```python
import torch

def _softmax(x, axis=-1):
    return torch.softmax(x, dim=axis)
def _gelu(x):
    return torch.nn.functional.gelu(x, approximate="tanh")
def _silu(x):
    return torch.nn.functional.silu(x)
def _sigmoid(x):
    return torch.sigmoid(x)
def _layernorm(x, axis=-1, eps=1e-5):
    m = x.mean(dim=axis, keepdim=True)
    v = x.var(dim=axis, keepdim=True, unbiased=False)
    return (x - m) / torch.sqrt(v + eps)
def _scatter_add(tgt, idx, src, axis=0):
    return tgt.clone().index_add_(axis, idx, src)
def _segment_sum(src, seg, n):
    out = torch.zeros((n,) + src.shape[1:], dtype=src.dtype)
    return out.index_add_(0, seg, src)
def _pad(x, pw):
    flat = tuple(v for pair in reversed(pw) for v in pair)
    return torch.nn.functional.pad(x, flat)

kernel_name = 'gated_mix__mha_block__glu_gated_geglu__prompt'

def setup_inputs():

    _w = (lambda a: (lambda t: t.to(torch.bfloat16) if t.is_floating_point() else t)(torch.as_tensor(a)))
    def _A_setup():
        B, S, D, H = 1, 2048, 640, 32
        return {
            "x": _w((lambda *s: torch.randn(*s, dtype=torch.bfloat16) * 0.05)(B, S, D)),
            "wqkv": _w((lambda *s: torch.randn(*s, dtype=torch.bfloat16) * 0.8)(D, 3 * D)),
            "wo": _w((lambda *s: torch.randn(*s, dtype=torch.bfloat16) * 0.05)(D, D)),
        }
    _A_in = _A_setup()

    def _B_setup():
        B, S, Dm, Df = 1, 2048, 640, 1536
        return {
            "x": _w((lambda *s: torch.randn(*s, dtype=torch.bfloat16) * 0.05)(B, S, Dm)),
            "w_gate": _w((lambda *s: torch.randn(*s, dtype=torch.bfloat16) * 3.2)(Dm, Df) * (Dm ** -0.5)),
            "w_up": _w((lambda *s: torch.randn(*s, dtype=torch.bfloat16) * 3.2)(Dm, Df) * (Dm ** -0.5)),
            "w_down": _w((lambda *s: torch.randn(*s, dtype=torch.bfloat16) * 3.2)(Df, Dm) * (Df ** -0.5)),
        }
    _B_in = _B_setup()

    return {
        "A_x": _A_in["x"],
        "A_wqkv": _A_in["wqkv"],
        "A_wo": _A_in["wo"],
        "B_x": _B_in["x"],
        "B_w_gate": _B_in["w_gate"],
        "B_w_up": _B_in["w_up"],
        "B_w_down": _B_in["w_down"],
        "gate_w": _w((lambda *s: torch.randn(*s, dtype=torch.bfloat16) * 0.05)(640) * 16.0),
    }

def reference(A_x, A_wqkv, A_wo, B_x, B_w_gate, B_w_up, B_w_down, gate_w):
    def _A_ref(x, wqkv, wo):
        B, S, D = x.shape
        H = 32
        Dh = D // H
        qkv = (lambda x, *d: x.permute(*d))((x @ wqkv).reshape(B, S, 3, H, Dh), 2, 0, 3, 1, 4)
        q, k, v = qkv[0], qkv[1], qkv[2]
        scores = torch.einsum("bhqd,bhkd->bhqk", q, k) * (Dh ** -0.5)
        p = _softmax(scores, axis=-1)
        o = torch.einsum("bhqk,bhkd->bhqd", p, v)
        return (lambda x, *d: x.permute(*d))(o, 0, 2, 1, 3).reshape(B, S, D) @ wo

    def _B_ref(x, w_gate, w_up, w_down):
        g = torch.einsum("bsd,df->bsf", x, w_gate)
        u = torch.einsum("bsd,df->bsf", x, w_up)
        h = _gelu(g) * u
        return torch.einsum("bsf,fd->bsd", h, w_down)

    x = A_x
    g = _sigmoid((x * gate_w).sum(-1, keepdims=True))
    a = _A_ref(x, A_wqkv, A_wo)
    b = _B_ref(x, B_w_gate, B_w_up, B_w_down)
    return g * a + (1 - g) * b
```

```python
class Asm:
    def __init__(self):
        self.lines = []
        self.uid = 0
    def __call__(self, s=""):
        for l in s.split("\n"):
            self.lines.append(l.rstrip())
    def label(self, name):
        self.lines.append(name + ":")
    def c(self, s):
        self.lines.append("    ; " + s)
    def new(self, prefix="L"):
        self.uid += 1
        return f"{prefix}_{self.uid}"
    def text(self):
        out = []
        for l in self.lines:
            if l.endswith(":") or l.startswith(".") or l.startswith(";") or l.startswith(" ") or l == "":
                out.append(l)
            else:
                out.append("    " + l)
        return "\n".join(out) + "\n"

def vr(a, n=1):
    return f"v{a}" if n == 1 else f"v[{a}:{a+n-1}]"
def sr(a, n=1):
    return f"s{a}" if n == 1 else f"s[{a}:{a+n-1}]"

def kernel_header(A, name):
    A(".text")
    A(f".globl {name}")
    A(".p2align 8")
    A(f".type {name},@function")
    A.label(name)

def kernel_desc(A, name, vgpr, sgpr=102, accum=None):
    if accum is None:
        accum = (vgpr + 3)//4*4
    A('.section .rodata,"a"')
    A(".p2align 6")
    A(f".amdhsa_kernel {name}")
    A(f"  .amdhsa_next_free_vgpr {vgpr}")
    A(f"  .amdhsa_next_free_sgpr {sgpr}")
    A(f"  .amdhsa_accum_offset {accum}")
    A("  .amdhsa_group_segment_fixed_size 0")
    A("  .amdhsa_kernarg_size 88")
    A("  .amdhsa_user_sgpr_count 2")
    A("  .amdhsa_user_sgpr_kernarg_segment_ptr 1")
    A("  .amdhsa_system_sgpr_workgroup_id_x 1")
    A("  .amdhsa_float_denorm_mode_32 3")
    A(".end_amdhsa_kernel")
```

```python
from asmlib import *
from layout import *

STAGE = 53376
WOFF = 32768
UOFF = 10368
K1_LDS = 3*STAGE

def gen_k1(A, name):
    kernel_header(A, name)
    sX, sWQ, sWO, sWG, sWU, sWD, sGW, sWS = 4, 6, 8, 10, 12, 14, 16, 18
    sRB, sCB, sW, sT = 20, 21, 22, 23
    sT2, sT3 = 24, 25
    sRS = 26
    sCG, sCU = 27, 28
    sTYPE = 29
    sNU = 30
    sU0 = 31
    SRD_X, SRD_W, SRD_WS = 32, 36, 40
    sBUF = 44; sXO = 45; sWO_ = 46; sCNT = 47
    sHM = 48
    sH = 52
    sSC = 60
    sDP, sDN = 84, 85
    A("s_cmp_ge_u32 s2, 256")
    A(f"s_cbranch_scc1 {name}_end")
    A(f"s_load_dwordx2 {sr(sX,2)}, s[0:1], {KA_X}")
    A(f"s_load_dwordx2 {sr(sWQ,2)}, s[0:1], {KA_WQKV}")
    A(f"s_load_dwordx2 {sr(sWO,2)}, s[0:1], {KA_WO}")
    A(f"s_load_dwordx2 {sr(sWG,2)}, s[0:1], {KA_WG}")
    A(f"s_load_dwordx2 {sr(sWU,2)}, s[0:1], {KA_WU}")
    A(f"s_load_dwordx2 {sr(sWD,2)}, s[0:1], {KA_WD}")
    A(f"s_load_dwordx2 {sr(sGW,2)}, s[0:1], {KA_GW}")
    A(f"s_load_dwordx2 {sr(sWS,2)}, s[0:1], {KA_WS}")
    A.c("decode: xcd = id&7, j = id>>3; rb = 4*(xcd&1) + (j&3); cb = 8*(xcd>>1) + (j>>2)")
    A(f"s_and_b32 s{sT}, s2, 1")
    A(f"s_lshl_b32 s{sT}, s{sT}, 2")
    A(f"s_lshr_b32 s{sT2}, s2, 3")
    A(f"s_and_b32 s{sT3}, s{sT2}, 3")
    A(f"s_add_u32 s{sRB}, s{sT}, s{sT3}")
    A(f"s_and_b32 s{sT}, s2, 6")
    A(f"s_lshl_b32 s{sT}, s{sT}, 2")
    A(f"s_lshr_b32 s{sT2}, s{sT2}, 2")
    A(f"s_add_u32 s{sCB}, s{sT}, s{sT2}")
    A("v_lshrrev_b32 v1, 6, v0")
    A("v_and_b32 v2, 63, v0")
    A(f"v_readfirstlane_b32 s{sW}, v1")
    A.c("block params")
    A(f"s_cmp_ge_u32 s{sCB}, 12")
    A(f"s_cbranch_scc1 {name}_ffn_params")
    A(f"s_movk_i32 s{sRS}, 3840")
    A(f"s_mul_i32 s{sCG}, s{sCB}, 160")
    A(f"s_add_u32 s{sCU}, s{sCG}, 80")
    A(f"s_lshr_b32 s{sTYPE}, s{sCB}, 2")
    A(f"s_mov_b32 s{sNU}, 5")
    A(f"s_mov_b32 s{sU0}, 0")
    A("s_waitcnt lgkmcnt(0)")
    A(f"s_mov_b64 {sr(sWG,2)}, {sr(sWQ,2)}")
    A(f"s_mov_b64 {sr(sWU,2)}, {sr(sWQ,2)}")
    A(f"s_branch {name}_params_done")
    A.label(f"{name}_ffn_params")
    A(f"s_movk_i32 s{sRS}, 3072")
    A(f"s_sub_u32 s{sT}, s{sCB}, 12")
    A(f"s_mul_i32 s{sU0}, s{sT}, 5")
    A(f"s_mov_b32 s{sNU}, 5")
    A(f"s_cmp_lt_u32 s{sT}, 16")
    A(f"s_cbranch_scc1 {name}_ffn_p2")
    A(f"s_lshl_b32 s{sU0}, s{sT}, 2")
    A(f"s_add_u32 s{sU0}, s{sU0}, 16")
    A(f"s_mov_b32 s{sNU}, 4")
    A.label(f"{name}_ffn_p2")
    A(f"s_lshl_b32 s{sCG}, s{sU0}, 4")
    A(f"s_mov_b32 s{sCU}, s{sCG}")
    A(f"s_mov_b32 s{sTYPE}, 3")
    A("s_waitcnt lgkmcnt(0)")
    A.label(f"{name}_params_done")
    A.c("SRD for ws")
    A(f"s_mov_b32 s{SRD_WS}, s{sWS}")
    A(f"s_and_b32 s{SRD_WS+1}, s{sWS+1}, 0xffff")
    A(f"s_mov_b32 s{SRD_WS+2}, {WS_SIZE}")
    A(f"s_mov_b32 s{SRD_WS+3}, 0x20000")
    A(f"s_cmp_ge_u32 s{sW}, 4")
    A(f"s_cbranch_scc1 {name}_loader")

    ACC = 96
    def acc(tt, mt): return ACC + (tt*5 + mt)*16
    FA = [8, 36]
    FB = [28, 56]
    vXA = 64
    vWA = 68
    A.c("compute wave: LDS read addresses")
    A("v_and_b32 v3, 31, v2")
    A("v_lshrrev_b32 v4, 5, v2")
    A(f"s_lshl_b32 s{sT}, s{sW}, 6")
    A(f"v_add_u32 v5, s{sT}, v3")
    A("v_lshlrev_b32 v5, 7, v5")
    A("v_bfe_u32 v6, v3, 1, 3")
    for sp in range(4):
        A(f"v_or_b32 v7, {2*sp}, v4")
        A("v_xor_b32 v7, v7, v6")
        A(f"v_lshl_add_u32 v{vXA+sp}, v7, 4, v5")
    A("v_bfe_u32 v5, v2, 4, 1")
    A(f"v_mul_u32_u24 v5, {UOFF}, v5")
    A("v_bfe_u32 v6, v2, 2, 2")
    A("v_lshl_add_u32 v6, v4, 3, v6")
    A("v_mul_u32_u24 v6, 160, v6")
    A("v_and_b32 v7, 3, v2")
    A("v_lshlrev_b32 v7, 3, v7")
    A("v_add3_u32 v5, v5, v6, v7")
    A(f"v_add_u32 v{vWA}, {WOFF}, v5")
    for r in range(ACC, ACC+160):
        A(f"v_mov_b32 v{r}, 0")

    def reads(sp, st):
        L = []
        for tt in range(2):
            L.append(f"ds_read_b128 {vr(FB[st]+4*tt,4)}, v{vXA+sp} offset:{tt*4096}")
        for mt in range(5):
            for half in range(2):
                L.append(f"ds_read_b64_tr_b16 {vr(FA[st]+4*mt+2*half,2)}, v{vWA} offset:{sp*2560+mt*32+half*640}")
        return [L[0], L[2], L[3], L[1]] + L[4:]
    def mfmas(st, swapped):
        L = []
        for mt in range(5):
            for tt in range(2):
                a, b = vr(FA[st]+4*mt,4), vr(FB[st]+4*tt,4)
                if swapped: a, b = b, a
                L.append(f"v_mfma_f32_32x32x16_bf16 {vr(acc(tt,mt),16)}, {a}, {b}, {vr(acc(tt,mt),16)}")
        return L
    def mainloop(swapped, tag):
        A("s_barrier")
        for l in reads(0, 0): A(l)
        A(f"s_mov_b32 s{sCNT}, 0")
        A(f"s_mov_b32 s{sBUF}, 0")
        A(f"s_mov_b32 s{sDP}, {STAGE}")
        A(f"s_mov_b32 s{sDN}, {(-2*STAGE) & 0xffffffff}")
        A(".p2align 6")
        A.label(f"{name}_loop_{tag}")
        for sp in range(4):
            cur = sp & 1; nxt = cur ^ 1
            M = mfmas(cur, swapped)
            A("s_waitcnt lgkmcnt(0)")
            if sp < 3:
                R = reads(sp+1, nxt)
                k = 0
                for i, m in enumerate(M):
                    A(m)
                    for l in R[k:k+2]: A(l)
                    k += 2
            else:
                A(M[0]); A(M[1])
                A(f"s_add_u32 s{sBUF}, s{sBUF}, 1")
                A(f"s_cmp_eq_u32 s{sBUF}, 3")
                A(f"s_cselect_b32 s{sT}, s{sDN}, s{sDP}")
                A(f"s_cselect_b32 s{sBUF}, 0, s{sBUF}")
                A("s_barrier")
                for j in range(4): A(f"v_add_u32 v{vXA+j}, s{sT}, v{vXA+j}")
                A(f"v_add_u32 v{vWA}, s{sT}, v{vWA}")
                R = reads(0, nxt)
                k = 0
                for m in M[2:]:
                    A(m)
                    for l in R[k:k+2]: A(l)
                    k += 2
        A(f"s_add_u32 s{sCNT}, s{sCNT}, 1")
        A(f"s_cmp_lt_u32 s{sCNT}, 10")
        A(f"s_cbranch_scc1 {name}_loop_{tag}")
        A("s_waitcnt lgkmcnt(0)")
        A("s_nop 15")
    A(f"s_cmp_eq_u32 s{sTYPE}, 2")
    A(f"s_cbranch_scc1 {name}_vblock")
    mainloop(False, "n")
    A(f"s_cmp_eq_u32 s{sTYPE}, 3")
    A(f"s_cbranch_scc1 {name}_epi_ffn")

    A.c("epilogue Q/K")
    vT16, vT8, vTb, vTc, vHm, vAd, vTmp = 8, 9, 10, 11, 12, 13, 14
    D0 = 16
    A("v_and_b32 v3, 31, v2")
    A(f"v_lshlrev_b32 v{vT16}, 4, v3")
    A(f"v_lshlrev_b32 v{vT8}, 3, v3")
    A("v_cmp_lt_u32 vcc, 31, v2")
    A("s_nop 1")
    A(f"v_cndmask_b32 v{vTb}, v{vT8}, v{vT16}, vcc")
    A(f"v_cndmask_b32 v{vTc}, v{vT16}, v{vT8}, vcc")
    A(f"v_cndmask_b32 v{vHm}, 0, -1, vcc")
    sBASE, sHS, sD = 61, 62, 63
    A(f"s_and_b32 s{sT}, s{sCB}, 3")
    A(f"s_cmp_eq_u32 s{sTYPE}, 0")
    A(f"s_cbranch_scc0 {name}_kparams")
    A(f"s_mov_b32 s{sHS}, {HS_Q}")
    A(f"s_mul_i32 s{sBASE}, s{sT}, {8*HS_Q}")
    A(f"s_lshl_b32 s{sT2}, s{sRB}, 3")
    A(f"s_lshl_b32 s{sT3}, s{sW}, 1")
    A(f"s_add_u32 s{sT2}, s{sT2}, s{sT3}")
    A(f"s_mul_i32 s{sT2}, s{sT2}, 1280")
    A(f"s_add_u32 s{sBASE}, s{sBASE}, s{sT2}")
    A(f"s_add_u32 s{sBASE}, s{sBASE}, {QF}")
    A(f"s_mov_b32 s{sSC}, 0x3ea52b5c")
    A(f"s_branch {name}_qk_go")
    A.label(f"{name}_kparams")
    A(f"s_mov_b32 s{sHS}, {HS_KV}")
    A(f"s_mul_i32 s{sBASE}, s{sT}, {8*HS_KV}")
    A(f"s_lshl_b32 s{sT2}, s{sRB}, 1")
    A(f"s_lshr_b32 s{sT3}, s{sW}, 1")
    A(f"s_add_u32 s{sT2}, s{sT2}, s{sT3}")
    A(f"s_mul_i32 s{sT2}, s{sT2}, {CH}")
    A(f"s_add_u32 s{sBASE}, s{sBASE}, s{sT2}")
    A(f"s_and_b32 s{sT3}, s{sW}, 1")
    A(f"s_mul_i32 s{sT3}, s{sT3}, 2560")
    A(f"s_add_u32 s{sBASE}, s{sBASE}, s{sT3}")
    A(f"s_add_u32 s{sBASE}, s{sBASE}, {KV}")
    A(f"s_mov_b32 s{sSC}, 1.0")
    A.label(f"{name}_qk_go")
    A(f"s_mov_b32 s{sH}, 0")
    for i in range(1, 8):
        A(f"s_add_u32 s{sH+i}, s{sH+i-1}, s{sHS}")
    def offp(p): return (p>>1)*512 + (p&1)*8 if p < 4 else 1024
    for mt in range(5):
        for i in range(4):
            q0 = (0 if i < 2 else 20) + 4*mt + 2*(i&1)
            q1 = q0 + 1
            h0, p0 = divmod(q0, 5); h1, p1 = divmod(q1, 5)
            c0, c1 = offp(p0), offp(p1)
            vT = vTb if p0 == 4 else (vTc if p1 == 4 else vT16)
            A(f"s_add_u32 s{sT}, s{sH+h0}, {c0}")
            if h0 == h1:
                A(f"v_and_b32 v{vTmp}, {(c1-c0) & 0xffffffff}, v{vHm}")
            else:
                A(f"s_add_u32 s{sD}, s{sHS}, {(c1-c0) & 0xffffffff}")
                A(f"v_and_b32 v{vTmp}, s{sD}, v{vHm}")
            A(f"v_add3_u32 v{vAd}, v{vT}, v{vTmp}, s{sT}")
            for tt in range(2):
                a = acc(tt, mt) + 4*i
                d = D0 + 4*tt
                for j in range(4):
                    A(f"v_mul_f32 v{a+j}, s{sSC}, v{a+j}")
                A(f"v_cvt_pk_bf16_f32 v{d}, v{a}, v{a+1}")
                A(f"v_cvt_pk_bf16_f32 v{d+1}, v{a+2}, v{a+3}")
                A(f"buffer_store_dwordx2 {vr(d,2)}, v{vAd}, {sr(SRD_WS,4)}, s{sBASE} offen offset:{tt*1280}")
            A("s_nop 0")
    A(f"s_branch {name}_end")

    A.label(f"{name}_epi_ffn")
    A.c("epilogue FFN: h = gelu_tanh(g) * u")
    vC0, vC1, vONE = 8, 10, 12
    vTt, vP, vE, vGU = 14, 16, 18, 20
    vOUT = 24
    import math
    c0 = -2.0*math.sqrt(2.0/math.pi)*math.log2(math.e)
    c1 = c0*0.044715
    import struct
    def f2u(f): return struct.unpack("<I", struct.pack("<f", f))[0]
    for j in range(2):
        A(f"v_mov_b32 v{vC0+j}, {hex(f2u(c0))}")
        A(f"v_mov_b32 v{vC1+j}, {hex(f2u(c1))}")
        A(f"v_mov_b32 v{vONE+j}, 1.0")
    A(f"v_lshlrev_b32 v3, 4, v2")
    A(f"s_lshl_b32 s{sT2}, s{sRB}, 3")
    A(f"s_lshl_b32 s{sT3}, s{sW}, 1")
    A(f"s_add_u32 s{sT2}, s{sT2}, s{sT3}")
    A(f"s_mul_i32 s{sT2}, s{sT2}, {96*1024}")
    A(f"s_lshl_b32 s{sT3}, s{sU0}, 10")
    A(f"s_add_u32 s{sT2}, s{sT2}, s{sT3}")
    A(f"s_add_u32 s{sT2}, s{sT2}, {HF}")
    A(f"s_add_u32 s{sT3}, s{sT2}, {96*1024}")
    n = 0
    for mt in range(5):
        if mt == 4:
            A(f"s_cmp_eq_u32 s{sNU}, 4")
            A(f"s_cbranch_scc1 {name}_end")
        for tt in range(2):
            a = acc(tt, mt)
            o = vOUT + 4*(n & 1); n += 1
            for pr in range(4):
                g = a + 2*pr; u = a + 8 + 2*pr
                A(f"v_pk_mul_f32 {vr(vTt,2)}, {vr(g,2)}, {vr(g,2)}")
                A(f"v_pk_mul_f32 {vr(vGU,2)}, {vr(g,2)}, {vr(u,2)}")
                A(f"v_pk_fma_f32 {vr(vP,2)}, {vr(vTt,2)}, {vr(vC1,2)}, {vr(vC0,2)}")
                A(f"v_pk_mul_f32 {vr(vP,2)}, {vr(vP,2)}, {vr(g,2)}")
                A(f"v_exp_f32 v{vE}, v{vP}")
                A(f"v_exp_f32 v{vE+1}, v{vP+1}")
                A("s_nop 0")
                A(f"v_pk_add_f32 {vr(vE,2)}, {vr(vE,2)}, {vr(vONE,2)}")
                A(f"v_rcp_f32 v{vE}, v{vE}")
                A(f"v_rcp_f32 v{vE+1}, v{vE+1}")
                A("s_nop 0")
                A(f"v_pk_mul_f32 {vr(vGU,2)}, {vr(vGU,2)}, {vr(vE,2)}")
                A(f"v_cvt_pk_bf16_f32 v{o+pr}, v{vGU}, v{vGU+1}")
            A(f"buffer_store_dwordx4 {vr(o,4)}, v3, {sr(SRD_WS,4)}, s{sT2 if tt == 0 else sT3} offen offset:{mt*1024 if mt*1024 < 4096 else 0}" if mt < 4 else
              f"s_add_u32 s{sT}, s{sT2 if tt == 0 else sT3}, 4096\n" + f"buffer_store_dwordx4 {vr(o,4)}, v3, {sr(SRD_WS,4)}, s{sT} offen")
    A(f"s_branch {name}_end")

    A.label(f"{name}_vblock")
    mainloop(True, "v")
    A.c("epilogue V")
    vCol, vHead, vD, vAd2 = 8, 9, 10, 11
    vOnes = 12
    D1 = 16
    for j in range(4): A(f"v_mov_b32 v{vOnes+j}, 0x3f803f80")
    A("v_and_b32 v3, 31, v2")
    A("v_lshrrev_b32 v4, 5, v2")
    A("v_bfe_u32 v5, v2, 4, 1")
    A("v_lshl_add_u32 v3, v5, 6, v3")
    A("v_lshlrev_b32 v4, 9, v4")
    A(f"s_sub_u32 s{sT}, s{sCB}, 8")
    A(f"s_mul_i32 s{sBASE}, s{sT}, {8*HS_KV}")
    A(f"s_lshl_b32 s{sT2}, s{sRB}, 1")
    A(f"s_lshr_b32 s{sT3}, s{sW}, 1")
    A(f"s_add_u32 s{sT2}, s{sT2}, s{sT3}")
    A(f"s_mul_i32 s{sT2}, s{sT2}, {CH}")
    A(f"s_add_u32 s{sBASE}, s{sBASE}, s{sT2}")
    A(f"s_and_b32 s{sT3}, s{sW}, 1")
    A(f"s_lshl_b32 s{sT3}, s{sT3}, 12")
    A(f"s_add_u32 s{sBASE}, s{sBASE}, s{sT3}")
    A(f"s_add_u32 s{sBASE}, s{sBASE}, {KV+5120}")
    A(f"s_mov_b32 s{sHS}, {HS_KV}")
    for mt in range(5):
        A(f"v_add_u32 v{vCol}, {16*mt}, v3")
        A(f"v_mul_u32_u24 v{vHead}, 3277, v{vCol}")
        A(f"v_lshrrev_b32 v{vHead}, 16, v{vHead}")
        A(f"v_mul_u32_u24 v{vD}, 20, v{vHead}")
        A(f"v_sub_u32 v{vD}, v{vCol}, v{vD}")
        A(f"v_mul_lo_u32 v{vAd2}, v{vHead}, s{sHS}")
        A(f"v_lshl_add_u32 v{vAd2}, v{vD}, 4, v{vAd2}")
        A(f"v_add_u32 v{vAd2}, v{vAd2}, v4")
        for tt in range(2):
            for f in range(2):
                a = acc(tt, mt) + 8*f
                d = D1 + 4*(2*tt+f)
                for j in range(4):
                    A(f"v_cvt_pk_bf16_f32 v{d+j}, v{a+2*j}, v{a+2*j+1}")
                A(f"buffer_store_dwordx4 {vr(d,4)}, v{vAd2}, {sr(SRD_WS,4)}, s{sBASE} offen offset:{tt*2048+f*1024}")
        A(f"v_cmp_eq_u32 vcc, 0, v{vD}")
        A(f"s_and_saveexec_b64 s[50:51], vcc")
        A(f"s_cbranch_execz {name}_noones_{mt}")
        for tt in range(2):
            for f in range(2):
                A(f"buffer_store_dwordx4 {vr(vOnes,4)}, v{vAd2}, {sr(SRD_WS,4)}, s{sBASE} offen offset:{tt*2048+f*1024+320}")
        A.label(f"{name}_noones_{mt}")
        A("s_mov_b64 exec, s[50:51]")
        A("s_nop 1")
    A(f"s_branch {name}_end")

    A.label(f"{name}_loader")
    vXO = 8
    vWO = 16
    A(f"s_sub_u32 s{sW}, s{sW}, 4")
    A.c("SRD x")
    A(f"s_mov_b32 s{SRD_X}, s{sX}")
    A(f"s_and_b32 s{SRD_X+1}, s{sX+1}, 0xffff")
    A(f"s_mov_b32 s{SRD_X+2}, {2048*1280}")
    A(f"s_mov_b32 s{SRD_X+3}, 0x20000")
    A.c("SRD w (G part for loaders 0,1; U part for 2,3)")
    A(f"s_cmp_ge_u32 s{sW}, 2")
    A(f"s_cselect_b32 s{SRD_W}, s{sWU}, s{sWG}")
    A(f"s_cselect_b32 s{SRD_W+1}, s{sWU+1}, s{sWG+1}")
    A(f"s_cselect_b32 s{sT}, s{sCU}, s{sCG}")
    A(f"s_and_b32 s{SRD_W+1}, s{SRD_W+1}, 0xffff")
    A(f"s_mul_i32 s{SRD_W+2}, s{sRS}, 640")
    A(f"s_mov_b32 s{SRD_W+3}, 0x20000")
    A(f"s_lshl_b32 s{sWO_}, s{sT}, 1")
    A(f"s_mul_i32 s{sXO}, s{sRB}, {256*1280}")
    A("v_lshrrev_b32 v3, 3, v2")
    A("v_lshrrev_b32 v4, 4, v2")
    A("v_and_b32 v5, 7, v2")
    A("v_xor_b32 v5, v5, v4")
    A("v_xor_b32 v6, 4, v5")
    A(f"s_lshl_b32 s{sT}, s{sW}, 6")
    A(f"v_add_u32 v3, s{sT}, v3")
    A(f"s_movk_i32 s{sT2}, 1280")
    A(f"v_mul_lo_u32 v3, v3, s{sT2}")
    A("v_lshl_add_u32 v5, v5, 4, v3")
    A("v_lshl_add_u32 v6, v6, 4, v3")
    for j in range(8):
        A(f"v_add_u32 v{vXO+j}, {j*10240}, v{5 if j % 2 == 0 else 6}")
    A(f"s_and_b32 s{sT}, s{sW}, 1")
    A(f"s_mul_i32 s{sT}, s{sT}, 320")
    for i in range(5):
        A(f"v_add_u32 v3, s{sT}, v2")
        A(f"v_add_u32 v3, {64*i}, v3")
        A("v_mul_u32_u24 v4, 6554, v3")
        A("v_lshrrev_b32 v4, 16, v4")
        A("v_mul_u32_u24 v5, 10, v4")
        A("v_sub_u32 v5, v3, v5")
        A(f"v_mul_lo_u32 v4, v4, s{sRS}")
        A(f"v_lshl_add_u32 v{vWO+i}, v5, 4, v4")
    sLX, sLW, sWSTEP = 61, 62, 63
    A(f"s_lshl_b32 s{sLX}, s{sW}, 13")
    A(f"s_lshr_b32 s{sT}, s{sW}, 1")
    A(f"s_mul_i32 s{sLW}, s{sT}, {UOFF}")
    A(f"s_and_b32 s{sT}, s{sW}, 1")
    A(f"s_mul_i32 s{sT}, s{sT}, 5120")
    A(f"s_add_u32 s{sLW}, s{sLW}, s{sT}")
    A(f"s_add_u32 s{sLW}, s{sLW}, {WOFF}")
    A(f"s_lshl_b32 s{sWSTEP}, s{sRS}, 6")
    def issue_stage():
        A(f"s_add_u32 s{sT}, s{sBUF}, s{sLW}")
        for i in range(5):
            A(f"s_add_u32 m0, s{sT}, {i*1024}")
            A("s_nop 0")
            A(f"buffer_load_dwordx4 v{vWO+i}, {sr(SRD_W,4)}, s{sWO_} offen lds")
        A(f"s_add_u32 s{sT}, s{sBUF}, s{sLX}")
        for j in range(8):
            A(f"s_add_u32 m0, s{sT}, {j*1024}")
            A("s_nop 0")
            A(f"buffer_load_dwordx4 v{vXO+j}, {sr(SRD_X,4)}, s{sXO} offen lds")
        A(f"s_add_u32 s{sXO}, s{sXO}, 128")
        A(f"s_add_u32 s{sWO_}, s{sWO_}, s{sWSTEP}")
        A(f"s_add_u32 s{sBUF}, s{sBUF}, {STAGE}")
        A(f"s_cmp_eq_u32 s{sBUF}, {3*STAGE}")
        A(f"s_cselect_b32 s{sBUF}, 0, s{sBUF}")
    A(f"s_mov_b32 s{sBUF}, 0")
    issue_stage(); issue_stage()
    A(f"s_mov_b32 s{sCNT}, 0")
    A.label(f"{name}_lloop")
    A("s_waitcnt vmcnt(13)")
    A("s_barrier")
    issue_stage()
    A(f"s_add_u32 s{sCNT}, s{sCNT}, 1")
    A(f"s_cmp_lt_u32 s{sCNT}, 8")
    A(f"s_cbranch_scc1 {name}_lloop")
    sL = 64
    A(f"s_lshl_b32 s{sL}, s2, 2")
    A(f"s_add_u32 s{sL}, s{sL}, s{sW}")
    SRD_D, SRD_O, SRD_G = 68, 72, 76
    for srd, p, nb in ((SRD_D, sWD, 1536*1280), (SRD_O, sWO, 640*1280), (SRD_G, sGW, 1280)):
        A(f"s_mov_b32 s{srd}, s{p}")
        A(f"s_and_b32 s{srd+1}, s{p+1}, 0xffff")
        A(f"s_mov_b32 s{srd+2}, {nb}")
        A(f"s_mov_b32 s{srd+3}, 0x20000")
    A("v_lshrrev_b32 v3, 2, v2")
    A("v_mul_u32_u24 v3, 1280, v3")
    A("v_and_b32 v4, 3, v2")
    A("v_lshl_add_u32 v3, v4, 4, v3")
    vPW = 24
    sN = 80
    for m in range(3):
        A(f"s_add_u32 s{sN+m}, s{sL}, {1024*m}")
        A(f"s_cmp_ge_u32 s{sN+m}, 1920")
        A(f"s_cbranch_scc1 {name}_pl_o{m}")
        A(f"s_mul_i32 s{sT}, s{sN+m}, 683")
        A(f"s_lshr_b32 s{sT}, s{sT}, 16")
        A(f"s_mul_i32 s{sT2}, s{sT}, 96")
        A(f"s_sub_u32 s{sT2}, s{sN+m}, s{sT2}")
        A(f"s_mul_i32 s{sT2}, s{sT2}, {16*1280}")
        A(f"s_lshl_b32 s{sT}, s{sT}, 6")
        A(f"s_add_u32 s{sT}, s{sT}, s{sT2}")
        A(f"buffer_load_dwordx4 {vr(vPW+4*m,4)}, v3, {sr(SRD_D,4)}, s{sT} offen")
        A(f"s_branch {name}_pl_n{m}")
        A.label(f"{name}_pl_o{m}")
        A(f"s_sub_u32 s{sT3}, s{sN+m}, 1920")
        A(f"s_mul_i32 s{sT}, s{sT3}, 1639")
        A(f"s_lshr_b32 s{sT}, s{sT}, 16")
        A(f"s_mul_i32 s{sT2}, s{sT}, 40")
        A(f"s_sub_u32 s{sT2}, s{sT3}, s{sT2}")
        A(f"s_mul_i32 s{sT2}, s{sT2}, {16*1280}")
        A(f"s_lshl_b32 s{sT}, s{sT}, 6")
        A(f"s_add_u32 s{sT}, s{sT}, s{sT2}")
        A.c("blocks past 2720 read past the end of Wo -> SRD returns 0, never stored")
        A(f"buffer_load_dwordx4 {vr(vPW+4*m,4)}, v3, {sr(SRD_O,4)}, s{sT} offen")
        A.label(f"{name}_pl_n{m}")
    vGX, vGW = 40, 52
    A("v_and_b32 v21, 31, v2")
    A("v_lshlrev_b32 v21, 4, v21")
    A("v_lshrrev_b32 v22, 5, v2")
    A(f"s_lshl_b32 s{sT}, s{sL}, 1")
    A(f"v_add_u32 v22, s{sT}, v22")
    A("v_mul_u32_u24 v5, 1280, v22")
    A("v_add_u32 v5, v5, v21")
    A("v_and_b32 v6, 16, v2")
    A("v_cmp_ne_u32 vcc, 0, v6")
    A(f"v_mov_b32 v7, 0x7ff00000")
    A("v_add_u32 v8, 1024, v5")
    A("v_add_u32 v9, 1024, v21")
    A("v_cndmask_b32 v8, v8, v7, vcc")
    A("v_cndmask_b32 v9, v9, v7, vcc")
    A(f"buffer_load_dwordx4 {vr(vGX,4)}, v5, {sr(SRD_X,4)}, 0 offen")
    A(f"buffer_load_dwordx4 {vr(vGX+4,4)}, v5, {sr(SRD_X,4)}, 0 offen offset:512")
    A(f"buffer_load_dwordx4 {vr(vGX+8,4)}, v8, {sr(SRD_X,4)}, 0 offen")
    A(f"buffer_load_dwordx4 {vr(vGW,4)}, v21, {sr(SRD_G,4)}, 0 offen")
    A(f"buffer_load_dwordx4 {vr(vGW+4,4)}, v21, {sr(SRD_G,4)}, 0 offen offset:512")
    A(f"buffer_load_dwordx4 {vr(vGW+8,4)}, v9, {sr(SRD_G,4)}, 0 offen")
    A("s_waitcnt vmcnt(22)")
    A("s_barrier")
    A("s_waitcnt vmcnt(9)")
    A("s_barrier")
    A("s_barrier")
    A("s_waitcnt vmcnt(0)")
    A.c("side job: gate g = sigmoid(x . gate_w)")
    A("v_mov_b32 v10, 0")
    for j in range(12):
        A(f"v_dot2c_f32_bf16 v10, v{vGX+j}, v{vGW+j}")
    A("s_nop 3")
    for sh in (1, 2, 4, 8):
        A(f"v_add_f32_dpp v10, v10, v10 row_shr:{sh} row_mask:0xf bank_mask:0xf bound_ctrl:0")
        A("s_nop 1")
    A("v_add_f32_dpp v10, v10, v10 row_bcast:15 row_mask:0xa bank_mask:0xf")
    A("s_nop 1")
    A("v_mul_f32 v10, 0xbfb8aa3b, v10")
    A("v_exp_f32 v10, v10")
    A("s_nop 0")
    A("v_add_f32 v10, 1.0, v10")
    A("v_rcp_f32 v10, v10")
    A("v_lshlrev_b32 v22, 2, v22")
    A("v_and_b32 v6, 31, v2")
    A("v_cmp_eq_u32 vcc, 31, v6")
    A("s_and_saveexec_b64 s[50:51], vcc")
    A(f"s_cbranch_execz {name}_gate_done")
    A(f"s_mov_b32 s{sT}, {GG}")
    A(f"buffer_store_dword v10, v22, {sr(SRD_WS,4)}, s{sT} offen")
    A.label(f"{name}_gate_done")
    A("s_mov_b64 exec, s[50:51]")
    A.c("side job: transpose Wd / Wo blocks into MFMA A-fragment order (through LDS, ring is free now)")
    A("v_lshlrev_b32 v10, 4, v2")
    A(f"s_lshl_b32 s{sT}, s{sW}, 12")
    A(f"v_add_u32 v11, s{sT}, v10")
    for m in range(3):
        A(f"ds_write_b128 v11, {vr(vPW+4*m,4)} offset:{1024*m}")
    A("v_lshrrev_b32 v7, 5, v2")
    A("v_bfe_u32 v8, v2, 2, 2")
    A("v_bfe_u32 v9, v2, 4, 1")
    A("v_lshlrev_b32 v9, 5, v9")
    A("v_and_b32 v4, 3, v2")
    A("v_lshl_add_u32 v9, v4, 3, v9")
    A(f"v_add_u32 v9, s{sT}, v9")
    A("v_lshl_add_u32 v5, v7, 2, v8")
    A("v_lshl_add_u32 v5, v5, 6, v9")
    A("v_lshl_add_u32 v6, v7, 3, v8")
    A("v_lshl_add_u32 v6, v6, 6, v9")
    A("s_waitcnt lgkmcnt(0)")
    for m in range(3):
        if m == 2:
            A(f"s_cmp_ge_u32 s{sN+m}, 2720")
            A(f"s_cbranch_scc1 {name}_end")
        A(f"s_cmp_ge_u32 s{sN+m}, 1920")
        A(f"s_cbranch_scc1 {name}_pr_o{m}")
        A(f"ds_read_b64_tr_b16 {vr(12+4*m,2)}, v5 offset:{1024*m}")
        A(f"ds_read_b64_tr_b16 {vr(14+4*m,2)}, v5 offset:{1024*m+512}")
        A(f"s_branch {name}_pr_s{m}")
        A.label(f"{name}_pr_o{m}")
        A(f"ds_read_b64_tr_b16 {vr(12+4*m,2)}, v6 offset:{1024*m}")
        A(f"ds_read_b64_tr_b16 {vr(14+4*m,2)}, v6 offset:{1024*m+256}")
        A.label(f"{name}_pr_s{m}")
        A(f"s_lshl_b32 s{sT}, s{sN+m}, 10")
        A(f"s_add_u32 s{sT}, s{sT}, {WDF}")
        A("s_waitcnt lgkmcnt(0)")
        A(f"buffer_store_dwordx4 {vr(12+4*m,4)}, v10, {sr(SRD_WS,4)}, s{sT} offen")
    A.label(f"{name}_end")
    A("s_endpgm")
    return 256
```

```python
from asmlib import *
from layout import *

K2_LDS = 4*CH
K3_LDS = 81920

def ws_srd(A, srd, sWS):
    A(f"s_mov_b32 s{srd}, s{sWS}")
    A(f"s_and_b32 s{srd+1}, s{sWS+1}, 0xffff")
    A(f"s_mov_b32 s{srd+2}, {WS_SIZE}")
    A(f"s_mov_b32 s{srd+3}, 0x20000")

def fgemm(A, name, SRD, sA0, sB0, vOff, nsteps, NS, R, ACC, FR, rolled, sCNT, sT):
    def slot(s): return FR + (s % R)*24
    def load(s, which, imm):
        b = slot(s)
        if which < 5:
            return f"buffer_load_dwordx4 {vr(b+4*which,4)}, v{vOff}, {sr(SRD,4)}, s{sA0+which} offen offset:{imm}"
        return f"buffer_load_dwordx4 {vr(b+20,4)}, v{vOff}, {sr(SRD,4)}, s{sB0} offen offset:{imm}"
    def mf(s, mt):
        b = slot(s)
        d = vr(ACC+16*mt,16)
        return f"v_mfma_f32_32x32x16_bf16 {d}, {vr(b+4*mt,4)}, {vr(b+20,4)}, {d}"
    if not rolled:
        base = 0
        def imm_for(s):
            return (s - base)*1024
        issued = 0
        def issue(s):
            nonlocal base
            if s - base >= 4:
                A(f"v_add_u32 v{vOff}, 4096, v{vOff}")
                base += 4
            for w in (5, 0, 1, 2, 3, 4):
                A(load(s, w, imm_for(s)))
        for s in range(min(R, nsteps)):
            issue(s)
        for s in range(nsteps):
            left = min(nsteps-1, s+R-1) - s
            A(f"s_waitcnt vmcnt({6*left})")
            for mt in range(5): A(mf(s, mt))
            if s + R < nsteps:
                issue(s+R)
    else:
        assert nsteps % R == 0 and R <= 4
        for s in range(R):
            for w in (5, 0, 1, 2, 3, 4):
                A(load(s, w, s*1024))
        A(f"s_mov_b32 s{sCNT}, {nsteps//R - 1}")
        A.label(f"{name}_floop")
        A(f"v_add_u32 v{vOff}, {R*1024}, v{vOff}")
        for s in range(R):
            A(f"s_waitcnt vmcnt({6*(R-1)})")
            for mt in range(5):
                A(mf(s, mt))
                A(load(s, mt, s*1024))
            A(load(s, 5, s*1024))
        A(f"s_sub_u32 s{sCNT}, s{sCNT}, 1")
        A(f"s_cmp_lg_u32 s{sCNT}, 0")
        A(f"s_cbranch_scc1 {name}_floop")
        for s in range(R):
            A(f"s_waitcnt vmcnt({6*(R-1-s)})")
            for mt in range(5): A(mf(s, mt))

def reduce_round(A, ACC, mts, vW, vRd, SUM, vTmp):
    T = len(mts)
    for q in range(4):
        for t, mt in enumerate(mts):
            A(f"ds_write_b128 v{vW}, {vr(ACC+16*mt+4*q,4)} offset:{(q*T+t)*1024}")
    A("s_waitcnt lgkmcnt(0)")
    A("s_barrier")
    for t, mt in enumerate(mts):
        for s in range(4):
            A(f"ds_read_b128 {vr(vTmp+4*s,4)}, v{vRd} offset:{(s*4*T+t)*1024}")
        A("s_waitcnt lgkmcnt(0)")
        d = SUM + 4*mt
        for j in range(4):
            A(f"v_add_f32 v{d+j}, v{vTmp+j}, v{vTmp+4+j}")
            A(f"v_add_f32 v{vTmp+8+j}, v{vTmp+8+j}, v{vTmp+12+j}")
        for j in range(4):
            A(f"v_add_f32 v{d+j}, v{d+j}, v{vTmp+8+j}")

def gen_k2(A, name):
    kernel_header(A, name)
    sWS = 4; SRD = 8; sW = 12; sT, sT2, sT3 = 13, 14, 15
    A("s_cmp_ge_u32 s2, 768")
    A(f"s_cbranch_scc1 {name}_end")
    A(f"s_load_dwordx2 {sr(sWS,2)}, s[0:1], {KA_WS}")
    A("v_lshrrev_b32 v1, 6, v0")
    A("v_and_b32 v2, 63, v0")
    A(f"v_readfirstlane_b32 s{sW}, v1")
    A("s_waitcnt lgkmcnt(0)")
    ws_srd(A, SRD, sWS)
    A("s_cmp_ge_u32 s2, 512")
    A(f"s_cbranch_scc1 {name}_ffn2")
    sHEAD, sQT, sKV, sM0, sCNT, sC = 16, 17, 18, 19, 20, 21
    S = [16, 32]; P = 48; O = 56; Q16 = 72; Q4 = 76; K16 = 78; K4 = 82; V1 = 84; V2 = 88
    vL16, vK4a = 4, 5
    A(f"s_and_b32 s{sT}, s2, 7")
    A(f"s_lshl_b32 s{sT}, s{sT}, 2")
    A(f"s_lshr_b32 s{sT2}, s2, 3")
    A(f"s_and_b32 s{sT3}, s{sT2}, 3")
    A(f"s_add_u32 s{sHEAD}, s{sT}, s{sT3}")
    A(f"s_lshr_b32 s{sT2}, s{sT2}, 2")
    A(f"s_lshl_b32 s{sT2}, s{sT2}, 2")
    A(f"s_add_u32 s{sQT}, s{sT2}, s{sW}")
    A(f"v_lshlrev_b32 v{vL16}, 4, v2")
    A("v_and_b32 v3, 31, v2")
    A(f"v_lshlrev_b32 v{vK4a}, 3, v3")
    A(f"v_add_u32 v{vK4a}, 1024, v{vK4a}")
    A(f"s_mul_i32 s{sKV}, s{sHEAD}, {HS_KV}")
    A(f"s_mul_i32 s{sM0}, s{sW}, 3072")
    A(f"s_add_u32 s{sKV}, s{sKV}, s{sM0}")
    A(f"s_add_u32 s{sKV}, s{sKV}, {KV}")
    def dma(buf, tag):
        A(f"s_add_u32 m0, s{sM0}, {buf*CH}")
        A("s_nop 0")
        for i in range(3):
            A(f"buffer_load_dwordx4 v{vL16}, {sr(SRD,4)}, s{sKV} offen offset:{i*1024} lds")
        A(f"s_cmp_eq_u32 s{sW}, 3")
        A(f"s_cbranch_scc0 {name}_dma_{tag}")
        A(f"buffer_load_dwordx4 v{vL16}, {sr(SRD,4)}, s{sKV} offen offset:3072 lds")
        A.label(f"{name}_dma_{tag}")
        A(f"s_add_u32 s{sKV}, s{sKV}, {CH}")
    dma(0, "p0"); dma(1, "p1")
    A(f"s_mul_i32 s{sT}, s{sHEAD}, {HS_Q}")
    A(f"s_mul_i32 s{sT2}, s{sQT}, 1280")
    A(f"s_add_u32 s{sT}, s{sT}, s{sT2}")
    if QF: A(f"s_add_u32 s{sT}, s{sT}, {QF}")
    A(f"buffer_load_dwordx4 {vr(Q16,4)}, v{vL16}, {sr(SRD,4)}, s{sT} offen")
    A(f"buffer_load_dwordx2 {vr(Q4,2)}, v{vK4a}, {sr(SRD,4)}, s{sT} offen")
    for r in range(O, O+16): A(f"v_mov_b32 v{r}, 0")
    for r in range(P, P+8): A(f"v_mov_b32 v{r}, 0")
    for r in range(V2, V2+4): A(f"v_mov_b32 v{r}, 0")
    A("v_cmp_lt_u32 vcc, 31, v2")
    A("s_nop 1")
    A("s_waitcnt vmcnt(0)")
    A(f"v_cndmask_b32 v{Q4}, v{Q4}, v{P}, vcc")
    A(f"v_cndmask_b32 v{Q4+1}, v{Q4+1}, v{P}, vcc")
    A("s_barrier")
    def koff(t): return ((t >> 2) & 3)*CH + (t & 3)*1280
    def voff(t, f): return ((t >> 2) & 3)*CH + 5120 + (t & 3)*2048 + f*1024
    rdK16 = lambda t: f"ds_read_b128 {vr(K16,4)}, v{vL16} offset:{koff(t)}"
    rdK4 = lambda t: f"ds_read_b64 {vr(K4,2)}, v{vK4a} offset:{koff(t)}"
    rdV1 = lambda t: f"ds_read_b128 {vr(V1,4)}, v{vL16} offset:{voff(t,0)}"
    rdV2 = lambda t: f"ds_read_b128 {vr(V2,4)}, v{vL16} offset:{voff(t,1)}"
    mS1 = lambda d: f"v_mfma_f32_32x32x16_bf16 {vr(d,16)}, {vr(K16,4)}, {vr(Q16,4)}, 0"
    mS2 = lambda d: f"v_mfma_f32_32x32x8_bf16 {vr(d,16)}, {vr(K4,2)}, {vr(Q4,2)}, {vr(d,16)}"
    mP1 = f"v_mfma_f32_32x32x16_bf16 {vr(O,16)}, {vr(V1,4)}, {vr(P,4)}, {vr(O,16)}"
    mP2 = f"v_mfma_f32_32x32x16_bf16 {vr(O,16)}, {vr(V2,4)}, {vr(P+4,4)}, {vr(O,16)}"
    A(rdK16(0)); A(rdK4(0))
    A("s_waitcnt lgkmcnt(0)")
    A(mS1(S[0]))
    A(rdK16(1))
    A("s_nop 7"); A("s_nop 7")
    A(mS2(S[0]))
    A(rdK4(1)); A(rdV1(0))
    A("s_waitcnt lgkmcnt(0)")
    A("s_nop 7"); A("s_nop 7")
    A(f"s_mov_b32 s{sCNT}, 0")
    A(".p2align 6")
    A.label(f"{name}_aloop")
    def expcvt(cur, q):
        for j in range(4): A(f"v_exp_f32 v{cur+4*q+j}, v{cur+4*q+j}")
        A(f"v_cvt_pk_bf16_f32 v{P+2*q}, v{cur+4*q}, v{cur+4*q+1}")
        A(f"v_cvt_pk_bf16_f32 v{P+2*q+1}, v{cur+4*q+2}, v{cur+4*q+3}")
    for t in range(16):
        cur, nxt = S[t & 1], S[(t+1) & 1]
        if (t & 3) == 2:
            c = t >> 2
            A("s_waitcnt vmcnt(0)")
            A("s_barrier")
            if c >= 2:
                A(f"s_cmp_eq_u32 s{sCNT}, 3")
                A(f"s_cbranch_scc1 {name}_nodma_{t}")
            dma((c+2) & 3, f"t{t}")
            if c >= 2:
                A.label(f"{name}_nodma_{t}")
        A("s_waitcnt lgkmcnt(3)"); A(mS1(nxt)); A(rdK16(t+2)); expcvt(cur, 0)
        A("s_waitcnt lgkmcnt(3)"); A(mP2); A(rdV2(t)); expcvt(cur, 1)
        A("s_waitcnt lgkmcnt(3)"); A(mS2(nxt)); A(rdK4(t+2)); expcvt(cur, 2)
        A("s_waitcnt lgkmcnt(3)"); A(mP1); A(rdV1(t+1)); expcvt(cur, 3)
    A(f"s_add_u32 s{sCNT}, s{sCNT}, 1")
    A(f"s_cmp_lt_u32 s{sCNT}, 4")
    A(f"s_cbranch_scc1 {name}_aloop")
    A("s_waitcnt lgkmcnt(0)")
    A(mP2)
    A("s_nop 15")
    vLs, vR, vC, vAd, vTok = 16, 17, 18, 19, 20
    A(f"v_mov_b32 v{vLs}, v{O+8}")
    A(f"v_mov_b32 v{vR}, v{O+8}")
    A("s_nop 1")
    A(f"v_permlane32_swap_b32 v{vLs}, v{vR}")
    A("s_nop 1")
    A(f"v_rcp_f32 v{vR}, v{vR}")
    A("v_and_b32 v3, 31, v2")
    A(f"v_lshlrev_b32 v{vTok}, 4, v3")
    A("v_lshrrev_b32 v6, 5, v2")
    for r in range(12): A(f"v_mul_f32 v{O+r}, v{O+r}, v{vR}")
    for j in range(6): A(f"v_cvt_pk_bf16_f32 v{24+j}, v{O+2*j}, v{O+2*j+1}")
    A(f"s_mul_i32 s{sT}, s{sQT}, 40960")
    A(f"s_add_u32 s{sT}, s{sT}, {OF}")
    A(f"s_mul_i32 s{sT2}, s{sHEAD}, 5")
    for g, pb in enumerate((0, 2, 4)):
        A(f"s_add_u32 s{sT3}, s{sT2}, {pb}")
        A(f"v_add_u32 v{vC}, s{sT3}, v6")
        A(f"v_lshrrev_b32 v{vAd}, 1, v{vC}")
        A(f"v_lshlrev_b32 v{vAd}, 9, v{vAd}")
        A(f"v_and_b32 v{vC}, 1, v{vC}")
        A(f"v_lshl_add_u32 v{vAd}, v{vC}, 3, v{vAd}")
        A(f"v_add_u32 v{vAd}, v{vAd}, v{vTok}")
        if g == 2:
            A("s_mov_b32 exec_hi, 0")
        A(f"buffer_store_dwordx2 {vr(24+2*g,2)}, v{vAd}, {sr(SRD,4)}, s{sT} offen")
    A(f"s_branch {name}_end")

    A.label(f"{name}_ffn2")
    sTT, sCBK = 16, 17
    sA0, sB0, sCN = 20, 25, 26
    ACC = 88; FR = 16
    vOff = 4
    A("s_sub_u32 s3, s2, 512")
    A(f"s_and_b32 s{sT}, s3, 7")
    A(f"s_lshr_b32 s{sT2}, s3, 3")
    A(f"s_and_b32 s{sT3}, s{sT2}, 7")
    A(f"s_lshl_b32 s{sT}, s{sT}, 3")
    A(f"s_add_u32 s{sTT}, s{sT}, s{sT3}")
    A(f"s_lshr_b32 s{sCBK}, s{sT2}, 3")
    A(f"v_lshlrev_b32 v{vOff}, 4, v2")
    A(f"s_mul_i32 s{sT}, s{sW}, {24*1024}")
    A(f"s_mul_i32 s{sT2}, s{sCBK}, {5*96*1024}")
    A(f"s_add_u32 s{sT2}, s{sT2}, s{sT}")
    A(f"s_add_u32 s{sA0}, s{sT2}, {WDF}")
    for mt in range(1, 5): A(f"s_add_u32 s{sA0+mt}, s{sA0+mt-1}, {96*1024}")
    A(f"s_mul_i32 s{sT2}, s{sTT}, {96*1024}")
    A(f"s_add_u32 s{sT2}, s{sT2}, s{sT}")
    A(f"s_add_u32 s{sB0}, s{sT2}, {HF}")
    for r in range(ACC, ACC+80): A(f"v_mov_b32 v{r}, 0")
    fgemm(A, name, SRD, sA0, sB0, vOff, 24, 96, 3, ACC, FR, True, sCN, sT)
    A("s_nop 15")
    vW, vRd, SUM, vTmp = 5, 6, 16, 40
    A("v_lshlrev_b32 v7, 4, v2")
    for rnd, mts in enumerate(((0, 1, 2), (3, 4))):
        T = len(mts)
        A(f"s_mul_i32 s{sT}, s{sW}, {4*T*1024}")
        A(f"v_add_u32 v{vW}, s{sT}, v7")
        A(f"s_mul_i32 s{sT}, s{sW}, {T*1024}")
        A(f"v_add_u32 v{vRd}, s{sT}, v7")
        if rnd: A("s_barrier")
        reduce_round(A, ACC, mts, vW, vRd, SUM, vTmp)
    A(f"s_lshl_b32 s{sT}, s{sTT}, 2")
    A(f"s_add_u32 s{sT}, s{sT}, s{sCBK}")
    A(f"s_mul_i32 s{sT}, s{sT}, {5*2048}")
    A(f"s_lshl_b32 s{sT2}, s{sW}, 9")
    A(f"s_add_u32 s{sT}, s{sT}, s{sT2}")
    A(f"s_add_u32 s{sT}, s{sT}, {BF}")
    A("v_lshlrev_b32 v7, 3, v2")
    for mt in range(5):
        d = 40 + 2*mt
        A(f"v_cvt_pk_bf16_f32 v{d}, v{SUM+4*mt}, v{SUM+4*mt+1}")
        A(f"v_cvt_pk_bf16_f32 v{d+1}, v{SUM+4*mt+2}, v{SUM+4*mt+3}")
        if mt in (2, 4):
            A(f"s_add_u32 s{sT}, s{sT}, 4096")
        A(f"buffer_store_dwordx2 {vr(d,2)}, v7, {sr(SRD,4)}, s{sT} offen offset:{(mt*2048) % 4096}")
    A.label(f"{name}_end")
    A("s_endpgm")
    return 168

def gen_k3(A, name):
    kernel_header(A, name)
    sWS = 4; sOUT = 6; SRD = 8; sW = 12; sT, sT2, sT3 = 13, 14, 15
    SRD_O = 28
    A("s_cmp_ge_u32 s2, 256")
    A(f"s_cbranch_scc1 {name}_end")
    A(f"s_load_dwordx2 {sr(sWS,2)}, s[0:1], {KA_WS}")
    A(f"s_load_dwordx2 {sr(sOUT,2)}, s[0:1], {KA_OUT}")
    A("v_lshrrev_b32 v1, 6, v0")
    A("v_and_b32 v2, 63, v0")
    A(f"v_readfirstlane_b32 s{sW}, v1")
    A("s_waitcnt lgkmcnt(0)")
    ws_srd(A, SRD, sWS)
    A(f"s_mov_b32 s{SRD_O}, s{sOUT}")
    A(f"s_and_b32 s{SRD_O+1}, s{sOUT+1}, 0xffff")
    A(f"s_mov_b32 s{SRD_O+2}, {2048*1280}")
    A(f"s_mov_b32 s{SRD_O+3}, 0x20000")
    sTT, sCBK = 16, 17
    sA0, sB0, sCN = 20, 25, 26
    ACC = 136; FR = 16
    vOff = 4
    A(f"s_and_b32 s{sT}, s2, 7")
    A(f"s_lshr_b32 s{sT2}, s2, 3")
    A(f"s_and_b32 s{sT3}, s{sT2}, 7")
    A(f"s_lshl_b32 s{sT}, s{sT}, 3")
    A(f"s_add_u32 s{sTT}, s{sT}, s{sT3}")
    A(f"s_lshr_b32 s{sCBK}, s{sT2}, 3")
    A(f"v_lshlrev_b32 v{vOff}, 4, v2")
    A(f"s_mul_i32 s{sT}, s{sW}, {10*1024}")
    A(f"s_mul_i32 s{sT2}, s{sCBK}, {5*40*1024}")
    A(f"s_add_u32 s{sT2}, s{sT2}, s{sT}")
    A(f"s_add_u32 s{sA0}, s{sT2}, {WOF}")
    for mt in range(1, 5): A(f"s_add_u32 s{sA0+mt}, s{sA0+mt-1}, {40*1024}")
    A(f"s_mul_i32 s{sT2}, s{sTT}, {40*1024}")
    A(f"s_add_u32 s{sT2}, s{sT2}, s{sT}")
    A(f"s_add_u32 s{sB0}, s{sT2}, {OF}")
    vB = 216
    vG = 226
    A(f"s_lshl_b32 s{sT}, s{sTT}, 2")
    A(f"s_add_u32 s{sT}, s{sT}, s{sCBK}")
    A(f"s_mul_i32 s{sT}, s{sT}, {5*2048}")
    A(f"s_lshl_b32 s{sT2}, s{sW}, 9")
    A(f"s_add_u32 s{sT}, s{sT}, s{sT2}")
    A(f"s_add_u32 s{sT}, s{sT}, {BF}")
    A("v_lshlrev_b32 v7, 3, v2")
    for mt in range(5):
        if mt == 2: A(f"s_add_u32 s{sT}, s{sT}, 4096")
        if mt == 4: A(f"s_add_u32 s{sT}, s{sT}, 4096")
        A(f"buffer_load_dwordx2 {vr(vB+2*mt,2)}, v7, {sr(SRD,4)}, s{sT} offen offset:{(mt*2048) % 4096}")
    A("v_and_b32 v3, 31, v2")
    A("v_lshlrev_b32 v8, 2, v3")
    A(f"s_lshl_b32 s{sT}, s{sTT}, 7")
    A(f"s_add_u32 s{sT}, s{sT}, {GG}")
    A(f"buffer_load_dword v{vG}, v8, {sr(SRD,4)}, s{sT} offen")
    for r in range(ACC, ACC+80): A(f"v_mov_b32 v{r}, 0")
    fgemm(A, name, SRD, sA0, sB0, vOff, 10, 40, 5, ACC, FR, False, sCN, sT)
    A("s_nop 15")
    vW, vRd, SUM, vTmp = 5, 6, 16, 40
    A("v_lshlrev_b32 v7, 4, v2")
    T = 5
    A(f"s_mul_i32 s{sT}, s{sW}, {4*T*1024}")
    A(f"v_add_u32 v{vW}, s{sT}, v7")
    A(f"s_mul_i32 s{sT}, s{sW}, {T*1024}")
    A(f"v_add_u32 v{vRd}, s{sT}, v7")
    for q in range(4):
        for mt in range(5):
            A(f"ds_write_b128 v{vW}, {vr(ACC+16*mt+4*q,4)} offset:{(q*T+mt)*1024}")
    A("s_waitcnt lgkmcnt(0)")
    A("s_barrier")
    A(f"v_add_u32 v9, {2*4*T*1024}, v{vRd}")
    for mt in range(5):
        for s in range(4):
            A(f"ds_read_b128 {vr(vTmp+4*s,4)}, v{vRd if s < 2 else 9} offset:{((s % 2)*4*T+mt)*1024}")
        A("s_waitcnt lgkmcnt(0)")
        d = SUM + 4*mt
        for j in range(4):
            A(f"v_add_f32 v{d+j}, v{vTmp+j}, v{vTmp+4+j}")
            A(f"v_add_f32 v{vTmp+8+j}, v{vTmp+8+j}, v{vTmp+12+j}")
        for j in range(4):
            A(f"v_add_f32 v{d+j}, v{d+j}, v{vTmp+8+j}")
    A(f"s_lshl_b32 s{sT}, s{sTT}, 5")
    A(f"v_add_u32 v3, s{sT}, v3")
    A("v_mul_u32_u24 v3, 1280, v3")
    A("v_lshrrev_b32 v6, 5, v2")
    A("v_lshl_add_u32 v3, v6, 3, v3")
    A(f"s_mul_i32 s{sT}, s{sCBK}, 320")
    A(f"s_lshl_b32 s{sT2}, s{sW}, 4")
    A(f"s_add_u32 s{sT}, s{sT}, s{sT2}")
    for mt in range(5):
        d = SUM + 4*mt
        b = vB + 2*mt
        A(f"v_lshlrev_b32 v60, 16, v{b}")
        A(f"v_and_b32 v61, 0xffff0000, v{b}")
        A(f"v_lshlrev_b32 v62, 16, v{b+1}")
        A(f"v_and_b32 v63, 0xffff0000, v{b+1}")
        for j in range(4):
            A(f"v_sub_f32 v{d+j}, v{d+j}, v{60+j}")
        for j in range(4):
            A(f"v_fma_f32 v{d+j}, v{vG}, v{d+j}, v{60+j}")
        o = 64 + 2*mt
        A(f"v_cvt_pk_bf16_f32 v{o}, v{d}, v{d+1}")
        A(f"v_cvt_pk_bf16_f32 v{o+1}, v{d+2}, v{d+3}")
        A(f"buffer_store_dwordx2 {vr(o,2)}, v3, {sr(SRD_O,4)}, s{sT} offen offset:{mt*64}")
    A.label(f"{name}_end")
    A("s_endpgm")
    return 232
```

```python
QF   = 0x0
KV   = 0x280000
HF   = 0x900000
WDF  = 0xF00000
WOF  = 0x10E0000
OF   = 0x1200000
BF   = 0x1480000
GG   = 0x1700000
MK   = 0x1710000
WS_SIZE = 0x1900000
HS_Q = 64*1280
CH   = 13312
HS_KV = 16*CH
KA_X, KA_WQKV, KA_WO, KA_BX, KA_WG, KA_WU, KA_WD, KA_GW, KA_OUT, KA_DBG, KA_WS = [8*i for i in range(11)]
```

```python
import sys
from asmlib import *
from layout import *
import k1, k23
HEADER = open('gated_mix__mha_block__glu_gated_geglu__prompt.s.ref').read().split('; Override launch geometry')[0]
def build():
    A = Asm()
    names = ("gm_k1_kernel", "gm_k2_kernel", "gm_k3_kernel")
    hdr = HEADER
    hdr += f"; @launch kernel={names[0]} grid=(256,1,1) block=(512,1,1) lds={k1.K1_LDS}\n"
    hdr += f"; @launch kernel={names[1]} grid=(768,1,1) block=(256,1,1) lds={k23.K2_LDS}\n"
    hdr += f"; @launch kernel={names[2]} grid=(256,1,1) block=(256,1,1) lds={k23.K3_LDS}\n"
    A('.amdgcn_target "amdgcn-amd-amdhsa--gfx950"')
    v1 = k1.gen_k1(A, names[0])
    v2 = k23.gen_k2(A, names[1])
    v3 = k23.gen_k3(A, names[2])
    kernel_desc(A, names[0], v1)
    kernel_desc(A, names[1], v2)
    kernel_desc(A, names[2], v3)
    return hdr + A.text()
if __name__ == "__main__":
    out = sys.argv[1] if len(sys.argv) > 1 else "gated_mix__mha_block__glu_gated_geglu__prompt.s"
    open(out, "w").write(build())
    print("wrote", out)
```

```python
class Asm:
    def __init__(self):
        self.lines = []
        self.uid = 0
    def __call__(self, s=""):
        for l in s.split("\n"):
            self.lines.append(l.rstrip())
    def label(self, name):
        self.lines.append(name + ":")
    def c(self, s):
        self.lines.append("    ; " + s)
    def new(self, prefix="L"):
        self.uid += 1
        return f"{prefix}_{self.uid}"
    def text(self):
        out = []
        for l in self.lines:
            if l.endswith(":") or l.startswith(".") or l.startswith(";") or l.startswith(" ") or l == "":
                out.append(l)
            else:
                out.append("    " + l)
        return "\n".join(out) + "\n"

def vr(a, n=1):
    return f"v{a}" if n == 1 else f"v[{a}:{a+n-1}]"
def sr(a, n=1):
    return f"s{a}" if n == 1 else f"s[{a}:{a+n-1}]"

def kernel_header(A, name):
    A(".text")
    A(f".globl {name}")
    A(".p2align 8")
    A(f".type {name},@function")
    A.label(name)

def kernel_desc(A, name, vgpr, sgpr=102, accum=None):
    if accum is None:
        accum = (vgpr + 3)//4*4
    A('.section .rodata,"a"')
    A(".p2align 6")
    A(f".amdhsa_kernel {name}")
    A(f"  .amdhsa_next_free_vgpr {vgpr}")
    A(f"  .amdhsa_next_free_sgpr {sgpr}")
    A(f"  .amdhsa_accum_offset {accum}")
    A("  .amdhsa_group_segment_fixed_size 0")
    A("  .amdhsa_kernarg_size 88")
    A("  .amdhsa_user_sgpr_count 2")
    A("  .amdhsa_user_sgpr_kernarg_segment_ptr 1")
    A("  .amdhsa_system_sgpr_workgroup_id_x 1")
    A("  .amdhsa_float_denorm_mode_32 3")
    A(".end_amdhsa_kernel")

PROFILE = False
OPT = {}
PROF_OFF = 0x1780000
def stamp(A, i):
    if not PROFILE: return
    A(f"s_memrealtime s[{86+2*i}:{87+2*i}]")
    if i in (1, 2):
        A(f"s_memtime s[{94+2*(i-1)+0}:{95+2*(i-1)}]")
def stamp_flush(A, kidx, srd, sW, n):
    if not PROFILE: return
    A("s_waitcnt vmcnt(0) lgkmcnt(0)")
    A("s_mov_b64 exec, 1")
    A(f"s_lshl_b32 s84, s2, 3")
    A(f"s_add_u32 s84, s84, s{sW}")
    A(f"s_lshl_b32 s84, s84, 5")
    A(f"s_add_u32 s84, s84, {PROF_OFF + kidx*1024*8*32}")
    A("s_getreg_b32 s98, hwreg(HW_REG_HW_ID)")
    A("s_getreg_b32 s100, hwreg(HW_REG_XCC_ID)")
    for i in range(n+4):
        A(f"v_mov_b32 v1, s{86+2*i}")
        A(f"v_mov_b32 v3, {4*i}")
        A(f"buffer_store_dword v1, v3, s[{srd}:{srd+3}], s84 offen")
        A("s_nop 1")
```

```python
from asmlib import *
import asmlib
from layout import *

STAGE = 53376
WOFF = 32768
UOFF = 10368
K1_LDS = 3*STAGE

def gen_k1(A, name):
    kernel_header(A, name)
    sX, sWQ, sWO, sWG, sWU, sWD, sGW, sWS = 4, 6, 8, 10, 12, 14, 16, 18
    sRB, sCB, sW, sT = 20, 21, 22, 23
    sT2, sT3 = 24, 25
    sRS = 26
    sCG, sCU = 27, 28
    sTYPE = 29
    sNU = 30
    sU0 = 31
    SRD_X, SRD_W, SRD_WS = 32, 36, 40
    sBUF = 44; sXO = 45; sWO_ = 46; sCNT = 47
    sHM = 48
    sH = 52
    sSC = 60
    sDP, sDN = 84, 85
    A("s_cmp_ge_u32 s2, 256")
    A(f"s_cbranch_scc1 {name}_end")
    stamp(A, 0)
    A(f"s_load_dwordx2 {sr(sX,2)}, s[0:1], {KA_X}")
    A(f"s_load_dwordx2 {sr(sWQ,2)}, s[0:1], {KA_WQKV}")
    A(f"s_load_dwordx2 {sr(sWO,2)}, s[0:1], {KA_WO}")
    A(f"s_load_dwordx2 {sr(sWG,2)}, s[0:1], {KA_WG}")
    A(f"s_load_dwordx2 {sr(sWU,2)}, s[0:1], {KA_WU}")
    A(f"s_load_dwordx2 {sr(sWD,2)}, s[0:1], {KA_WD}")
    A(f"s_load_dwordx2 {sr(sGW,2)}, s[0:1], {KA_GW}")
    A(f"s_load_dwordx2 {sr(sWS,2)}, s[0:1], {KA_WS}")
    A.c("decode: xcd = id&7, j = id>>3; rb = 4*(xcd&1) + (j&3); cb = 8*(xcd>>1) + (j>>2)")
    A(f"s_and_b32 s{sT}, s2, 1")
    A(f"s_lshl_b32 s{sT}, s{sT}, 2")
    A(f"s_lshr_b32 s{sT2}, s2, 3")
    A(f"s_and_b32 s{sT3}, s{sT2}, 3")
    A(f"s_add_u32 s{sRB}, s{sT}, s{sT3}")
    A(f"s_and_b32 s{sT}, s2, 6")
    A(f"s_lshl_b32 s{sT}, s{sT}, 2")
    A(f"s_lshr_b32 s{sT2}, s{sT2}, 2")
    A(f"s_add_u32 s{sCB}, s{sT}, s{sT2}")
    A("v_lshrrev_b32 v1, 6, v0")
    A("v_and_b32 v2, 63, v0")
    A(f"v_readfirstlane_b32 s{sW}, v1")
    A.c("block params")
    A(f"s_cmp_ge_u32 s{sCB}, 12")
    A(f"s_cbranch_scc1 {name}_ffn_params")
    A(f"s_movk_i32 s{sRS}, 3840")
    A(f"s_mul_i32 s{sCG}, s{sCB}, 160")
    A(f"s_add_u32 s{sCU}, s{sCG}, 80")
    A(f"s_lshr_b32 s{sTYPE}, s{sCB}, 2")
    A(f"s_mov_b32 s{sNU}, 5")
    A(f"s_mov_b32 s{sU0}, 0")
    A("s_waitcnt lgkmcnt(0)")
    A(f"s_mov_b64 {sr(sWG,2)}, {sr(sWQ,2)}")
    A(f"s_mov_b64 {sr(sWU,2)}, {sr(sWQ,2)}")
    A(f"s_branch {name}_params_done")
    A.label(f"{name}_ffn_params")
    A(f"s_movk_i32 s{sRS}, 3072")
    A(f"s_sub_u32 s{sT}, s{sCB}, 12")
    A(f"s_mul_i32 s{sU0}, s{sT}, 5")
    A(f"s_mov_b32 s{sNU}, 5")
    A(f"s_cmp_lt_u32 s{sT}, 16")
    A(f"s_cbranch_scc1 {name}_ffn_p2")
    A(f"s_lshl_b32 s{sU0}, s{sT}, 2")
    A(f"s_add_u32 s{sU0}, s{sU0}, 16")
    A(f"s_mov_b32 s{sNU}, 4")
    A.label(f"{name}_ffn_p2")
    A(f"s_lshl_b32 s{sCG}, s{sU0}, 4")
    A(f"s_mov_b32 s{sCU}, s{sCG}")
    A(f"s_mov_b32 s{sTYPE}, 3")
    A("s_waitcnt lgkmcnt(0)")
    A.label(f"{name}_params_done")
    SP = asmlib.OPT.get("startprof")
    A.c("SRD for ws")
    A(f"s_mov_b32 s{SRD_WS}, s{sWS}")
    A(f"s_and_b32 s{SRD_WS+1}, s{sWS+1}, 0xffff")
    A(f"s_mov_b32 s{SRD_WS+2}, {WS_SIZE}")
    A(f"s_mov_b32 s{SRD_WS+3}, 0x20000")
    A(f"s_cmp_ge_u32 s{sW}, 4")
    A(f"s_cbranch_scc1 {name}_loader")

    ACC = 96
    def acc(tt, mt): return ACC + (tt*5 + mt)*16
    FA = [8, 36]
    FB = [28, 56]
    vXA = 64
    vWA = 68
    A.c("compute wave: LDS read addresses")
    A("v_and_b32 v3, 31, v2")
    A("v_lshrrev_b32 v4, 5, v2")
    A(f"s_lshl_b32 s{sT}, s{sW}, 6")
    A(f"v_add_u32 v5, s{sT}, v3")
    A("v_lshlrev_b32 v5, 7, v5")
    A("v_bfe_u32 v6, v3, 1, 3")
    for sp in range(4):
        A(f"v_or_b32 v7, {2*sp}, v4")
        A("v_xor_b32 v7, v7, v6")
        A(f"v_lshl_add_u32 v{vXA+sp}, v7, 4, v5")
    A("v_bfe_u32 v5, v2, 4, 1")
    A(f"v_mul_u32_u24 v5, {UOFF}, v5")
    A("v_bfe_u32 v6, v2, 2, 2")
    A("v_lshl_add_u32 v6, v4, 3, v6")
    A("v_mul_u32_u24 v6, 160, v6")
    A("v_and_b32 v7, 3, v2")
    A("v_lshlrev_b32 v7, 3, v7")
    A("v_add3_u32 v5, v5, v6, v7")
    A(f"v_add_u32 v{vWA}, {WOFF}, v5")
    for r in range(ACC, ACC+160):
        A(f"v_mov_b32 v{r}, 0")

    def reads(sp, st):
        L = []
        for tt in range(2):
            L.append(f"ds_read_b128 {vr(FB[st]+4*tt,4)}, v{vXA+sp} offset:{tt*4096}")
        for mt in range(5):
            for half in range(2):
                L.append(f"ds_read_b64_tr_b16 {vr(FA[st]+4*mt+2*half,2)}, v{vWA} offset:{sp*2560+mt*32+half*640}")
        return [L[0], L[2], L[3], L[1]] + L[4:]
    def mfmas(st, swapped):
        L = []
        for mt in range(5):
            for tt in range(2):
                a, b = vr(FA[st]+4*mt,4), vr(FB[st]+4*tt,4)
                if swapped: a, b = b, a
                L.append(f"v_mfma_f32_32x32x16_bf16 {vr(acc(tt,mt),16)}, {a}, {b}, {vr(acc(tt,mt),16)}")
        return L
    def mainloop(swapped, tag):
        A("s_barrier")
        stamp(A, 1)
        for l in reads(0, 0): A(l)
        A(f"s_mov_b32 s{sCNT}, 0")
        A(f"s_mov_b32 s{sBUF}, 0")
        A(f"s_mov_b32 s{sDP}, {STAGE}")
        A(f"s_mov_b32 s{sDN}, {(-2*STAGE) & 0xffffffff}")
        A(".p2align 6")
        A.label(f"{name}_loop_{tag}")
        for sp in range(4):
            cur = sp & 1; nxt = cur ^ 1
            M = mfmas(cur, swapped)
            A("s_waitcnt lgkmcnt(0)")
            if sp < 3:
                R = reads(sp+1, nxt)
                k = 0
                for i, m in enumerate(M):
                    A(m)
                    for l in R[k:k+2]: A(l)
                    k += 2
            else:
                A(M[0]); A(M[1])
                A(f"s_add_u32 s{sBUF}, s{sBUF}, 1")
                A(f"s_cmp_eq_u32 s{sBUF}, 3")
                A(f"s_cselect_b32 s{sT}, s{sDN}, s{sDP}")
                A(f"s_cselect_b32 s{sBUF}, 0, s{sBUF}")
                A("s_barrier")
                for j in range(4): A(f"v_add_u32 v{vXA+j}, s{sT}, v{vXA+j}")
                A(f"v_add_u32 v{vWA}, s{sT}, v{vWA}")
                R = reads(0, nxt)
                k = 0
                for m in M[2:]:
                    A(m)
                    for l in R[k:k+2]: A(l)
                    k += 2
        A(f"s_add_u32 s{sCNT}, s{sCNT}, 1")
        A(f"s_cmp_lt_u32 s{sCNT}, 10")
        A(f"s_cbranch_scc1 {name}_loop_{tag}")
        A("s_waitcnt lgkmcnt(0)")
        A("s_nop 15")
        stamp(A, 2)
    A(f"s_cmp_eq_u32 s{sTYPE}, 2")
    A(f"s_cbranch_scc1 {name}_vblock")
    mainloop(False, "n")
    A(f"s_cmp_eq_u32 s{sTYPE}, 3")
    A(f"s_cbranch_scc1 {name}_epi_ffn")

    A.c("epilogue Q/K")
    vT16, vT8, vTb, vTc, vHm, vAd, vTmp = 8, 9, 10, 11, 12, 13, 14
    D0 = 16
    A("v_and_b32 v3, 31, v2")
    A(f"v_lshlrev_b32 v{vT16}, 4, v3")
    A(f"v_lshlrev_b32 v{vT8}, 3, v3")
    A("v_cmp_lt_u32 vcc, 31, v2")
    A("s_nop 1")
    A(f"v_cndmask_b32 v{vTb}, v{vT8}, v{vT16}, vcc")
    A(f"v_cndmask_b32 v{vTc}, v{vT16}, v{vT8}, vcc")
    A(f"v_cndmask_b32 v{vHm}, 0, -1, vcc")
    sBASE, sHS, sD = 61, 62, 63
    A(f"s_and_b32 s{sT}, s{sCB}, 3")
    A(f"s_cmp_eq_u32 s{sTYPE}, 0")
    A(f"s_cbranch_scc0 {name}_kparams")
    A(f"s_mov_b32 s{sHS}, {HS_Q}")
    A(f"s_mul_i32 s{sBASE}, s{sT}, {8*HS_Q}")
    A(f"s_lshl_b32 s{sT2}, s{sRB}, 3")
    A(f"s_lshl_b32 s{sT3}, s{sW}, 1")
    A(f"s_add_u32 s{sT2}, s{sT2}, s{sT3}")
    A(f"s_mul_i32 s{sT2}, s{sT2}, 1280")
    A(f"s_add_u32 s{sBASE}, s{sBASE}, s{sT2}")
    A(f"s_add_u32 s{sBASE}, s{sBASE}, {QF}")
    A(f"s_mov_b32 s{sSC}, 0x3ea52b5c")
    A(f"s_branch {name}_qk_go")
    A.label(f"{name}_kparams")
    A(f"s_mov_b32 s{sHS}, {HS_KV}")
    A(f"s_mul_i32 s{sBASE}, s{sT}, {8*HS_KV}")
    A(f"s_lshl_b32 s{sT2}, s{sRB}, 1")
    A(f"s_lshr_b32 s{sT3}, s{sW}, 1")
    A(f"s_add_u32 s{sT2}, s{sT2}, s{sT3}")
    A(f"s_mul_i32 s{sT2}, s{sT2}, {CH}")
    A(f"s_add_u32 s{sBASE}, s{sBASE}, s{sT2}")
    A(f"s_and_b32 s{sT3}, s{sW}, 1")
    A(f"s_mul_i32 s{sT3}, s{sT3}, 2560")
    A(f"s_add_u32 s{sBASE}, s{sBASE}, s{sT3}")
    A(f"s_add_u32 s{sBASE}, s{sBASE}, {KV}")
    A(f"s_mov_b32 s{sSC}, 1.0")
    A.label(f"{name}_qk_go")
    A(f"s_mov_b32 s{sH}, 0")
    for i in range(1, 8):
        A(f"s_add_u32 s{sH+i}, s{sH+i-1}, s{sHS}")
    def offp(p): return (p>>1)*512 + (p&1)*8 if p < 4 else 1024
    for mt in range(5):
        for i in range(4):
            q0 = (0 if i < 2 else 20) + 4*mt + 2*(i&1)
            q1 = q0 + 1
            h0, p0 = divmod(q0, 5); h1, p1 = divmod(q1, 5)
            c0, c1 = offp(p0), offp(p1)
            vT = vTb if p0 == 4 else (vTc if p1 == 4 else vT16)
            A(f"s_add_u32 s{sT}, s{sH+h0}, {c0}")
            if h0 == h1:
                A(f"v_and_b32 v{vTmp}, {(c1-c0) & 0xffffffff}, v{vHm}")
            else:
                A(f"s_add_u32 s{sD}, s{sHS}, {(c1-c0) & 0xffffffff}")
                A(f"v_and_b32 v{vTmp}, s{sD}, v{vHm}")
            A(f"v_add3_u32 v{vAd}, v{vT}, v{vTmp}, s{sT}")
            for tt in range(2):
                a = acc(tt, mt) + 4*i
                d = D0 + 4*tt
                for j in range(4):
                    A(f"v_mul_f32 v{a+j}, s{sSC}, v{a+j}")
                A(f"v_cvt_pk_bf16_f32 v{d}, v{a}, v{a+1}")
                A(f"v_cvt_pk_bf16_f32 v{d+1}, v{a+2}, v{a+3}")
                A(f"buffer_store_dwordx2 {vr(d,2)}, v{vAd}, {sr(SRD_WS,4)}, s{sBASE} offen offset:{tt*1280}")
            A("s_nop 0")
    A(f"s_branch {name}_fin")

    A.label(f"{name}_epi_ffn")
    A.c("epilogue FFN: h = gelu_tanh(g) * u")
    vC0, vC1, vONE = 8, 10, 12
    vTt, vP, vE, vGU = 14, 16, 18, 20
    vOUT = 24
    import math
    c0 = -2.0*math.sqrt(2.0/math.pi)*math.log2(math.e)
    c1 = c0*0.044715
    import struct
    def f2u(f): return struct.unpack("<I", struct.pack("<f", f))[0]
    for j in range(2):
        A(f"v_mov_b32 v{vC0+j}, {hex(f2u(c0))}")
        A(f"v_mov_b32 v{vC1+j}, {hex(f2u(c1))}")
        A(f"v_mov_b32 v{vONE+j}, 1.0")
    A(f"v_lshlrev_b32 v3, 4, v2")
    A(f"s_lshl_b32 s{sT2}, s{sRB}, 3")
    A(f"s_lshl_b32 s{sT3}, s{sW}, 1")
    A(f"s_add_u32 s{sT2}, s{sT2}, s{sT3}")
    A(f"s_mul_i32 s{sT2}, s{sT2}, {96*1024}")
    A(f"s_lshl_b32 s{sT3}, s{sU0}, 10")
    A(f"s_add_u32 s{sT2}, s{sT2}, s{sT3}")
    A(f"s_add_u32 s{sT2}, s{sT2}, {HF}")
    A(f"s_add_u32 s{sT3}, s{sT2}, {96*1024}")
    n = 0
    for mt in range(5):
        if mt == 4:
            A(f"s_cmp_eq_u32 s{sNU}, 4")
            A(f"s_cbranch_scc1 {name}_fin")
        for tt in range(2):
            a = acc(tt, mt)
            o = vOUT + 4*(n & 1); n += 1
            for pr in range(4):
                g = a + 2*pr; u = a + 8 + 2*pr
                A(f"v_pk_mul_f32 {vr(vTt,2)}, {vr(g,2)}, {vr(g,2)}")
                A(f"v_pk_mul_f32 {vr(vGU,2)}, {vr(g,2)}, {vr(u,2)}")
                A(f"v_pk_fma_f32 {vr(vP,2)}, {vr(vTt,2)}, {vr(vC1,2)}, {vr(vC0,2)}")
                A(f"v_pk_mul_f32 {vr(vP,2)}, {vr(vP,2)}, {vr(g,2)}")
                A(f"v_exp_f32 v{vE}, v{vP}")
                A(f"v_exp_f32 v{vE+1}, v{vP+1}")
                A("s_nop 0")
                A(f"v_pk_add_f32 {vr(vE,2)}, {vr(vE,2)}, {vr(vONE,2)}")
                A(f"v_rcp_f32 v{vE}, v{vE}")
                A(f"v_rcp_f32 v{vE+1}, v{vE+1}")
                A("s_nop 0")
                A(f"v_pk_mul_f32 {vr(vGU,2)}, {vr(vGU,2)}, {vr(vE,2)}")
                A(f"v_cvt_pk_bf16_f32 v{o+pr}, v{vGU}, v{vGU+1}")
            A(f"buffer_store_dwordx4 {vr(o,4)}, v3, {sr(SRD_WS,4)}, s{sT2 if tt == 0 else sT3} offen offset:{mt*1024 if mt*1024 < 4096 else 0}" if mt < 4 else
              f"s_add_u32 s{sT}, s{sT2 if tt == 0 else sT3}, 4096\n" + f"buffer_store_dwordx4 {vr(o,4)}, v3, {sr(SRD_WS,4)}, s{sT} offen")
    A(f"s_branch {name}_fin")

    A.label(f"{name}_vblock")
    mainloop(True, "v")
    A.c("epilogue V")
    vCol, vHead, vD, vAd2 = 8, 9, 10, 11
    vOnes = 12
    D1 = 16
    for j in range(4): A(f"v_mov_b32 v{vOnes+j}, 0x3f803f80")
    A("v_and_b32 v3, 31, v2")
    A("v_lshrrev_b32 v4, 5, v2")
    A("v_bfe_u32 v5, v2, 4, 1")
    A("v_lshl_add_u32 v3, v5, 6, v3")
    A("v_lshlrev_b32 v4, 9, v4")
    A(f"s_sub_u32 s{sT}, s{sCB}, 8")
    A(f"s_mul_i32 s{sBASE}, s{sT}, {8*HS_KV}")
    A(f"s_lshl_b32 s{sT2}, s{sRB}, 1")
    A(f"s_lshr_b32 s{sT3}, s{sW}, 1")
    A(f"s_add_u32 s{sT2}, s{sT2}, s{sT3}")
    A(f"s_mul_i32 s{sT2}, s{sT2}, {CH}")
    A(f"s_add_u32 s{sBASE}, s{sBASE}, s{sT2}")
    A(f"s_and_b32 s{sT3}, s{sW}, 1")
    A(f"s_lshl_b32 s{sT3}, s{sT3}, 12")
    A(f"s_add_u32 s{sBASE}, s{sBASE}, s{sT3}")
    A(f"s_add_u32 s{sBASE}, s{sBASE}, {KV+5120}")
    A(f"s_mov_b32 s{sHS}, {HS_KV}")
    for mt in range(5):
        A(f"v_add_u32 v{vCol}, {16*mt}, v3")
        A(f"v_mul_u32_u24 v{vHead}, 3277, v{vCol}")
        A(f"v_lshrrev_b32 v{vHead}, 16, v{vHead}")
        A(f"v_mul_u32_u24 v{vD}, 20, v{vHead}")
        A(f"v_sub_u32 v{vD}, v{vCol}, v{vD}")
        A(f"v_mul_lo_u32 v{vAd2}, v{vHead}, s{sHS}")
        A(f"v_lshl_add_u32 v{vAd2}, v{vD}, 4, v{vAd2}")
        A(f"v_add_u32 v{vAd2}, v{vAd2}, v4")
        for tt in range(2):
            for f in range(2):
                a = acc(tt, mt) + 8*f
                d = D1 + 4*(2*tt+f)
                for j in range(4):
                    A(f"v_cvt_pk_bf16_f32 v{d+j}, v{a+2*j}, v{a+2*j+1}")
                A(f"buffer_store_dwordx4 {vr(d,4)}, v{vAd2}, {sr(SRD_WS,4)}, s{sBASE} offen offset:{tt*2048+f*1024}")
    A(f"s_branch {name}_fin")

    A.label(f"{name}_loader")
    vXO = 8
    vWO = 16
    A(f"s_sub_u32 s{sW}, s{sW}, 4")
    A.c("SRD x")
    A(f"s_mov_b32 s{SRD_X}, s{sX}")
    A(f"s_and_b32 s{SRD_X+1}, s{sX+1}, 0xffff")
    A(f"s_mov_b32 s{SRD_X+2}, {2048*1280}")
    A(f"s_mov_b32 s{SRD_X+3}, 0x20000")
    A.c("SRD w (G part for loaders 0,1; U part for 2,3)")
    A(f"s_cmp_ge_u32 s{sW}, 2")
    A(f"s_cselect_b32 s{SRD_W}, s{sWU}, s{sWG}")
    A(f"s_cselect_b32 s{SRD_W+1}, s{sWU+1}, s{sWG+1}")
    A(f"s_cselect_b32 s{sT}, s{sCU}, s{sCG}")
    A(f"s_and_b32 s{SRD_W+1}, s{SRD_W+1}, 0xffff")
    A(f"s_mul_i32 s{SRD_W+2}, s{sRS}, 640")
    A(f"s_mov_b32 s{SRD_W+3}, 0x20000")
    A(f"s_lshl_b32 s{sWO_}, s{sT}, 1")
    A(f"s_mul_i32 s{sXO}, s{sRB}, {256*1280}")
    A("v_lshrrev_b32 v3, 3, v2")
    A("v_lshrrev_b32 v4, 4, v2")
    A("v_and_b32 v5, 7, v2")
    A("v_xor_b32 v5, v5, v4")
    A("v_xor_b32 v6, 4, v5")
    A(f"s_lshl_b32 s{sT}, s{sW}, 6")
    A(f"v_add_u32 v3, s{sT}, v3")
    A(f"s_movk_i32 s{sT2}, 1280")
    A(f"v_mul_lo_u32 v3, v3, s{sT2}")
    A("v_lshl_add_u32 v5, v5, 4, v3")
    A("v_lshl_add_u32 v6, v6, 4, v3")
    for j in range(8):
        A(f"v_add_u32 v{vXO+j}, {j*10240}, v{5 if j % 2 == 0 else 6}")
    A(f"s_and_b32 s{sT}, s{sW}, 1")
    A(f"s_mul_i32 s{sT}, s{sT}, 320")
    for i in range(5):
        A(f"v_add_u32 v3, s{sT}, v2")
        A(f"v_add_u32 v3, {64*i}, v3")
        A("v_mul_u32_u24 v4, 6554, v3")
        A("v_lshrrev_b32 v4, 16, v4")
        A("v_mul_u32_u24 v5, 10, v4")
        A("v_sub_u32 v5, v3, v5")
        A(f"v_mul_lo_u32 v4, v4, s{sRS}")
        A(f"v_lshl_add_u32 v{vWO+i}, v5, 4, v4")
    sLX, sLW, sWSTEP = 61, 62, 63
    A(f"s_lshl_b32 s{sLX}, s{sW}, 13")
    A(f"s_lshr_b32 s{sT}, s{sW}, 1")
    A(f"s_mul_i32 s{sLW}, s{sT}, {UOFF}")
    A(f"s_and_b32 s{sT}, s{sW}, 1")
    A(f"s_mul_i32 s{sT}, s{sT}, 5120")
    A(f"s_add_u32 s{sLW}, s{sLW}, s{sT}")
    A(f"s_add_u32 s{sLW}, s{sLW}, {WOFF}")
    A(f"s_lshl_b32 s{sWSTEP}, s{sRS}, 6")
    def issue_stage():
        A(f"s_add_u32 s{sT}, s{sBUF}, s{sLW}")
        for i in range(5):
            A(f"s_add_u32 m0, s{sT}, {i*1024}")
            A("s_nop 0")
            A(f"buffer_load_dwordx4 v{vWO+i}, {sr(SRD_W,4)}, s{sWO_} offen lds")
        A(f"s_add_u32 s{sT}, s{sBUF}, s{sLX}")
        for j in range(8):
            A(f"s_add_u32 m0, s{sT}, {j*1024}")
            A("s_nop 0")
            A(f"buffer_load_dwordx4 v{vXO+j}, {sr(SRD_X,4)}, s{sXO} offen lds")
        A(f"s_add_u32 s{sXO}, s{sXO}, 128")
        A(f"s_add_u32 s{sWO_}, s{sWO_}, s{sWSTEP}")
        A(f"s_add_u32 s{sBUF}, s{sBUF}, {STAGE}")
        A(f"s_cmp_eq_u32 s{sBUF}, {3*STAGE}")
        A(f"s_cselect_b32 s{sBUF}, 0, s{sBUF}")
    A(f"s_mov_b32 s{sBUF}, 0")
    if SP: stamp(A, 1)
    issue_stage()
    if SP: stamp(A, 2)
    issue_stage()
    if SP:
        A("s_waitcnt vmcnt(13)")
        stamp(A, 3)
        A("s_mov_b32 s66, s92")
    A(f"s_mov_b32 s{sCNT}, 0")
    A.label(f"{name}_lloop")
    A("s_waitcnt vmcnt(13)")
    A("s_barrier")
    issue_stage()
    A(f"s_add_u32 s{sCNT}, s{sCNT}, 1")
    A(f"s_cmp_lt_u32 s{sCNT}, 8")
    A(f"s_cbranch_scc1 {name}_lloop")
    sL = 64
    A(f"s_lshl_b32 s{sL}, s2, 2")
    A(f"s_add_u32 s{sL}, s{sL}, s{sW}")
    SRD_D, SRD_O, SRD_G = 68, 72, 76
    for srd, p, nb in ((SRD_D, sWD, 1536*1280), (SRD_O, sWO, 640*1280), (SRD_G, sGW, 1280)):
        A(f"s_mov_b32 s{srd}, s{p}")
        A(f"s_and_b32 s{srd+1}, s{p+1}, 0xffff")
        A(f"s_mov_b32 s{srd+2}, {nb}")
        A(f"s_mov_b32 s{srd+3}, 0x20000")
    A("v_lshrrev_b32 v3, 2, v2")
    A("v_mul_u32_u24 v3, 1280, v3")
    A("v_and_b32 v4, 3, v2")
    A("v_lshl_add_u32 v3, v4, 4, v3")
    A("v_bfe_u32 v5, v2, 4, 1")
    A("v_lshrrev_b32 v6, 5, v2")
    A("v_lshl_add_u32 v5, v5, 1, v6")
    A("v_mul_u32_u24 v5, 20, v5")
    A("v_bfe_u32 v6, v2, 2, 2")
    A("v_add3_u32 v5, v5, v6, 16")
    A("v_mul_u32_u24 v5, 1280, v5")
    A("v_lshl_add_u32 v23, v4, 4, v5")
    vPW = 24
    sN = 80
    for m in range(3):
        A(f"s_add_u32 s{sN+m}, s{sL}, {1024*m}")
        A(f"s_cmp_ge_u32 s{sN+m}, 1920")
        A(f"s_cbranch_scc1 {name}_pl_o{m}")
        A(f"s_mul_i32 s{sT}, s{sN+m}, 683")
        A(f"s_lshr_b32 s{sT}, s{sT}, 16")
        A(f"s_mul_i32 s{sT2}, s{sT}, 96")
        A(f"s_sub_u32 s{sT2}, s{sN+m}, s{sT2}")
        A(f"s_mul_i32 s{sT2}, s{sT2}, {16*1280}")
        A(f"s_lshl_b32 s{sT}, s{sT}, 6")
        A(f"s_add_u32 s{sT}, s{sT}, s{sT2}")
        A(f"buffer_load_dwordx4 {vr(vPW+4*m,4)}, v3, {sr(SRD_D,4)}, s{sT} offen")
        A(f"s_branch {name}_pl_n{m}")
        A.label(f"{name}_pl_o{m}")
        A(f"s_sub_u32 s{sT3}, s{sN+m}, 1920")
        A(f"s_mul_i32 s{sT}, s{sT3}, 1639")
        A(f"s_lshr_b32 s{sT}, s{sT}, 16")
        A(f"s_mul_i32 s{sT2}, s{sT}, 40")
        A(f"s_sub_u32 s{sT2}, s{sT3}, s{sT2}")
        A(f"s_lshl_b32 s{sT}, s{sT}, 6")
        A(f"s_cmp_ge_u32 s{sT2}, 32")
        A(f"s_cbranch_scc1 {name}_pl_t{m}")
        A.c("main step (one head): rows 20*head .. +15")
        A(f"s_mul_i32 s{sT2}, s{sT2}, {20*1280}")
        A(f"s_add_u32 s{sT}, s{sT}, s{sT2}")
        A(f"buffer_load_dwordx4 {vr(vPW+4*m,4)}, v3, {sr(SRD_O,4)}, s{sT} offen")
        A(f"s_branch {name}_pl_n{m}")
        A.label(f"{name}_pl_t{m}")
        A.c("tail step: d=16..19 of four heads (blocks past 2720 read zeros or junk, never stored)")
        A(f"s_sub_u32 s{sT2}, s{sT2}, 32")
        A(f"s_mul_i32 s{sT2}, s{sT2}, {80*1280}")
        A(f"s_add_u32 s{sT}, s{sT}, s{sT2}")
        A(f"buffer_load_dwordx4 {vr(vPW+4*m,4)}, v23, {sr(SRD_O,4)}, s{sT} offen")
        A.label(f"{name}_pl_n{m}")
    vGX, vGW = 40, 52
    A("v_and_b32 v21, 31, v2")
    A("v_lshlrev_b32 v21, 4, v21")
    A("v_lshrrev_b32 v22, 5, v2")
    A(f"s_lshl_b32 s{sT}, s{sL}, 1")
    A(f"v_add_u32 v22, s{sT}, v22")
    A("v_mul_u32_u24 v5, 1280, v22")
    A("v_add_u32 v5, v5, v21")
    A("v_and_b32 v6, 16, v2")
    A("v_cmp_ne_u32 vcc, 0, v6")
    A(f"v_mov_b32 v7, 0x7ff00000")
    A("v_add_u32 v8, 1024, v5")
    A("v_add_u32 v9, 1024, v21")
    A("v_cndmask_b32 v8, v8, v7, vcc")
    A("v_cndmask_b32 v9, v9, v7, vcc")
    A(f"buffer_load_dwordx4 {vr(vGX,4)}, v5, {sr(SRD_X,4)}, 0 offen")
    A(f"buffer_load_dwordx4 {vr(vGX+4,4)}, v5, {sr(SRD_X,4)}, 0 offen offset:512")
    A(f"buffer_load_dwordx4 {vr(vGX+8,4)}, v8, {sr(SRD_X,4)}, 0 offen")
    A(f"buffer_load_dwordx4 {vr(vGW,4)}, v21, {sr(SRD_G,4)}, 0 offen")
    A(f"buffer_load_dwordx4 {vr(vGW+4,4)}, v21, {sr(SRD_G,4)}, 0 offen offset:512")
    A(f"buffer_load_dwordx4 {vr(vGW+8,4)}, v9, {sr(SRD_G,4)}, 0 offen")
    A("s_waitcnt vmcnt(22)")
    A("s_barrier")
    if not SP: stamp(A, 1)
    A("s_waitcnt vmcnt(9)")
    A("s_barrier")
    A("s_barrier")
    if not SP: stamp(A, 2)
    A("s_waitcnt vmcnt(0)")
    A.c("side job: gate g = sigmoid(x . gate_w)")
    A("v_mov_b32 v10, 0")
    for j in range(12):
        A(f"v_dot2c_f32_bf16 v10, v{vGX+j}, v{vGW+j}")
    A("s_nop 3")
    for sh in (1, 2, 4, 8):
        A(f"v_add_f32_dpp v10, v10, v10 row_shr:{sh} row_mask:0xf bank_mask:0xf bound_ctrl:0")
        A("s_nop 1")
    A("v_add_f32_dpp v10, v10, v10 row_bcast:15 row_mask:0xa bank_mask:0xf")
    A("s_nop 1")
    A("v_mul_f32 v10, 0xbfb8aa3b, v10")
    A("v_exp_f32 v10, v10")
    A("s_nop 0")
    A("v_add_f32 v10, 1.0, v10")
    A("v_rcp_f32 v10, v10")
    A("v_lshlrev_b32 v22, 2, v22")
    A("v_and_b32 v6, 31, v2")
    A("v_cmp_eq_u32 vcc, 31, v6")
    A("s_and_saveexec_b64 s[50:51], vcc")
    A(f"s_cbranch_execz {name}_gate_done")
    A(f"s_mov_b32 s{sT}, {GG}")
    A(f"buffer_store_dword v10, v22, {sr(SRD_WS,4)}, s{sT} offen")
    A.label(f"{name}_gate_done")
    A("s_mov_b64 exec, s[50:51]")
    A.c("side job: fill the O' hand-off area with the not-ready pattern (2560 B per loader wave)")
    A("v_mov_b32 v12, -1")
    for j in range(1, 4): A(f"v_mov_b32 v{12+j}, -1")
    A("v_lshlrev_b32 v3, 4, v2")
    A(f"s_mul_i32 s{sT}, s{sL}, 2560")
    A(f"s_add_u32 s{sT}, s{sT}, {OF}")
    A(f"buffer_store_dwordx4 v[12:15], v3, {sr(SRD_WS,4)}, s{sT} offen")
    A(f"buffer_store_dwordx4 v[12:15], v3, {sr(SRD_WS,4)}, s{sT} offen offset:1024")
    A("s_mov_b32 exec_hi, 0")
    A(f"buffer_store_dwordx4 v[12:15], v3, {sr(SRD_WS,4)}, s{sT} offen offset:2048")
    A("s_mov_b64 exec, -1")
    A.c("side job (V blocks): rows 20..31 of every V^T fragment: row 20 = ones (row sums), rows 21..31 = zeros")
    A(f"s_cmp_eq_u32 s{sTYPE}, 2")
    A(f"s_cbranch_scc0 {name}_novpad")
    A("v_and_b32 v3, 15, v2")
    A("v_add_u32 v3, 16, v3")
    A("v_lshrrev_b32 v4, 4, v2")
    A("v_lshlrev_b32 v4, 9, v4")
    A("v_lshl_add_u32 v4, v3, 4, v4")
    A("v_cmp_gt_u32 vcc, 20, v3")
    A("v_mov_b32 v5, 0x7ff00000")
    A("v_mov_b32 v12, 0x3f803f80")
    A("v_cndmask_b32 v4, v4, v5, vcc")
    A("v_cmp_eq_u32 vcc, 20, v3")
    A("s_nop 1")
    A("v_cndmask_b32 v12, 0, v12, vcc")
    A("s_nop 0")
    for j in range(1, 4): A(f"v_mov_b32 v{12+j}, v12")
    A(f"s_sub_u32 s{sT}, s{sCB}, 8")
    A(f"s_lshl_b32 s{sT}, s{sT}, 3")
    A(f"s_lshl_b32 s{sT2}, s{sW}, 1")
    A(f"s_add_u32 s{sT}, s{sT}, s{sT2}")
    A(f"s_mul_i32 s{sT}, s{sT}, {HS_KV}")
    A(f"s_lshl_b32 s{sT2}, s{sRB}, 1")
    A(f"s_mul_i32 s{sT2}, s{sT2}, {CH}")
    A(f"s_add_u32 s{sT}, s{sT}, s{sT2}")
    A(f"s_add_u32 s{sT}, s{sT}, {KV+5120}")
    for hh in range(2):
        for ck in range(2):
            for tl in range(4):
                A(f"s_add_u32 s{sT2}, s{sT}, {hh*HS_KV + ck*CH + tl*2048}")
                A(f"buffer_store_dwordx4 v[12:15], v4, {sr(SRD_WS,4)}, s{sT2} offen")
    A.label(f"{name}_novpad")
    A.c("side job: transpose Wd / Wo blocks into MFMA A-fragment order (through LDS, ring is free now)")
    A("v_lshlrev_b32 v10, 4, v2")
    A(f"s_lshl_b32 s{sT}, s{sW}, 12")
    A(f"v_add_u32 v11, s{sT}, v10")
    for m in range(3):
        A(f"ds_write_b128 v11, {vr(vPW+4*m,4)} offset:{1024*m}")
    A("v_lshrrev_b32 v7, 5, v2")
    A("v_bfe_u32 v8, v2, 2, 2")
    A("v_bfe_u32 v9, v2, 4, 1")
    A("v_lshlrev_b32 v9, 5, v9")
    A("v_and_b32 v4, 3, v2")
    A("v_lshl_add_u32 v9, v4, 3, v9")
    A(f"v_add_u32 v9, s{sT}, v9")
    A("v_lshl_add_u32 v5, v7, 2, v8")
    A("v_lshl_add_u32 v5, v5, 6, v9")
    A("v_lshl_add_u32 v6, v7, 3, v8")
    A("v_lshl_add_u32 v6, v6, 6, v9")
    A("s_waitcnt lgkmcnt(0)")
    for m in range(3):
        if m == 2:
            A(f"s_cmp_ge_u32 s{sN+m}, 2720")
            A(f"s_cbranch_scc1 {name}_fin")
        A(f"ds_read_b64_tr_b16 {vr(12+4*m,2)}, v5 offset:{1024*m}")
        A(f"ds_read_b64_tr_b16 {vr(14+4*m,2)}, v5 offset:{1024*m+512}")
        A(f"s_lshl_b32 s{sT}, s{sN+m}, 10")
        A(f"s_add_u32 s{sT}, s{sT}, {WDF}")
        A("s_waitcnt lgkmcnt(0)")
        A(f"buffer_store_dwordx4 {vr(12+4*m,4)}, v10, {sr(SRD_WS,4)}, s{sT} offen")
    A.label(f"{name}_fin")
    if asmlib.PROFILE:
        A("s_waitcnt vmcnt(0)")
        if SP:
            A("v_readfirstlane_b32 s83, v0")
            A("s_nop 3")
            A("s_cmp_ge_u32 s83, 256")
            A(f"s_cbranch_scc1 {name}_fin_sp")
        stamp(A, 3)
        if SP:
            A(f"s_branch {name}_fin_sp2")
            A.label(f"{name}_fin_sp")
            A("s_mov_b32 s92, s66")
            A.label(f"{name}_fin_sp2")
        A("v_readfirstlane_b32 s83, v0")
        A("s_nop 3")
        A("s_lshr_b32 s83, s83, 6")
        stamp_flush(A, 0, SRD_WS, 83, 4)
    A.label(f"{name}_end")
    A("s_endpgm")
    return 256
```

```python
from asmlib import *
import asmlib
from layout import *

K2_LDS = 4*CH
K3_LDS = 81920

def ws_srd(A, srd, sWS):
    A(f"s_mov_b32 s{srd}, s{sWS}")
    A(f"s_and_b32 s{srd+1}, s{sWS+1}, 0xffff")
    A(f"s_mov_b32 s{srd+2}, {WS_SIZE}")
    A(f"s_mov_b32 s{srd+3}, 0x20000")

def fgemm(A, name, SRD, sA0, sB0, vOff, nsteps, NS, R, ACC, FR, rolled, sCNT, sT):
    def slot(s): return FR + (s % R)*24
    def load(s, which, imm):
        b = slot(s)
        if which < 5:
            return f"buffer_load_dwordx4 {vr(b+4*which,4)}, v{vOff}, {sr(SRD,4)}, s{sA0+which} offen offset:{imm}"
        return f"buffer_load_dwordx4 {vr(b+20,4)}, v{vOff}, {sr(SRD,4)}, s{sB0} offen offset:{imm}"
    def mf(s, mt):
        b = slot(s)
        d = vr(ACC+16*mt,16)
        return f"v_mfma_f32_32x32x16_bf16 {d}, {vr(b+4*mt,4)}, {vr(b+20,4)}, {d}"
    if not rolled:
        base = 0
        def imm_for(s):
            return (s - base)*1024
        issued = 0
        def issue(s):
            nonlocal base
            if s - base >= 4:
                A(f"v_add_u32 v{vOff}, 4096, v{vOff}")
                base += 4
            for w in (5, 0, 1, 2, 3, 4):
                A(load(s, w, imm_for(s)))
        for s in range(min(R, nsteps)):
            issue(s)
        for s in range(nsteps):
            left = min(nsteps-1, s+R-1) - s
            A(f"s_waitcnt vmcnt({6*left})")
            for mt in range(5): A(mf(s, mt))
            if s + R < nsteps:
                issue(s+R)
    else:
        assert nsteps % R == 0 and R <= 4
        for s in range(R):
            for w in (5, 0, 1, 2, 3, 4):
                A(load(s, w, s*1024))
        A(f"s_mov_b32 s{sCNT}, {nsteps//R - 1}")
        A.label(f"{name}_floop")
        A(f"v_add_u32 v{vOff}, {R*1024}, v{vOff}")
        for s in range(R):
            A(f"s_waitcnt vmcnt({6*(R-1)})")
            for mt in range(5):
                A(mf(s, mt))
                A(load(s, mt, s*1024))
            A(load(s, 5, s*1024))
        A(f"s_sub_u32 s{sCNT}, s{sCNT}, 1")
        A(f"s_cmp_lg_u32 s{sCNT}, 0")
        A(f"s_cbranch_scc1 {name}_floop")
        for s in range(R):
            A(f"s_waitcnt vmcnt({6*(R-1-s)})")
            for mt in range(5): A(mf(s, mt))

def reduce_round(A, ACC, mts, vW, vRd, SUM, vTmp):
    T = len(mts)
    for q in range(4):
        for t, mt in enumerate(mts):
            A(f"ds_write_b128 v{vW}, {vr(ACC+16*mt+4*q,4)} offset:{(q*T+t)*1024}")
    A("s_waitcnt lgkmcnt(0)")
    A("s_barrier")
    for t, mt in enumerate(mts):
        for s in range(4):
            A(f"ds_read_b128 {vr(vTmp+4*s,4)}, v{vRd} offset:{(s*4*T+t)*1024}")
        A("s_waitcnt lgkmcnt(0)")
        d = SUM + 4*mt
        for j in range(4):
            A(f"v_add_f32 v{d+j}, v{vTmp+j}, v{vTmp+4+j}")
            A(f"v_add_f32 v{vTmp+8+j}, v{vTmp+8+j}, v{vTmp+12+j}")
        for j in range(4):
            A(f"v_add_f32 v{d+j}, v{d+j}, v{vTmp+8+j}")

def gen_k2(A, name):
    kernel_header(A, name)
    sWS = 4; SRD = 8; sW = 12; sT, sT2, sT3 = 13, 14, 15
    A(f"s_cmp_ge_u32 s2, {asmlib.OPT.get('k2max', 768)}")
    A(f"s_cbranch_scc1 {name}_end")
    stamp(A, 0)
    A(f"s_load_dwordx2 {sr(sWS,2)}, s[0:1], {KA_WS}")
    A("v_lshrrev_b32 v1, 6, v0")
    A("v_and_b32 v2, 63, v0")
    A(f"v_readfirstlane_b32 s{sW}, v1")
    A("s_waitcnt lgkmcnt(0)")
    ws_srd(A, SRD, sWS)
    A("s_cmp_ge_u32 s2, 512")
    A(f"s_cbranch_scc1 {name}_ffn2" if not asmlib.OPT.get("noffn2") else f"s_cbranch_scc1 {name}_end")
    sHEAD, sQT, sKV, sM0, sCNT, sC = 16, 17, 18, 19, 20, 21
    S = [16, 32]; P = 48; O = 56; Q16 = 72; Q4 = 76; K16 = 78; K4 = 82; V1 = 84; V2 = 88
    vL16, vK4a = 4, 5
    A(f"s_and_b32 s{sT}, s2, 7")
    A(f"s_lshl_b32 s{sT}, s{sT}, 2")
    A(f"s_lshr_b32 s{sT2}, s2, 3")
    A(f"s_and_b32 s{sT3}, s{sT2}, 3")
    A(f"s_add_u32 s{sHEAD}, s{sT}, s{sT3}")
    A(f"s_lshr_b32 s{sT2}, s{sT2}, 2")
    A(f"s_lshl_b32 s{sT2}, s{sT2}, 2")
    A(f"s_add_u32 s{sQT}, s{sT2}, s{sW}")
    A(f"v_lshlrev_b32 v{vL16}, 4, v2")
    A("v_and_b32 v3, 31, v2")
    A(f"v_lshlrev_b32 v{vK4a}, 3, v3")
    A(f"v_add_u32 v{vK4a}, 1024, v{vK4a}")
    A(f"s_mul_i32 s{sKV}, s{sHEAD}, {HS_KV}")
    A(f"s_mul_i32 s{sM0}, s{sW}, 3072")
    A(f"s_add_u32 s{sKV}, s{sKV}, s{sM0}")
    A(f"s_add_u32 s{sKV}, s{sKV}, {KV}")
    def dma(buf, tag):
        A(f"s_add_u32 m0, s{sM0}, {buf*CH}")
        A("s_nop 0")
        for i in range(3):
            A(f"buffer_load_dwordx4 v{vL16}, {sr(SRD,4)}, s{sKV} offen offset:{i*1024} lds")
        A(f"s_cmp_eq_u32 s{sW}, 3")
        A(f"s_cbranch_scc0 {name}_dma_{tag}")
        A(f"buffer_load_dwordx4 v{vL16}, {sr(SRD,4)}, s{sKV} offen offset:3072 lds")
        A.label(f"{name}_dma_{tag}")
        A(f"s_add_u32 s{sKV}, s{sKV}, {CH}")
    dma(0, "p0"); dma(1, "p1")
    A(f"s_mul_i32 s{sT}, s{sHEAD}, {HS_Q}")
    A(f"s_mul_i32 s{sT2}, s{sQT}, 1280")
    A(f"s_add_u32 s{sT}, s{sT}, s{sT2}")
    if QF: A(f"s_add_u32 s{sT}, s{sT}, {QF}")
    A(f"buffer_load_dwordx4 {vr(Q16,4)}, v{vL16}, {sr(SRD,4)}, s{sT} offen")
    A(f"buffer_load_dwordx2 {vr(Q4,2)}, v{vK4a}, {sr(SRD,4)}, s{sT} offen")
    for r in range(O, O+16): A(f"v_mov_b32 v{r}, 0")
    for r in range(P, P+8): A(f"v_mov_b32 v{r}, 0")
    for r in range(V2, V2+4): A(f"v_mov_b32 v{r}, 0")
    for r in range(92, 100): A(f"v_mov_b32 v{r}, 0")
    A("v_cmp_lt_u32 vcc, 31, v2")
    A("s_nop 1")
    A("s_waitcnt vmcnt(0)")
    A(f"v_cndmask_b32 v{Q4}, v{Q4}, v{P}, vcc")
    A(f"v_cndmask_b32 v{Q4+1}, v{Q4+1}, v{P}, vcc")
    A("s_barrier")
    def koff(t): return ((t >> 2) & 3)*CH + (t & 3)*1280
    def voff(t, f): return ((t >> 2) & 3)*CH + 5120 + (t & 3)*2048 + f*1024
    rdK16 = lambda t: f"ds_read_b128 {vr(K16,4)}, v{vL16} offset:{koff(t)}"
    rdK4 = lambda t: f"ds_read_b64 {vr(K4,2)}, v{vK4a} offset:{koff(t)}"
    rdV1 = lambda t: f"ds_read_b128 {vr(V1,4)}, v{vL16} offset:{voff(t,0)}"
    rdV2 = lambda t: f"ds_read_b128 {vr(V2,4)}, v{vL16} offset:{voff(t,1)}"
    mS1 = lambda d: f"v_mfma_f32_32x32x16_bf16 {vr(d,16)}, {vr(K16,4)}, {vr(Q16,4)}, 0"
    mS2 = lambda d: f"v_mfma_f32_32x32x8_bf16 {vr(d,16)}, {vr(K4,2)}, {vr(Q4,2)}, {vr(d,16)}"
    mP1 = f"v_mfma_f32_32x32x16_bf16 {vr(O,16)}, {vr(V1,4)}, {vr(P,4)}, {vr(O,16)}"
    mP2 = f"v_mfma_f32_32x32x16_bf16 {vr(O,16)}, {vr(V2,4)}, {vr(P+4,4)}, {vr(O,16)}"
    A(rdK16(0)); A(rdK4(0))
    A("s_waitcnt lgkmcnt(0)")
    A(mS1(S[0]))
    A(rdK16(1))
    A("s_nop 7"); A("s_nop 7")
    A(mS2(S[0]))
    A(rdK4(1)); A(rdV1(0))
    A("s_waitcnt lgkmcnt(0)")
    A("s_nop 7"); A("s_nop 7")
    A(f"s_mov_b32 s{sCNT}, 0")
    stamp(A, 1)
    A(".p2align 6")
    A.label(f"{name}_aloop")
    E = [92, 96]
    def quarter(cur, q, mf, rd):
        e = E[q & 1]; pe = E[(q+1) & 1]; pp = P + 2*((q-1) & 3)
        if not asmlib.OPT.get("nolds"):
            A("s_waitcnt lgkmcnt(3)"); A(mf); A(rd)
        else:
            A(mf)
        A(f"v_cvt_pk_bf16_f32 v{pp}, v{pe}, v{pe+1}")
        A(f"v_exp_f32 v{e}, v{cur+4*q}")
        A(f"v_exp_f32 v{e+1}, v{cur+4*q+1}")
        A(f"v_cvt_pk_bf16_f32 v{pp+1}, v{pe+2}, v{pe+3}")
        A(f"v_exp_f32 v{e+2}, v{cur+4*q+2}")
        A(f"v_exp_f32 v{e+3}, v{cur+4*q+3}")
    for t in range(16):
        cur, nxt = S[t & 1], S[(t+1) & 1]
        if (t & 3) == 2:
            c = t >> 2
            if not asmlib.OPT.get("nobar"):
                A("s_waitcnt vmcnt(0)")
                A("s_barrier")
            if c >= 2:
                A(f"s_cmp_eq_u32 s{sCNT}, 3")
                A(f"s_cbranch_scc1 {name}_nodma_{t}")
            dma((c+2) & 3, f"t{t}")
            if c >= 2:
                A.label(f"{name}_nodma_{t}")
        quarter(cur, 0, mS1(nxt), rdK16(t+2))
        quarter(cur, 1, mP2, rdV2(t))
        quarter(cur, 2, mS2(nxt), rdK4(t+2))
        quarter(cur, 3, mP1, rdV1(t+1))
    A(f"s_add_u32 s{sCNT}, s{sCNT}, 1")
    A(f"s_cmp_lt_u32 s{sCNT}, 4")
    A(f"s_cbranch_scc1 {name}_aloop")
    A("s_nop 1")
    A(f"v_cvt_pk_bf16_f32 v{P+6}, v{E[1]}, v{E[1]+1}")
    A(f"v_cvt_pk_bf16_f32 v{P+7}, v{E[1]+2}, v{E[1]+3}")
    A("s_waitcnt lgkmcnt(0)")
    A("s_nop 1")
    A(mP2)
    A("s_nop 15")
    stamp(A, 2)
    vLs, vR, vC, vAd, vTok = 16, 17, 18, 19, 20
    A(f"v_mov_b32 v{vLs}, v{O+8}")
    A(f"v_mov_b32 v{vR}, v{O+8}")
    A("s_nop 1")
    A(f"v_permlane32_swap_b32 v{vLs}, v{vR}")
    A("s_nop 1")
    A(f"v_rcp_f32 v{vR}, v{vR}")
    A("v_and_b32 v3, 31, v2")
    A(f"v_lshlrev_b32 v{vTok}, 4, v3")
    A("v_lshrrev_b32 v6, 5, v2")
    for r in range(12): A(f"v_mul_f32 v{O+r}, v{O+r}, v{vR}")
    for j in range(6): A(f"v_cvt_pk_bf16_f32 v{24+j}, v{O+2*j}, v{O+2*j+1}")
    A(f"s_mul_i32 s{sT}, s{sQT}, 40960")
    A(f"s_add_u32 s{sT}, s{sT}, {OF}")
    A(f"s_mul_i32 s{sT2}, s{sHEAD}, 5")
    for g, pb in enumerate((0, 2, 4)):
        A(f"s_add_u32 s{sT3}, s{sT2}, {pb}")
        A(f"v_add_u32 v{vC}, s{sT3}, v6")
        A(f"v_lshrrev_b32 v{vAd}, 1, v{vC}")
        A(f"v_lshlrev_b32 v{vAd}, 9, v{vAd}")
        A(f"v_and_b32 v{vC}, 1, v{vC}")
        A(f"v_lshl_add_u32 v{vAd}, v{vC}, 3, v{vAd}")
        A(f"v_add_u32 v{vAd}, v{vAd}, v{vTok}")
        if g == 2:
            A("s_mov_b32 exec_hi, 0")
        A(f"buffer_store_dwordx2 {vr(24+2*g,2)}, v{vAd}, {sr(SRD,4)}, s{sT} offen")
    A("s_mov_b64 exec, -1")
    A(f"s_branch {name}_fin")

    A.label(f"{name}_ffn2")
    sTT, sCBK = 16, 17
    sA0, sB0, sCN = 20, 25, 26
    ACC = 88; FR = 16
    vOff = 4
    A("s_sub_u32 s3, s2, 512")
    A(f"s_and_b32 s{sT}, s3, 7")
    A(f"s_lshr_b32 s{sT2}, s3, 3")
    A(f"s_and_b32 s{sT3}, s{sT2}, 7")
    A(f"s_lshl_b32 s{sT}, s{sT}, 3")
    A(f"s_add_u32 s{sTT}, s{sT}, s{sT3}")
    A(f"s_lshr_b32 s{sCBK}, s{sT2}, 3")
    A(f"v_lshlrev_b32 v{vOff}, 4, v2")
    A(f"s_mul_i32 s{sT}, s{sW}, {24*1024}")
    A(f"s_mul_i32 s{sT2}, s{sCBK}, {5*96*1024}")
    A(f"s_add_u32 s{sT2}, s{sT2}, s{sT}")
    A(f"s_add_u32 s{sA0}, s{sT2}, {WDF}")
    for mt in range(1, 5): A(f"s_add_u32 s{sA0+mt}, s{sA0+mt-1}, {96*1024}")
    A(f"s_mul_i32 s{sT2}, s{sTT}, {96*1024}")
    A(f"s_add_u32 s{sT2}, s{sT2}, s{sT}")
    A(f"s_add_u32 s{sB0}, s{sT2}, {HF}")
    for r in range(ACC, ACC+80): A(f"v_mov_b32 v{r}, 0")
    stamp(A, 1)
    fgemm(A, name, SRD, sA0, sB0, vOff, 24, 96, 3, ACC, FR, True, sCN, sT)
    A("s_nop 15")
    stamp(A, 2)
    vW, vRd, SUM, vTmp = 5, 6, 16, 40
    A("v_lshlrev_b32 v7, 4, v2")
    for rnd, mts in enumerate(((0, 1, 2), (3, 4))):
        T = len(mts)
        A(f"s_mul_i32 s{sT}, s{sW}, {4*T*1024}")
        A(f"v_add_u32 v{vW}, s{sT}, v7")
        A(f"s_mul_i32 s{sT}, s{sW}, {T*1024}")
        A(f"v_add_u32 v{vRd}, s{sT}, v7")
        if rnd: A("s_barrier")
        reduce_round(A, ACC, mts, vW, vRd, SUM, vTmp)
    A(f"s_lshl_b32 s{sT}, s{sTT}, 2")
    A(f"s_add_u32 s{sT}, s{sT}, s{sCBK}")
    A(f"s_mul_i32 s{sT}, s{sT}, {5*2048}")
    A(f"s_lshl_b32 s{sT2}, s{sW}, 9")
    A(f"s_add_u32 s{sT}, s{sT}, s{sT2}")
    A(f"s_add_u32 s{sT}, s{sT}, {BF}")
    A("v_lshlrev_b32 v7, 3, v2")
    for mt in range(5):
        d = 40 + 2*mt
        A(f"v_cvt_pk_bf16_f32 v{d}, v{SUM+4*mt}, v{SUM+4*mt+1}")
        A(f"v_cvt_pk_bf16_f32 v{d+1}, v{SUM+4*mt+2}, v{SUM+4*mt+3}")
        if mt in (2, 4):
            A(f"s_add_u32 s{sT}, s{sT}, 4096")
        A(f"buffer_store_dwordx2 {vr(d,2)}, v7, {sr(SRD,4)}, s{sT} offen offset:{(mt*2048) % 4096}")
    A.label(f"{name}_fin")
    if asmlib.PROFILE:
        A("s_waitcnt vmcnt(0)")
        stamp(A, 3)
        stamp_flush(A, 1, SRD, sW, 4)
    A.label(f"{name}_end")
    A("s_endpgm")
    return 168

def gen_k3(A, name):
    kernel_header(A, name)
    sWS = 4; sOUT = 6; SRD = 8; sW = 12; sT, sT2, sT3 = 13, 14, 15
    SRD_O = 28
    A("s_cmp_ge_u32 s2, 256")
    A(f"s_cbranch_scc1 {name}_end")
    stamp(A, 0)
    A(f"s_load_dwordx2 {sr(sWS,2)}, s[0:1], {KA_WS}")
    A(f"s_load_dwordx2 {sr(sOUT,2)}, s[0:1], {KA_OUT}")
    A("v_lshrrev_b32 v1, 6, v0")
    A("v_and_b32 v2, 63, v0")
    A(f"v_readfirstlane_b32 s{sW}, v1")
    A("s_waitcnt lgkmcnt(0)")
    ws_srd(A, SRD, sWS)
    A(f"s_mov_b32 s{SRD_O}, s{sOUT}")
    A(f"s_and_b32 s{SRD_O+1}, s{sOUT+1}, 0xffff")
    A(f"s_mov_b32 s{SRD_O+2}, {2048*1280}")
    A(f"s_mov_b32 s{SRD_O+3}, 0x20000")
    sTT, sCBK = 16, 17
    sA0, sB0, sCN = 20, 25, 26
    ACC = 136; FR = 16
    vOff = 4
    A(f"s_and_b32 s{sT}, s2, 7")
    A(f"s_lshr_b32 s{sT2}, s2, 3")
    A(f"s_and_b32 s{sT3}, s{sT2}, 7")
    A(f"s_lshl_b32 s{sT}, s{sT}, 3")
    A(f"s_add_u32 s{sTT}, s{sT}, s{sT3}")
    A(f"s_lshr_b32 s{sCBK}, s{sT2}, 3")
    A(f"v_lshlrev_b32 v{vOff}, 4, v2")
    A(f"s_mul_i32 s{sT}, s{sW}, {10*1024}")
    A(f"s_mul_i32 s{sT2}, s{sCBK}, {5*40*1024}")
    A(f"s_add_u32 s{sT2}, s{sT2}, s{sT}")
    A(f"s_add_u32 s{sA0}, s{sT2}, {WOF}")
    for mt in range(1, 5): A(f"s_add_u32 s{sA0+mt}, s{sA0+mt-1}, {40*1024}")
    A(f"s_mul_i32 s{sT2}, s{sTT}, {40*1024}")
    A(f"s_add_u32 s{sT2}, s{sT2}, s{sT}")
    A(f"s_add_u32 s{sB0}, s{sT2}, {OF}")
    vB = 216
    vG = 226
    A(f"s_lshl_b32 s{sT}, s{sTT}, 2")
    A(f"s_add_u32 s{sT}, s{sT}, s{sCBK}")
    A(f"s_mul_i32 s{sT}, s{sT}, {5*2048}")
    A(f"s_lshl_b32 s{sT2}, s{sW}, 9")
    A(f"s_add_u32 s{sT}, s{sT}, s{sT2}")
    A(f"s_add_u32 s{sT}, s{sT}, {BF}")
    A("v_lshlrev_b32 v7, 3, v2")
    for mt in range(5):
        if mt == 2: A(f"s_add_u32 s{sT}, s{sT}, 4096")
        if mt == 4: A(f"s_add_u32 s{sT}, s{sT}, 4096")
        A(f"buffer_load_dwordx2 {vr(vB+2*mt,2)}, v7, {sr(SRD,4)}, s{sT} offen offset:{(mt*2048) % 4096}")
    A("v_and_b32 v3, 31, v2")
    A("v_lshlrev_b32 v8, 2, v3")
    A(f"s_lshl_b32 s{sT}, s{sTT}, 7")
    A(f"s_add_u32 s{sT}, s{sT}, {GG}")
    A(f"buffer_load_dword v{vG}, v8, {sr(SRD,4)}, s{sT} offen")
    for r in range(ACC, ACC+80): A(f"v_mov_b32 v{r}, 0")
    stamp(A, 1)
    fgemm(A, name, SRD, sA0, sB0, vOff, 10, 40, 5, ACC, FR, False, sCN, sT)
    A("s_nop 15")
    stamp(A, 2)
    vW, vRd, SUM, vTmp = 5, 6, 16, 40
    A("v_lshlrev_b32 v7, 4, v2")
    T = 5
    A(f"s_mul_i32 s{sT}, s{sW}, {4*T*1024}")
    A(f"v_add_u32 v{vW}, s{sT}, v7")
    A(f"s_mul_i32 s{sT}, s{sW}, {T*1024}")
    A(f"v_add_u32 v{vRd}, s{sT}, v7")
    for q in range(4):
        for mt in range(5):
            A(f"ds_write_b128 v{vW}, {vr(ACC+16*mt+4*q,4)} offset:{(q*T+mt)*1024}")
    A("s_waitcnt lgkmcnt(0)")
    A("s_barrier")
    A(f"v_add_u32 v9, {2*4*T*1024}, v{vRd}")
    for mt in range(5):
        for s in range(4):
            A(f"ds_read_b128 {vr(vTmp+4*s,4)}, v{vRd if s < 2 else 9} offset:{((s % 2)*4*T+mt)*1024}")
        A("s_waitcnt lgkmcnt(0)")
        d = SUM + 4*mt
        for j in range(4):
            A(f"v_add_f32 v{d+j}, v{vTmp+j}, v{vTmp+4+j}")
            A(f"v_add_f32 v{vTmp+8+j}, v{vTmp+8+j}, v{vTmp+12+j}")
        for j in range(4):
            A(f"v_add_f32 v{d+j}, v{d+j}, v{vTmp+8+j}")
    A(f"s_lshl_b32 s{sT}, s{sTT}, 5")
    A(f"v_add_u32 v3, s{sT}, v3")
    A("v_mul_u32_u24 v3, 1280, v3")
    A("v_lshrrev_b32 v6, 5, v2")
    A("v_lshl_add_u32 v3, v6, 3, v3")
    A(f"s_mul_i32 s{sT}, s{sCBK}, 320")
    A(f"s_lshl_b32 s{sT2}, s{sW}, 4")
    A(f"s_add_u32 s{sT}, s{sT}, s{sT2}")
    for mt in range(5):
        d = SUM + 4*mt
        b = vB + 2*mt
        A(f"v_lshlrev_b32 v60, 16, v{b}")
        A(f"v_and_b32 v61, 0xffff0000, v{b}")
        A(f"v_lshlrev_b32 v62, 16, v{b+1}")
        A(f"v_and_b32 v63, 0xffff0000, v{b+1}")
        for j in range(4):
            A(f"v_sub_f32 v{d+j}, v{d+j}, v{60+j}")
        for j in range(4):
            A(f"v_fma_f32 v{d+j}, v{vG}, v{d+j}, v{60+j}")
        o = 64 + 2*mt
        A(f"v_cvt_pk_bf16_f32 v{o}, v{d}, v{d+1}")
        A(f"v_cvt_pk_bf16_f32 v{o+1}, v{d+2}, v{d+3}")
        A(f"buffer_store_dwordx2 {vr(o,2)}, v3, {sr(SRD_O,4)}, s{sT} offen offset:{mt*64}")
    if asmlib.PROFILE:
        A("s_waitcnt vmcnt(0)")
        stamp(A, 3)
        stamp_flush(A, 2, SRD, sW, 4)
    A.label(f"{name}_end")
    A("s_endpgm")
    return 232
```

```python
from asmlib import *
import asmlib
from layout import *
from k23 import ws_srd

K2_LDS = 8*CH + 24576

class VmTrack:
    def __init__(self):
        self.seq = []
        self.need = {}
    def issue(self, tag): self.seq.append(tag)
    def wait(self, wid, tags):
        idx = [i for i, t in enumerate(self.seq) if t in tags]
        if not idx: return
        n = len(self.seq) - 1 - max(idx)
        self.need[wid] = min(self.need.get(wid, 63), n)

def gen_k2(A, name, fused=False):
    kernel_header(A, name)
    sWS = 4; SRD = 8; sW = 12; sT, sT2, sT3 = 13, 14, 15
    sHEAD, sQT, sKV, sM0, sCNT, sG, sHF = 16, 17, 18, 19, 20, 21, 22
    sTT, sCBK = 23, 24
    sA0, sB0 = 26, 31
    A("s_cmp_ge_u32 s2, 256")
    A(f"s_cbranch_scc1 {name}_end")
    TP = asmlib.OPT.get("tailprof")
    if not TP: stamp(A, 0)
    A(f"s_load_dwordx2 {sr(sWS,2)}, s[0:1], {KA_WS}")
    A(f"s_load_dwordx2 s[38:39], s[0:1], {KA_DBG}")
    A(f"s_load_dwordx2 s[48:49], s[0:1], {KA_OUT}")
    A("v_lshrrev_b32 v1, 6, v0")
    A("v_and_b32 v2, 63, v0")
    A(f"v_readfirstlane_b32 s{sW}, v1")
    A(f"s_and_b32 s{sT}, s2, 7")
    A(f"s_lshr_b32 s{sT2}, s2, 3")
    A(f"s_and_b32 s{sT3}, s{sT2}, 3")
    A(f"s_lshl_b32 s{sHEAD}, s{sT}, 2")
    A(f"s_add_u32 s{sHEAD}, s{sHEAD}, s{sT3}")
    A(f"s_and_b32 s{sG}, s{sW}, 3")
    A(f"s_lshr_b32 s{sHF}, s{sW}, 2")
    A(f"s_lshr_b32 s{sQT}, s{sT2}, 2")
    A(f"s_lshl_b32 s{sQT}, s{sQT}, 3")
    A(f"s_lshl_b32 s{sT3}, s{sG}, 1")
    A(f"s_add_u32 s{sQT}, s{sQT}, s{sT3}")
    A(f"s_lshl_b32 s{sTT}, s{sT}, 3")
    A(f"s_and_b32 s{sT3}, s{sT2}, 7")
    A(f"s_add_u32 s{sTT}, s{sTT}, s{sT3}")
    A(f"s_lshr_b32 s{sCBK}, s{sT2}, 3")
    A("s_waitcnt lgkmcnt(0)")
    ws_srd(A, SRD, sWS)
    if asmlib.OPT.get("lone"):
        A(f"s_cmp_ge_u32 s{sW}, 4")
        A(f"s_cbranch_scc1 {name}_end")
    SA, SB = 16, 32; P = 48; OA, OB = 56, 72
    Q16A, Q4A, Q16B, Q4B = 88, 92, 94, 98
    K16 = 100; K4 = [104, 106]; V1 = 108; V2 = 112; E = [116, 120]
    FR = 124; ACC = 172
    vL16, vKV, vK4a, vDma, vFo = 4, 5, 6, 7, 8
    A(f"v_lshlrev_b32 v{vL16}, 4, v2")
    A(f"s_mul_i32 s{sT}, s{sHF}, {4*CH}")
    A(f"v_add_u32 v{vKV}, s{sT}, v{vL16}")
    A("v_and_b32 v3, 31, v2")
    A(f"v_lshlrev_b32 v9, 3, v3")
    A(f"v_add_u32 v9, 1024, v9")
    A(f"v_add_u32 v{vK4a}, s{sT}, v9")
    A(f"v_mov_b32 v{vDma}, v{vL16}")
    A(f"v_mov_b32 v{vFo}, v{vL16}")
    A(f"s_mul_i32 s{sM0}, s{sG}, 3072")
    A(f"s_add_u32 s{sM0}, s{sM0}, s{sT}")
    A(f"s_mul_i32 s{sKV}, s{sHEAD}, {HS_KV}")
    A(f"s_mul_i32 s{sT2}, s{sHF}, {8*CH}")
    A(f"s_add_u32 s{sKV}, s{sKV}, s{sT2}")
    A(f"s_mul_i32 s{sT2}, s{sG}, 3072")
    A(f"s_add_u32 s{sKV}, s{sKV}, s{sT2}")
    A(f"s_add_u32 s{sKV}, s{sKV}, {KV}")
    vm = VmTrack()
    def dma_piece(chunk, i, emit):
        if emit and not (asmlib.OPT.get("nodma") and chunk > 2):
            if i == 0:
                A(f"s_add_u32 m0, s{sM0}, {(chunk & 3)*CH}")
                A("s_nop 0")
            A(f"buffer_load_dwordx4 v{vDma}, {sr(SRD,4)}, s{sKV} offen offset:{i*1024} lds")
            if i == 3:
                A(f"s_add_u32 s{sKV}, s{sKV}, {CH}")
        vm.issue(("dma", chunk))
    def dma(chunk, emit):
        for i in range(4): dma_piece(chunk, i, emit)
    A(f"s_mul_i32 s{sT}, s{sW}, {12*1024}")
    A(f"s_mul_i32 s{sT2}, s{sCBK}, {5*96*1024}")
    A(f"s_add_u32 s{sT2}, s{sT2}, s{sT}")
    A(f"s_add_u32 s{sA0}, s{sT2}, {WDF}")
    for mt in range(1, 5): A(f"s_add_u32 s{sA0+mt}, s{sA0+mt-1}, {96*1024}")
    A(f"s_mul_i32 s{sT2}, s{sTT}, {96*1024}")
    A(f"s_add_u32 s{sT2}, s{sT2}, s{sT}")
    A(f"s_add_u32 s{sB0}, s{sT2}, {HF}")
    def fslot(s): return FR + (s & 1)*24
    def fload(s, which, imm, emit):
        b = fslot(s)
        if emit:
            if which < 5:
                A(f"buffer_load_dwordx4 {vr(b+4*which,4)}, v{vFo}, {sr(SRD,4)}, s{sA0+which} offen offset:{imm}")
            else:
                A(f"buffer_load_dwordx4 {vr(b+20,4)}, v{vFo}, {sr(SRD,4)}, s{sB0} offen offset:{imm}")
        vm.issue(("f", s))
    A(f"s_mul_i32 s{sT}, s{sHEAD}, {HS_Q}")
    A(f"s_mul_i32 s{sT2}, s{sQT}, 1280")
    A(f"s_add_u32 s{sT}, s{sT}, s{sT2}")
    if QF: A(f"s_add_u32 s{sT}, s{sT}, {QF}")
    A(f"buffer_load_dwordx4 {vr(Q16A,4)}, v{vL16}, {sr(SRD,4)}, s{sT} offen")
    A(f"buffer_load_dwordx2 {vr(Q4A,2)}, v9, {sr(SRD,4)}, s{sT} offen")
    A(f"buffer_load_dwordx4 {vr(Q16B,4)}, v{vL16}, {sr(SRD,4)}, s{sT} offen offset:1280")
    A(f"buffer_load_dwordx2 {vr(Q4B,2)}, v9, {sr(SRD,4)}, s{sT} offen offset:1280")
    for i in range(4): vm.issue(("q", 0))
    dma(0, True)
    dma(1, True)
    A("v_cmp_lt_u32 vcc, 31, v2")
    for r in list(range(OA, OA+32)) + list(range(P, P+8)) + list(range(V2, V2+4)) + list(range(E[0], E[0]+8)):
        A(f"v_mov_b32 v{r}, 0")
    vm.wait("pro", [("dma", 0), ("q", 0)])
    A(f"s_waitcnt vmcnt({vm.need['pro']})")
    for r in (Q4A, Q4A+1, Q4B, Q4B+1):
        A(f"v_cndmask_b32 v{r}, v{r}, v{P}, vcc")
    A("s_barrier")
    dma(2, True)
    for s in range(2):
        for w in (5, 0, 1, 2, 3, 4): fload(s, w, s*1024, True)
    A(f"v_add_u32 v{vFo}, 2048, v{vFo}")
    def koff(t): return ((t >> 2) & 3)*CH + (t & 3)*1280
    def voff(t, f): return ((t >> 2) & 3)*CH + 5120 + (t & 3)*2048 + f*1024
    rdK16 = lambda t: f"ds_read_b128 {vr(K16,4)}, v{vKV} offset:{koff(t)}"
    rdK4 = lambda t: f"ds_read_b64 {vr(K4[t & 1],2)}, v{vK4a} offset:{koff(t)}"
    rdV1 = lambda t: f"ds_read_b128 {vr(V1,4)}, v{vKV} offset:{voff(t,0)}"
    rdV2 = lambda t: f"ds_read_b128 {vr(V2,4)}, v{vKV} offset:{voff(t,1)}"
    mS1 = lambda d, q: f"v_mfma_f32_32x32x16_bf16 {vr(d,16)}, {vr(K16,4)}, {vr(q,4)}, 0"
    mS2 = lambda d, q, t: f"v_mfma_f32_32x32x8_bf16 {vr(d,16)}, {vr(K4[t & 1],2)}, {vr(q,2)}, {vr(d,16)}"
    mP1 = lambda o: f"v_mfma_f32_32x32x16_bf16 {vr(o,16)}, {vr(V1,4)}, {vr(P,4)}, {vr(o,16)}"
    mP2 = lambda o: f"v_mfma_f32_32x32x16_bf16 {vr(o,16)}, {vr(V2,4)}, {vr(P+4,4)}, {vr(o,16)}"
    A(rdK16(0)); A(rdK4(0)); A(rdV1(0))
    A("s_waitcnt lgkmcnt(0)")
    A(mS1(SA, Q16A))
    for r in range(ACC, ACC+40): A(f"v_mov_b32 v{r}, 0")
    A(mS2(SA, Q4A, 0))
    for r in range(ACC+40, ACC+80): A(f"v_mov_b32 v{r}, 0")
    A(f"s_mov_b32 s{sCNT}, 0")
    if not TP: stamp(A, 1)
    def valu(cur, q):
        e = E[q & 1]; pe = E[(q+1) & 1]; pp = P + 2*((q-1) & 3)
        return [f"v_cvt_pk_bf16_f32 v{pp}, v{pe}, v{pe+1}",
                f"v_exp_f32 v{e}, v{cur+4*q}", f"v_exp_f32 v{e+1}, v{cur+4*q+1}",
                f"v_cvt_pk_bf16_f32 v{pp+1}, v{pe+2}, v{pe+3}",
                f"v_exp_f32 v{e+2}, v{cur+4*q+2}", f"v_exp_f32 v{e+3}, v{cur+4*q+3}"]
    def body(it, emit):
        def E_(s):
            if not emit: return
            if asmlib.OPT.get("nolds") and (s.startswith("ds_read") or "lgkmcnt" in s): return
            if asmlib.OPT.get("nomfma") and s.startswith("v_mfma"): return
            if asmlib.OPT.get("noexp") and s.startswith("v_exp"): return
            A(s)
        for u in range(32):
            t = u >> 1
            gt = it*16 + t
            ev = (u & 1) == 0
            if ev and (t & 3) == 3:
                c = gt >> 2
                wid = ("bar", u)
                vm.wait(wid, [("dma", c+1)])
                if not asmlib.OPT.get("nobar"):
                    E_(f"s_waitcnt vmcnt(@{wid}@)")
                    E_("s_barrier")
                if u == 14:
                    E_(f"s_cmp_eq_u32 s{sCNT}, 1")
                    E_(f"s_cselect_b32 s{sT}, 0x7fff0000, 0")
                    E_(f"v_or_b32 v{vDma}, s{sT}, v{vL16}")
                pend_dma = c+3
            fs, fmt = divmod(max(u-2, 0), 5)
            gs = it*6 + fs
            dof = u >= 2 and not asmlib.OPT.get("noffn2")
            def ffn():
                if not dof: return
                b = fslot(fs)
                if u == 22:
                    E_(f"s_cmp_eq_u32 s{sCNT}, 1")
                    E_(f"s_cselect_b32 s{sT}, 0x7fff0000, 0")
                    E_(f"v_add_u32 v{vFo}, s{sT}, v{vFo}")
                if fmt == 0:
                    wid = ("f", u)
                    vm.wait(wid, [("f", gs)])
                    E_(f"s_waitcnt vmcnt(@{wid}@)")
                d = vr(ACC+16*fmt,16)
                E_(f"v_mfma_f32_32x32x16_bf16 {d}, {vr(b+4*fmt,4)}, {vr(b+20,4)}, {d}")
                imm = (fs & 1)*1024
                fload(gs+2, fmt, imm, emit)
                if fmt == 4:
                    fload(gs+2, 5, imm, emit)
                    if fs & 1:
                        E_(f"v_add_u32 v{vFo}, 2048, v{vFo}")
            cur = SA if ev else SB
            vv = valu(cur, 0) + valu(cur, 1) + valu(cur, 2) + valu(cur, 3)
            if ev:
                m = {"S1": [mS1(SB, Q16B), rdK16(t+1), rdK4(t+1)],
                     "P2": [mP2(OB), rdV2(t)],
                     "S2": [mS2(SB, Q4B, t)],
                     "P1": ["s_waitcnt lgkmcnt(3)", mP1(OA)]}
            else:
                m = {"S1": ["s_waitcnt lgkmcnt(0)", mS1(SA, Q16A)],
                     "P2": [mP2(OA)],
                     "S2": [mS2(SA, Q4A, t+1)],
                     "P1": [mP1(OB), rdV1(t+1)]}
            if dof: pos = {0: "S1", 5: "F", 10: "P2", 14: "S2", 19: "P1"}
            else:   pos = {0: "S1", 6: "P2", 12: "S2", 18: "P1"}
            dpos = {}
            if ev and (t & 3) == 3: dpos = {3: 0, 16: 1}
            if (not ev) and (t & 3) == 3: dpos = {3: 2, 16: 3}
            for i, l in enumerate(vv):
                if i in dpos:
                    dma_piece((gt >> 2) + 3, dpos[i], emit)
                if i in pos:
                    k = pos[i]
                    if k == "F": ffn()
                    else:
                        for x in m[k]: E_(x)
                E_(l)
    body(0, False); body(1, False)
    start = len(A.lines)
    A(".p2align 6")
    A.label(f"{name}_aloop")
    saved = (list(vm.seq), dict(vm.need))
    body(0, True)
    vm.seq, vm.need = saved
    for i in range(start, len(A.lines)):
        l = A.lines[i]
        if "@" in l:
            key = eval(l.split("@")[1])
            A.lines[i] = l.split("@")[0] + str(vm.need[key]) + l.split("@")[2]
    A(f"s_add_u32 s{sCNT}, s{sCNT}, 1")
    A(f"s_cmp_lt_u32 s{sCNT}, 2")
    A(f"s_cbranch_scc1 {name}_aloop")
    A(f"v_cvt_pk_bf16_f32 v{P+6}, v{E[1]}, v{E[1]+1}")
    A(f"v_cvt_pk_bf16_f32 v{P+7}, v{E[1]+2}, v{E[1]+3}")
    A("s_waitcnt lgkmcnt(0)")
    A("s_nop 1")
    A(mP2(OB))
    stamp(A, 0 if TP else 2)
    def wo_reg(st, mt):
        i = st*5 + mt
        return 16 + 4*i if i < 10 else 88 + 4*(i-10)
    BFR = 148
    vG1, vG2 = 168, 169
    sWo = 32
    A("v_and_b32 v3, 31, v2")
    A("v_lshlrev_b32 v14, 2, v3")
    A(f"s_add_u32 s{sT}, s{sQT}, s{sHF}")
    A(f"s_lshl_b32 s{sT}, s{sT}, 7")
    A(f"s_add_u32 s{sT}, s{sT}, {GG}")
    A(f"buffer_load_dword v{vG1}, v14, {sr(SRD,4)}, s{sT} offen")
    A(f"s_lshl_b32 s{sT}, s{sTT}, 7")
    A(f"s_add_u32 s{sT}, s{sT}, {GG}")
    A(f"buffer_load_dword v{vG2}, v14, {sr(SRD,4)}, s{sT} offen")
    CATT, RA, RB = 8*CH, 0, 65536
    vWr, vRd, vC1, vC2 = 9, 10, 11, 12
    A(f"s_mul_i32 s{sT}, s{sW}, 3072")
    A(f"s_add_u32 s{sT}, s{sT}, {CATT}")
    A(f"v_add_u32 v{vC1}, s{sT}, v{vL16}")
    A(f"s_xor_b32 s{sT2}, s{sW}, 4")
    A(f"s_mul_i32 s{sT2}, s{sT2}, 3072")
    A(f"s_add_u32 s{sT2}, s{sT2}, {CATT}")
    A(f"v_add_u32 v{vC2}, s{sT2}, v{vL16}")
    A("s_nop 7")
    A(f"s_cmp_eq_u32 s{sHF}, 0")
    A(f"s_cbranch_scc0 {name}_cmb1")
    A("s_nop 3")
    for j in range(3): A(f"ds_write_b128 v{vC1}, {vr(OB+4*j,4)} offset:{j*1024}")
    A(f"s_branch {name}_cmb2")
    A.label(f"{name}_cmb1")
    for j in range(3): A(f"ds_write_b128 v{vC1}, {vr(OA+4*j,4)} offset:{j*1024}")
    A("s_nop 1")
    for j in range(12): A(f"v_mov_b32 v{OA+j}, v{OB+j}")
    A.label(f"{name}_cmb2")
    A("s_waitcnt lgkmcnt(0)")
    A("s_barrier")
    for j in range(3): A(f"ds_read_b128 {vr(OB+4*j,4)}, v{vC2} offset:{j*1024}")
    A("s_waitcnt lgkmcnt(0)")
    O = OA
    for j in range(12): A(f"v_add_f32 v{O+j}, v{O+j}, v{OB+j}")
    vLs, vR = OB, OB+1
    A(f"v_mov_b32 v{vLs}, v{O+8}")
    A(f"v_mov_b32 v{vR}, v{O+8}")
    A("s_nop 1")
    A(f"v_permlane32_swap_b32 v{vLs}, v{vR}")
    A("s_nop 1")
    A(f"v_rcp_f32 v{vR}, v{vR}")
    A("s_waitcnt vmcnt(0)")
    A(f"v_mul_f32 v{vR}, v{vR}, v{vG1}")
    for r in range(12): A(f"v_mul_f32 v{O+r}, v{O+r}, v{vR}")
    OP = OB + 4
    for j in range(6): A(f"v_cvt_pk_bf16_f32 v{OP+j}, v{O+2*j}, v{O+2*j+1}")
    A(f"s_add_u32 s{sT}, s{sQT}, s{sHF}")
    A(f"s_mul_i32 s{sT}, s{sT}, 40960")
    A(f"s_add_u32 s{sT}, s{sT}, {OF}")
    A(f"s_lshl_b32 s{sT2}, s{sHEAD}, 10")
    A(f"s_add_u32 s{sT2}, s{sT2}, s{sT}")
    A(f"buffer_store_dwordx4 {vr(OP,4)}, v{vL16}, {sr(SRD,4)}, s{sT2} offen sc1")
    A(f"s_lshr_b32 s{sT2}, s{sHEAD}, 2")
    A(f"s_add_u32 s{sT2}, s{sT2}, 32")
    A(f"s_lshl_b32 s{sT2}, s{sT2}, 10")
    A(f"s_add_u32 s{sT}, s{sT}, s{sT2}")
    A(f"s_bfe_u32 s{sT2}, s{sHEAD}, 0x10001")
    A(f"s_lshl_b32 s{sT2}, s{sT2}, 9")
    A(f"s_add_u32 s{sT}, s{sT}, s{sT2}")
    A(f"s_and_b32 s{sT2}, s{sHEAD}, 1")
    A(f"s_lshl_b32 s{sT2}, s{sT2}, 3")
    A(f"s_add_u32 s{sT}, s{sT}, s{sT2}")
    A("s_mov_b32 exec_hi, 0")
    A(f"buffer_store_dwordx2 {vr(OP+4,2)}, v{vL16}, {sr(SRD,4)}, s{sT} offen sc1")
    A("s_mov_b64 exec, -1")
    if TP == 1: stamp(A, 1)
    A(f"s_mul_i32 s{sT}, s{sW}, {5*1024}")
    A(f"s_mul_i32 s{sT2}, s{sCBK}, {5*40*1024}")
    A(f"s_add_u32 s{sT2}, s{sT2}, s{sT}")
    A(f"s_add_u32 s{sWo}, s{sT2}, {WOF}")
    for mt in range(1, 5): A(f"s_add_u32 s{sWo+mt}, s{sWo+mt-1}, {40*1024}")
    A(f"v_add_u32 v15, 4096, v{vL16}")
    A(f"v_sub_f32 v{vG2}, 1.0, v{vG2}")
    k = 0
    for st in range(5):
        for mt in range(5):
            if st < 4:
                A(f"buffer_load_dwordx4 {vr(wo_reg(st,mt),4)}, v{vL16}, {sr(SRD,4)}, s{sWo+mt} offen offset:{st*1024}")
            else:
                A(f"buffer_load_dwordx4 {vr(wo_reg(st,mt),4)}, v15, {sr(SRD,4)}, s{sWo+mt} offen")
            for r in range(ACC+k, min(ACC+k+4, ACC+80)): A(f"v_mul_f32 v{r}, v{r}, v{vG2}")
            k = min(k+4, 80)
    A(f"s_mul_i32 s{sT}, s{sTT}, 40960")
    A(f"s_mul_i32 s{sT2}, s{sW}, {5*1024}")
    A(f"s_add_u32 s{sT}, s{sT}, s{sT2}")
    A(f"s_add_u32 s{sT}, s{sT}, {OF}")
    A(f"s_mov_b32 s{sT2}, 0")
    A.label(f"{name}_poll")
    for st in range(5):
        if st < 4:
            A(f"buffer_load_dwordx4 {vr(BFR+4*st,4)}, v{vL16}, {sr(SRD,4)}, s{sT} offen offset:{st*1024} sc1")
        else:
            A(f"buffer_load_dwordx4 {vr(BFR+4*st,4)}, v15, {sr(SRD,4)}, s{sT} offen sc1")
    A("s_waitcnt vmcnt(0)")
    A(f"v_max3_u32 v14, v{BFR}, v{BFR+1}, v{BFR+2}")
    for j in range(3, 19, 2):
        A(f"v_max3_u32 v14, v14, v{BFR+j}, v{BFR+j+1}")
    A(f"v_max_u32 v14, v14, v{BFR+19}")
    A("v_cmp_eq_u32 vcc, -1, v14")
    A(f"s_add_u32 s{sT2}, s{sT2}, 1")
    A("s_nop 1")
    A(f"s_cbranch_vccz {name}_polldone")
    A(f"s_cmp_lt_u32 s{sT2}, 0x40000")
    A(f"s_cbranch_scc1 {name}_poll")
    A.label(f"{name}_polldone")
    if TP == 1: stamp(A, 2)
    for st in range(5):
        for mt in range(5):
            d = vr(ACC+16*mt,16)
            A(f"v_mfma_f32_32x32x16_bf16 {d}, {vr(wo_reg(st,mt),4)}, {vr(BFR+4*st,4)}, {d}")
    A("s_barrier")
    A(f"s_lshl_b32 s{sT}, s{sW}, 13")
    A(f"s_add_u32 s{sT}, s{sT}, {RA}")
    A(f"v_add_u32 v{vWr}, s{sT}, v{vL16}")
    A(f"s_lshl_b32 s{sT}, s{sG}, 11")
    A(f"s_lshl_b32 s{sT2}, s{sHF}, 10")
    A(f"s_add_u32 s{sT}, s{sT}, s{sT2}")
    A(f"s_add_u32 s{sT}, s{sT}, {RA}")
    A(f"v_add_u32 v{vRd}, s{sT}, v{vL16}")
    A(f"v_add_u32 v13, {65536}, v{vWr}")
    A("s_nop 15")
    for rnd in range(2):
        for q in range(4):
            for tl in range(2):
                A(f"ds_write_b128 v{vWr if rnd == 0 else 13}, {vr(ACC+16*(2*rnd+tl)+4*q,4)} offset:{(q*2+tl)*1024}")
    A("s_waitcnt lgkmcnt(0)")
    A("s_barrier")
    T0 = 16
    SUMA, SUMB, SUMC = 56, 60, 64
    A(f"v_add_u32 v13, {65536}, v{vRd}")
    def sum8(dst):
        for j in range(4):
            A(f"v_add_f32 v{T0+j}, v{T0+j}, v{T0+4+j}")
            A(f"v_add_f32 v{T0+8+j}, v{T0+8+j}, v{T0+12+j}")
            A(f"v_add_f32 v{T0+16+j}, v{T0+16+j}, v{T0+20+j}")
            A(f"v_add_f32 v{T0+24+j}, v{T0+24+j}, v{T0+28+j}")
        for j in range(4):
            A(f"v_add_f32 v{T0+j}, v{T0+j}, v{T0+8+j}")
            A(f"v_add_f32 v{T0+16+j}, v{T0+16+j}, v{T0+24+j}")
        for j in range(4):
            A(f"v_add_f32 v{dst+j}, v{T0+j}, v{T0+16+j}")
    for rnd, (va, dst) in enumerate(((vRd, SUMA), (13, SUMB))):
        for s_ in range(8):
            A(f"ds_read_b128 {vr(T0+4*s_,4)}, v{va} offset:{s_*8192}")
        A("s_waitcnt lgkmcnt(0)")
        sum8(dst)
    A("s_barrier")
    A(f"s_lshl_b32 s{sT}, s{sW}, 12")
    A(f"s_add_u32 s{sT}, s{sT}, {RA}")
    A(f"v_add_u32 v{vWr}, s{sT}, v{vL16}")
    for q in range(4):
        A(f"ds_write_b128 v{vWr}, {vr(ACC+64+4*q,4)} offset:{q*1024}")
    A(f"s_lshl_b32 s{sT}, s{sG}, 10")
    A(f"s_add_u32 s{sT}, s{sT}, {RA}")
    A(f"v_add_u32 v{vRd}, s{sT}, v{vL16}")
    A("s_waitcnt lgkmcnt(0)")
    A("s_barrier")
    for s_ in range(8):
        A(f"ds_read_b128 {vr(T0+4*s_,4)}, v{vRd} offset:{s_*4096}")
    SRD_O = 44; sOUT = 48
    A("v_and_b32 v3, 31, v2")
    A(f"s_lshl_b32 s{sT}, s{sTT}, 5")
    A(f"v_add_u32 v3, s{sT}, v3")
    A("v_mul_u32_u24 v3, 1280, v3")
    A("v_lshrrev_b32 v14, 5, v2")
    A("v_lshl_add_u32 v3, v14, 3, v3")
    A(f"s_mul_i32 s{sT}, s{sCBK}, 320")
    A(f"s_lshl_b32 s{sT2}, s{sG}, 4")
    A(f"s_add_u32 s{sT}, s{sT}, s{sT2}")
    A(f"s_lshl_b32 s{sT2}, s{sHF}, 6")
    A(f"s_add_u32 s{sT2}, s{sT2}, s{sT}")
    A("s_waitcnt lgkmcnt(0)")
    A(f"s_mov_b32 s{SRD_O}, s{sOUT}")
    A(f"s_and_b32 s{SRD_O+1}, s{sOUT+1}, 0xffff")
    A(f"s_mov_b32 s{SRD_O+2}, {2048*1280}")
    A(f"s_mov_b32 s{SRD_O+3}, 0x20000")
    for src, d in ((SUMA, 68), (SUMB, 70)):
        A(f"v_cvt_pk_bf16_f32 v{d}, v{src}, v{src+1}")
        A(f"v_cvt_pk_bf16_f32 v{d+1}, v{src+2}, v{src+3}")
    A(f"buffer_store_dwordx2 v[68:69], v3, {sr(SRD_O,4)}, s{sT2} offen")
    A(f"buffer_store_dwordx2 v[70:71], v3, {sr(SRD_O,4)}, s{sT2} offen offset:128")
    A(f"s_cmp_eq_u32 s{sHF}, 0")
    A(f"s_cbranch_scc0 {name}_fin")
    sum8(SUMC)
    A(f"v_cvt_pk_bf16_f32 v72, v{SUMC}, v{SUMC+1}")
    A(f"v_cvt_pk_bf16_f32 v73, v{SUMC+2}, v{SUMC+3}")
    A(f"buffer_store_dwordx2 v[72:73], v3, {sr(SRD_O,4)}, s{sT} offen offset:256")
    A.label(f"{name}_fin")
    if asmlib.PROFILE:
        A("s_waitcnt vmcnt(0)")
        stamp(A, 3)
        stamp_flush(A, 1, SRD, sW, 4)
    A.label(f"{name}_end")
    A("s_endpgm")
    return 256
```

```python
import sys
from asmlib import *
from layout import *
import k1, k23, k2v2
HEADER = open('gated_mix__mha_block__glu_gated_geglu__prompt.s.ref').read().split('; Override launch geometry')[0]
def build():
    A = Asm()
    names = ("gm_k1_kernel", "gm_k2_kernel", "gm_k3_kernel")
    hdr = HEADER
    hdr += f"; @launch kernel={names[0]} grid=(256,1,1) block=(512,1,1) lds={k1.K1_LDS}\n"
    hdr += f"; @launch kernel={names[1]} grid=(256,1,1) block=(512,1,1) lds={k2v2.K2_LDS}\n"
    A('.amdgcn_target "amdgcn-amd-amdhsa--gfx950"')
    v1 = k1.gen_k1(A, names[0])
    v2 = k2v2.gen_k2(A, names[1])
    kernel_desc(A, names[0], v1)
    kernel_desc(A, names[1], v2)
    return hdr + A.text()
if __name__ == "__main__":
    import asmlib
    if "--prof" in sys.argv:
        sys.argv.remove("--prof"); asmlib.PROFILE = True
    for a in list(sys.argv):
        if a.startswith("--opt="):
            sys.argv.remove(a)
            for kv in a[6:].split(","):
                k, _, v = kv.partition("=")
                asmlib.OPT[k] = int(v) if v else 1
    out = sys.argv[1] if len(sys.argv) > 1 else "gated_mix__mha_block__glu_gated_geglu__prompt.s"
    open(out, "w").write(build())
    print("wrote", out)
```

```python
from asmlib import *
import asmlib
from layout import *

STAGE = 53376
WOFF = 32768
UOFF = 10368
K1_LDS = 3*STAGE + 2048

def gen_k1(A, name, fused=False):
    SC1 = ' sc1' if (fused and not asmlib.OPT.get('wbl2')) else ''
    kernel_header(A, name)
    sX, sWQ, sWO, sWG, sWU, sWD, sGW, sWS = 4, 6, 8, 10, 12, 14, 16, 18
    sRB, sCB, sW, sT = 20, 21, 22, 23
    sT2, sT3 = 24, 25
    sRS = 26
    sCG, sCU = 27, 28
    sTYPE = 29
    sNU = 30
    sU0 = 31
    SRD_X, SRD_W, SRD_WS = 32, 36, 40
    sBUF = 44; sXO = 45; sWO_ = 46; sCNT = 47
    sHM = 48
    sH = 52
    sSC = 60
    sDP, sDN = 84, 85
    A("s_cmp_ge_u32 s2, 256")
    A(f"s_cbranch_scc1 {name}_end")
    stamp(A, 0)
    A(f"s_load_dwordx2 {sr(sX,2)}, s[0:1], {KA_X}")
    A(f"s_load_dwordx2 {sr(sWQ,2)}, s[0:1], {KA_WQKV}")
    A(f"s_load_dwordx2 {sr(sWO,2)}, s[0:1], {KA_WO}")
    A(f"s_load_dwordx2 {sr(sWG,2)}, s[0:1], {KA_WG}")
    A(f"s_load_dwordx2 {sr(sWU,2)}, s[0:1], {KA_WU}")
    A(f"s_load_dwordx2 {sr(sWD,2)}, s[0:1], {KA_WD}")
    A(f"s_load_dwordx2 {sr(sGW,2)}, s[0:1], {KA_GW}")
    A(f"s_load_dwordx2 {sr(sWS,2)}, s[0:1], {KA_WS}")
    A(f"s_load_dwordx2 s[72:73], s[0:1], {KA_WG}")
    A(f"s_load_dwordx2 s[74:75], s[0:1], {KA_WU}")
    A.c("decode: xcd = id&7, j = id>>3; rb = 4*(xcd&1) + (j&3); cb = 8*(xcd>>1) + (j>>2)")
    A(f"s_and_b32 s{sT}, s2, 1")
    A(f"s_lshl_b32 s{sT}, s{sT}, 2")
    A(f"s_lshr_b32 s{sT2}, s2, 3")
    A(f"s_and_b32 s{sT3}, s{sT2}, 3")
    A(f"s_add_u32 s{sRB}, s{sT}, s{sT3}")
    A(f"s_and_b32 s{sT}, s2, 6")
    A(f"s_lshl_b32 s{sT}, s{sT}, 2")
    A(f"s_lshr_b32 s{sT2}, s{sT2}, 2")
    A(f"s_add_u32 s{sCB}, s{sT}, s{sT2}")
    A("v_lshrrev_b32 v1, 6, v0")
    A("v_and_b32 v2, 63, v0")
    A(f"v_readfirstlane_b32 s{sW}, v1")
    A.c("block params")
    A(f"s_cmp_ge_u32 s{sCB}, 12")
    A(f"s_cbranch_scc1 {name}_ffn_params")
    A(f"s_movk_i32 s{sRS}, 3840")
    A(f"s_mul_i32 s{sCG}, s{sCB}, 160")
    A(f"s_add_u32 s{sCU}, s{sCG}, 80")
    A(f"s_lshr_b32 s{sTYPE}, s{sCB}, 2")
    A(f"s_mov_b32 s{sNU}, 5")
    A(f"s_mov_b32 s{sU0}, 0")
    A("s_waitcnt lgkmcnt(0)")
    A(f"s_mov_b64 {sr(sWG,2)}, {sr(sWQ,2)}")
    A(f"s_mov_b64 {sr(sWU,2)}, {sr(sWQ,2)}")
    A(f"s_branch {name}_params_done")
    A.label(f"{name}_ffn_params")
    A(f"s_movk_i32 s{sRS}, 3072")
    A(f"s_sub_u32 s{sT}, s{sCB}, 12")
    A(f"s_mul_i32 s{sU0}, s{sT}, 5")
    A(f"s_mov_b32 s{sNU}, 5")
    A(f"s_cmp_lt_u32 s{sT}, 16")
    A(f"s_cbranch_scc1 {name}_ffn_p2")
    A(f"s_lshl_b32 s{sU0}, s{sT}, 2")
    A(f"s_add_u32 s{sU0}, s{sU0}, 16")
    A(f"s_mov_b32 s{sNU}, 4")
    A.label(f"{name}_ffn_p2")
    A(f"s_lshl_b32 s{sCG}, s{sU0}, 4")
    A(f"s_mov_b32 s{sCU}, s{sCG}")
    A(f"s_mov_b32 s{sTYPE}, 3")
    A("s_waitcnt lgkmcnt(0)")
    A.label(f"{name}_params_done")
    SP = asmlib.OPT.get("startprof")
    A.c("SRD for ws")
    A(f"s_mov_b32 s{SRD_WS}, s{sWS}")
    A(f"s_and_b32 s{SRD_WS+1}, s{sWS+1}, 0xffff")
    A(f"s_mov_b32 s{SRD_WS+2}, {WS_SIZE}")
    A(f"s_mov_b32 s{SRD_WS+3}, 0x20000")
    A(f"s_cmp_ge_u32 s{sW}, 4")
    A(f"s_cbranch_scc1 {name}_loader")

    ACC = 96
    def acc(tt, mt): return ACC + (tt*5 + mt)*16
    FA = [8, 36]
    FB = [28, 56]
    vXA = 64
    vWA = 68
    vWA2 = 69
    if asmlib.OPT.get("wtouch"):
        A.c("touch the pages this wave will store to at the end (translation warm-up)")
        A(f"s_lshl_b32 s{sT2}, s{sRB}, 3")
        A(f"s_lshl_b32 s{sT3}, s{sW}, 1")
        A(f"s_add_u32 s{sT2}, s{sT2}, s{sT3}")
        A(f"s_cmp_eq_u32 s{sTYPE}, 3")
        A(f"s_cbranch_scc1 {name}_wt_f")
        A(f"s_and_b32 s{sT}, s{sCB}, 3")
        A(f"s_lshl_b32 s{sT}, s{sT}, 3")
        A("v_and_b32 v3, 7, v2")
        A(f"v_add_u32 v3, s{sT}, v3")
        A(f"s_cmp_eq_u32 s{sTYPE}, 0")
        A(f"s_mov_b32 s{sT}, {HS_KV}")
        A(f"s_mov_b32 s{sT3}, {HS_Q}")
        A(f"s_cselect_b32 s{sT}, s{sT3}, s{sT}")
        A(f"v_mul_lo_u32 v3, v3, s{sT}")
        A(f"s_mul_i32 s{sT3}, s{sT2}, 1280")
        A(f"s_lshr_b32 s{sT2}, s{sT2}, 2")
        A(f"s_mul_i32 s{sT2}, s{sT2}, {CH}")
        A(f"s_add_u32 s{sT2}, s{sT2}, {KV}")
        A(f"s_cmp_eq_u32 s{sTYPE}, 0")
        A(f"s_cselect_b32 s{sT2}, s{sT3}, s{sT2}")
        A(f"s_branch {name}_wt_go")
        A.label(f"{name}_wt_f")
        A("v_and_b32 v3, 1, v2")
        A(f"v_mul_u32_u24 v3, {96*1024}, v3")
        A(f"s_mul_i32 s{sT2}, s{sT2}, {96*1024}")
        A(f"s_lshl_b32 s{sT3}, s{sU0}, 10")
        A(f"s_add_u32 s{sT2}, s{sT2}, s{sT3}")
        A(f"s_add_u32 s{sT2}, s{sT2}, {HF}")
        A.label(f"{name}_wt_go")
        A("s_mov_b64 exec, 0xff")
        A(f"buffer_load_dword v80, v3, {sr(SRD_WS,4)}, s{sT2} offen")
        A("s_mov_b64 exec, -1")
    A.c("compute wave: LDS read addresses")
    A("v_and_b32 v3, 31, v2")
    A("v_lshrrev_b32 v4, 5, v2")
    A(f"s_lshl_b32 s{sT}, s{sW}, 6")
    A(f"v_add_u32 v5, s{sT}, v3")
    A("v_lshlrev_b32 v5, 7, v5")
    A("v_bfe_u32 v6, v3, 1, 3")
    for sp in range(4):
        A(f"v_or_b32 v7, {2*sp}, v4")
        A("v_xor_b32 v7, v7, v6")
        A(f"v_lshl_add_u32 v{vXA+sp}, v7, 4, v5")
    A("v_bfe_u32 v5, v2, 4, 1")
    A(f"v_mul_u32_u24 v5, {UOFF}, v5")
    A("v_bfe_u32 v6, v2, 2, 2")
    A("v_lshl_add_u32 v6, v4, 3, v6")
    A("v_mul_u32_u24 v6, 160, v6")
    A("v_and_b32 v7, 3, v2")
    A("v_lshlrev_b32 v7, 3, v7")
    A("v_add3_u32 v5, v5, v6, v7")
    A(f"v_add_u32 v{vWA}, {WOFF}, v5")
    A.c("Q/K/V blocks: unit 4 gathers d=16..19 of four heads: column byte offset 40c+32 instead of 8c")
    A("v_lshlrev_b32 v7, 2, v7")
    A(f"v_add3_u32 v{vWA2}, v{vWA}, v7, 32")
    for r in range(ACC, ACC+160):
        A(f"v_mov_b32 v{r}, 0")

    def reads(sp, st, qkv):
        L = []
        for tt in range(2):
            L.append(f"ds_read_b128 {vr(FB[st]+4*tt,4)}, v{vXA+sp} offset:{tt*4096}")
        for mt in range(5):
            for half in range(2):
                if not qkv:
                    L.append(f"ds_read_b64_tr_b16 {vr(FA[st]+4*mt+2*half,2)}, v{vWA} offset:{sp*2560+mt*32+half*640}")
                elif mt < 4:
                    L.append(f"ds_read_b64_tr_b16 {vr(FA[st]+4*mt+2*half,2)}, v{vWA} offset:{sp*2560+mt*40+half*640}")
                else:
                    L.append(f"ds_read_b64_tr_b16 {vr(FA[st]+4*mt+2*half,2)}, v{vWA2} offset:{sp*2560+half*640}")
        return [L[0], L[2], L[3], L[1]] + L[4:]
    def mfmas(st, swapped):
        L = []
        for mt in range(5):
            for tt in range(2):
                a, b = vr(FA[st]+4*mt,4), vr(FB[st]+4*tt,4)
                if swapped: a, b = b, a
                L.append(f"v_mfma_f32_32x32x16_bf16 {vr(acc(tt,mt),16)}, {a}, {b}, {vr(acc(tt,mt),16)}")
        return L
    def mainloop(swapped, tag, qkv):
        A("s_barrier")
        stamp(A, 1)
        for l in reads(0, 0, qkv): A(l)
        A(f"s_mov_b32 s{sCNT}, 0")
        A(f"s_mov_b32 s{sBUF}, 0")
        A(f"s_mov_b32 s{sDP}, {STAGE}")
        A(f"s_mov_b32 s{sDN}, {(-2*STAGE) & 0xffffffff}")
        A(".p2align 6")
        A.label(f"{name}_loop_{tag}")
        for sp in range(4):
            cur = sp & 1; nxt = cur ^ 1
            M = mfmas(cur, swapped)
            A("s_waitcnt lgkmcnt(0)")
            if sp < 3:
                R = reads(sp+1, nxt, qkv)
                k = 0
                for i, m in enumerate(M):
                    A(m)
                    for l in R[k:k+2]: A(l)
                    k += 2
            else:
                A(M[0]); A(M[1])
                A(f"s_add_u32 s{sBUF}, s{sBUF}, 1")
                A(f"s_cmp_eq_u32 s{sBUF}, 3")
                A(f"s_cselect_b32 s{sT}, s{sDN}, s{sDP}")
                A(f"s_cselect_b32 s{sBUF}, 0, s{sBUF}")
                A("s_barrier")
                for j in range(4): A(f"v_add_u32 v{vXA+j}, s{sT}, v{vXA+j}")
                A(f"v_add_u32 v{vWA}, s{sT}, v{vWA}")
                if qkv: A(f"v_add_u32 v{vWA2}, s{sT}, v{vWA2}")
                R = reads(0, nxt, qkv)
                k = 0
                for m in M[2:]:
                    A(m)
                    for l in R[k:k+2]: A(l)
                    k += 2
        A(f"s_add_u32 s{sCNT}, s{sCNT}, 1")
        A(f"s_cmp_lt_u32 s{sCNT}, 10")
        A(f"s_cbranch_scc1 {name}_loop_{tag}")
        A("s_waitcnt lgkmcnt(0)")
        A("s_nop 15")
        stamp(A, 2)
    A(f"s_cmp_eq_u32 s{sTYPE}, 2")
    A(f"s_cbranch_scc1 {name}_vblock")
    A(f"s_cmp_eq_u32 s{sTYPE}, 3")
    A(f"s_cbranch_scc1 {name}_ffnblock")
    mainloop(False, "qk", True)

    A.c("epilogue Q/K: unit mt<4 = d 0..15 of head mt (rows 0..15) and head 4+mt (rows 16..31); unit 4 = d 16..19 of the 8 heads")
    vL16q, vTail = 8, 9
    D0 = 16
    sBASE, sHS = 61, 62
    A(f"v_lshlrev_b32 v{vL16q}, 4, v2")
    A(f"s_and_b32 s{sT}, s{sCB}, 3")
    A(f"s_cmp_eq_u32 s{sTYPE}, 0")
    A(f"s_cbranch_scc0 {name}_kparams")
    A(f"s_mov_b32 s{sHS}, {HS_Q}")
    A(f"s_mul_i32 s{sBASE}, s{sT}, {8*HS_Q}")
    A(f"s_lshl_b32 s{sT2}, s{sRB}, 3")
    A(f"s_lshl_b32 s{sT3}, s{sW}, 1")
    A(f"s_add_u32 s{sT2}, s{sT2}, s{sT3}")
    A(f"s_mul_i32 s{sT2}, s{sT2}, 1280")
    A(f"s_add_u32 s{sBASE}, s{sBASE}, s{sT2}")
    if QF: A(f"s_add_u32 s{sBASE}, s{sBASE}, {QF}")
    A(f"s_mov_b32 s{sSC}, 0x3ea52b5c")
    A(f"s_branch {name}_qk_go")
    A.label(f"{name}_kparams")
    A(f"s_mov_b32 s{sHS}, {HS_KV}")
    A(f"s_mul_i32 s{sBASE}, s{sT}, {8*HS_KV}")
    A(f"s_lshl_b32 s{sT2}, s{sRB}, 1")
    A(f"s_lshr_b32 s{sT3}, s{sW}, 1")
    A(f"s_add_u32 s{sT2}, s{sT2}, s{sT3}")
    A(f"s_mul_i32 s{sT2}, s{sT2}, {CH}")
    A(f"s_add_u32 s{sBASE}, s{sBASE}, s{sT2}")
    A(f"s_and_b32 s{sT3}, s{sW}, 1")
    A(f"s_mul_i32 s{sT3}, s{sT3}, 2560")
    A(f"s_add_u32 s{sBASE}, s{sBASE}, s{sT3}")
    A(f"s_add_u32 s{sBASE}, s{sBASE}, {KV}")
    A(f"s_mov_b32 s{sSC}, 1.0")
    A.label(f"{name}_qk_go")
    A(f"s_mov_b32 s{sH}, s{sBASE}")
    for i in range(1, 8):
        A(f"s_add_u32 s{sH+i}, s{sH+i-1}, s{sHS}")
    A("v_and_b32 v3, 31, v2")
    A("v_lshrrev_b32 v4, 5, v2")
    A(f"v_mul_lo_u32 v4, v4, s{sHS}")
    A("v_lshl_add_u32 v4, v3, 3, v4")
    A(f"v_add_u32 v{vTail}, 1024, v4")
    A(f"v_mov_b32 v10, s{sSC}")
    A(f"v_mov_b32 v11, s{sSC}")
    n = 0
    for mt in range(4):
        for tt in range(2):
            for part in range(2):
                a = acc(tt, mt) + 8*part
                d = D0 + 4*(n % 8); n += 1
                for j in range(4):
                    A(f"v_pk_mul_f32 {vr(a+2*j,2)}, {vr(a+2*j,2)}, v[10:11]")
                for j in range(4):
                    A(f"v_cvt_pk_bf16_f32 v{d+j}, v{a+2*j}, v{a+2*j+1}")
                A("s_nop 1")
                A(f"v_permlane32_swap_b32 v{d}, v{d+2}")
                A(f"v_permlane32_swap_b32 v{d+1}, v{d+3}")
                A(f"buffer_store_dwordx4 {vr(d,4)}, v{vL16q}, {sr(SRD_WS,4)}, s{sH+4*part+mt} offen offset:{tt*1280}{SC1}")
    for tt in range(2):
        for i in range(4):
            a = acc(tt, 4) + 4*i
            d = D0 + 4*(n % 8); n += 1
            for j in range(2):
                A(f"v_pk_mul_f32 {vr(a+2*j,2)}, {vr(a+2*j,2)}, v[10:11]")
            A(f"v_cvt_pk_bf16_f32 v{d}, v{a}, v{a+1}")
            A(f"v_cvt_pk_bf16_f32 v{d+1}, v{a+2}, v{a+3}")
            A(f"buffer_store_dwordx2 {vr(d,2)}, v{vTail}, {sr(SRD_WS,4)}, s{sH+2*i} offen offset:{tt*1280}{SC1}")
    A(f"s_branch {name}_fin")

    A.label(f"{name}_ffnblock")
    mainloop(False, "f", False)
    A.c("epilogue FFN: h = gelu_tanh(g) * u")
    vC0, vC1, vONE = 8, 10, 12
    vTt, vP, vE, vGU = 14, 16, 18, 20
    vOUT = 24
    import math
    c0 = -2.0*math.sqrt(2.0/math.pi)*math.log2(math.e)
    c1 = c0*0.044715
    import struct
    def f2u(f): return struct.unpack("<I", struct.pack("<f", f))[0]
    for j in range(2):
        A(f"v_mov_b32 v{vC0+j}, {hex(f2u(c0))}")
        A(f"v_mov_b32 v{vC1+j}, {hex(f2u(c1))}")
        A(f"v_mov_b32 v{vONE+j}, 1.0")
    A(f"v_lshlrev_b32 v3, 4, v2")
    A(f"s_lshl_b32 s{sT2}, s{sRB}, 3")
    A(f"s_lshl_b32 s{sT3}, s{sW}, 1")
    A(f"s_add_u32 s{sT2}, s{sT2}, s{sT3}")
    A(f"s_mul_i32 s{sT2}, s{sT2}, {96*1024}")
    A(f"s_lshl_b32 s{sT3}, s{sU0}, 10")
    A(f"s_add_u32 s{sT2}, s{sT2}, s{sT3}")
    A(f"s_add_u32 s{sT2}, s{sT2}, {HF}")
    A(f"s_add_u32 s{sT3}, s{sT2}, {96*1024}")
    n = 0
    for mt in range(5):
        if mt == 4:
            A(f"s_cmp_eq_u32 s{sNU}, 4")
            A(f"s_cbranch_scc1 {name}_fin")
        for tt in range(2):
            a = acc(tt, mt)
            o = vOUT + 4*(n & 1); n += 1
            for pr in range(4):
                g = a + 2*pr; u = a + 8 + 2*pr
                A(f"v_pk_mul_f32 {vr(vTt,2)}, {vr(g,2)}, {vr(g,2)}")
                A(f"v_pk_mul_f32 {vr(vGU,2)}, {vr(g,2)}, {vr(u,2)}")
                A(f"v_pk_fma_f32 {vr(vP,2)}, {vr(vTt,2)}, {vr(vC1,2)}, {vr(vC0,2)}")
                A(f"v_pk_mul_f32 {vr(vP,2)}, {vr(vP,2)}, {vr(g,2)}")
                A(f"v_exp_f32 v{vE}, v{vP}")
                A(f"v_exp_f32 v{vE+1}, v{vP+1}")
                A("s_nop 0")
                A(f"v_pk_add_f32 {vr(vE,2)}, {vr(vE,2)}, {vr(vONE,2)}")
                A(f"v_rcp_f32 v{vE}, v{vE}")
                A(f"v_rcp_f32 v{vE+1}, v{vE+1}")
                A("s_nop 0")
                A(f"v_pk_mul_f32 {vr(vGU,2)}, {vr(vGU,2)}, {vr(vE,2)}")
                A(f"v_cvt_pk_bf16_f32 v{o+pr}, v{vGU}, v{vGU+1}")
            A(f"buffer_store_dwordx4 {vr(o,4)}, v3, {sr(SRD_WS,4)}, s{sT2 if tt == 0 else sT3} offen offset:{mt*1024 if mt*1024 < 4096 else 0}{SC1}" if mt < 4 else
              f"s_add_u32 s{sT}, s{sT2 if tt == 0 else sT3}, 4096\n" + f"buffer_store_dwordx4 {vr(o,4)}, v3, {sr(SRD_WS,4)}, s{sT} offen{SC1}")
    A(f"s_branch {name}_fin")

    A.label(f"{name}_vblock")
    mainloop(True, "v", True)
    A.c("epilogue V: lane = weight column n; unit mt<4: head mt (n<16) / 4+mt (n>=16), d = n&15; unit 4: head (n>>2)&3 (+4), d = 16+(n&3)")
    sBASE, sHS = 61, 62
    vA1, vA2 = 8, 9
    D1 = 16
    A(f"s_mov_b32 s{sHS}, {HS_KV}")
    A("v_bfe_u32 v5, v2, 4, 1")
    A("v_lshlrev_b32 v5, 2, v5")
    A("v_lshrrev_b32 v4, 5, v2")
    A("v_lshlrev_b32 v4, 9, v4")
    A(f"v_mul_lo_u32 v6, v5, s{sHS}")
    A("v_and_b32 v3, 15, v2")
    A("v_lshl_add_u32 v6, v3, 4, v6")
    A(f"v_add_u32 v{vA1}, v6, v4")
    A("v_bfe_u32 v6, v2, 2, 2")
    A("v_add_u32 v6, v6, v5")
    A(f"v_mul_lo_u32 v6, v6, s{sHS}")
    A("v_and_b32 v3, 3, v2")
    A("v_lshl_add_u32 v6, v3, 4, v6")
    A(f"v_add3_u32 v{vA2}, v6, v4, 0")
    A(f"v_add_u32 v{vA2}, 256, v{vA2}")
    A(f"s_sub_u32 s{sT}, s{sCB}, 8")
    A(f"s_mul_i32 s{sBASE}, s{sT}, {8*HS_KV}")
    A(f"s_lshl_b32 s{sT2}, s{sRB}, 1")
    A(f"s_lshr_b32 s{sT3}, s{sW}, 1")
    A(f"s_add_u32 s{sT2}, s{sT2}, s{sT3}")
    A(f"s_mul_i32 s{sT2}, s{sT2}, {CH}")
    A(f"s_add_u32 s{sBASE}, s{sBASE}, s{sT2}")
    A(f"s_and_b32 s{sT3}, s{sW}, 1")
    A(f"s_lshl_b32 s{sT3}, s{sT3}, 12")
    A(f"s_add_u32 s{sBASE}, s{sBASE}, s{sT3}")
    A(f"s_add_u32 s{sBASE}, s{sBASE}, {KV+5120}")
    n = 0
    for mt in range(5):
        if 0 < mt < 4: A(f"s_add_u32 s{sBASE}, s{sBASE}, s{sHS}")
        if mt == 4: A(f"s_sub_u32 s{sBASE}, s{sBASE}, {3*HS_KV}")
        for tt in range(2):
            for f in range(2):
                a = acc(tt, mt) + 8*f
                d = D1 + 4*(n % 8); n += 1
                for j in range(4):
                    A(f"v_cvt_pk_bf16_f32 v{d+j}, v{a+2*j}, v{a+2*j+1}")
                A(f"buffer_store_dwordx4 {vr(d,4)}, v{vA1 if mt < 4 else vA2}, {sr(SRD_WS,4)}, s{sBASE} offen offset:{tt*2048+f*1024}{SC1}")
    A(f"s_branch {name}_fin")

    A.label(f"{name}_loader")
    vXO = 8
    vWO = 16
    A(f"s_sub_u32 s{sW}, s{sW}, 4")
    A.c("SRD x")
    A(f"s_mov_b32 s{SRD_X}, s{sX}")
    A(f"s_and_b32 s{SRD_X+1}, s{sX+1}, 0xffff")
    A(f"s_mov_b32 s{SRD_X+2}, {2048*1280}")
    A(f"s_mov_b32 s{SRD_X+3}, 0x20000")
    A.c("SRD w (G part for loaders 0,1; U part for 2,3)")
    A(f"s_cmp_ge_u32 s{sW}, 2")
    A(f"s_cselect_b32 s{SRD_W}, s{sWU}, s{sWG}")
    A(f"s_cselect_b32 s{SRD_W+1}, s{sWU+1}, s{sWG+1}")
    A(f"s_cselect_b32 s{sT}, s{sCU}, s{sCG}")
    A(f"s_and_b32 s{SRD_W+1}, s{SRD_W+1}, 0xffff")
    A(f"s_mul_i32 s{SRD_W+2}, s{sRS}, 640")
    A(f"s_mov_b32 s{SRD_W+3}, 0x20000")
    A(f"s_lshl_b32 s{sWO_}, s{sT}, 1")
    A(f"s_mul_i32 s{sXO}, s{sRB}, {256*1280}")
    A("v_lshrrev_b32 v3, 3, v2")
    A("v_lshrrev_b32 v4, 4, v2")
    A("v_and_b32 v5, 7, v2")
    A("v_xor_b32 v5, v5, v4")
    A("v_xor_b32 v6, 4, v5")
    A(f"s_lshl_b32 s{sT}, s{sW}, 6")
    A(f"v_add_u32 v3, s{sT}, v3")
    A(f"s_movk_i32 s{sT2}, 1280")
    A(f"v_mul_lo_u32 v3, v3, s{sT2}")
    A("v_lshl_add_u32 v5, v5, 4, v3")
    A("v_lshl_add_u32 v6, v6, 4, v3")
    for j in range(8):
        A(f"v_add_u32 v{vXO+j}, {j*10240}, v{5 if j % 2 == 0 else 6}")
    A(f"s_and_b32 s{sT}, s{sW}, 1")
    A(f"s_mul_i32 s{sT}, s{sT}, 320")
    for i in range(5):
        A(f"v_add_u32 v3, s{sT}, v2")
        A(f"v_add_u32 v3, {64*i}, v3")
        A("v_mul_u32_u24 v4, 6554, v3")
        A("v_lshrrev_b32 v4, 16, v4")
        A("v_mul_u32_u24 v5, 10, v4")
        A("v_sub_u32 v5, v3, v5")
        A(f"v_mul_lo_u32 v4, v4, s{sRS}")
        A(f"v_lshl_add_u32 v{vWO+i}, v5, 4, v4")
    sLX, sLW, sWSTEP = 61, 62, 63
    A(f"s_lshl_b32 s{sLX}, s{sW}, 13")
    A(f"s_lshr_b32 s{sT}, s{sW}, 1")
    A(f"s_mul_i32 s{sLW}, s{sT}, {UOFF}")
    A(f"s_and_b32 s{sT}, s{sW}, 1")
    A(f"s_mul_i32 s{sT}, s{sT}, 5120")
    A(f"s_add_u32 s{sLW}, s{sLW}, s{sT}")
    A(f"s_add_u32 s{sLW}, s{sLW}, {WOFF}")
    A(f"s_lshl_b32 s{sWSTEP}, s{sRS}, 6")
    def issue_stage():
        if asmlib.OPT.get("k1nodma"): return
        A(f"s_add_u32 s{sT}, s{sBUF}, s{sLW}")
        for i in range(5):
            A(f"s_add_u32 m0, s{sT}, {i*1024}")
            A("s_nop 0")
            A(f"buffer_load_dwordx4 v{vWO+i}, {sr(SRD_W,4)}, s{sWO_} offen lds")
        A(f"s_add_u32 s{sT}, s{sBUF}, s{sLX}")
        for j in range(8):
            A(f"s_add_u32 m0, s{sT}, {j*1024}")
            A("s_nop 0")
            A(f"buffer_load_dwordx4 v{vXO+j}, {sr(SRD_X,4)}, s{sXO} offen lds")
        A(f"s_add_u32 s{sXO}, s{sXO}, 128")
        A(f"s_add_u32 s{sWO_}, s{sWO_}, s{sWSTEP}")
        A(f"s_add_u32 s{sBUF}, s{sBUF}, {STAGE}")
        A(f"s_cmp_eq_u32 s{sBUF}, {3*STAGE}")
        A(f"s_cselect_b32 s{sBUF}, 0, s{sBUF}")
    A(f"s_mov_b32 s{sBUF}, 0")
    if SP: stamp(A, 1)
    issue_stage()
    if SP: stamp(A, 2)
    issue_stage()
    if SP:
        A("s_waitcnt vmcnt(13)")
        stamp(A, 3)
        A("s_mov_b32 s66, s92")
    sL = 64
    A(f"s_lshl_b32 s{sL}, s2, 2")
    A(f"s_add_u32 s{sL}, s{sL}, s{sW}")
    SRD_D, SRD_O, SRD_G, SRD_P = 68, 76, 80, 68
    vPW = 64
    vGX, vGW = 76, 88
    vS1, vS2, vTK = 100, 101, 102
    sN = 84
    sN = 56
    def prefetch_inputs():
        n = 0
        A.c("warm-up: stream a 1/1024 share of every GEMM input linearly, so that the strided tile loads of the later stages hit the memory-side cache")
        A("v_lshlrev_b32 v3, 4, v2")
        for (ptr, nb, pieces) in ((sX, 2048*1280, 3), (sWQ, 640*3840, 3), (72, 640*3072, 2), (74, 640*3072, 2)):
            A(f"s_mov_b32 s{SRD_P}, s{ptr}")
            A(f"s_and_b32 s{SRD_P+1}, s{ptr+1}, 0xffff")
            A(f"s_mov_b32 s{SRD_P+2}, {nb}")
            A(f"s_mov_b32 s{SRD_P+3}, 0x20000")
            A(f"s_mul_i32 s{sT2}, s{sL}, {pieces*1024}")
            for i in range(pieces):
                A(f"buffer_load_dwordx4 v[60:63], v3, {sr(SRD_P,4)}, s{sT2} offen offset:{i*1024}")
                n += 1
        return n
    def side_loads():
        for srd, p, nb in ((SRD_D, sWD, 1536*1280), (SRD_O, sWO, 640*1280), (SRD_G, sGW, 1280)):
            A(f"s_mov_b32 s{srd}, s{p}")
            A(f"s_and_b32 s{srd+1}, s{p+1}, 0xffff")
            A(f"s_mov_b32 s{srd+2}, {nb}")
            A(f"s_mov_b32 s{srd+3}, 0x20000")
        A("v_lshrrev_b32 v3, 2, v2")
        A("v_mul_u32_u24 v3, 1280, v3")
        A("v_and_b32 v4, 3, v2")
        A(f"v_lshl_add_u32 v{vS1}, v4, 4, v3")
        A("v_bfe_u32 v5, v2, 4, 1")
        A("v_lshrrev_b32 v6, 5, v2")
        A("v_lshl_add_u32 v5, v5, 1, v6")
        A("v_mul_u32_u24 v5, 20, v5")
        A("v_bfe_u32 v6, v2, 2, 2")
        A("v_add3_u32 v5, v5, v6, 16")
        A("v_mul_u32_u24 v5, 1280, v5")
        A(f"v_lshl_add_u32 v{vS2}, v4, 4, v5")
        for m in range(3):
            A(f"s_add_u32 s{sN+m}, s{sL}, {1024*m}")
            A(f"s_cmp_ge_u32 s{sN+m}, 1920")
            A(f"s_cbranch_scc1 {name}_pl_o{m}")
            A(f"s_mul_i32 s{sT}, s{sN+m}, 683")
            A(f"s_lshr_b32 s{sT}, s{sT}, 16")
            A(f"s_mul_i32 s{sT2}, s{sT}, 96")
            A(f"s_sub_u32 s{sT2}, s{sN+m}, s{sT2}")
            A(f"s_mul_i32 s{sT2}, s{sT2}, {16*1280}")
            A(f"s_lshl_b32 s{sT}, s{sT}, 6")
            A(f"s_add_u32 s{sT}, s{sT}, s{sT2}")
            A(f"buffer_load_dwordx4 {vr(vPW+4*m,4)}, v{vS1}, {sr(SRD_D,4)}, s{sT} offen")
            A(f"s_branch {name}_pl_n{m}")
            A.label(f"{name}_pl_o{m}")
            A(f"s_sub_u32 s{sT3}, s{sN+m}, 1920")
            A(f"s_mul_i32 s{sT}, s{sT3}, 1639")
            A(f"s_lshr_b32 s{sT}, s{sT}, 16")
            A(f"s_mul_i32 s{sT2}, s{sT}, 40")
            A(f"s_sub_u32 s{sT2}, s{sT3}, s{sT2}")
            A(f"s_lshl_b32 s{sT}, s{sT}, 6")
            A(f"s_cmp_ge_u32 s{sT2}, 32")
            A(f"s_cbranch_scc1 {name}_pl_t{m}")
            A.c("main step (one head): rows 20*head .. +15")
            A(f"s_mul_i32 s{sT2}, s{sT2}, {20*1280}")
            A(f"s_add_u32 s{sT}, s{sT}, s{sT2}")
            A(f"buffer_load_dwordx4 {vr(vPW+4*m,4)}, v{vS1}, {sr(SRD_O,4)}, s{sT} offen")
            A(f"s_branch {name}_pl_n{m}")
            A.label(f"{name}_pl_t{m}")
            A.c("tail step: d=16..19 of four heads (blocks past 2720 read zeros or junk, never stored)")
            A(f"s_sub_u32 s{sT2}, s{sT2}, 32")
            A(f"s_mul_i32 s{sT2}, s{sT2}, {80*1280}")
            A(f"s_add_u32 s{sT}, s{sT}, s{sT2}")
            A(f"buffer_load_dwordx4 {vr(vPW+4*m,4)}, v{vS2}, {sr(SRD_O,4)}, s{sT} offen")
            A.label(f"{name}_pl_n{m}")
        A("v_and_b32 v3, 31, v2")
        A("v_lshlrev_b32 v3, 4, v3")
        A(f"v_lshrrev_b32 v{vTK}, 5, v2")
        A(f"s_lshl_b32 s{sT}, s{sL}, 1")
        A(f"v_add_u32 v{vTK}, s{sT}, v{vTK}")
        A(f"v_mul_u32_u24 v5, 1280, v{vTK}")
        A("v_add_u32 v5, v5, v3")
        A("v_and_b32 v6, 16, v2")
        A("v_cmp_ne_u32 vcc, 0, v6")
        A(f"v_mov_b32 v7, 0x7ff00000")
        A("v_add_u32 v6, 1024, v5")
        A("v_add_u32 v4, 1024, v3")
        A("v_cndmask_b32 v6, v6, v7, vcc")
        A("v_cndmask_b32 v4, v4, v7, vcc")
        A(f"buffer_load_dwordx4 {vr(vGX,4)}, v5, {sr(SRD_X,4)}, 0 offen")
        A(f"buffer_load_dwordx4 {vr(vGX+4,4)}, v5, {sr(SRD_X,4)}, 0 offen offset:512")
        A(f"buffer_load_dwordx4 {vr(vGX+8,4)}, v6, {sr(SRD_X,4)}, 0 offen")
        A(f"buffer_load_dwordx4 {vr(vGW,4)}, v3, {sr(SRD_G,4)}, 0 offen")
        A(f"buffer_load_dwordx4 {vr(vGW+4,4)}, v3, {sr(SRD_G,4)}, 0 offen offset:512")
        A(f"buffer_load_dwordx4 {vr(vGW+8,4)}, v4, {sr(SRD_G,4)}, 0 offen")
        return 9
    def side_process():
        A.c("side job: gate g = sigmoid(x . gate_w)")
        A("v_mov_b32 v3, 0")
        for j in range(12):
            A(f"v_dot2c_f32_bf16 v3, v{vGX+j}, v{vGW+j}")
        A("s_nop 3")
        for sh in (1, 2, 4, 8):
            A(f"v_add_f32_dpp v3, v3, v3 row_shr:{sh} row_mask:0xf bank_mask:0xf bound_ctrl:0")
            A("s_nop 1")
        A("v_add_f32_dpp v3, v3, v3 row_bcast:15 row_mask:0xa bank_mask:0xf")
        A("s_nop 1")
        A("v_mul_f32 v3, 0xbfb8aa3b, v3")
        A("v_exp_f32 v3, v3")
        A("s_nop 0")
        A("v_add_f32 v3, 1.0, v3")
        A("v_rcp_f32 v3, v3")
        A(f"v_lshlrev_b32 v{vTK}, 2, v{vTK}")
        A("v_and_b32 v6, 31, v2")
        A("v_cmp_eq_u32 vcc, 31, v6")
        A(f"s_mov_b32 s{sT}, {GG}")
        A("s_and_saveexec_b64 s[50:51], vcc")
        A(f"s_cbranch_execz {name}_gate_done")
        A(f"buffer_store_dword v3, v{vTK}, {sr(SRD_WS,4)}, s{sT} offen{SC1}")
        A.label(f"{name}_gate_done")
        A("s_mov_b64 exec, s[50:51]")
        A.c("side job: transpose Wd / Wo blocks into MFMA A-fragment order through a 512-byte LDS scratch per wave")
        A(f"s_lshl_b32 s{sT}, s{sW}, 9")
        A(f"s_add_u32 s{sT}, s{sT}, {3*STAGE}")
        A("v_and_b32 v4, 31, v2")
        A("v_lshlrev_b32 v4, 4, v4")
        A(f"v_add_u32 v4, s{sT}, v4")
        A("v_lshrrev_b32 v7, 5, v2")
        A("v_bfe_u32 v5, v2, 2, 2")
        A("v_lshl_add_u32 v5, v7, 2, v5")
        A("v_lshlrev_b32 v5, 6, v5")
        A("v_bfe_u32 v6, v2, 4, 1")
        A("v_lshl_add_u32 v5, v6, 5, v5")
        A("v_and_b32 v6, 3, v2")
        A("v_lshl_add_u32 v5, v6, 3, v5")
        A(f"v_add_u32 v5, s{sT}, v5")
        A("v_lshlrev_b32 v7, 4, v2")
        OUT = 104
        for m in range(3):
            if m == 2:
                A(f"s_cmp_ge_u32 s{sN+m}, 2720")
                A(f"s_cbranch_scc1 {name}_prep_done")
            for half in range(2):
                A("s_mov_b32 exec_hi, 0" if half == 0 else "s_mov_b32 exec_lo, 0")
                A(f"ds_write_b128 v4, {vr(vPW+4*m,4)}")
                A("s_mov_b64 exec, -1")
                A("s_waitcnt lgkmcnt(0)")
                A(f"ds_read_b64_tr_b16 {vr(OUT+4*m+2*half,2)}, v5")
                A("s_waitcnt lgkmcnt(0)")
            A(f"s_lshl_b32 s{sT}, s{sN+m}, 10")
            A(f"s_add_u32 s{sT}, s{sT}, {WDF}")
            A(f"buffer_store_dwordx4 {vr(OUT+4*m,4)}, v7, {sr(SRD_WS,4)}, s{sT} offen{SC1}")
        A.label(f"{name}_prep_done")
    A("s_waitcnt vmcnt(13)")
    A("s_barrier")
    issue_stage()
    NPF = prefetch_inputs() if not asmlib.OPT.get("nopf") else 0
    A(f"s_waitcnt vmcnt({13+NPF})")
    A("s_barrier")
    issue_stage()
    A(f"s_waitcnt vmcnt({13+NPF})")
    A("s_barrier")
    issue_stage()
    for S in range(3, 8):
        A("s_waitcnt vmcnt(13)")
        A("s_barrier")
        issue_stage()
    NS = side_loads()
    A(f"s_waitcnt vmcnt({13+NS})")
    A("s_barrier")
    if not SP: stamp(A, 1)
    A(f"s_waitcnt vmcnt({NS})")
    A("s_barrier")
    A("s_barrier")
    if not SP: stamp(A, 2)
    A("s_waitcnt vmcnt(0)")
    side_process()
    A.c("constant stores: fill this wave's share of the O' hand-off area with the not-ready pattern")
    A(f"s_lshl_b32 s{sT3}, s2, 2")
    A(f"s_add_u32 s{sT3}, s{sT3}, s{sW}")
    for j in range(4): A(f"v_mov_b32 v{120+j}, -1")
    A("v_lshlrev_b32 v3, 4, v2")
    A(f"s_mul_i32 s{sT}, s{sT3}, 2560")
    A(f"s_add_u32 s{sT}, s{sT}, {OF}")
    A(f"buffer_store_dwordx4 v[120:123], v3, {sr(SRD_WS,4)}, s{sT} offen{SC1}")
    A(f"buffer_store_dwordx4 v[120:123], v3, {sr(SRD_WS,4)}, s{sT} offen offset:1024{SC1}")
    A("s_mov_b32 exec_hi, 0")
    A(f"buffer_store_dwordx4 v[120:123], v3, {sr(SRD_WS,4)}, s{sT} offen offset:2048{SC1}")
    A("s_mov_b64 exec, -1")
    A.c("V blocks: rows 20..31 of every V^T fragment: row 20 = ones (row sums), rows 21..31 = zeros")
    A(f"s_cmp_eq_u32 s{sTYPE}, 2")
    A(f"s_cbranch_scc0 {name}_novpad")
    A("v_and_b32 v3, 15, v2")
    A("v_add_u32 v3, 16, v3")
    A("v_lshrrev_b32 v4, 4, v2")
    A("v_lshlrev_b32 v4, 9, v4")
    A("v_lshl_add_u32 v4, v3, 4, v4")
    A("v_cmp_gt_u32 vcc, 20, v3")
    A("v_mov_b32 v5, 0x7ff00000")
    A("v_mov_b32 v124, 0x3f803f80")
    A("v_cndmask_b32 v4, v4, v5, vcc")
    A("v_cmp_eq_u32 vcc, 20, v3")
    A("s_nop 1")
    A("v_cndmask_b32 v124, 0, v124, vcc")
    A("s_nop 0")
    for j in range(1, 4): A(f"v_mov_b32 v{124+j}, v124")
    A(f"s_sub_u32 s{sT}, s{sCB}, 8")
    A(f"s_lshl_b32 s{sT}, s{sT}, 3")
    A(f"s_lshl_b32 s{sT2}, s{sW}, 1")
    A(f"s_add_u32 s{sT}, s{sT}, s{sT2}")
    A(f"s_mul_i32 s{sT}, s{sT}, {HS_KV}")
    A(f"s_lshl_b32 s{sT2}, s{sRB}, 1")
    A(f"s_mul_i32 s{sT2}, s{sT2}, {CH}")
    A(f"s_add_u32 s{sT}, s{sT}, s{sT2}")
    A(f"s_add_u32 s{sT}, s{sT}, {KV+5120}")
    for hh in range(2):
        for ck in range(2):
            for tl in range(4):
                A(f"s_add_u32 s{sT2}, s{sT}, {hh*HS_KV + ck*CH + tl*2048}")
                A(f"buffer_store_dwordx4 v[124:127], v4, {sr(SRD_WS,4)}, s{sT2} offen{SC1}")
    A.label(f"{name}_novpad")
    A.label(f"{name}_fin")
    if asmlib.PROFILE:
        A("s_waitcnt vmcnt(0)")
        if SP:
            A("v_readfirstlane_b32 s83, v0")
            A("s_nop 3")
            A("s_cmp_ge_u32 s83, 256")
            A(f"s_cbranch_scc1 {name}_fin_sp")
        stamp(A, 3)
        if SP:
            A(f"s_branch {name}_fin_sp2")
            A.label(f"{name}_fin_sp")
            A("s_mov_b32 s92, s66")
            A.label(f"{name}_fin_sp2")
        A("v_readfirstlane_b32 s83, v0")
        A("s_nop 3")
        A("s_lshr_b32 s83, s83, 6")
        stamp_flush(A, 0, SRD_WS, 83, 4)
    if not fused:
        A.label(f"{name}_end")
        A("s_endpgm")
        return 256
    A.c("every wave drains its write-through stores, then one lane signals for the workgroup")
    A("s_mov_b64 exec, -1")
    A("s_waitcnt vmcnt(0) lgkmcnt(0)")
    A("s_barrier")
    sDBG, SRD_D2 = 4, 8
    A(f"s_load_dwordx2 {sr(sDBG,2)}, s[0:1], {KA_DBG}")
    A("v_readfirstlane_b32 s83, v0")
    A("s_nop 3")
    A("s_cmp_lt_u32 s83, 64")
    A(f"s_cbranch_scc0 {name}_p1polled")
    if asmlib.OPT.get('wbl2'):
        A("buffer_wbl2 sc1")
        A("s_waitcnt vmcnt(0)")
    A("s_waitcnt lgkmcnt(0)")
    A(f"s_mov_b32 s{SRD_D2}, s{sDBG}")
    A(f"s_and_b32 s{SRD_D2+1}, s{sDBG+1}, 0xffff")
    A(f"s_mov_b32 s{SRD_D2+2}, 256")
    A(f"s_mov_b32 s{SRD_D2+3}, 0x20000")
    A(f"s_and_b32 s{sT}, s{sCB}, 3")
    A(f"s_add_u32 s{sT2}, s{sRB}, 32")
    A(f"s_cmp_ge_u32 s{sCB}, 12")
    A(f"s_cselect_b32 s{sT}, s{sT2}, s{sT}")
    A(f"s_lshl_b32 s{sT}, s{sT}, 2")
    A("s_mov_b64 exec, 1")
    A(f"v_mov_b32 v3, s{sT}")
    A("v_mov_b32 v4, 1")
    A(f"buffer_atomic_add v4, v3, {sr(SRD_D2,4)}, 0 offen sc1")
    A("s_mov_b64 exec, 0xfff")
    A("v_cmp_gt_u32 vcc, 4, v2")
    A("v_add_u32 v3, 28, v2")
    A("v_mov_b32 v5, 20")
    A("v_mov_b32 v6, 24")
    A("v_cndmask_b32 v3, v3, v2, vcc")
    A("v_cndmask_b32 v5, v5, v6, vcc")
    A("v_lshlrev_b32 v3, 2, v3")
    A(f"s_mov_b32 s{sT2}, 0")
    A.label(f"{name}_p1poll")
    A(f"buffer_load_dword v4, v3, {sr(SRD_D2,4)}, 0 offen sc1")
    A("s_waitcnt vmcnt(0)")
    A("v_cmp_lt_u32 vcc, v4, v5")
    A(f"s_add_u32 s{sT2}, s{sT2}, 1")
    A("s_nop 1")
    A(f"s_cbranch_vccz {name}_p1done")
    A(f"s_cmp_lt_u32 s{sT2}, 0x40000")
    A(f"s_cbranch_scc1 {name}_p1poll")
    A.label(f"{name}_p1done")
    A("s_mov_b64 exec, -1")
    A.label(f"{name}_p1polled")
    A("s_waitcnt lgkmcnt(0)")
    A("s_barrier")
    return 256
```

```python
from asmlib import *
import asmlib
from layout import *
from k23 import ws_srd

K2_LDS = 8*CH + 24576

class VmTrack:
    def __init__(self):
        self.seq = []
        self.need = {}
    def issue(self, tag): self.seq.append(tag)
    def wait(self, wid, tags):
        idx = [i for i, t in enumerate(self.seq) if t in tags]
        if not idx: return
        n = len(self.seq) - 1 - max(idx)
        self.need[wid] = min(self.need.get(wid, 63), n)

def gen_k2(A, name, fused=False):
    if not fused: kernel_header(A, name)
    LD1 = ' sc1' if (fused and asmlib.OPT.get("ldsc1")) else ''
    sWS = 4; SRD = 8; sW = 12; sT, sT2, sT3 = 13, 14, 15
    sHEAD, sQT, sKV, sM0, sCNT, sG, sHF = 16, 17, 18, 19, 20, 21, 22
    sTT, sCBK = 23, 24
    sA0, sB0 = 26, 31
    if not fused:
        A("s_cmp_ge_u32 s2, 256")
        A(f"s_cbranch_scc1 {name}_end")
    TP = asmlib.OPT.get("tailprof")
    if not TP: stamp(A, 0)
    A(f"s_load_dwordx2 {sr(sWS,2)}, s[0:1], {KA_WS}")
    A(f"s_load_dwordx2 s[38:39], s[0:1], {KA_DBG}")
    A(f"s_load_dwordx2 s[48:49], s[0:1], {KA_OUT}")
    A("v_lshrrev_b32 v1, 6, v0")
    A("v_and_b32 v2, 63, v0")
    A(f"v_readfirstlane_b32 s{sW}, v1")
    A(f"s_and_b32 s{sT}, s2, 7")
    A(f"s_lshr_b32 s{sT2}, s2, 3")
    A(f"s_and_b32 s{sT3}, s{sT2}, 3")
    A(f"s_lshl_b32 s{sHEAD}, s{sT}, 2")
    A(f"s_add_u32 s{sHEAD}, s{sHEAD}, s{sT3}")
    A(f"s_and_b32 s{sG}, s{sW}, 3")
    A(f"s_lshr_b32 s{sHF}, s{sW}, 2")
    A(f"s_lshr_b32 s{sQT}, s{sT2}, 2")
    A(f"s_lshl_b32 s{sQT}, s{sQT}, 3")
    A(f"s_lshl_b32 s{sT3}, s{sG}, 1")
    A(f"s_add_u32 s{sQT}, s{sQT}, s{sT3}")
    A(f"s_lshl_b32 s{sTT}, s{sT}, 3")
    A(f"s_and_b32 s{sT3}, s{sT2}, 7")
    A(f"s_add_u32 s{sTT}, s{sTT}, s{sT3}")
    A(f"s_lshr_b32 s{sCBK}, s{sT2}, 3")
    A("s_waitcnt lgkmcnt(0)")
    ws_srd(A, SRD, sWS)
    if asmlib.OPT.get("lone"):
        A(f"s_cmp_ge_u32 s{sW}, 4")
        A(f"s_cbranch_scc1 {name}_end")
    SA, SB = 16, 32; P = 48; OA, OB = 56, 72
    Q16A, Q4A, Q16B, Q4B = 88, 92, 94, 98
    K16 = 100; K4 = [104, 106]; V1 = 108; V2 = 112; E = [116, 120]
    FR = 124; ACC = 172
    vL16, vKV, vK4a, vDma, vFo = 4, 5, 6, 7, 8
    A(f"v_lshlrev_b32 v{vL16}, 4, v2")
    A(f"s_mul_i32 s{sT}, s{sHF}, {4*CH}")
    A(f"v_add_u32 v{vKV}, s{sT}, v{vL16}")
    A("v_and_b32 v3, 31, v2")
    A(f"v_lshlrev_b32 v9, 3, v3")
    A(f"v_add_u32 v9, 1024, v9")
    A(f"v_add_u32 v{vK4a}, s{sT}, v9")
    A(f"v_mov_b32 v{vDma}, v{vL16}")
    A(f"v_mov_b32 v{vFo}, v{vL16}")
    A(f"s_mul_i32 s{sM0}, s{sG}, 3072")
    A(f"s_add_u32 s{sM0}, s{sM0}, s{sT}")
    A(f"s_mul_i32 s{sKV}, s{sHEAD}, {HS_KV}")
    A(f"s_mul_i32 s{sT2}, s{sHF}, {8*CH}")
    A(f"s_add_u32 s{sKV}, s{sKV}, s{sT2}")
    A(f"s_mul_i32 s{sT2}, s{sG}, 3072")
    A(f"s_add_u32 s{sKV}, s{sKV}, s{sT2}")
    A(f"s_add_u32 s{sKV}, s{sKV}, {KV}")
    A("s_mov_b32 s52, 0x30800000")
    A("s_mov_b32 s53, 0x58800000")
    vm = VmTrack()
    def dma_piece(chunk, i, emit):
        if emit and not (asmlib.OPT.get("nodma") and chunk > 2):
            if i == 0:
                A(f"s_add_u32 m0, s{sM0}, {(chunk & 3)*CH}")
                A("s_nop 0")
            A(f"buffer_load_dwordx4 v{vDma}, {sr(SRD,4)}, s{sKV} offen offset:{i*1024}{LD1} lds")
            if i == 3:
                A(f"s_add_u32 s{sKV}, s{sKV}, {CH}")
        vm.issue(("dma", chunk))
    def dma(chunk, emit):
        for i in range(4): dma_piece(chunk, i, emit)
    A(f"s_mul_i32 s{sT}, s{sW}, {12*1024}")
    A(f"s_mul_i32 s{sT2}, s{sCBK}, {5*96*1024}")
    A(f"s_add_u32 s{sT2}, s{sT2}, s{sT}")
    A(f"s_add_u32 s{sA0}, s{sT2}, {WDF}")
    for mt in range(1, 5): A(f"s_add_u32 s{sA0+mt}, s{sA0+mt-1}, {96*1024}")
    A(f"s_mul_i32 s{sT2}, s{sTT}, {96*1024}")
    A(f"s_add_u32 s{sT2}, s{sT2}, s{sT}")
    A(f"s_add_u32 s{sB0}, s{sT2}, {HF}")
    def fslot(s): return FR + (s & 1)*24
    def fload(s, which, imm, emit):
        b = fslot(s)
        if emit:
            if which < 5:
                A(f"buffer_load_dwordx4 {vr(b+4*which,4)}, v{vFo}, {sr(SRD,4)}, s{sA0+which} offen offset:{imm}{LD1}")
            else:
                A(f"buffer_load_dwordx4 {vr(b+20,4)}, v{vFo}, {sr(SRD,4)}, s{sB0} offen offset:{imm}{LD1}")
        vm.issue(("f", s))
    A(f"s_mul_i32 s{sT}, s{sHEAD}, {HS_Q}")
    A(f"s_mul_i32 s{sT2}, s{sQT}, 1280")
    A(f"s_add_u32 s{sT}, s{sT}, s{sT2}")
    if QF: A(f"s_add_u32 s{sT}, s{sT}, {QF}")
    A(f"buffer_load_dwordx4 {vr(Q16A,4)}, v{vL16}, {sr(SRD,4)}, s{sT} offen{LD1}")
    A(f"buffer_load_dwordx2 {vr(Q4A,2)}, v9, {sr(SRD,4)}, s{sT} offen{LD1}")
    A(f"buffer_load_dwordx4 {vr(Q16B,4)}, v{vL16}, {sr(SRD,4)}, s{sT} offen offset:1280{LD1}")
    A(f"buffer_load_dwordx2 {vr(Q4B,2)}, v9, {sr(SRD,4)}, s{sT} offen offset:1280{LD1}")
    for i in range(4): vm.issue(("q", 0))
    dma(0, True)
    dma(1, True)
    A("v_cmp_lt_u32 vcc, 31, v2")
    for r in list(range(OA, OA+32)) + list(range(P, P+8)) + list(range(V2, V2+4)) + list(range(E[0], E[0]+8)):
        A(f"v_mov_b32 v{r}, 0")
    vm.wait("pro", [("dma", 0), ("q", 0)])
    A(f"s_waitcnt vmcnt({vm.need['pro']})")
    for r in (Q4A, Q4A+1, Q4B, Q4B+1):
        A(f"v_cndmask_b32 v{r}, v{r}, v{P}, vcc")
    A("s_barrier")
    dma(2, True)
    vG1, vG2 = 252, 253
    A("v_lshlrev_b32 v14, 2, v3")
    A(f"s_add_u32 s{sT}, s{sQT}, s{sHF}")
    A(f"s_lshl_b32 s{sT}, s{sT}, 7")
    A(f"s_add_u32 s{sT}, s{sT}, {GG}")
    A(f"buffer_load_dword v{vG1}, v14, {sr(SRD,4)}, s{sT} offen{LD1}")
    A(f"s_lshl_b32 s{sT}, s{sTT}, 7")
    A(f"s_add_u32 s{sT}, s{sT}, {GG}")
    A(f"buffer_load_dword v{vG2}, v14, {sr(SRD,4)}, s{sT} offen{LD1}")
    vm.issue(("g", 0)); vm.issue(("g", 0))
    sWo = 32
    A(f"s_mul_i32 s{sT}, s{sW}, {5*1024}")
    A(f"s_mul_i32 s{sT2}, s{sCBK}, {5*40*1024}")
    A(f"s_add_u32 s{sT2}, s{sT2}, s{sT}")
    A(f"s_add_u32 s{sWo}, s{sT2}, {WOF}")
    for mt in range(1, 5): A(f"s_add_u32 s{sWo+mt}, s{sWo+mt-1}, {40*1024}")
    for s in range(2):
        for w in (5, 0, 1, 2, 3, 4): fload(s, w, s*1024, True)
    A(f"v_add_u32 v{vFo}, 2048, v{vFo}")
    def koff(t): return ((t >> 2) & 3)*CH + (t & 3)*1280
    def voff(t, f): return ((t >> 2) & 3)*CH + 5120 + (t & 3)*2048 + f*1024
    rdK16 = lambda t: f"ds_read_b128 {vr(K16,4)}, v{vKV} offset:{koff(t)}"
    rdK4 = lambda t: f"ds_read_b64 {vr(K4[t & 1],2)}, v{vK4a} offset:{koff(t)}"
    rdV1 = lambda t: f"ds_read_b128 {vr(V1,4)}, v{vKV} offset:{voff(t,0)}"
    rdV2 = lambda t: f"ds_read_b128 {vr(V2,4)}, v{vKV} offset:{voff(t,1)}"
    mS1 = lambda d, q: f"v_mfma_f32_32x32x16_bf16 {vr(d,16)}, {vr(K16,4)}, {vr(q,4)}, 0"
    mS2 = lambda d, q, t: f"v_mfma_f32_32x32x8_bf16 {vr(d,16)}, {vr(K4[t & 1],2)}, {vr(q,2)}, {vr(d,16)}"
    mP1 = lambda o: f"v_mfma_f32_32x32x16_bf16 {vr(o,16)}, {vr(V1,4)}, {vr(P,4)}, {vr(o,16)}"
    mP2 = lambda o: f"v_mfma_f32_32x32x16_bf16 {vr(o,16)}, {vr(V2,4)}, {vr(P+4,4)}, {vr(o,16)}"
    A(rdK16(0)); A(rdK4(0)); A(rdV1(0))
    A("s_waitcnt lgkmcnt(0)")
    A(mS1(SA, Q16A))
    for r in range(ACC, ACC+40): A(f"v_mov_b32 v{r}, 0")
    A(mS2(SA, Q4A, 0))
    for r in range(ACC+40, ACC+80): A(f"v_mov_b32 v{r}, 0")
    A(f"s_mov_b32 s{sCNT}, 0")
    if not TP: stamp(A, 1)
    def valu(cur, q):
        e = E[q & 1]; pe = E[(q+1) & 1]; pp = P + 2*((q-1) & 3)
        return [f"v_cvt_pk_bf16_f32 v{pp}, v{pe}, v{pe+1}",
                f"v_exp_f32 v{e}, v{cur+4*q}", f"v_exp_f32 v{e+1}, v{cur+4*q+1}",
                f"v_cvt_pk_bf16_f32 v{pp+1}, v{pe+2}, v{pe+3}",
                f"v_exp_f32 v{e+2}, v{cur+4*q+2}", f"v_exp_f32 v{e+3}, v{cur+4*q+3}"]
    def body(it, emit):
        def E_(s):
            if not emit: return
            if asmlib.OPT.get("nolds") and (s.startswith("ds_read") or "lgkmcnt" in s): return
            if asmlib.OPT.get("nomfma") and s.startswith("v_mfma"): return
            if asmlib.OPT.get("noexp") and s.startswith("v_exp"): return
            A(s)
        for u in range(32):
            t = u >> 1
            gt = it*16 + t
            ev = (u & 1) == 0
            if ev and (t & 3) == 3:
                c = gt >> 2
                wid = ("bar", u)
                vm.wait(wid, [("dma", c+1)])
                if not asmlib.OPT.get("nobar"):
                    E_(f"s_waitcnt vmcnt(@{wid}@)")
                    E_("s_barrier")
                if u == 14:
                    E_(f"s_cmp_eq_u32 s{sCNT}, 1")
                    E_(f"s_cselect_b32 s{sT}, 0x7fff0000, 0")
                    E_(f"v_or_b32 v{vDma}, s{sT}, v{vL16}")
                pend_dma = c+3
            fs, fmt = divmod(max(u-2, 0), 5)
            gs = it*6 + fs
            dof = u >= 2 and not asmlib.OPT.get("noffn2")
            def ffn():
                if not dof: return
                b = fslot(fs)
                if u == 22:
                    E_(f"s_cmp_eq_u32 s{sCNT}, 1")
                    E_(f"s_cbranch_scc0 {name}_nowo")
                    for mt in range(5): E_(f"s_mov_b32 s{sA0+mt}, s{sWo+mt}")
                    E_(f"s_add_u32 s{sB0}, s{sWo}, 2048")
                    E_(f"v_mov_b32 v{vFo}, v{vL16}")
                    if emit: A.label(f"{name}_nowo")
                if fmt == 0:
                    wid = ("f", u)
                    vm.wait(wid, [("f", gs)])
                    E_(f"s_waitcnt vmcnt(@{wid}@)")
                d = vr(ACC+16*fmt,16)
                E_(f"v_mfma_f32_32x32x16_bf16 {d}, {vr(b+4*fmt,4)}, {vr(b+20,4)}, {d}")
                imm = (fs & 1)*1024
                fload(gs+2, fmt, imm, emit)
                if fmt == 4:
                    fload(gs+2, 5, imm, emit)
                    if fs & 1:
                        E_(f"v_add_u32 v{vFo}, 2048, v{vFo}")
            cur = SA if ev else SB
            vv = valu(cur, 0) + valu(cur, 1) + valu(cur, 2) + valu(cur, 3)
            if ev:
                m = {"S1": [mS1(SB, Q16B), rdK16(t+1), rdK4(t+1)],
                     "P2": [mP2(OB), rdV2(t)],
                     "S2": [mS2(SB, Q4B, t)],
                     "P1": ["s_waitcnt lgkmcnt(3)", mP1(OA)]}
            else:
                m = {"S1": ["s_waitcnt lgkmcnt(0)", mS1(SA, Q16A)],
                     "P2": [mP2(OA)],
                     "S2": [mS2(SA, Q4A, t+1)],
                     "P1": [mP1(OB), rdV1(t+1)]}
            if dof: pos = {0: "S1", 5: "F", 10: "P2", 14: "S2", 19: "P1"}
            else:   pos = {0: "S1", 6: "P2", 12: "S2", 18: "P1"}
            dpos = {}
            if ev and (t & 3) == 3: dpos = {3: 0, 16: 1}
            if (not ev) and (t & 3) == 3: dpos = {3: 2, 16: 3}
            for i, l in enumerate(vv):
                if i in dpos:
                    dma_piece((gt >> 2) + 3, dpos[i], emit)
                if i in pos:
                    k = pos[i]
                    if k == "F": ffn()
                    else:
                        for x in m[k]: E_(x)
                E_(l)
    body(0, False); body(1, False)
    start = len(A.lines)
    A(".p2align 6")
    A.label(f"{name}_aloop")
    saved = (list(vm.seq), dict(vm.need))
    body(0, True)
    vm.seq, vm.need = saved
    for i in range(start, len(A.lines)):
        l = A.lines[i]
        if "@" in l:
            key = eval(l.split("@")[1])
            A.lines[i] = l.split("@")[0] + str(vm.need[key]) + l.split("@")[2]
    A(f"s_add_u32 s{sCNT}, s{sCNT}, 1")
    A(f"s_cmp_lt_u32 s{sCNT}, 2")
    A(f"s_cbranch_scc1 {name}_aloop")
    A(f"v_cvt_pk_bf16_f32 v{P+6}, v{E[1]}, v{E[1]+1}")
    A(f"v_cvt_pk_bf16_f32 v{P+7}, v{E[1]+2}, v{E[1]+3}")
    A("s_waitcnt lgkmcnt(0)")
    A("s_nop 1")
    A(mP2(OB))
    stamp(A, 0 if TP else 2)
    def wo_reg(st, mt):
        if st == 0: return FR + 4*mt
        if st == 1: return FR + 24 + 4*mt
        if mt == 0 and st == 2: return FR + 20
        if mt == 0 and st == 3: return FR + 44
        rest = [(2,1),(2,2),(2,3),(2,4),(3,1),(3,2),(3,3),(3,4),(4,0),(4,1),(4,2),(4,3),(4,4)]
        i = rest.index((st, mt))
        return 16 + 4*i if i < 10 else 88 + 4*(i-10)
    BFR = 100
    CATT, RA, RB = 8*CH, 0, 65536
    vWr, vRd, vC1, vC2 = 9, 10, 11, 12
    A(f"s_mul_i32 s{sT}, s{sW}, 3072")
    A(f"s_add_u32 s{sT}, s{sT}, {CATT}")
    A(f"v_add_u32 v{vC1}, s{sT}, v{vL16}")
    A(f"s_xor_b32 s{sT2}, s{sW}, 4")
    A(f"s_mul_i32 s{sT2}, s{sT2}, 3072")
    A(f"s_add_u32 s{sT2}, s{sT2}, {CATT}")
    A(f"v_add_u32 v{vC2}, s{sT2}, v{vL16}")
    A("s_nop 7")
    A(f"s_cmp_eq_u32 s{sHF}, 0")
    A(f"s_cbranch_scc0 {name}_cmb1")
    A("s_nop 3")
    for j in range(3): A(f"ds_write_b128 v{vC1}, {vr(OB+4*j,4)} offset:{j*1024}")
    A(f"s_branch {name}_cmb2")
    A.label(f"{name}_cmb1")
    for j in range(3): A(f"ds_write_b128 v{vC1}, {vr(OA+4*j,4)} offset:{j*1024}")
    A("s_nop 1")
    for j in range(12): A(f"v_mov_b32 v{OA+j}, v{OB+j}")
    A.label(f"{name}_cmb2")
    A("s_waitcnt lgkmcnt(0)")
    A("s_barrier")
    for j in range(3): A(f"ds_read_b128 {vr(OB+4*j,4)}, v{vC2} offset:{j*1024}")
    A("s_waitcnt lgkmcnt(0)")
    O = OA
    for j in range(12): A(f"v_add_f32 v{O+j}, v{O+j}, v{OB+j}")
    vLs, vR = OB, OB+1
    def rowsum():
        A(f"v_mov_b32 v{vLs}, v{O+8}")
        A(f"v_mov_b32 v{vR}, v{O+8}")
        A("s_nop 1")
        A(f"v_permlane32_swap_b32 v{vLs}, v{vR}")
        A("s_nop 1")
    rowsum()
    A(f"v_mov_b32 v{OB+2}, 0")
    for r in range(12): A(f"v_fma_f32 v{OB+2}, v{O+r}, 0, v{OB+2}")
    A(f"v_cmp_o_f32 vcc, v{OB+2}, v{OB+2}")
    A(f"v_cmp_le_f32 s[50:51], s52, v{vR}")
    A(f"v_cmp_ge_f32 s[54:55], s53, v{vR}")
    A("s_nop 3")
    A("s_and_b64 vcc, vcc, s[50:51]")
    A("s_and_b64 vcc, vcc, s[54:55]")
    A("s_cmp_eq_u64 vcc, -1")
    A(f"s_cbranch_scc1 {name}_fastok")
    FS, FP, FK16, FK4, FV1, FV2, FM, FA, FT = 16, 48, 100, 104, 108, 112, 116, 117, 118
    FQ16, FQ4 = 32, 36
    A(f"s_cmp_eq_u32 s{sHF}, 0")
    A(f"s_cbranch_scc0 {name}_fb_b")
    for j in range(4): A(f"v_mov_b32 v{FQ16+j}, v{Q16A+j}")
    for j in range(2): A(f"v_mov_b32 v{FQ4+j}, v{Q4A+j}")
    A(f"s_branch {name}_fb_go")
    A.label(f"{name}_fb_b")
    for j in range(4): A(f"v_mov_b32 v{FQ16+j}, v{Q16B+j}")
    for j in range(2): A(f"v_mov_b32 v{FQ4+j}, v{Q4B+j}")
    A.label(f"{name}_fb_go")
    for r in range(16): A(f"v_mov_b32 v{O+r}, 0")
    A(f"v_mov_b32 v{FM}, 0xff7fffff")
    A("v_and_b32 v3, 31, v2")
    A("v_lshlrev_b32 v14, 3, v3")
    A("v_add_u32 v14, 1024, v14")
    A(f"s_mul_i32 s56, s{sHEAD}, {HS_KV}")
    A(f"s_add_u32 s56, s56, {KV}")
    A("s_mov_b32 s57, 0")
    A.label(f"{name}_fb_loop")
    A("s_lshr_b32 s58, s57, 2")
    A(f"s_mul_i32 s58, s58, {CH}")
    A("s_add_u32 s58, s58, s56")
    A("s_and_b32 s59, s57, 3")
    A("s_mul_i32 s60, s59, 1280")
    A("s_add_u32 s60, s60, s58")
    A("s_lshl_b32 s59, s59, 11")
    A("s_add_u32 s59, s59, s58")
    A("s_add_u32 s59, s59, 5120")
    A(f"buffer_load_dwordx4 {vr(FK16,4)}, v{vL16}, {sr(SRD,4)}, s60 offen{LD1}")
    A(f"buffer_load_dwordx2 {vr(FK4,2)}, v14, {sr(SRD,4)}, s60 offen{LD1}")
    A(f"buffer_load_dwordx4 {vr(FV1,4)}, v{vL16}, {sr(SRD,4)}, s59 offen{LD1}")
    A(f"buffer_load_dwordx4 {vr(FV2,4)}, v{vL16}, {sr(SRD,4)}, s59 offen offset:1024{LD1}")
    A("s_waitcnt vmcnt(0)")
    A(f"v_mfma_f32_32x32x16_bf16 {vr(FS,16)}, {vr(FK16,4)}, {vr(FQ16,4)}, 0")
    A("s_nop 15")
    A(f"v_mfma_f32_32x32x8_bf16 {vr(FS,16)}, {vr(FK4,2)}, {vr(FQ4,2)}, {vr(FS,16)}")
    A("s_nop 15")
    A(f"v_max3_f32 v{FT}, v{FS}, v{FS+1}, v{FS+2}")
    for j in range(3, 15, 2): A(f"v_max3_f32 v{FT}, v{FT}, v{FS+j}, v{FS+j+1}")
    A(f"v_max_f32 v{FT}, v{FT}, v{FS+15}")
    A(f"v_mov_b32 v{FT+1}, v{FT}")
    A("s_nop 1")
    A(f"v_permlane32_swap_b32 v{FT}, v{FT+1}")
    A("s_nop 1")
    A(f"v_max3_f32 v{FT}, v{FT}, v{FT+1}, v{FM}")
    A(f"v_sub_f32 v{FA}, v{FM}, v{FT}")
    A(f"v_exp_f32 v{FA}, v{FA}")
    A(f"v_mov_b32 v{FM}, v{FT}")
    for j in range(16): A(f"v_sub_f32 v{FS+j}, v{FS+j}, v{FM}")
    for j in range(16): A(f"v_exp_f32 v{FS+j}, v{FS+j}")
    A("s_nop 0")
    for j in range(8): A(f"v_cvt_pk_bf16_f32 v{FP+j}, v{FS+2*j}, v{FS+2*j+1}")
    for j in range(16): A(f"v_mul_f32 v{O+j}, v{O+j}, v{FA}")
    A("s_nop 1")
    A(f"v_mfma_f32_32x32x16_bf16 {vr(O,16)}, {vr(FV1,4)}, {vr(FP,4)}, {vr(O,16)}")
    A(f"v_mfma_f32_32x32x16_bf16 {vr(O,16)}, {vr(FV2,4)}, {vr(FP+4,4)}, {vr(O,16)}")
    A("s_nop 15")
    A("s_add_u32 s57, s57, 1")
    A("s_cmp_lt_u32 s57, 64")
    A(f"s_cbranch_scc1 {name}_fb_loop")
    rowsum()
    A.label(f"{name}_fastok")
    A(f"v_rcp_f32 v{vR}, v{vR}")
    A("s_nop 0")
    A(f"v_mul_f32 v{vR}, v{vR}, v{vG1}")
    for r in range(12): A(f"v_mul_f32 v{O+r}, v{O+r}, v{vR}")
    OP = OB + 4
    for j in range(6): A(f"v_cvt_pk_bf16_f32 v{OP+j}, v{O+2*j}, v{O+2*j+1}")
    A(f"s_add_u32 s{sT}, s{sQT}, s{sHF}")
    A(f"s_mul_i32 s{sT}, s{sT}, 40960")
    A(f"s_add_u32 s{sT}, s{sT}, {OF}")
    A(f"s_lshl_b32 s{sT2}, s{sHEAD}, 10")
    A(f"s_add_u32 s{sT2}, s{sT2}, s{sT}")
    A(f"buffer_store_dwordx4 {vr(OP,4)}, v{vL16}, {sr(SRD,4)}, s{sT2} offen sc1")
    A(f"s_lshr_b32 s{sT2}, s{sHEAD}, 2")
    A(f"s_add_u32 s{sT2}, s{sT2}, 32")
    A(f"s_lshl_b32 s{sT2}, s{sT2}, 10")
    A(f"s_add_u32 s{sT}, s{sT}, s{sT2}")
    A(f"s_bfe_u32 s{sT2}, s{sHEAD}, 0x10001")
    A(f"s_lshl_b32 s{sT2}, s{sT2}, 9")
    A(f"s_add_u32 s{sT}, s{sT}, s{sT2}")
    A(f"s_and_b32 s{sT2}, s{sHEAD}, 1")
    A(f"s_lshl_b32 s{sT2}, s{sT2}, 3")
    A(f"s_add_u32 s{sT}, s{sT}, s{sT2}")
    A("s_mov_b32 exec_hi, 0")
    A(f"buffer_store_dwordx2 {vr(OP+4,2)}, v{vL16}, {sr(SRD,4)}, s{sT} offen sc1")
    A("s_mov_b64 exec, -1")
    if TP == 1: stamp(A, 1)
    sOF = 37
    A(f"s_mul_i32 s{sOF}, s{sTT}, 40960")
    A(f"s_mul_i32 s{sT2}, s{sW}, {5*1024}")
    A(f"s_add_u32 s{sOF}, s{sOF}, s{sT2}")
    A(f"s_add_u32 s{sOF}, s{sOF}, {OF}")
    A(f"v_add_u32 v15, 4096, v{vL16}")
    def ofloads():
        for st in range(5):
            if st < 4:
                A(f"buffer_load_dwordx4 {vr(BFR+4*st,4)}, v{vL16}, {sr(SRD,4)}, s{sOF} offen offset:{st*1024} sc1")
            else:
                A(f"buffer_load_dwordx4 {vr(BFR+4*st,4)}, v15, {sr(SRD,4)}, s{sOF} offen sc1")
    def ofcheck():
        A(f"v_max3_u32 v14, v{BFR}, v{BFR+1}, v{BFR+2}")
        for j in range(3, 19, 2):
            A(f"v_max3_u32 v14, v14, v{BFR+j}, v{BFR+j+1}")
        A(f"v_max_u32 v14, v14, v{BFR+19}")
        A("v_cmp_eq_u32 vcc, -1, v14")
    A(f"v_sub_f32 v{vG2}, 1.0, v{vG2}")
    k = 0
    for st in range(2, 5):
        for mt in range(5):
            if st < 4 and mt == 0: continue
            if st < 4:
                A(f"buffer_load_dwordx4 {vr(wo_reg(st,mt),4)}, v{vL16}, {sr(SRD,4)}, s{sWo+mt} offen offset:{st*1024}{LD1}")
            else:
                A(f"buffer_load_dwordx4 {vr(wo_reg(st,mt),4)}, v15, {sr(SRD,4)}, s{sWo+mt} offen{LD1}")
            for r in range(ACC+k, min(ACC+k+7, ACC+80)): A(f"v_mul_f32 v{r}, v{r}, v{vG2}")
            k = min(k+7, 80)
    assert k == 80
    A(f"s_mov_b32 s{sT2}, 0")
    A.label(f"{name}_poll")
    ofloads()
    A("s_waitcnt vmcnt(0)")
    ofcheck()
    A(f"s_add_u32 s{sT2}, s{sT2}, 1")
    A("s_nop 1")
    A(f"s_cbranch_vccz {name}_polldone")
    A(f"s_cmp_lt_u32 s{sT2}, 0x40000")
    A(f"s_cbranch_scc1 {name}_poll")
    A.label(f"{name}_polldone")
    if TP == 1: stamp(A, 2)
    for st in range(5):
        for mt in range(5):
            d = vr(ACC+16*mt,16)
            A(f"v_mfma_f32_32x32x16_bf16 {d}, {vr(wo_reg(st,mt),4)}, {vr(BFR+4*st,4)}, {d}")
    RB2 = 65536
    PK = 16
    A("s_nop 15")
    G4 = 56
    for mt in (0, 1, 2, 3, 4):
        for q in range(4):
            a = ACC + 16*mt + 4*q
            d = PK + 32 + 2*q if mt == 4 else G4 + 4*((mt & 1)*4 + q) + 2*(mt >> 1)
            A(f"v_cvt_pk_bf16_f32 v{d}, v{a}, v{a+1}")
            A(f"v_cvt_pk_bf16_f32 v{d+1}, v{a+2}, v{a+3}")
    A(f"s_lshl_b32 s{sT}, s{sW}, 13")
    A(f"v_add_u32 v{vWr}, s{sT}, v{vL16}")
    A(f"s_lshl_b32 s{sT}, s{sW}, 11")
    A(f"s_add_u32 s{sT}, s{sT}, {RB2}")
    A("v_lshlrev_b32 v13, 3, v2")
    A(f"v_add_u32 v14, s{sT}, v13")
    for d in range(8):
        A(f"ds_write_b128 v{vWr}, {vr(G4+4*d,4)} offset:{d*1024}")
    for q in range(4):
        A(f"ds_write_b64 v14, {vr(PK+32+2*q,2)} offset:{q*512}")
    A(f"s_lshl_b32 s{sT}, s{sW}, 10")
    A(f"v_add_u32 v{vRd}, s{sT}, v{vL16}")
    A(f"s_lshl_b32 s{sT}, s{sG}, 9")
    A(f"s_add_u32 s{sT}, s{sT}, {RB2}")
    A(f"v_add_u32 v14, s{sT}, v13")
    A("v_mov_b32 v12, 0x3f80")
    A("v_mov_b32 v11, 0x3f800000")
    SUMA, SUMB, SUMC = 56, 60, 64
    A("s_waitcnt lgkmcnt(0)")
    A("s_barrier")
    T0 = 16
    for s_ in range(8):
        A(f"ds_read_b128 {vr(T0+4*s_,4)}, v{vRd} offset:{s_*8192}")
    for s_ in range(8):
        A(f"ds_read_b64 {vr(88+2*s_,2)}, v14 offset:{s_*2048}")
    for r in range(SUMA, SUMA+12): A(f"v_mov_b32 v{r}, 0")
    for s_ in range(8):
        A(f"s_waitcnt lgkmcnt({min(15, 7-s_+8)})")
        for j in range(2):
            A(f"v_dot2_f32_bf16 v{SUMA+2*j}, v{T0+4*s_+j}, v12, v{SUMA+2*j}")
            A(f"v_dot2_f32_bf16 v{SUMA+2*j+1}, v{T0+4*s_+j}, v11, v{SUMA+2*j+1}")
            A(f"v_dot2_f32_bf16 v{SUMB+2*j}, v{T0+4*s_+2+j}, v12, v{SUMB+2*j}")
            A(f"v_dot2_f32_bf16 v{SUMB+2*j+1}, v{T0+4*s_+2+j}, v11, v{SUMB+2*j+1}")
    A("s_waitcnt lgkmcnt(0)")
    for s_ in range(8):
        for j in range(2):
            A(f"v_dot2_f32_bf16 v{SUMC+2*j}, v{88+2*s_+j}, v12, v{SUMC+2*j}")
            A(f"v_dot2_f32_bf16 v{SUMC+2*j+1}, v{88+2*s_+j}, v11, v{SUMC+2*j+1}")
    SRD_O = 44; sOUT = 48
    A("v_and_b32 v3, 31, v2")
    A(f"s_lshl_b32 s{sT}, s{sTT}, 5")
    A(f"v_add_u32 v3, s{sT}, v3")
    A("v_mul_u32_u24 v3, 1280, v3")
    A("v_lshrrev_b32 v14, 5, v2")
    A("v_lshl_add_u32 v3, v14, 3, v3")
    A(f"s_mul_i32 s{sT}, s{sCBK}, 320")
    A(f"s_lshl_b32 s{sT2}, s{sG}, 4")
    A(f"s_add_u32 s{sT}, s{sT}, s{sT2}")
    A(f"s_lshl_b32 s{sT2}, s{sHF}, 6")
    A(f"s_add_u32 s{sT2}, s{sT2}, s{sT}")
    A(f"s_mov_b32 s{SRD_O}, s{sOUT}")
    A(f"s_and_b32 s{SRD_O+1}, s{sOUT+1}, 0xffff")
    A(f"s_mov_b32 s{SRD_O+2}, {2048*1280}")
    A(f"s_mov_b32 s{SRD_O+3}, 0x20000")
    A("s_nop 3")
    for src, d in ((SUMA, 68), (SUMB, 70)):
        A(f"v_cvt_pk_bf16_f32 v{d}, v{src}, v{src+1}")
        A(f"v_cvt_pk_bf16_f32 v{d+1}, v{src+2}, v{src+3}")
    A(f"buffer_store_dwordx2 v[68:69], v3, {sr(SRD_O,4)}, s{sT2} offen")
    A(f"buffer_store_dwordx2 v[70:71], v3, {sr(SRD_O,4)}, s{sT2} offen offset:128")
    A(f"s_cmp_eq_u32 s{sHF}, 0")
    A(f"s_cbranch_scc0 {name}_fin")
    A(f"v_cvt_pk_bf16_f32 v72, v{SUMC}, v{SUMC+1}")
    A(f"v_cvt_pk_bf16_f32 v73, v{SUMC+2}, v{SUMC+3}")
    A(f"buffer_store_dwordx2 v[72:73], v3, {sr(SRD_O,4)}, s{sT} offen offset:256")
    A.label(f"{name}_fin")
    if asmlib.PROFILE:
        A("s_waitcnt vmcnt(0)")
        stamp(A, 3)
        stamp_flush(A, 1, SRD, sW, 4)
    A.label(f"{name}_end")
    A("s_endpgm")
    return 256
```

```python
import sys
from asmlib import *
from layout import *
import k1, k23, k2v2
HEADER = open('gated_mix__mha_block__glu_gated_geglu__prompt.s.ref').read().split('; Override launch geometry')[0]
def build_fused():
    A = Asm()
    name = "gated_mix__mha_block__glu_gated_geglu__prompt_kernel"
    hdr = HEADER
    hdr += f"; @launch grid=(256,1,1) block=(512,1,1) lds={max(k1.K1_LDS, k2v2.K2_LDS)}\n"
    A('.amdgcn_target "amdgcn-amd-amdhsa--gfx950"')
    kernel_header_done = False
    k1.gen_k1(A, name, fused=True)
    k2v2.gen_k2(A, name + "_p2", fused=True)
    kernel_desc(A, name, 256)
    txt = A.text().replace(name + "_p2_end:", name + "_end:")
    return hdr + txt

def build():
    import asmlib
    if asmlib.OPT.get("fused"): return build_fused()
    A = Asm()
    names = ("gm_k1_kernel", "gm_k2_kernel", "gm_k3_kernel")
    hdr = HEADER
    hdr += f"; @launch kernel={names[0]} grid=(256,1,1) block=(512,1,1) lds={k1.K1_LDS}\n"
    hdr += f"; @launch kernel={names[1]} grid=(256,1,1) block=(512,1,1) lds={k2v2.K2_LDS}\n"
    A('.amdgcn_target "amdgcn-amd-amdhsa--gfx950"')
    v1 = k1.gen_k1(A, names[0])
    v2 = k2v2.gen_k2(A, names[1])
    kernel_desc(A, names[0], v1)
    kernel_desc(A, names[1], v2)
    return hdr + A.text()
if __name__ == "__main__":
    import asmlib
    if "--prof" in sys.argv:
        sys.argv.remove("--prof"); asmlib.PROFILE = True
    for a in list(sys.argv):
        if a.startswith("--opt="):
            sys.argv.remove(a)
            for kv in a[6:].split(","):
                k, _, v = kv.partition("=")
                asmlib.OPT[k] = int(v) if v else 1
    out = sys.argv[1] if len(sys.argv) > 1 else "gated_mix__mha_block__glu_gated_geglu__prompt.s"
    open(out, "w").write(build())
    print("wrote", out)
```

```python
from asmlib import *
import asmlib
from layout import *

STAGE = 53376
WOFF = 32768
UOFF = 10368
K1_LDS = 3*STAGE + 2048

def gen_k1(A, name, fused=False):
    SC1 = ' sc1' if ((fused and not asmlib.OPT.get('wbl2')) or not asmlib.OPT.get('k1plain')) else (' nt' if asmlib.OPT.get('k1nt') else '')
    kernel_header(A, name)
    sX, sWQ, sWO, sWG, sWU, sWD, sGW, sWS = 4, 6, 8, 12, 14, 16, 18, 48
    sRB, sCB, sW, sT = 20, 21, 22, 23
    sT2, sT3 = 24, 25
    sRS = 26
    sCG, sCU = 27, 28
    sTYPE = 29
    sNU = 30
    sU0 = 31
    SRD_X, SRD_W, SRD_WS = 32, 36, 40
    sBUF = 44; sXO = 45; sWO_ = 46; sCNT = 47
    sHM = 48
    sH = 52
    sSC = 60
    sDP, sDN = 84, 85
    A("s_cmp_ge_u32 s2, 256")
    A(f"s_cbranch_scc1 {name}_end")
    stamp(A, 0)
    A("s_load_dwordx8 s[4:11], s[0:1], 0")
    A("s_load_dwordx8 s[12:19], s[0:1], 32")
    A(f"s_load_dwordx2 {sr(sWS,2)}, s[0:1], {KA_WS}")
    A.c("decode: xcd = id&7, j = id>>3; rb = 4*(xcd&1) + (j&3); cb = 8*(xcd>>1) + (j>>2)")
    A(f"s_and_b32 s{sT}, s2, 1")
    A(f"s_lshl_b32 s{sT}, s{sT}, 2")
    A(f"s_lshr_b32 s{sT2}, s2, 3")
    A(f"s_and_b32 s{sT3}, s{sT2}, 3")
    A(f"s_add_u32 s{sRB}, s{sT}, s{sT3}")
    if not asmlib.OPT.get("map1"):
        A.c("XCD pair p produces Q_p, K_p, V_p (the heads its attention workgroups consume) and five FFN column blocks")
        A(f"s_bfe_u32 s{sT}, s2, 0x20001")
        A(f"s_lshr_b32 s{sT2}, s{sT2}, 2")
        A(f"s_lshl_b32 s{sT3}, s{sT2}, 2")
        A(f"s_add_u32 s{sCB}, s{sT3}, s{sT}")
        A(f"s_mul_i32 s{sT3}, s{sT}, 5")
        A(f"s_add_u32 s{sT3}, s{sT3}, s{sT2}")
        A(f"s_add_u32 s{sT3}, s{sT3}, 9")
        A(f"s_cmp_ge_u32 s{sT2}, 3")
        A(f"s_cselect_b32 s{sCB}, s{sT3}, s{sCB}")
    else:
        A(f"s_and_b32 s{sT}, s2, 6")
        if not asmlib.OPT.get("oldmap"):
            A.c("column-block groups in reverse XCD order: the blocks with the longer epilogue (FFN) go to the workgroups that start first")
            A(f"s_sub_u32 s{sT}, 6, s{sT}")
        A(f"s_lshl_b32 s{sT}, s{sT}, 2")
        A(f"s_lshr_b32 s{sT2}, s{sT2}, 2")
        A(f"s_add_u32 s{sCB}, s{sT}, s{sT2}")
    A("v_lshrrev_b32 v1, 6, v0")
    A("v_and_b32 v2, 63, v0")
    A(f"v_readfirstlane_b32 s{sW}, v1")
    A.c("block params")
    A(f"s_cmp_ge_u32 s{sCB}, 12")
    A(f"s_cbranch_scc1 {name}_ffn_params")
    A(f"s_movk_i32 s{sRS}, 3840")
    A(f"s_mul_i32 s{sCG}, s{sCB}, 160")
    A(f"s_add_u32 s{sCU}, s{sCG}, 80")
    A(f"s_lshr_b32 s{sTYPE}, s{sCB}, 2")
    A(f"s_mov_b32 s{sNU}, 5")
    A(f"s_mov_b32 s{sU0}, 0")
    A(f"s_branch {name}_params_done")
    A.label(f"{name}_ffn_params")
    A(f"s_movk_i32 s{sRS}, 3072")
    A(f"s_sub_u32 s{sT}, s{sCB}, 12")
    A(f"s_mul_i32 s{sU0}, s{sT}, 5")
    A(f"s_mov_b32 s{sNU}, 5")
    A(f"s_cmp_lt_u32 s{sT}, 16")
    A(f"s_cbranch_scc1 {name}_ffn_p2")
    A(f"s_lshl_b32 s{sU0}, s{sT}, 2")
    A(f"s_add_u32 s{sU0}, s{sU0}, 16")
    A(f"s_mov_b32 s{sNU}, 4")
    A.label(f"{name}_ffn_p2")
    A(f"s_lshl_b32 s{sCG}, s{sU0}, 4")
    A(f"s_mov_b32 s{sCU}, s{sCG}")
    A(f"s_mov_b32 s{sTYPE}, 3")
    A.label(f"{name}_params_done")
    SP = asmlib.OPT.get("startprof")
    def srd_ws():
        A(f"s_mov_b32 s{SRD_WS}, s{sWS}")
        A(f"s_and_b32 s{SRD_WS+1}, s{sWS+1}, 0xffff")
        A(f"s_mov_b32 s{SRD_WS+2}, {WS_SIZE}")
        A(f"s_mov_b32 s{SRD_WS+3}, 0x20000")
    def srd_x():
        A(f"s_mov_b32 s{SRD_X}, s{sX}")
        A(f"s_and_b32 s{SRD_X+1}, s{sX+1}, 0xffff")
        A(f"s_mov_b32 s{SRD_X+2}, {2048*1280}")
        A(f"s_mov_b32 s{SRD_X+3}, 0x20000")
    def x_voffsets(vXO):
        A("v_lshrrev_b32 v3, 3, v2")
        A("v_lshrrev_b32 v4, 4, v2")
        A("v_and_b32 v5, 7, v2")
        A("v_xor_b32 v5, v5, v4")
        A("v_xor_b32 v6, 4, v5")
        A(f"s_lshl_b32 s{sT}, s{sW}, 6")
        A(f"v_add_u32 v3, s{sT}, v3")
        A("v_mul_u32_u24 v3, 1280, v3")
        A("v_lshl_add_u32 v5, v5, 4, v3")
        A("v_lshl_add_u32 v6, v6, 4, v3")
        for j in range(8):
            A(f"v_add_u32 v{vXO+j}, {j*10240}, v{5 if j % 2 == 0 else 6}")
    A(f"s_cmp_ge_u32 s{sW}, 4")
    A(f"s_cbranch_scc1 {name}_loader")

    ACC = 96
    def acc(tt, mt): return ACC + (tt*5 + mt)*16
    FA = [8, 36]
    FB = [28, 56]
    vXA = 64
    vWA = 68
    vWA2 = 69
    A.c("compute waves fetch the x rows of stages 0 and 1 themselves (the loaders fetch the weights)")
    x_voffsets(70)
    A(f"s_mul_i32 s{sXO}, s{sRB}, {256*1280}")
    A(f"s_lshl_b32 s{sT2}, s{sW}, 13")
    A("s_waitcnt lgkmcnt(0)")
    srd_x()
    srd_ws()
    for st in range(2):
        for j in range(8):
            A(f"s_add_u32 m0, s{sT2}, {st*STAGE + j*1024}")
            A("s_nop 0")
            A(f"buffer_load_dwordx4 v{70+j}, {sr(SRD_X,4)}, s{sXO} offen lds")
        A(f"s_add_u32 s{sXO}, s{sXO}, 128")
    if asmlib.OPT.get("wtouch"):
        A.c("touch the pages this wave will store to at the end (translation warm-up)")
        A(f"s_lshl_b32 s{sT2}, s{sRB}, 3")
        A(f"s_lshl_b32 s{sT3}, s{sW}, 1")
        A(f"s_add_u32 s{sT2}, s{sT2}, s{sT3}")
        A(f"s_cmp_eq_u32 s{sTYPE}, 3")
        A(f"s_cbranch_scc1 {name}_wt_f")
        A(f"s_and_b32 s{sT}, s{sCB}, 3")
        A(f"s_lshl_b32 s{sT}, s{sT}, 3")
        A("v_and_b32 v3, 7, v2")
        A(f"v_add_u32 v3, s{sT}, v3")
        A(f"s_cmp_eq_u32 s{sTYPE}, 0")
        A(f"s_mov_b32 s{sT}, {HS_KV}")
        A(f"s_mov_b32 s{sT3}, {HS_Q}")
        A(f"s_cselect_b32 s{sT}, s{sT3}, s{sT}")
        A(f"v_mul_lo_u32 v3, v3, s{sT}")
        A(f"s_mul_i32 s{sT3}, s{sT2}, 1280")
        A(f"s_lshr_b32 s{sT2}, s{sT2}, 2")
        A(f"s_mul_i32 s{sT2}, s{sT2}, {CH}")
        A(f"s_add_u32 s{sT2}, s{sT2}, {KV}")
        A(f"s_cmp_eq_u32 s{sTYPE}, 0")
        A(f"s_cselect_b32 s{sT2}, s{sT3}, s{sT2}")
        A(f"s_branch {name}_wt_go")
        A.label(f"{name}_wt_f")
        A("v_and_b32 v3, 1, v2")
        A(f"v_mul_u32_u24 v3, {96*1024}, v3")
        A(f"s_mul_i32 s{sT2}, s{sT2}, {96*1024}")
        A(f"s_lshl_b32 s{sT3}, s{sU0}, 10")
        A(f"s_add_u32 s{sT2}, s{sT2}, s{sT3}")
        A(f"s_add_u32 s{sT2}, s{sT2}, {HF}")
        A.label(f"{name}_wt_go")
        A("s_mov_b64 exec, 0xff")
        A(f"buffer_load_dword v80, v3, {sr(SRD_WS,4)}, s{sT2} offen")
        A("s_mov_b64 exec, -1")
    if asmlib.OPT.get("k1prio"): A(f"s_setprio {asmlib.OPT.get('k1prio')}")
    A.c("compute wave: LDS read addresses")
    A("v_and_b32 v3, 31, v2")
    A("v_lshrrev_b32 v4, 5, v2")
    A(f"s_lshl_b32 s{sT}, s{sW}, 6")
    A(f"v_add_u32 v5, s{sT}, v3")
    A("v_lshlrev_b32 v5, 7, v5")
    A("v_bfe_u32 v6, v3, 1, 3")
    for sp in range(4):
        A(f"v_or_b32 v7, {2*sp}, v4")
        A("v_xor_b32 v7, v7, v6")
        A(f"v_lshl_add_u32 v{vXA+sp}, v7, 4, v5")
    A("v_bfe_u32 v5, v2, 4, 1")
    A(f"v_mul_u32_u24 v5, {UOFF}, v5")
    A("v_bfe_u32 v6, v2, 2, 2")
    A("v_lshl_add_u32 v6, v4, 3, v6")
    A("v_mul_u32_u24 v6, 160, v6")
    A("v_and_b32 v7, 3, v2")
    A("v_lshlrev_b32 v7, 3, v7")
    A("v_add3_u32 v5, v5, v6, v7")
    A(f"v_add_u32 v{vWA}, {WOFF}, v5")
    A.c("Q/K/V blocks: unit 4 gathers d=16..19 of four heads: column byte offset 40c+32 instead of 8c")
    A("v_lshlrev_b32 v7, 2, v7")
    A(f"v_add3_u32 v{vWA2}, v{vWA}, v7, 32")
    for r in range(ACC, ACC+160):
        A(f"v_mov_b32 v{r}, 0")

    def const_stores(tag, R=70):
        A.c("constant stores: fill this wave's share of the O' hand-off area with the not-ready pattern")
        A(f"s_lshl_b32 s{sT3}, s2, 2")
        A(f"s_add_u32 s{sT3}, s{sT3}, s{sW}")
        for j in range(4): A(f"v_mov_b32 v{R+j}, -1")
        A("v_lshlrev_b32 v3, 4, v2")
        A(f"s_mul_i32 s{sT}, s{sT3}, 2560")
        A(f"s_add_u32 s{sT}, s{sT}, {OF}")
        A(f"buffer_store_dwordx4 {vr(R,4)}, v3, {sr(SRD_WS,4)}, s{sT} offen{SC1}")
        A(f"buffer_store_dwordx4 {vr(R,4)}, v3, {sr(SRD_WS,4)}, s{sT} offen offset:1024{SC1}")
        A("s_mov_b32 exec_hi, 0")
        A(f"buffer_store_dwordx4 {vr(R,4)}, v3, {sr(SRD_WS,4)}, s{sT} offen offset:2048{SC1}")
        A("s_mov_b64 exec, -1")
        A.c("V blocks: rows 20..31 of every V^T fragment: row 20 = ones (row sums), rows 21..31 = zeros")
        A(f"s_cmp_eq_u32 s{sTYPE}, 2")
        A(f"s_cbranch_scc0 {name}_novpad_{tag}")
        A("v_and_b32 v3, 15, v2")
        A("v_add_u32 v3, 16, v3")
        A("v_lshrrev_b32 v4, 4, v2")
        A("v_lshlrev_b32 v4, 9, v4")
        A("v_lshl_add_u32 v4, v3, 4, v4")
        A("v_cmp_gt_u32 vcc, 20, v3")
        A("v_mov_b32 v5, 0x7ff00000")
        A(f"v_mov_b32 v{R+4}, 0x3f803f80")
        A("v_cndmask_b32 v4, v4, v5, vcc")
        A("v_cmp_eq_u32 vcc, 20, v3")
        A("s_nop 1")
        A(f"v_cndmask_b32 v{R+4}, 0, v{R+4}, vcc")
        A("s_nop 0")
        for j in range(1, 4): A(f"v_mov_b32 v{R+4+j}, v{R+4}")
        A(f"s_sub_u32 s{sT}, s{sCB}, 8")
        A(f"s_lshl_b32 s{sT}, s{sT}, 3")
        A(f"s_lshl_b32 s{sT2}, s{sW}, 1")
        A(f"s_add_u32 s{sT}, s{sT}, s{sT2}")
        A(f"s_mul_i32 s{sT}, s{sT}, {HS_KV}")
        A(f"s_lshl_b32 s{sT2}, s{sRB}, 1")
        A(f"s_mul_i32 s{sT2}, s{sT2}, {CH}")
        A(f"s_add_u32 s{sT}, s{sT}, s{sT2}")
        A(f"s_add_u32 s{sT}, s{sT}, {KV+5120}")
        for hh in range(2):
            for ck in range(2):
                for tl in range(4):
                    A(f"s_add_u32 s{sT2}, s{sT}, {hh*HS_KV + ck*CH + tl*2048}")
                    A(f"buffer_store_dwordx4 {vr(R+4,4)}, v4, {sr(SRD_WS,4)}, s{sT2} offen{SC1}")
        A.label(f"{name}_novpad_{tag}")

    def reads(sp, st, qkv):
        L = []
        for tt in range(2):
            L.append(f"ds_read_b128 {vr(FB[st]+4*tt,4)}, v{vXA+sp} offset:{tt*4096}")
        for mt in range(5):
            for half in range(2):
                if not qkv:
                    L.append(f"ds_read_b64_tr_b16 {vr(FA[st]+4*mt+2*half,2)}, v{vWA} offset:{sp*2560+mt*32+half*640}")
                elif mt < 4:
                    L.append(f"ds_read_b64_tr_b16 {vr(FA[st]+4*mt+2*half,2)}, v{vWA} offset:{sp*2560+mt*40+half*640}")
                else:
                    L.append(f"ds_read_b64_tr_b16 {vr(FA[st]+4*mt+2*half,2)}, v{vWA2} offset:{sp*2560+half*640}")
        return [L[0], L[2], L[3], L[1]] + L[4:]
    def mfmas(st, swapped):
        L = []
        for mt in range(5):
            for tt in range(2):
                a, b = vr(FA[st]+4*mt,4), vr(FB[st]+4*tt,4)
                if swapped: a, b = b, a
                L.append(f"v_mfma_f32_32x32x16_bf16 {vr(acc(tt,mt),16)}, {a}, {b}, {vr(acc(tt,mt),16)}")
        return L
    def mainloop(swapped, tag, qkv):
        A("s_waitcnt vmcnt(8)")
        A("s_barrier")
        stamp(A, 1)
        for l in reads(0, 0, qkv): A(l)
        A(f"s_mov_b32 s{sCNT}, 0")
        A(f"s_mov_b32 s{sBUF}, 0")
        A(f"s_mov_b32 s{sDP}, {STAGE}")
        A(f"s_mov_b32 s{sDN}, {(-2*STAGE) & 0xffffffff}")
        A(".p2align 6")
        A.label(f"{name}_loop_{tag}")
        for sp in range(4):
            cur = sp & 1; nxt = cur ^ 1
            M = mfmas(cur, swapped)
            A("s_waitcnt lgkmcnt(0)")
            if sp < 3:
                R = reads(sp+1, nxt, qkv)
                k = 0
                for i, m in enumerate(M):
                    A(m)
                    for l in R[k:k+2]: A(l)
                    k += 2
            else:
                A(M[0]); A(M[1])
                A(f"s_add_u32 s{sBUF}, s{sBUF}, 1")
                A(f"s_cmp_eq_u32 s{sBUF}, 3")
                A(f"s_cselect_b32 s{sT}, s{sDN}, s{sDP}")
                A(f"s_cselect_b32 s{sBUF}, 0, s{sBUF}")
                A(f"s_cmp_eq_u32 s{sCNT}, 0")
                A(f"s_cbranch_scc0 {name}_nw_{tag}")
                A("s_waitcnt vmcnt(0)")
                A.label(f"{name}_nw_{tag}")
                A("s_barrier")
                for j in range(4): A(f"v_add_u32 v{vXA+j}, s{sT}, v{vXA+j}")
                A(f"v_add_u32 v{vWA}, s{sT}, v{vWA}")
                if qkv: A(f"v_add_u32 v{vWA2}, s{sT}, v{vWA2}")
                R = reads(0, nxt, qkv)
                k = 0
                for m in M[2:]:
                    A(m)
                    for l in R[k:k+2]: A(l)
                    k += 2
        if asmlib.OPT.get("earlyconst"):
            A(f"s_cmp_eq_u32 s{sCNT}, 2")
            A(f"s_cbranch_scc0 {name}_nc_{tag}")
            const_stores(tag)
            A.label(f"{name}_nc_{tag}")
        A(f"s_add_u32 s{sCNT}, s{sCNT}, 1")
        A(f"s_cmp_lt_u32 s{sCNT}, 10")
        A(f"s_cbranch_scc1 {name}_loop_{tag}")
        A("s_waitcnt lgkmcnt(0)")
        A("s_nop 15")
        stamp(A, 2)
    A(f"s_cmp_eq_u32 s{sTYPE}, 2")
    A(f"s_cbranch_scc1 {name}_vblock")
    A(f"s_cmp_eq_u32 s{sTYPE}, 3")
    A(f"s_cbranch_scc1 {name}_ffnblock")
    mainloop(False, "qk", True)

    A.c("epilogue Q/K: unit mt<4 = d 0..15 of head mt (rows 0..15) and head 4+mt (rows 16..31); unit 4 = d 16..19 of the 8 heads")
    vL16q, vTail = 8, 9
    D0 = 16
    sBASE, sHS = 61, 62
    A(f"v_lshlrev_b32 v{vL16q}, 4, v2")
    A(f"s_and_b32 s{sT}, s{sCB}, 3")
    A(f"s_cmp_eq_u32 s{sTYPE}, 0")
    A(f"s_cbranch_scc0 {name}_kparams")
    A(f"s_mov_b32 s{sHS}, {HS_Q}")
    A(f"s_mul_i32 s{sBASE}, s{sT}, {8*HS_Q}")
    A(f"s_lshl_b32 s{sT2}, s{sRB}, 3")
    A(f"s_lshl_b32 s{sT3}, s{sW}, 1")
    A(f"s_add_u32 s{sT2}, s{sT2}, s{sT3}")
    A(f"s_mul_i32 s{sT2}, s{sT2}, 1280")
    A(f"s_add_u32 s{sBASE}, s{sBASE}, s{sT2}")
    if QF: A(f"s_add_u32 s{sBASE}, s{sBASE}, {QF}")
    A(f"s_mov_b32 s{sSC}, 0x3ea52b5c")
    A(f"s_branch {name}_qk_go")
    A.label(f"{name}_kparams")
    A(f"s_mov_b32 s{sHS}, {HS_KV}")
    A(f"s_mul_i32 s{sBASE}, s{sT}, {8*HS_KV}")
    A(f"s_lshl_b32 s{sT2}, s{sRB}, 1")
    A(f"s_lshr_b32 s{sT3}, s{sW}, 1")
    A(f"s_add_u32 s{sT2}, s{sT2}, s{sT3}")
    A(f"s_mul_i32 s{sT2}, s{sT2}, {CH}")
    A(f"s_add_u32 s{sBASE}, s{sBASE}, s{sT2}")
    A(f"s_and_b32 s{sT3}, s{sW}, 1")
    A(f"s_mul_i32 s{sT3}, s{sT3}, 2560")
    A(f"s_add_u32 s{sBASE}, s{sBASE}, s{sT3}")
    A(f"s_add_u32 s{sBASE}, s{sBASE}, {KV}")
    A(f"s_mov_b32 s{sSC}, 1.0")
    A.label(f"{name}_qk_go")
    A(f"s_mov_b32 s{sH}, s{sBASE}")
    for i in range(1, 8):
        A(f"s_add_u32 s{sH+i}, s{sH+i-1}, s{sHS}")
    A("v_and_b32 v3, 31, v2")
    A("v_lshrrev_b32 v4, 5, v2")
    A(f"v_mul_lo_u32 v4, v4, s{sHS}")
    A("v_lshl_add_u32 v4, v3, 3, v4")
    A(f"v_add_u32 v{vTail}, 1024, v4")
    A(f"v_mov_b32 v10, s{sSC}")
    A(f"v_mov_b32 v11, s{sSC}")
    n = 0
    for mt in range(4):
        for tt in range(2):
            for part in range(2):
                a = acc(tt, mt) + 8*part
                d = D0 + 4*(n % 8); n += 1
                for j in range(4):
                    A(f"v_pk_mul_f32 {vr(a+2*j,2)}, {vr(a+2*j,2)}, v[10:11]")
                for j in range(4):
                    A(f"v_cvt_pk_bf16_f32 v{d+j}, v{a+2*j}, v{a+2*j+1}")
                A("s_nop 1")
                A(f"v_permlane32_swap_b32 v{d}, v{d+2}")
                A(f"v_permlane32_swap_b32 v{d+1}, v{d+3}")
                A(f"buffer_store_dwordx4 {vr(d,4)}, v{vL16q}, {sr(SRD_WS,4)}, s{sH+4*part+mt} offen offset:{tt*1280}{SC1}")
    for tt in range(2):
        for i in range(4):
            a = acc(tt, 4) + 4*i
            d = D0 + 4*(n % 8); n += 1
            for j in range(2):
                A(f"v_pk_mul_f32 {vr(a+2*j,2)}, {vr(a+2*j,2)}, v[10:11]")
            A(f"v_cvt_pk_bf16_f32 v{d}, v{a}, v{a+1}")
            A(f"v_cvt_pk_bf16_f32 v{d+1}, v{a+2}, v{a+3}")
            A(f"buffer_store_dwordx2 {vr(d,2)}, v{vTail}, {sr(SRD_WS,4)}, s{sH+2*i} offen offset:{tt*1280}{SC1}")
    A(f"s_branch {name}_fin")

    A.label(f"{name}_ffnblock")
    mainloop(False, "f", False)
    A.c("epilogue FFN: h = gelu_tanh(g) * u")
    vC0, vC1, vONE = 8, 10, 12
    vTt, vP, vE, vGU = 14, 16, 18, 20
    vOUT = 24
    import math
    c0 = -2.0*math.sqrt(2.0/math.pi)*math.log2(math.e)
    c1 = c0*0.044715
    import struct
    def f2u(f): return struct.unpack("<I", struct.pack("<f", f))[0]
    for j in range(2):
        A(f"v_mov_b32 v{vC0+j}, {hex(f2u(c0))}")
        A(f"v_mov_b32 v{vC1+j}, {hex(f2u(c1))}")
        A(f"v_mov_b32 v{vONE+j}, 1.0")
    A(f"v_lshlrev_b32 v3, 4, v2")
    A(f"s_lshl_b32 s{sT2}, s{sRB}, 3")
    A(f"s_lshl_b32 s{sT3}, s{sW}, 1")
    A(f"s_add_u32 s{sT2}, s{sT2}, s{sT3}")
    A(f"s_mul_i32 s{sT2}, s{sT2}, {96*1024}")
    A(f"s_lshl_b32 s{sT3}, s{sU0}, 10")
    A(f"s_add_u32 s{sT2}, s{sT2}, s{sT3}")
    A(f"s_add_u32 s{sT2}, s{sT2}, {HF}")
    A(f"s_add_u32 s{sT3}, s{sT2}, {96*1024}")
    n = 0
    for mt in range(5):
        if mt == 4:
            A(f"s_cmp_eq_u32 s{sNU}, 4")
            A(f"s_cbranch_scc1 {name}_fin")
        for tt in range(2):
            a = acc(tt, mt)
            o = vOUT + 4*(n & 1); n += 1
            for pr in range(4):
                g = a + 2*pr; u = a + 8 + 2*pr
                A(f"v_pk_mul_f32 {vr(vTt,2)}, {vr(g,2)}, {vr(g,2)}")
                A(f"v_pk_mul_f32 {vr(vGU,2)}, {vr(g,2)}, {vr(u,2)}")
                A(f"v_pk_fma_f32 {vr(vP,2)}, {vr(vTt,2)}, {vr(vC1,2)}, {vr(vC0,2)}")
                A(f"v_pk_mul_f32 {vr(vP,2)}, {vr(vP,2)}, {vr(g,2)}")
                A(f"v_exp_f32 v{vE}, v{vP}")
                A(f"v_exp_f32 v{vE+1}, v{vP+1}")
                A("s_nop 0")
                A(f"v_pk_add_f32 {vr(vE,2)}, {vr(vE,2)}, {vr(vONE,2)}")
                A(f"v_rcp_f32 v{vE}, v{vE}")
                A(f"v_rcp_f32 v{vE+1}, v{vE+1}")
                A("s_nop 0")
                A(f"v_pk_mul_f32 {vr(vGU,2)}, {vr(vGU,2)}, {vr(vE,2)}")
                A(f"v_cvt_pk_bf16_f32 v{o+pr}, v{vGU}, v{vGU+1}")
            A(f"buffer_store_dwordx4 {vr(o,4)}, v3, {sr(SRD_WS,4)}, s{sT2 if tt == 0 else sT3} offen offset:{mt*1024 if mt*1024 < 4096 else 0}{SC1}" if mt < 4 else
              f"s_add_u32 s{sT}, s{sT2 if tt == 0 else sT3}, 4096\n" + f"buffer_store_dwordx4 {vr(o,4)}, v3, {sr(SRD_WS,4)}, s{sT} offen{SC1}")
    A(f"s_branch {name}_fin")

    A.label(f"{name}_vblock")
    mainloop(True, "v", True)
    A.c("epilogue V: lane = weight column n; unit mt<4: head mt (n<16) / 4+mt (n>=16), d = n&15; unit 4: head (n>>2)&3 (+4), d = 16+(n&3)")
    sBASE, sHS = 61, 62
    vA1, vA2 = 8, 9
    D1 = 16
    A(f"s_mov_b32 s{sHS}, {HS_KV}")
    A("v_bfe_u32 v5, v2, 4, 1")
    A("v_lshlrev_b32 v5, 2, v5")
    A("v_lshrrev_b32 v4, 5, v2")
    A("v_lshlrev_b32 v4, 9, v4")
    A(f"v_mul_lo_u32 v6, v5, s{sHS}")
    A("v_and_b32 v3, 15, v2")
    A("v_lshl_add_u32 v6, v3, 4, v6")
    A(f"v_add_u32 v{vA1}, v6, v4")
    A("v_bfe_u32 v6, v2, 2, 2")
    A("v_add_u32 v6, v6, v5")
    A(f"v_mul_lo_u32 v6, v6, s{sHS}")
    A("v_and_b32 v3, 3, v2")
    A("v_lshl_add_u32 v6, v3, 4, v6")
    A(f"v_add3_u32 v{vA2}, v6, v4, 0")
    A(f"v_add_u32 v{vA2}, 256, v{vA2}")
    A(f"s_sub_u32 s{sT}, s{sCB}, 8")
    A(f"s_mul_i32 s{sBASE}, s{sT}, {8*HS_KV}")
    A(f"s_lshl_b32 s{sT2}, s{sRB}, 1")
    A(f"s_lshr_b32 s{sT3}, s{sW}, 1")
    A(f"s_add_u32 s{sT2}, s{sT2}, s{sT3}")
    A(f"s_mul_i32 s{sT2}, s{sT2}, {CH}")
    A(f"s_add_u32 s{sBASE}, s{sBASE}, s{sT2}")
    A(f"s_and_b32 s{sT3}, s{sW}, 1")
    A(f"s_lshl_b32 s{sT3}, s{sT3}, 12")
    A(f"s_add_u32 s{sBASE}, s{sBASE}, s{sT3}")
    A(f"s_add_u32 s{sBASE}, s{sBASE}, {KV+5120}")
    n = 0
    for mt in range(5):
        if 0 < mt < 4: A(f"s_add_u32 s{sBASE}, s{sBASE}, s{sHS}")
        if mt == 4: A(f"s_sub_u32 s{sBASE}, s{sBASE}, {3*HS_KV}")
        for tt in range(2):
            for f in range(2):
                a = acc(tt, mt) + 8*f
                d = D1 + 4*(n % 8); n += 1
                for j in range(4):
                    A(f"v_cvt_pk_bf16_f32 v{d+j}, v{a+2*j}, v{a+2*j+1}")
                A(f"buffer_store_dwordx4 {vr(d,4)}, v{vA1 if mt < 4 else vA2}, {sr(SRD_WS,4)}, s{sBASE} offen offset:{tt*2048+f*1024}{SC1}")
    A(f"s_branch {name}_fin")

    A.label(f"{name}_loader")
    vXO = 8
    vWO = 16
    A(f"s_sub_u32 s{sW}, s{sW}, 4")
    A(f"s_mul_i32 s{sXO}, s{sRB}, {256*1280}")
    A(f"s_add_u32 s{sXO}, s{sXO}, 256")
    A(f"s_and_b32 s{sT}, s{sW}, 1")
    A(f"s_mul_i32 s{sT}, s{sT}, 320")
    for i in range(5):
        A(f"v_add_u32 v3, s{sT}, v2")
        A(f"v_add_u32 v3, {64*i}, v3")
        A("v_mul_u32_u24 v4, 6554, v3")
        A("v_lshrrev_b32 v4, 16, v4")
        A("v_mul_u32_u24 v5, 10, v4")
        A("v_sub_u32 v5, v3, v5")
        A(f"v_mul_lo_u32 v4, v4, s{sRS}")
        A(f"v_lshl_add_u32 v{vWO+i}, v5, 4, v4")
    sLX, sLW, sWSTEP = 61, 62, 63
    A(f"s_lshl_b32 s{sLX}, s{sW}, 13")
    A(f"s_lshr_b32 s{sT}, s{sW}, 1")
    A(f"s_mul_i32 s{sLW}, s{sT}, {UOFF}")
    A(f"s_and_b32 s{sT}, s{sW}, 1")
    A(f"s_mul_i32 s{sT}, s{sT}, 5120")
    A(f"s_add_u32 s{sLW}, s{sLW}, s{sT}")
    A(f"s_add_u32 s{sLW}, s{sLW}, {WOFF}")
    A(f"s_lshl_b32 s{sWSTEP}, s{sRS}, 6")
    def issue_w():
        A(f"s_add_u32 s{sT}, s{sBUF}, s{sLW}")
        for i in range(5):
            A(f"s_add_u32 m0, s{sT}, {i*1024}")
            A("s_nop 0")
            A(f"buffer_load_dwordx4 v{vWO+i}, {sr(SRD_W,4)}, s{sWO_} offen lds")
        A(f"s_add_u32 s{sWO_}, s{sWO_}, s{sWSTEP}")
    def next_buf():
        A(f"s_add_u32 s{sBUF}, s{sBUF}, {STAGE}")
        A(f"s_cmp_eq_u32 s{sBUF}, {3*STAGE}")
        A(f"s_cselect_b32 s{sBUF}, 0, s{sBUF}")
    def issue_stage():
        if asmlib.OPT.get("k1nodma"): return
        issue_w()
        A(f"s_add_u32 s{sT}, s{sBUF}, s{sLX}")
        for j in range(8):
            A(f"s_add_u32 m0, s{sT}, {j*1024}")
            A("s_nop 0")
            A(f"buffer_load_dwordx4 v{vXO+j}, {sr(SRD_X,4)}, s{sXO} offen lds")
        A(f"s_add_u32 s{sXO}, s{sXO}, 128")
        next_buf()
    A("s_waitcnt lgkmcnt(0)")
    A.c("SRD w (QKV blocks: wqkv; FFN blocks: w_gate for loaders 0,1 and w_up for 2,3)")
    A(f"s_cmp_ge_u32 s{sW}, 2")
    A(f"s_cselect_b32 s{SRD_W}, s{sWU}, s{sWG}")
    A(f"s_cselect_b32 s{SRD_W+1}, s{sWU+1}, s{sWG+1}")
    A(f"s_cselect_b32 s{sT}, s{sCU}, s{sCG}")
    A(f"s_lshl_b32 s{sWO_}, s{sT}, 1")
    A(f"s_cmp_eq_u32 s{sTYPE}, 3")
    A(f"s_cselect_b32 s{SRD_W}, s{SRD_W}, s{sWQ}")
    A(f"s_cselect_b32 s{SRD_W+1}, s{SRD_W+1}, s{sWQ+1}")
    A(f"s_and_b32 s{SRD_W+1}, s{SRD_W+1}, 0xffff")
    A(f"s_mul_i32 s{SRD_W+2}, s{sRS}, 640")
    A(f"s_mov_b32 s{SRD_W+3}, 0x20000")
    A(f"s_mov_b32 s{sBUF}, 0")
    if SP: stamp(A, 1)
    issue_w(); next_buf()
    if SP: stamp(A, 2)
    issue_w(); next_buf()
    srd_x()
    srd_ws()
    x_voffsets(vXO)
    sL = 64
    A(f"s_lshl_b32 s{sL}, s2, 2")
    A(f"s_add_u32 s{sL}, s{sL}, s{sW}")
    SRD_D, SRD_O, SRD_G, SRD_P = 68, 76, 80, 68
    vPW = 64
    vGX, vGW = 76, 88
    vS1, vS2, vTK = 100, 101, 102
    sN = 84
    sN = 56
    def prefetch_inputs():
        n = 0
        if not asmlib.OPT.get("pf2"):
            A.c("warm-up: stream a 1/1024 share of every GEMM input linearly, so that the strided tile loads of the later stages hit the memory-side cache")
            A("v_lshlrev_b32 v3, 4, v2")
            for (ptr, nb, pieces) in ((sX, 2048*1280, 3), (sWQ, 640*3840, 3), (sWG, 640*3072, 2), (sWU, 640*3072, 2)):
                A(f"s_mov_b32 s{SRD_P}, s{ptr}")
                A(f"s_and_b32 s{SRD_P+1}, s{ptr+1}, 0xffff")
                A(f"s_mov_b32 s{SRD_P+2}, {nb}")
                A(f"s_mov_b32 s{SRD_P+3}, 0x20000")
                A(f"s_mul_i32 s{sT2}, s{sL}, {pieces*1024}")
                for i in range(pieces):
                    A(f"buffer_load_dwordx4 v[60:63], v3, {sr(SRD_P,4)}, s{sT2} offen offset:{i*1024}")
                    n += 1
            return n
        A.c("L2 warm-up (speed only): the workgroups that share operand lines split the job of pulling them in early.")
        A.c("x: this workgroup streams 32 of the 256 rows of its row block (all K); w: it fetches two later stages of its column block")
        A("v_lshlrev_b32 v3, 4, v2")
        A(f"s_lshr_b32 s{sT}, s2, 5")
        A(f"s_lshl_b32 s{sT}, s{sT}, 2")
        A(f"s_add_u32 s{sT}, s{sT}, s{sW}")
        A(f"s_mul_i32 s{sT}, s{sT}, {8*1280}")
        A(f"s_mul_i32 s{sT2}, s{sRB}, {256*1280}")
        A(f"s_add_u32 s{sT}, s{sT}, s{sT2}")
        NX = asmlib.OPT.get("pfx", 10)
        for i in range(NX):
            if i % 4 == 0 and i: A(f"s_add_u32 s{sT}, s{sT}, 4096")
            A(f"buffer_load_dwordx4 v[60:63], v3, {sr(SRD_X,4)}, s{sT} offen offset:{(i % 4)*1024}")
            n += 1
        for st in range(2):
            A(f"s_bfe_u32 s{sT}, s2, 0x20003")
            A(f"s_lshl_b32 s{sT}, s{sT}, 1")
            A(f"s_add_u32 s{sT}, s{sT}, {st}")
            A(f"s_min_u32 s{sT}, s{sT}, 6")
            A(f"s_mul_i32 s{sT}, s{sT}, s{sWSTEP}")
            A(f"s_add_u32 s{sT}, s{sT}, s{sWO_}")
            for i in range(5):
                A(f"buffer_load_dwordx4 v[60:63], v{vWO+i}, {sr(SRD_W,4)}, s{sT} offen")
                n += 1
        return n
    def side_loads():
        for srd, p, nb in ((SRD_D, sWD, 1536*1280), (SRD_O, sWO, 640*1280), (SRD_G, sGW, 1280)):
            A(f"s_mov_b32 s{srd}, s{p}")
            A(f"s_and_b32 s{srd+1}, s{p+1}, 0xffff")
            A(f"s_mov_b32 s{srd+2}, {nb}")
            A(f"s_mov_b32 s{srd+3}, 0x20000")
        A("v_lshrrev_b32 v3, 2, v2")
        A("v_mul_u32_u24 v3, 1280, v3")
        A("v_and_b32 v4, 3, v2")
        A(f"v_lshl_add_u32 v{vS1}, v4, 4, v3")
        A("v_bfe_u32 v5, v2, 4, 1")
        A("v_lshrrev_b32 v6, 5, v2")
        A("v_lshl_add_u32 v5, v5, 1, v6")
        A("v_mul_u32_u24 v5, 20, v5")
        A("v_bfe_u32 v6, v2, 2, 2")
        A("v_add3_u32 v5, v5, v6, 16")
        A("v_mul_u32_u24 v5, 1280, v5")
        A(f"v_lshl_add_u32 v{vS2}, v4, 4, v5")
        for m in range(3):
            A(f"s_add_u32 s{sN+m}, s{sL}, {1024*m}")
            A(f"s_cmp_ge_u32 s{sN+m}, 1920")
            A(f"s_cbranch_scc1 {name}_pl_o{m}")
            A(f"s_mul_i32 s{sT}, s{sN+m}, 683")
            A(f"s_lshr_b32 s{sT}, s{sT}, 16")
            A(f"s_mul_i32 s{sT2}, s{sT}, 96")
            A(f"s_sub_u32 s{sT2}, s{sN+m}, s{sT2}")
            A(f"s_mul_i32 s{sT2}, s{sT2}, {16*1280}")
            A(f"s_lshl_b32 s{sT}, s{sT}, 6")
            A(f"s_add_u32 s{sT}, s{sT}, s{sT2}")
            A(f"buffer_load_dwordx4 {vr(vPW+4*m,4)}, v{vS1}, {sr(SRD_D,4)}, s{sT} offen")
            A(f"s_branch {name}_pl_n{m}")
            A.label(f"{name}_pl_o{m}")
            A(f"s_sub_u32 s{sT3}, s{sN+m}, 1920")
            A(f"s_mul_i32 s{sT}, s{sT3}, 1639")
            A(f"s_lshr_b32 s{sT}, s{sT}, 16")
            A(f"s_mul_i32 s{sT2}, s{sT}, 40")
            A(f"s_sub_u32 s{sT2}, s{sT3}, s{sT2}")
            A(f"s_lshl_b32 s{sT}, s{sT}, 6")
            A(f"s_cmp_ge_u32 s{sT2}, 32")
            A(f"s_cbranch_scc1 {name}_pl_t{m}")
            A.c("main step (one head): rows 20*head .. +15")
            A(f"s_mul_i32 s{sT2}, s{sT2}, {20*1280}")
            A(f"s_add_u32 s{sT}, s{sT}, s{sT2}")
            A(f"buffer_load_dwordx4 {vr(vPW+4*m,4)}, v{vS1}, {sr(SRD_O,4)}, s{sT} offen")
            A(f"s_branch {name}_pl_n{m}")
            A.label(f"{name}_pl_t{m}")
            A.c("tail step: d=16..19 of four heads (blocks past 2720 read zeros or junk, never stored)")
            A(f"s_sub_u32 s{sT2}, s{sT2}, 32")
            A(f"s_mul_i32 s{sT2}, s{sT2}, {80*1280}")
            A(f"s_add_u32 s{sT}, s{sT}, s{sT2}")
            A(f"buffer_load_dwordx4 {vr(vPW+4*m,4)}, v{vS2}, {sr(SRD_O,4)}, s{sT} offen")
            A.label(f"{name}_pl_n{m}")
        A("v_and_b32 v3, 31, v2")
        A("v_lshlrev_b32 v3, 4, v3")
        A(f"v_lshrrev_b32 v{vTK}, 5, v2")
        A(f"s_lshl_b32 s{sT}, s{sL}, 1")
        A(f"v_add_u32 v{vTK}, s{sT}, v{vTK}")
        A(f"v_mul_u32_u24 v5, 1280, v{vTK}")
        A("v_add_u32 v5, v5, v3")
        A("v_and_b32 v6, 16, v2")
        A("v_cmp_ne_u32 vcc, 0, v6")
        A(f"v_mov_b32 v7, 0x7ff00000")
        A("v_add_u32 v6, 1024, v5")
        A("v_add_u32 v4, 1024, v3")
        A("v_cndmask_b32 v6, v6, v7, vcc")
        A("v_cndmask_b32 v4, v4, v7, vcc")
        A(f"buffer_load_dwordx4 {vr(vGX,4)}, v5, {sr(SRD_X,4)}, 0 offen")
        A(f"buffer_load_dwordx4 {vr(vGX+4,4)}, v5, {sr(SRD_X,4)}, 0 offen offset:512")
        A(f"buffer_load_dwordx4 {vr(vGX+8,4)}, v6, {sr(SRD_X,4)}, 0 offen")
        A(f"buffer_load_dwordx4 {vr(vGW,4)}, v3, {sr(SRD_G,4)}, 0 offen")
        A(f"buffer_load_dwordx4 {vr(vGW+4,4)}, v3, {sr(SRD_G,4)}, 0 offen offset:512")
        A(f"buffer_load_dwordx4 {vr(vGW+8,4)}, v4, {sr(SRD_G,4)}, 0 offen")
        return 9
    def side_process():
        A.c("side job: gate g = sigmoid(x . gate_w)")
        A("v_mov_b32 v3, 0")
        for j in range(12):
            A(f"v_dot2c_f32_bf16 v3, v{vGX+j}, v{vGW+j}")
        A("s_nop 3")
        for sh in (1, 2, 4, 8):
            A(f"v_add_f32_dpp v3, v3, v3 row_shr:{sh} row_mask:0xf bank_mask:0xf bound_ctrl:0")
            A("s_nop 1")
        A("v_add_f32_dpp v3, v3, v3 row_bcast:15 row_mask:0xa bank_mask:0xf")
        A("s_nop 1")
        A("v_mul_f32 v3, 0xbfb8aa3b, v3")
        A("v_exp_f32 v3, v3")
        A("s_nop 0")
        A("v_add_f32 v3, 1.0, v3")
        A("v_rcp_f32 v3, v3")
        A(f"v_lshlrev_b32 v{vTK}, 2, v{vTK}")
        A("v_and_b32 v6, 31, v2")
        A("v_cmp_eq_u32 vcc, 31, v6")
        A(f"s_mov_b32 s{sT}, {GG}")
        A("s_and_saveexec_b64 s[50:51], vcc")
        A(f"s_cbranch_execz {name}_gate_done")
        A(f"buffer_store_dword v3, v{vTK}, {sr(SRD_WS,4)}, s{sT} offen{SC1}")
        A.label(f"{name}_gate_done")
        A("s_mov_b64 exec, s[50:51]")
        A.c("side job: transpose Wd / Wo blocks into MFMA A-fragment order through a 512-byte LDS scratch per wave")
        A(f"s_lshl_b32 s{sT}, s{sW}, 9")
        A(f"s_add_u32 s{sT}, s{sT}, {3*STAGE}")
        A("v_and_b32 v4, 31, v2")
        A("v_lshlrev_b32 v4, 4, v4")
        A(f"v_add_u32 v4, s{sT}, v4")
        A("v_lshrrev_b32 v7, 5, v2")
        A("v_bfe_u32 v5, v2, 2, 2")
        A("v_lshl_add_u32 v5, v7, 2, v5")
        A("v_lshlrev_b32 v5, 6, v5")
        A("v_bfe_u32 v6, v2, 4, 1")
        A("v_lshl_add_u32 v5, v6, 5, v5")
        A("v_and_b32 v6, 3, v2")
        A("v_lshl_add_u32 v5, v6, 3, v5")
        A(f"v_add_u32 v5, s{sT}, v5")
        A("v_lshlrev_b32 v7, 4, v2")
        OUT = 104
        for m in range(3):
            if m == 2:
                A(f"s_cmp_ge_u32 s{sN+m}, 2720")
                A(f"s_cbranch_scc1 {name}_prep_done")
            for half in range(2):
                A("s_mov_b32 exec_hi, 0" if half == 0 else "s_mov_b32 exec_lo, 0")
                A(f"ds_write_b128 v4, {vr(vPW+4*m,4)}")
                A("s_mov_b64 exec, -1")
                A("s_waitcnt lgkmcnt(0)")
                A(f"ds_read_b64_tr_b16 {vr(OUT+4*m+2*half,2)}, v5")
                A("s_waitcnt lgkmcnt(0)")
            A(f"s_lshl_b32 s{sT}, s{sN+m}, 10")
            A(f"s_add_u32 s{sT}, s{sT}, {WDF}")
            A(f"buffer_store_dwordx4 {vr(OUT+4*m,4)}, v7, {sr(SRD_WS,4)}, s{sT} offen{SC1}")
        A.label(f"{name}_prep_done")
    A("s_waitcnt vmcnt(5)")
    A("s_barrier")
    issue_stage()
    NPF = prefetch_inputs() if not asmlib.OPT.get("nopf") else 0
    A(f"s_waitcnt vmcnt({13+NPF})")
    A("s_barrier")
    issue_stage()
    A(f"s_waitcnt vmcnt({13+NPF})")
    A("s_barrier")
    issue_stage()
    if not asmlib.OPT.get("earlyside"):
        for S in range(3, 8):
            A("s_waitcnt vmcnt(13)")
            A("s_barrier")
            issue_stage()
        NS = side_loads()
        A(f"s_waitcnt vmcnt({13+NS})")
        A("s_barrier")
        if not SP: stamp(A, 1)
        A(f"s_waitcnt vmcnt({NS})")
        A("s_barrier")
        if not asmlib.OPT.get("earlyconst"): const_stores("l", 120)
        A("s_barrier")
        if not SP: stamp(A, 2)
        A("s_waitcnt vmcnt(3)" if not asmlib.OPT.get("earlyconst") else "s_waitcnt vmcnt(0)")
        side_process()
    else:
        A("s_waitcnt vmcnt(13)")
        A("s_barrier")
        issue_stage()
        A("s_waitcnt vmcnt(13)")
        A("s_barrier")
        NS = side_loads()
        issue_stage()
        A(f"s_waitcnt vmcnt({13+NS})")
        A("s_barrier")
        issue_stage()
        A("s_waitcnt vmcnt(13)")
        A("s_barrier")
        issue_stage()
        side_process()
        A("s_waitcnt vmcnt(16)")
        A("s_barrier")
        issue_stage()
        A("s_waitcnt vmcnt(16)")
        A("s_barrier")
        if not SP: stamp(A, 1)
        A("s_waitcnt vmcnt(0)")
        A("s_barrier")
        A("s_barrier")
        if not SP: stamp(A, 2)
    A.label(f"{name}_fin")
    if asmlib.PROFILE:
        A("s_waitcnt vmcnt(0)")
        if SP:
            A("v_readfirstlane_b32 s83, v0")
            A("s_nop 3")
            A("s_cmp_ge_u32 s83, 256")
            A(f"s_cbranch_scc1 {name}_fin_sp")
        stamp(A, 3)
        if SP:
            A(f"s_branch {name}_fin_sp2")
            A.label(f"{name}_fin_sp")
            A("s_mov_b32 s92, s66")
            A.label(f"{name}_fin_sp2")
        A("v_readfirstlane_b32 s83, v0")
        A("s_nop 3")
        A("s_lshr_b32 s83, s83, 6")
        stamp_flush(A, 0, SRD_WS, 83, 4)
    if not fused:
        A.label(f"{name}_end")
        A("s_endpgm")
        return 256
    A.c("every wave drains its write-through stores, then one lane signals for the workgroup")
    A("s_mov_b64 exec, -1")
    A("s_waitcnt vmcnt(0) lgkmcnt(0)")
    A("s_barrier")
    sDBG, SRD_D2 = 4, 8
    A(f"s_load_dwordx2 {sr(sDBG,2)}, s[0:1], {KA_DBG}")
    A("v_readfirstlane_b32 s83, v0")
    A("s_nop 3")
    A("s_cmp_lt_u32 s83, 64")
    A(f"s_cbranch_scc0 {name}_p1polled")
    if asmlib.OPT.get('wbl2'):
        A("buffer_wbl2 sc1")
        A("s_waitcnt vmcnt(0)")
    A("s_waitcnt lgkmcnt(0)")
    A(f"s_mov_b32 s{SRD_D2}, s{sDBG}")
    A(f"s_and_b32 s{SRD_D2+1}, s{sDBG+1}, 0xffff")
    A(f"s_mov_b32 s{SRD_D2+2}, 256")
    A(f"s_mov_b32 s{SRD_D2+3}, 0x20000")
    A(f"s_and_b32 s{sT}, s{sCB}, 3")
    A(f"s_add_u32 s{sT2}, s{sRB}, 32")
    A(f"s_cmp_ge_u32 s{sCB}, 12")
    A(f"s_cselect_b32 s{sT}, s{sT2}, s{sT}")
    A(f"s_lshl_b32 s{sT}, s{sT}, 2")
    A("s_mov_b64 exec, 1")
    A(f"v_mov_b32 v3, s{sT}")
    A("v_mov_b32 v4, 1")
    A(f"buffer_atomic_add v4, v3, {sr(SRD_D2,4)}, 0 offen sc1")
    A("s_mov_b64 exec, 0xfff")
    A("v_cmp_gt_u32 vcc, 4, v2")
    A("v_add_u32 v3, 28, v2")
    A("v_mov_b32 v5, 20")
    A("v_mov_b32 v6, 24")
    A("v_cndmask_b32 v3, v3, v2, vcc")
    A("v_cndmask_b32 v5, v5, v6, vcc")
    A("v_lshlrev_b32 v3, 2, v3")
    A(f"s_mov_b32 s{sT2}, 0")
    A.label(f"{name}_p1poll")
    A(f"buffer_load_dword v4, v3, {sr(SRD_D2,4)}, 0 offen sc1")
    A("s_waitcnt vmcnt(0)")
    A("v_cmp_lt_u32 vcc, v4, v5")
    A(f"s_add_u32 s{sT2}, s{sT2}, 1")
    A("s_nop 1")
    A(f"s_cbranch_vccz {name}_p1done")
    A(f"s_cmp_lt_u32 s{sT2}, 0x40000")
    A(f"s_cbranch_scc1 {name}_p1poll")
    A.label(f"{name}_p1done")
    A("s_mov_b64 exec, -1")
    A.label(f"{name}_p1polled")
    A("s_waitcnt lgkmcnt(0)")
    A("s_barrier")
    return 256
```

```python
from asmlib import *
import asmlib
from layout import *
class Side:
    def __init__(self, A, name, env):
        self.A, self.name, self.e = A, name, env
        self.sL = 64; self.sN = 56
        e = env
        A(f"s_lshl_b32 s{self.sL}, s2, 2")
        A(f"s_add_u32 s{self.sL}, s{self.sL}, s{e['sW']}")
    def prefetch_inputs(self, q):
        A, e = self.A, self.e
        if asmlib.OPT.get("nopf"): return
        SRD_P = 68
        A.c("warm-up: stream a 1/1024 share of every GEMM input linearly, so that the strided tile loads of the later stages hit the memory-side cache")
        A("v_lshlrev_b32 v3, 4, v2")
        for (ptr, nb, pieces) in ((e['sX'], 2048*1280, 3), (e['sWQ'], 640*3840, 3), (e['sWG'], 640*3072, 2), (e['sWU'], 640*3072, 2)):
            A(f"s_mov_b32 s{SRD_P}, s{ptr}")
            A(f"s_and_b32 s{SRD_P+1}, s{ptr+1}, 0xffff")
            A(f"s_mov_b32 s{SRD_P+2}, {nb}")
            A(f"s_mov_b32 s{SRD_P+3}, 0x20000")
            A(f"s_mul_i32 s{e['sT2']}, s{self.sL}, {pieces*1024}")
            for i in range(pieces):
                A(f"buffer_load_dwordx4 v[60:63], v3, {sr(SRD_P,4)}, s{e['sT2']} offen offset:{i*1024}")
                q.add("pf")
    def side_loads(self, q):
        A, e, name = self.A, self.e, self.name
        sT, sT2, sT3, sL, sN = e['sT'], e['sT2'], e['sT3'], self.sL, self.sN
        SRD_D, SRD_O, SRD_G = 68, 76, 80
        vPW = 64; vGX, vGW = 76, 88; vS1, vS2, vTK = 100, 101, 102
        for srd, p, nb in ((SRD_D, e['sWD'], 1536*1280), (SRD_O, e['sWO'], 640*1280), (SRD_G, e['sGW'], 1280)):
            A(f"s_mov_b32 s{srd}, s{p}")
            A(f"s_and_b32 s{srd+1}, s{p+1}, 0xffff")
            A(f"s_mov_b32 s{srd+2}, {nb}")
            A(f"s_mov_b32 s{srd+3}, 0x20000")
        A("v_lshrrev_b32 v3, 2, v2")
        A("v_mul_u32_u24 v3, 1280, v3")
        A("v_and_b32 v4, 3, v2")
        A(f"v_lshl_add_u32 v{vS1}, v4, 4, v3")
        A("v_bfe_u32 v5, v2, 4, 1")
        A("v_lshrrev_b32 v6, 5, v2")
        A("v_lshl_add_u32 v5, v5, 1, v6")
        A("v_mul_u32_u24 v5, 20, v5")
        A("v_bfe_u32 v6, v2, 2, 2")
        A("v_add3_u32 v5, v5, v6, 16")
        A("v_mul_u32_u24 v5, 1280, v5")
        A(f"v_lshl_add_u32 v{vS2}, v4, 4, v5")
        for m in range(3):
            A(f"s_add_u32 s{sN+m}, s{sL}, {1024*m}")
            A(f"s_cmp_ge_u32 s{sN+m}, 1920")
            A(f"s_cbranch_scc1 {name}_pl_o{m}")
            A(f"s_mul_i32 s{sT}, s{sN+m}, 683")
            A(f"s_lshr_b32 s{sT}, s{sT}, 16")
            A(f"s_mul_i32 s{sT2}, s{sT}, 96")
            A(f"s_sub_u32 s{sT2}, s{sN+m}, s{sT2}")
            A(f"s_mul_i32 s{sT2}, s{sT2}, {16*1280}")
            A(f"s_lshl_b32 s{sT}, s{sT}, 6")
            A(f"s_add_u32 s{sT}, s{sT}, s{sT2}")
            A(f"buffer_load_dwordx4 {vr(vPW+4*m,4)}, v{vS1}, {sr(SRD_D,4)}, s{sT} offen")
            A(f"s_branch {name}_pl_n{m}")
            A.label(f"{name}_pl_o{m}")
            A(f"s_sub_u32 s{sT3}, s{sN+m}, 1920")
            A(f"s_mul_i32 s{sT}, s{sT3}, 1639")
            A(f"s_lshr_b32 s{sT}, s{sT}, 16")
            A(f"s_mul_i32 s{sT2}, s{sT}, 40")
            A(f"s_sub_u32 s{sT2}, s{sT3}, s{sT2}")
            A(f"s_lshl_b32 s{sT}, s{sT}, 6")
            A(f"s_cmp_ge_u32 s{sT2}, 32")
            A(f"s_cbranch_scc1 {name}_pl_t{m}")
            A(f"s_mul_i32 s{sT2}, s{sT2}, {20*1280}")
            A(f"s_add_u32 s{sT}, s{sT}, s{sT2}")
            A(f"buffer_load_dwordx4 {vr(vPW+4*m,4)}, v{vS1}, {sr(SRD_O,4)}, s{sT} offen")
            A(f"s_branch {name}_pl_n{m}")
            A.label(f"{name}_pl_t{m}")
            A(f"s_sub_u32 s{sT2}, s{sT2}, 32")
            A(f"s_mul_i32 s{sT2}, s{sT2}, {80*1280}")
            A(f"s_add_u32 s{sT}, s{sT}, s{sT2}")
            A(f"buffer_load_dwordx4 {vr(vPW+4*m,4)}, v{vS2}, {sr(SRD_O,4)}, s{sT} offen")
            A.label(f"{name}_pl_n{m}")
        A("v_and_b32 v3, 31, v2")
        A("v_lshlrev_b32 v3, 4, v3")
        A(f"v_lshrrev_b32 v{vTK}, 5, v2")
        A(f"s_lshl_b32 s{sT}, s{sL}, 1")
        A(f"v_add_u32 v{vTK}, s{sT}, v{vTK}")
        A(f"v_mul_u32_u24 v5, 1280, v{vTK}")
        A("v_add_u32 v5, v5, v3")
        A("v_and_b32 v6, 16, v2")
        A("v_cmp_ne_u32 vcc, 0, v6")
        A(f"v_mov_b32 v7, 0x7ff00000")
        A("v_add_u32 v6, 1024, v5")
        A("v_add_u32 v4, 1024, v3")
        A("v_cndmask_b32 v6, v6, v7, vcc")
        A("v_cndmask_b32 v4, v4, v7, vcc")
        SRD_X = e['SRD_X']
        A(f"buffer_load_dwordx4 {vr(vGX,4)}, v5, {sr(SRD_X,4)}, 0 offen")
        A(f"buffer_load_dwordx4 {vr(vGX+4,4)}, v5, {sr(SRD_X,4)}, 0 offen offset:512")
        A(f"buffer_load_dwordx4 {vr(vGX+8,4)}, v6, {sr(SRD_X,4)}, 0 offen")
        A(f"buffer_load_dwordx4 {vr(vGW,4)}, v3, {sr(SRD_G,4)}, 0 offen")
        A(f"buffer_load_dwordx4 {vr(vGW+4,4)}, v3, {sr(SRD_G,4)}, 0 offen offset:512")
        A(f"buffer_load_dwordx4 {vr(vGW+8,4)}, v4, {sr(SRD_G,4)}, 0 offen")
        q.add("side", 9)
    def const_stores(self, q):
        A, e = self.A, self.e
        sT = e['sT']; R = 120; SRD_WS = e['SRD_WS']; SC1 = e['SC1']
        A.c("fill this wave's share of the O' hand-off area with the not-ready pattern")
        for j in range(4): A(f"v_mov_b32 v{R+j}, -1")
        A("v_lshlrev_b32 v3, 4, v2")
        A(f"s_mul_i32 s{sT}, s{self.sL}, 2560")
        A(f"s_add_u32 s{sT}, s{sT}, {OF}")
        A(f"buffer_store_dwordx4 {vr(R,4)}, v3, {sr(SRD_WS,4)}, s{sT} offen{SC1}")
        A(f"buffer_store_dwordx4 {vr(R,4)}, v3, {sr(SRD_WS,4)}, s{sT} offen offset:1024{SC1}")
        A("s_mov_b32 exec_hi, 0")
        A(f"buffer_store_dwordx4 {vr(R,4)}, v3, {sr(SRD_WS,4)}, s{sT} offen offset:2048{SC1}")
        A("s_mov_b64 exec, -1")
        q.add("const", 3)
    def side_process(self, q):
        A, e, name = self.A, self.e, self.name
        sT, sW, sN = e['sT'], e['sW'], self.sN
        SRD_WS = e['SRD_WS']; SC1 = e['SC1']; SCR = e['SCR'] if 'SCR' in e else None
        import p1two
        SCR = p1two.SCR
        vPW = 64; vGX, vGW = 76, 88; vTK = 102
        A.c("side job: gate g = sigmoid(x . gate_w)")
        A("v_mov_b32 v3, 0")
        for j in range(12):
            A(f"v_dot2c_f32_bf16 v3, v{vGX+j}, v{vGW+j}")
        A("s_nop 3")
        for sh in (1, 2, 4, 8):
            A(f"v_add_f32_dpp v3, v3, v3 row_shr:{sh} row_mask:0xf bank_mask:0xf bound_ctrl:0")
            A("s_nop 1")
        A("v_add_f32_dpp v3, v3, v3 row_bcast:15 row_mask:0xa bank_mask:0xf")
        A("s_nop 1")
        A("v_mul_f32 v3, 0xbfb8aa3b, v3")
        A("v_exp_f32 v3, v3")
        A("s_nop 0")
        A("v_add_f32 v3, 1.0, v3")
        A("v_rcp_f32 v3, v3")
        A(f"v_lshlrev_b32 v{vTK}, 2, v{vTK}")
        A("v_and_b32 v6, 31, v2")
        A("v_cmp_eq_u32 vcc, 31, v6")
        A(f"s_mov_b32 s{sT}, {GG}")
        A("s_and_saveexec_b64 s[50:51], vcc")
        A(f"s_cbranch_execz {name}_gate_done")
        A(f"buffer_store_dword v3, v{vTK}, {sr(SRD_WS,4)}, s{sT} offen{SC1}")
        A.label(f"{name}_gate_done")
        A("s_mov_b64 exec, s[50:51]")
        A.c("side job: transpose Wd / Wo blocks into MFMA A-fragment order through a 512-byte LDS scratch per wave")
        A(f"s_lshl_b32 s{sT}, s{sW}, 9")
        A(f"s_add_u32 s{sT}, s{sT}, {SCR}")
        A("v_and_b32 v4, 31, v2")
        A("v_lshlrev_b32 v4, 4, v4")
        A(f"v_add_u32 v4, s{sT}, v4")
        A("v_lshrrev_b32 v7, 5, v2")
        A("v_bfe_u32 v5, v2, 2, 2")
        A("v_lshl_add_u32 v5, v7, 2, v5")
        A("v_lshlrev_b32 v5, 6, v5")
        A("v_bfe_u32 v6, v2, 4, 1")
        A("v_lshl_add_u32 v5, v6, 5, v5")
        A("v_and_b32 v6, 3, v2")
        A("v_lshl_add_u32 v5, v6, 3, v5")
        A(f"v_add_u32 v5, s{sT}, v5")
        A("v_lshlrev_b32 v7, 4, v2")
        OUT = 104
        for m in range(3):
            if m == 2:
                A(f"s_cmp_ge_u32 s{sN+m}, 2720")
                A(f"s_cbranch_scc1 {name}_prep_done")
            for half in range(2):
                A("s_mov_b32 exec_hi, 0" if half == 0 else "s_mov_b32 exec_lo, 0")
                A(f"ds_write_b128 v4, {vr(vPW+4*m,4)}")
                A("s_mov_b64 exec, -1")
                A("s_waitcnt lgkmcnt(0)")
                A(f"ds_read_b64_tr_b16 {vr(OUT+4*m+2*half,2)}, v5")
                A("s_waitcnt lgkmcnt(0)")
            A(f"s_lshl_b32 s{sT}, s{sN+m}, 10")
            A(f"s_add_u32 s{sT}, s{sT}, {WDF}")
            A(f"buffer_store_dwordx4 {vr(OUT+4*m,4)}, v7, {sr(SRD_WS,4)}, s{sT} offen{SC1}")
        A.label(f"{name}_prep_done")
```

```python
from asmlib import *
import asmlib
from layout import *
from k23 import ws_srd

K2_LDS = 8*CH + 24576

class VmTrack:
    def __init__(self):
        self.seq = []
        self.need = {}
    def issue(self, tag): self.seq.append(tag)
    def wait(self, wid, tags):
        idx = [i for i, t in enumerate(self.seq) if t in tags]
        if not idx: return
        n = len(self.seq) - 1 - max(idx)
        self.need[wid] = min(self.need.get(wid, 63), n)

def gen_k2(A, name, fused=False):
    if not fused: kernel_header(A, name)
    LD1 = ' sc1' if (fused and asmlib.OPT.get("ldsc1")) else ''
    sWS = 4; SRD = 8; sW = 12; sT, sT2, sT3 = 13, 14, 15
    sHEAD, sQT, sKV, sM0, sCNT, sG, sHF = 16, 17, 18, 19, 20, 21, 22
    sTT, sCBK = 23, 24
    sA0, sB0 = 26, 31
    if not fused:
        A("s_cmp_ge_u32 s2, 256")
        A(f"s_cbranch_scc1 {name}_end")
    TP = asmlib.OPT.get("tailprof")
    if not TP: stamp(A, 0)
    A(f"s_load_dwordx2 {sr(sWS,2)}, s[0:1], {KA_WS}")
    A(f"s_load_dwordx2 s[38:39], s[0:1], {KA_DBG}")
    A(f"s_load_dwordx2 s[48:49], s[0:1], {KA_OUT}")
    A("v_lshrrev_b32 v1, 6, v0")
    A("v_and_b32 v2, 63, v0")
    A(f"v_readfirstlane_b32 s{sW}, v1")
    A(f"s_and_b32 s{sT}, s2, 7")
    A(f"s_lshr_b32 s{sT2}, s2, 3")
    A(f"s_and_b32 s{sT3}, s{sT2}, 3")
    A(f"s_lshl_b32 s{sHEAD}, s{sT}, 2")
    A(f"s_add_u32 s{sHEAD}, s{sHEAD}, s{sT3}")
    A(f"s_and_b32 s{sG}, s{sW}, 3")
    A(f"s_lshr_b32 s{sHF}, s{sW}, 2")
    A(f"s_lshr_b32 s{sQT}, s{sT2}, 2")
    A(f"s_lshl_b32 s{sQT}, s{sQT}, 3")
    A(f"s_lshl_b32 s{sT3}, s{sG}, 1")
    A(f"s_add_u32 s{sQT}, s{sQT}, s{sT3}")
    A(f"s_lshl_b32 s{sTT}, s{sT}, 3")
    A(f"s_and_b32 s{sT3}, s{sT2}, 7")
    A(f"s_add_u32 s{sTT}, s{sTT}, s{sT3}")
    A(f"s_lshr_b32 s{sCBK}, s{sT2}, 3")
    A("s_waitcnt lgkmcnt(0)")
    ws_srd(A, SRD, sWS)
    if asmlib.OPT.get("lone"):
        A(f"s_cmp_ge_u32 s{sW}, 4")
        A(f"s_cbranch_scc1 {name}_end")
    SA, SB = 16, 32; P = 48; OA, OB = 56, 72
    Q16A, Q4A, Q16B, Q4B = 88, 92, 94, 98
    K16 = 100; K4 = [104, 106]; V1 = 108; V2 = 112; E = [116, 120]
    FR = 124; ACC = 172
    vL16, vKV, vK4a, vDma, vFo = 4, 5, 6, 7, 8
    A(f"v_lshlrev_b32 v{vL16}, 4, v2")
    A(f"s_mul_i32 s{sT}, s{sHF}, {4*CH}")
    A(f"v_add_u32 v{vKV}, s{sT}, v{vL16}")
    A("v_and_b32 v3, 31, v2")
    A(f"v_lshlrev_b32 v9, 3, v3")
    A(f"v_add_u32 v9, 1024, v9")
    A(f"v_add_u32 v{vK4a}, s{sT}, v9")
    A(f"v_mov_b32 v{vDma}, v{vL16}")
    A(f"v_mov_b32 v{vFo}, v{vL16}")
    A(f"s_mul_i32 s{sM0}, s{sG}, 3072")
    A(f"s_add_u32 s{sM0}, s{sM0}, s{sT}")
    A(f"s_mul_i32 s{sKV}, s{sHEAD}, {HS_KV}")
    A(f"s_mul_i32 s{sT2}, s{sHF}, {8*CH}")
    A(f"s_add_u32 s{sKV}, s{sKV}, s{sT2}")
    A(f"s_mul_i32 s{sT2}, s{sG}, 3072")
    A(f"s_add_u32 s{sKV}, s{sKV}, s{sT2}")
    A(f"s_add_u32 s{sKV}, s{sKV}, {KV}")
    A("s_mov_b32 s52, 0x30800000")
    A("s_mov_b32 s53, 0x58800000")
    vm = VmTrack()
    def dma_piece(chunk, i, emit):
        if emit and not (asmlib.OPT.get("nodma") and chunk > 2):
            if i == 0:
                A(f"s_add_u32 m0, s{sM0}, {(chunk & 3)*CH}")
                A("s_nop 0")
            A(f"buffer_load_dwordx4 v{vDma}, {sr(SRD,4)}, s{sKV} offen offset:{i*1024}{LD1} lds")
            if i == 3:
                A(f"s_add_u32 s{sKV}, s{sKV}, {CH}")
        vm.issue(("dma", chunk))
    def dma(chunk, emit):
        for i in range(4): dma_piece(chunk, i, emit)
    def fslot(s): return FR + (s & 1)*24
    def fload(s, which, imm, emit):
        b = fslot(s)
        if emit:
            if which < 5:
                A(f"buffer_load_dwordx4 {vr(b+4*which,4)}, v{vFo}, {sr(SRD,4)}, s{sA0+which} offen offset:{imm}{LD1}")
            else:
                A(f"buffer_load_dwordx4 {vr(b+20,4)}, v{vFo}, {sr(SRD,4)}, s{sB0} offen offset:{imm}{LD1}")
        vm.issue(("f", s))
    A(f"s_mul_i32 s{sT}, s{sHEAD}, {HS_Q}")
    A(f"s_mul_i32 s{sT2}, s{sQT}, 1280")
    A(f"s_add_u32 s{sT}, s{sT}, s{sT2}")
    if QF: A(f"s_add_u32 s{sT}, s{sT}, {QF}")
    A(f"buffer_load_dwordx4 {vr(Q16A,4)}, v{vL16}, {sr(SRD,4)}, s{sT} offen{LD1}")
    A(f"buffer_load_dwordx2 {vr(Q4A,2)}, v9, {sr(SRD,4)}, s{sT} offen{LD1}")
    A(f"buffer_load_dwordx4 {vr(Q16B,4)}, v{vL16}, {sr(SRD,4)}, s{sT} offen offset:1280{LD1}")
    A(f"buffer_load_dwordx2 {vr(Q4B,2)}, v9, {sr(SRD,4)}, s{sT} offen offset:1280{LD1}")
    for i in range(4): vm.issue(("q", 0))
    dma(0, True)
    dma(1, True)
    A("v_cmp_lt_u32 vcc, 31, v2")
    for r in list(range(OA, OA+32)) + list(range(P, P+8)) + list(range(V2, V2+4)) + list(range(E[0], E[0]+8)):
        A(f"v_mov_b32 v{r}, 0")
    vm.wait("pro", [("dma", 0), ("q", 0)])
    A(f"s_waitcnt vmcnt({vm.need['pro']})")
    for r in (Q4A, Q4A+1, Q4B, Q4B+1):
        A(f"v_cndmask_b32 v{r}, v{r}, v{P}, vcc")
    A("s_barrier")
    dma(2, True)
    A(f"s_mul_i32 s{sT}, s{sW}, {12*1024}")
    A(f"s_mul_i32 s{sT2}, s{sCBK}, {5*96*1024}")
    A(f"s_add_u32 s{sT2}, s{sT2}, s{sT}")
    A(f"s_add_u32 s{sA0}, s{sT2}, {WDF}")
    for mt in range(1, 5): A(f"s_add_u32 s{sA0+mt}, s{sA0+mt-1}, {96*1024}")
    A(f"s_mul_i32 s{sT2}, s{sTT}, {96*1024}")
    A(f"s_add_u32 s{sT2}, s{sT2}, s{sT}")
    A(f"s_add_u32 s{sB0}, s{sT2}, {HF}")
    vG1, vG2 = 252, 253
    A("v_lshlrev_b32 v14, 2, v3")
    A(f"s_add_u32 s{sT}, s{sQT}, s{sHF}")
    A(f"s_lshl_b32 s{sT}, s{sT}, 7")
    A(f"s_add_u32 s{sT}, s{sT}, {GG}")
    A(f"buffer_load_dword v{vG1}, v14, {sr(SRD,4)}, s{sT} offen{LD1}")
    A(f"s_lshl_b32 s{sT}, s{sTT}, 7")
    A(f"s_add_u32 s{sT}, s{sT}, {GG}")
    A(f"buffer_load_dword v{vG2}, v14, {sr(SRD,4)}, s{sT} offen{LD1}")
    vm.issue(("g", 0)); vm.issue(("g", 0))
    sWo = 32
    A(f"s_mul_i32 s{sT}, s{sW}, {5*1024}")
    A(f"s_mul_i32 s{sT2}, s{sCBK}, {5*40*1024}")
    A(f"s_add_u32 s{sT2}, s{sT2}, s{sT}")
    A(f"s_add_u32 s{sWo}, s{sT2}, {WOF}")
    for mt in range(1, 5): A(f"s_add_u32 s{sWo+mt}, s{sWo+mt-1}, {40*1024}")
    for s in range(2):
        for w in (5, 0, 1, 2, 3, 4): fload(s, w, s*1024, True)
    A(f"v_add_u32 v{vFo}, 2048, v{vFo}")
    def koff(t): return ((t >> 2) & 3)*CH + (t & 3)*1280
    def voff(t, f): return ((t >> 2) & 3)*CH + 5120 + (t & 3)*2048 + f*1024
    rdK16 = lambda t: f"ds_read_b128 {vr(K16,4)}, v{vKV} offset:{koff(t)}"
    rdK4 = lambda t: f"ds_read_b64 {vr(K4[t & 1],2)}, v{vK4a} offset:{koff(t)}"
    rdV1 = lambda t: f"ds_read_b128 {vr(V1,4)}, v{vKV} offset:{voff(t,0)}"
    rdV2 = lambda t: f"ds_read_b128 {vr(V2,4)}, v{vKV} offset:{voff(t,1)}"
    mS1 = lambda d, q: f"v_mfma_f32_32x32x16_bf16 {vr(d,16)}, {vr(K16,4)}, {vr(q,4)}, 0"
    mS2 = lambda d, q, t: f"v_mfma_f32_32x32x8_bf16 {vr(d,16)}, {vr(K4[t & 1],2)}, {vr(q,2)}, {vr(d,16)}"
    mP1 = lambda o: f"v_mfma_f32_32x32x16_bf16 {vr(o,16)}, {vr(V1,4)}, {vr(P,4)}, {vr(o,16)}"
    mP2 = lambda o: f"v_mfma_f32_32x32x16_bf16 {vr(o,16)}, {vr(V2,4)}, {vr(P+4,4)}, {vr(o,16)}"
    A(rdK16(0)); A(rdK4(0)); A(rdV1(0))
    A("s_waitcnt lgkmcnt(0)")
    A(mS1(SA, Q16A))
    for r in range(ACC, ACC+40): A(f"v_mov_b32 v{r}, 0")
    A(mS2(SA, Q4A, 0))
    for r in range(ACC+40, ACC+80): A(f"v_mov_b32 v{r}, 0")
    A(f"s_mov_b32 s{sCNT}, 0")
    if not TP: stamp(A, 1)
    def valu(cur, q):
        e = E[q & 1]; pe = E[(q+1) & 1]; pp = P + 2*((q-1) & 3)
        return [f"v_cvt_pk_bf16_f32 v{pp}, v{pe}, v{pe+1}",
                f"v_exp_f32 v{e}, v{cur+4*q}", f"v_exp_f32 v{e+1}, v{cur+4*q+1}",
                f"v_cvt_pk_bf16_f32 v{pp+1}, v{pe+2}, v{pe+3}",
                f"v_exp_f32 v{e+2}, v{cur+4*q+2}", f"v_exp_f32 v{e+3}, v{cur+4*q+3}"]
    def body(it, emit):
        def E_(s):
            if not emit: return
            if asmlib.OPT.get("nolds") and (s.startswith("ds_read") or "lgkmcnt" in s): return
            if asmlib.OPT.get("nomfma") and s.startswith("v_mfma"): return
            if asmlib.OPT.get("noexp") and s.startswith("v_exp"): return
            A(s)
        for u in range(32):
            t = u >> 1
            gt = it*16 + t
            ev = (u & 1) == 0
            if ev and (t & 3) == 3:
                c = gt >> 2
                wid = ("bar", u)
                vm.wait(wid, [("dma", c+1)])
                if not asmlib.OPT.get("nobar"):
                    E_(f"s_waitcnt vmcnt(@{wid}@)")
                    E_("s_barrier")
                if asmlib.OPT.get("prio") == 2:
                    par = (t >> 2) & 1
                    lab = f"{name}_p{u}"
                    E_(f"s_cmp_eq_u32 s{sHF}, {par}")
                    E_(f"s_cbranch_scc1 {lab}a")
                    E_("s_setprio 0")
                    E_(f"s_branch {lab}b")
                    if emit: A.label(f"{lab}a")
                    E_("s_setprio 1")
                    if emit: A.label(f"{lab}b")
                if u == 14:
                    E_(f"s_cmp_eq_u32 s{sCNT}, 1")
                    E_(f"s_cselect_b32 s{sT}, 0x7fff0000, 0")
                    E_(f"v_or_b32 v{vDma}, s{sT}, v{vL16}")
                pend_dma = c+3
            fs, fmt = divmod(max(u-2, 0), 5)
            gs = it*6 + fs
            dof = u >= 2 and not asmlib.OPT.get("noffn2")
            def ffn():
                if not dof: return
                b = fslot(fs)
                if u == 22:
                    E_(f"s_cmp_eq_u32 s{sCNT}, 1")
                    E_(f"s_cbranch_scc0 {name}_nowo")
                    for mt in range(5): E_(f"s_mov_b32 s{sA0+mt}, s{sWo+mt}")
                    E_(f"s_add_u32 s{sB0}, s{sWo}, 2048")
                    E_(f"v_mov_b32 v{vFo}, v{vL16}")
                    if emit: A.label(f"{name}_nowo")
                if fmt == 0:
                    wid = ("f", u)
                    vm.wait(wid, [("f", gs)])
                    E_(f"s_waitcnt vmcnt(@{wid}@)")
                d = vr(ACC+16*fmt,16)
                E_(f"v_mfma_f32_32x32x16_bf16 {d}, {vr(b+4*fmt,4)}, {vr(b+20,4)}, {d}")
                imm = (fs & 1)*1024
                fload(gs+2, fmt, imm, emit)
                if fmt == 4:
                    fload(gs+2, 5, imm, emit)
                    if fs & 1:
                        E_(f"v_add_u32 v{vFo}, 2048, v{vFo}")
            cur = SA if ev else SB
            vv = valu(cur, 0) + valu(cur, 1) + valu(cur, 2) + valu(cur, 3)
            if ev:
                m = {"S1": [mS1(SB, Q16B), rdK16(t+1), rdK4(t+1)],
                     "P2": [mP2(OB), rdV2(t)],
                     "S2": [mS2(SB, Q4B, t)],
                     "P1": ["s_waitcnt lgkmcnt(3)", mP1(OA)]}
            else:
                m = {"S1": ["s_waitcnt lgkmcnt(0)", mS1(SA, Q16A)],
                     "P2": [mP2(OA)],
                     "S2": [mS2(SA, Q4A, t+1)],
                     "P1": [mP1(OB), rdV1(t+1)]}
            if dof: pos = {0: "S1", 5: "F", 10: "P2", 14: "S2", 19: "P1"}
            else:   pos = {0: "S1", 6: "P2", 12: "S2", 18: "P1"}
            dpos = {}
            if ev and (t & 3) == 3: dpos = {3: 0, 16: 1}
            if (not ev) and (t & 3) == 3: dpos = {3: 2, 16: 3}
            for i, l in enumerate(vv):
                if i in dpos:
                    dma_piece((gt >> 2) + 3, dpos[i], emit)
                if i in pos:
                    k = pos[i]
                    if k == "F": ffn()
                    else:
                        for x in m[k]: E_(x)
                E_(l)
    PR = asmlib.OPT.get("prio", 0)
    if PR == 1:
        A(f"s_cmp_eq_u32 s{sHF}, 1")
        A(f"s_cbranch_scc0 {name}_noprio")
        A("s_setprio 1")
        A.label(f"{name}_noprio")
    body(0, False); body(1, False)
    start = len(A.lines)
    A(".p2align 6")
    A.label(f"{name}_aloop")
    saved = (list(vm.seq), dict(vm.need))
    body(0, True)
    vm.seq, vm.need = saved
    for i in range(start, len(A.lines)):
        l = A.lines[i]
        if "@" in l:
            key = eval(l.split("@")[1])
            A.lines[i] = l.split("@")[0] + str(vm.need[key]) + l.split("@")[2]
    A(f"s_add_u32 s{sCNT}, s{sCNT}, 1")
    A(f"s_cmp_lt_u32 s{sCNT}, 2")
    A(f"s_cbranch_scc1 {name}_aloop")
    A("s_setprio 0")
    A(f"v_cvt_pk_bf16_f32 v{P+6}, v{E[1]}, v{E[1]+1}")
    A(f"v_cvt_pk_bf16_f32 v{P+7}, v{E[1]+2}, v{E[1]+3}")
    A("s_waitcnt lgkmcnt(0)")
    A("s_nop 1")
    A(mP2(OB))
    if TP != 4: stamp(A, 0 if TP else 2)
    def wo_reg(st, mt):
        if st == 0: return FR + 4*mt
        if st == 1: return FR + 24 + 4*mt
        if mt == 0 and st == 2: return FR + 20
        if mt == 0 and st == 3: return FR + 44
        rest = [(2,1),(2,2),(2,3),(2,4),(3,1),(3,2),(3,3),(3,4),(4,0),(4,1),(4,2),(4,3),(4,4)]
        i = rest.index((st, mt))
        return 16 + 4*i if i < 10 else 88 + 4*(i-10)
    BFR = 100
    CATT, RA, RB = 8*CH, 0, 65536
    vWr, vRd, vC1, vC2 = 9, 10, 11, 12
    A(f"s_mul_i32 s{sT}, s{sW}, 3072")
    A(f"s_add_u32 s{sT}, s{sT}, {CATT}")
    A(f"v_add_u32 v{vC1}, s{sT}, v{vL16}")
    A(f"s_xor_b32 s{sT2}, s{sW}, 4")
    A(f"s_mul_i32 s{sT2}, s{sT2}, 3072")
    A(f"s_add_u32 s{sT2}, s{sT2}, {CATT}")
    A(f"v_add_u32 v{vC2}, s{sT2}, v{vL16}")
    A("s_nop 7")
    A(f"s_cmp_eq_u32 s{sHF}, 0")
    A(f"s_cbranch_scc0 {name}_cmb1")
    A("s_nop 3")
    for j in range(3): A(f"ds_write_b128 v{vC1}, {vr(OB+4*j,4)} offset:{j*1024}")
    A(f"s_branch {name}_cmb2")
    A.label(f"{name}_cmb1")
    for j in range(3): A(f"ds_write_b128 v{vC1}, {vr(OA+4*j,4)} offset:{j*1024}")
    A("s_nop 1")
    for j in range(12): A(f"v_mov_b32 v{OA+j}, v{OB+j}")
    A.label(f"{name}_cmb2")
    A("s_waitcnt lgkmcnt(0)")
    A("s_barrier")
    for j in range(3): A(f"ds_read_b128 {vr(OB+4*j,4)}, v{vC2} offset:{j*1024}")
    A("s_waitcnt lgkmcnt(0)")
    O = OA
    for j in range(12): A(f"v_add_f32 v{O+j}, v{O+j}, v{OB+j}")
    vLs, vR = OB, OB+1
    def rowsum():
        A(f"v_mov_b32 v{vLs}, v{O+8}")
        A(f"v_mov_b32 v{vR}, v{O+8}")
        A("s_nop 1")
        A(f"v_permlane32_swap_b32 v{vLs}, v{vR}")
        A("s_nop 1")
    rowsum()
    A(f"v_mov_b32 v{OB+2}, 0")
    for r in range(12): A(f"v_fma_f32 v{OB+2}, v{O+r}, 0, v{OB+2}")
    A(f"v_cmp_o_f32 vcc, v{OB+2}, v{OB+2}")
    A(f"v_cmp_le_f32 s[50:51], s52, v{vR}")
    A(f"v_cmp_ge_f32 s[54:55], s53, v{vR}")
    A("s_nop 3")
    A("s_and_b64 vcc, vcc, s[50:51]")
    A("s_and_b64 vcc, vcc, s[54:55]")
    A("s_cmp_eq_u64 vcc, -1")
    A(f"s_cbranch_scc1 {name}_fastok")
    FS, FP, FK16, FK4, FV1, FV2, FM, FA, FT = 16, 48, 100, 104, 108, 112, 116, 117, 118
    FQ16, FQ4 = 32, 36
    A(f"s_cmp_eq_u32 s{sHF}, 0")
    A(f"s_cbranch_scc0 {name}_fb_b")
    for j in range(4): A(f"v_mov_b32 v{FQ16+j}, v{Q16A+j}")
    for j in range(2): A(f"v_mov_b32 v{FQ4+j}, v{Q4A+j}")
    A(f"s_branch {name}_fb_go")
    A.label(f"{name}_fb_b")
    for j in range(4): A(f"v_mov_b32 v{FQ16+j}, v{Q16B+j}")
    for j in range(2): A(f"v_mov_b32 v{FQ4+j}, v{Q4B+j}")
    A.label(f"{name}_fb_go")
    for r in range(16): A(f"v_mov_b32 v{O+r}, 0")
    A(f"v_mov_b32 v{FM}, 0xff7fffff")
    A("v_and_b32 v3, 31, v2")
    A("v_lshlrev_b32 v14, 3, v3")
    A("v_add_u32 v14, 1024, v14")
    A(f"s_mul_i32 s56, s{sHEAD}, {HS_KV}")
    A(f"s_add_u32 s56, s56, {KV}")
    A("s_mov_b32 s57, 0")
    A.label(f"{name}_fb_loop")
    A("s_lshr_b32 s58, s57, 2")
    A(f"s_mul_i32 s58, s58, {CH}")
    A("s_add_u32 s58, s58, s56")
    A("s_and_b32 s59, s57, 3")
    A("s_mul_i32 s60, s59, 1280")
    A("s_add_u32 s60, s60, s58")
    A("s_lshl_b32 s59, s59, 11")
    A("s_add_u32 s59, s59, s58")
    A("s_add_u32 s59, s59, 5120")
    A(f"buffer_load_dwordx4 {vr(FK16,4)}, v{vL16}, {sr(SRD,4)}, s60 offen{LD1}")
    A(f"buffer_load_dwordx2 {vr(FK4,2)}, v14, {sr(SRD,4)}, s60 offen{LD1}")
    A(f"buffer_load_dwordx4 {vr(FV1,4)}, v{vL16}, {sr(SRD,4)}, s59 offen{LD1}")
    A(f"buffer_load_dwordx4 {vr(FV2,4)}, v{vL16}, {sr(SRD,4)}, s59 offen offset:1024{LD1}")
    A("s_waitcnt vmcnt(0)")
    A(f"v_mfma_f32_32x32x16_bf16 {vr(FS,16)}, {vr(FK16,4)}, {vr(FQ16,4)}, 0")
    A("s_nop 15")
    A(f"v_mfma_f32_32x32x8_bf16 {vr(FS,16)}, {vr(FK4,2)}, {vr(FQ4,2)}, {vr(FS,16)}")
    A("s_nop 15")
    A(f"v_max3_f32 v{FT}, v{FS}, v{FS+1}, v{FS+2}")
    for j in range(3, 15, 2): A(f"v_max3_f32 v{FT}, v{FT}, v{FS+j}, v{FS+j+1}")
    A(f"v_max_f32 v{FT}, v{FT}, v{FS+15}")
    A(f"v_mov_b32 v{FT+1}, v{FT}")
    A("s_nop 1")
    A(f"v_permlane32_swap_b32 v{FT}, v{FT+1}")
    A("s_nop 1")
    A(f"v_max3_f32 v{FT}, v{FT}, v{FT+1}, v{FM}")
    A(f"v_sub_f32 v{FA}, v{FM}, v{FT}")
    A(f"v_exp_f32 v{FA}, v{FA}")
    A(f"v_mov_b32 v{FM}, v{FT}")
    for j in range(16): A(f"v_sub_f32 v{FS+j}, v{FS+j}, v{FM}")
    for j in range(16): A(f"v_exp_f32 v{FS+j}, v{FS+j}")
    A("s_nop 0")
    for j in range(8): A(f"v_cvt_pk_bf16_f32 v{FP+j}, v{FS+2*j}, v{FS+2*j+1}")
    for j in range(16): A(f"v_mul_f32 v{O+j}, v{O+j}, v{FA}")
    A("s_nop 1")
    A(f"v_mfma_f32_32x32x16_bf16 {vr(O,16)}, {vr(FV1,4)}, {vr(FP,4)}, {vr(O,16)}")
    A(f"v_mfma_f32_32x32x16_bf16 {vr(O,16)}, {vr(FV2,4)}, {vr(FP+4,4)}, {vr(O,16)}")
    A("s_nop 15")
    A("s_add_u32 s57, s57, 1")
    A("s_cmp_lt_u32 s57, 64")
    A(f"s_cbranch_scc1 {name}_fb_loop")
    rowsum()
    A.label(f"{name}_fastok")
    A(f"v_rcp_f32 v{vR}, v{vR}")
    A("s_nop 0")
    A(f"v_mul_f32 v{vR}, v{vR}, v{vG1}")
    for r in range(12): A(f"v_mul_f32 v{O+r}, v{O+r}, v{vR}")
    OP = OB + 4
    for j in range(6): A(f"v_cvt_pk_bf16_f32 v{OP+j}, v{O+2*j}, v{O+2*j+1}")
    A(f"s_add_u32 s{sT}, s{sQT}, s{sHF}")
    A(f"s_mul_i32 s{sT}, s{sT}, 40960")
    A(f"s_add_u32 s{sT}, s{sT}, {OF}")
    A(f"s_lshl_b32 s{sT2}, s{sHEAD}, 10")
    A(f"s_add_u32 s{sT2}, s{sT2}, s{sT}")
    A(f"buffer_store_dwordx4 {vr(OP,4)}, v{vL16}, {sr(SRD,4)}, s{sT2} offen sc1")
    A(f"s_lshr_b32 s{sT2}, s{sHEAD}, 2")
    A(f"s_add_u32 s{sT2}, s{sT2}, 32")
    A(f"s_lshl_b32 s{sT2}, s{sT2}, 10")
    A(f"s_add_u32 s{sT}, s{sT}, s{sT2}")
    A(f"s_bfe_u32 s{sT2}, s{sHEAD}, 0x10001")
    A(f"s_lshl_b32 s{sT2}, s{sT2}, 9")
    A(f"s_add_u32 s{sT}, s{sT}, s{sT2}")
    A(f"s_and_b32 s{sT2}, s{sHEAD}, 1")
    A(f"s_lshl_b32 s{sT2}, s{sT2}, 3")
    A(f"s_add_u32 s{sT}, s{sT}, s{sT2}")
    A("s_mov_b32 exec_hi, 0")
    A(f"buffer_store_dwordx2 {vr(OP+4,2)}, v{vL16}, {sr(SRD,4)}, s{sT} offen sc1")
    A("s_mov_b64 exec, -1")
    if TP == 1: stamp(A, 1)
    sOF = 37
    A(f"s_mul_i32 s{sOF}, s{sTT}, 40960")
    A(f"s_mul_i32 s{sT2}, s{sW}, {5*1024}")
    A(f"s_add_u32 s{sOF}, s{sOF}, s{sT2}")
    A(f"s_add_u32 s{sOF}, s{sOF}, {OF}")
    A(f"v_add_u32 v15, 4096, v{vL16}")
    def ofloads():
        for st in range(5):
            if st < 4:
                A(f"buffer_load_dwordx4 {vr(BFR+4*st,4)}, v{vL16}, {sr(SRD,4)}, s{sOF} offen offset:{st*1024} sc1")
            else:
                A(f"buffer_load_dwordx4 {vr(BFR+4*st,4)}, v15, {sr(SRD,4)}, s{sOF} offen sc1")
    def ofcheck():
        A(f"v_max3_u32 v14, v{BFR}, v{BFR+1}, v{BFR+2}")
        for j in range(3, 19, 2):
            A(f"v_max3_u32 v14, v14, v{BFR+j}, v{BFR+j+1}")
        A(f"v_max_u32 v14, v14, v{BFR+19}")
        A("v_cmp_eq_u32 vcc, -1, v14")
    A(f"v_sub_f32 v{vG2}, 1.0, v{vG2}")
    k = 0
    for st in range(2, 5):
        for mt in range(5):
            if st < 4 and mt == 0: continue
            if st < 4:
                A(f"buffer_load_dwordx4 {vr(wo_reg(st,mt),4)}, v{vL16}, {sr(SRD,4)}, s{sWo+mt} offen offset:{st*1024}{LD1}")
            else:
                A(f"buffer_load_dwordx4 {vr(wo_reg(st,mt),4)}, v15, {sr(SRD,4)}, s{sWo+mt} offen{LD1}")
            for r in range(ACC+k, min(ACC+k+7, ACC+80)): A(f"v_mul_f32 v{r}, v{r}, v{vG2}")
            k = min(k+7, 80)
    assert k == 80
    A(f"s_mov_b32 s{sT2}, 0")
    A.label(f"{name}_poll")
    ofloads()
    A("s_waitcnt vmcnt(0)")
    ofcheck()
    A(f"s_add_u32 s{sT2}, s{sT2}, 1")
    A("s_nop 1")
    A(f"s_cbranch_vccz {name}_polldone")
    A(f"s_cmp_lt_u32 s{sT2}, 0x40000")
    A(f"s_cbranch_scc1 {name}_poll")
    A.label(f"{name}_polldone")
    if TP == 1: stamp(A, 2)
    if TP == 4: stamp(A, 0)
    for st in range(5):
        for mt in range(5):
            d = vr(ACC+16*mt,16)
            A(f"v_mfma_f32_32x32x16_bf16 {d}, {vr(wo_reg(st,mt),4)}, {vr(BFR+4*st,4)}, {d}")
    RB2 = 65536
    if TP == 4: stamp(A, 1)
    PK = 16
    A("s_nop 15")
    G4 = 56
    for mt in (0, 1, 2, 3, 4):
        for q in range(4):
            a = ACC + 16*mt + 4*q
            d = PK + 32 + 2*q if mt == 4 else G4 + 4*((mt & 1)*4 + q) + 2*(mt >> 1)
            A(f"v_cvt_pk_bf16_f32 v{d}, v{a}, v{a+1}")
            A(f"v_cvt_pk_bf16_f32 v{d+1}, v{a+2}, v{a+3}")
    A(f"s_lshl_b32 s{sT}, s{sW}, 13")
    A(f"v_add_u32 v{vWr}, s{sT}, v{vL16}")
    A(f"s_lshl_b32 s{sT}, s{sW}, 11")
    A(f"s_add_u32 s{sT}, s{sT}, {RB2}")
    A("v_lshlrev_b32 v13, 3, v2")
    A(f"v_add_u32 v14, s{sT}, v13")
    for d in range(8):
        A(f"ds_write_b128 v{vWr}, {vr(G4+4*d,4)} offset:{d*1024}")
    for q in range(4):
        A(f"ds_write_b64 v14, {vr(PK+32+2*q,2)} offset:{q*512}")
    A(f"s_lshl_b32 s{sT}, s{sW}, 10")
    A(f"v_add_u32 v{vRd}, s{sT}, v{vL16}")
    A(f"s_lshl_b32 s{sT}, s{sG}, 9")
    A(f"s_add_u32 s{sT}, s{sT}, {RB2}")
    A(f"v_add_u32 v14, s{sT}, v13")
    A("v_mov_b32 v12, 0x3f80")
    A("v_mov_b32 v11, 0x3f800000")
    SUMA, SUMB, SUMC = 56, 60, 64
    A("s_waitcnt lgkmcnt(0)")
    A("s_barrier")
    if TP == 4: stamp(A, 2)
    T0 = 16
    for s_ in range(8):
        A(f"ds_read_b128 {vr(T0+4*s_,4)}, v{vRd} offset:{s_*8192}")
    for s_ in range(8):
        A(f"ds_read_b64 {vr(88+2*s_,2)}, v14 offset:{s_*2048}")
    for r in range(SUMA, SUMA+12): A(f"v_mov_b32 v{r}, 0")
    for s_ in range(8):
        A(f"s_waitcnt lgkmcnt({min(15, 7-s_+8)})")
        for j in range(2):
            A(f"v_dot2_f32_bf16 v{SUMA+2*j}, v{T0+4*s_+j}, v12, v{SUMA+2*j}")
            A(f"v_dot2_f32_bf16 v{SUMA+2*j+1}, v{T0+4*s_+j}, v11, v{SUMA+2*j+1}")
            A(f"v_dot2_f32_bf16 v{SUMB+2*j}, v{T0+4*s_+2+j}, v12, v{SUMB+2*j}")
            A(f"v_dot2_f32_bf16 v{SUMB+2*j+1}, v{T0+4*s_+2+j}, v11, v{SUMB+2*j+1}")
    A("s_waitcnt lgkmcnt(0)")
    for s_ in range(8):
        for j in range(2):
            A(f"v_dot2_f32_bf16 v{SUMC+2*j}, v{88+2*s_+j}, v12, v{SUMC+2*j}")
            A(f"v_dot2_f32_bf16 v{SUMC+2*j+1}, v{88+2*s_+j}, v11, v{SUMC+2*j+1}")
    SRD_O = 44; sOUT = 48
    A("v_and_b32 v3, 31, v2")
    A(f"s_lshl_b32 s{sT}, s{sTT}, 5")
    A(f"v_add_u32 v3, s{sT}, v3")
    A("v_mul_u32_u24 v3, 1280, v3")
    A("v_lshrrev_b32 v14, 5, v2")
    A("v_lshl_add_u32 v3, v14, 3, v3")
    A(f"s_mul_i32 s{sT}, s{sCBK}, 320")
    A(f"s_lshl_b32 s{sT2}, s{sG}, 4")
    A(f"s_add_u32 s{sT}, s{sT}, s{sT2}")
    A(f"s_lshl_b32 s{sT2}, s{sHF}, 6")
    A(f"s_add_u32 s{sT2}, s{sT2}, s{sT}")
    A(f"s_mov_b32 s{SRD_O}, s{sOUT}")
    A(f"s_and_b32 s{SRD_O+1}, s{sOUT+1}, 0xffff")
    A(f"s_mov_b32 s{SRD_O+2}, {2048*1280}")
    A(f"s_mov_b32 s{SRD_O+3}, 0x20000")
    A("s_nop 3")
    for src, d in ((SUMA, 68), (SUMB, 70)):
        A(f"v_cvt_pk_bf16_f32 v{d}, v{src}, v{src+1}")
        A(f"v_cvt_pk_bf16_f32 v{d+1}, v{src+2}, v{src+3}")
    A(f"buffer_store_dwordx2 v[68:69], v3, {sr(SRD_O,4)}, s{sT2} offen")
    A(f"buffer_store_dwordx2 v[70:71], v3, {sr(SRD_O,4)}, s{sT2} offen offset:128")
    A(f"s_cmp_eq_u32 s{sHF}, 0")
    A(f"s_cbranch_scc0 {name}_fin")
    A(f"v_cvt_pk_bf16_f32 v72, v{SUMC}, v{SUMC+1}")
    A(f"v_cvt_pk_bf16_f32 v73, v{SUMC+2}, v{SUMC+3}")
    A(f"buffer_store_dwordx2 v[72:73], v3, {sr(SRD_O,4)}, s{sT} offen offset:256")
    A.label(f"{name}_fin")
    if asmlib.PROFILE:
        A("s_waitcnt vmcnt(0)")
        stamp(A, 3)
        stamp_flush(A, 1, SRD, sW, 4)
    A.label(f"{name}_end")
    A("s_endpgm")
    return 256
```

```python
from asmlib import *
import asmlib, math, struct
from layout import *

XB = 32768
STG = 45184
UA, UB = 4128, 6272
SCR = 3*STG
P1_LDS = SCR + 2048
def f2u(f): return struct.unpack("<I", struct.pack("<f", f))[0]

class Seq:
    def __init__(self): self.s = []
    def add(self, tag, n=1): self.s += [tag]*n
    def n_after(self, tag):
        idx = [i for i, t in enumerate(self.s) if t == tag]
        return len(self.s) - 1 - max(idx)

def gen_p1(A, name, fused=False):
    SC1 = '' if asmlib.OPT.get('p1plain') else ' sc1'
    kernel_header(A, name)
    sX, sWQ, sWO, sWG, sWU, sWD, sGW, sWS = 4, 6, 8, 12, 14, 16, 18, 48
    sRB, sCB, sW, sT, sT2, sT3 = 20, 21, 22, 23, 24, 25
    sCA, sTYPE = 26, 27
    SRD_X, SRD_W, SRD_WS = 32, 36, 40
    sBUF, sXO, sWO_, sCNT = 44, 45, 46, 47
    sDP, sDN = 84, 85
    A("s_cmp_ge_u32 s2, 256")
    A(f"s_cbranch_scc1 {name}_end")
    stamp(A, 0)
    A("s_load_dwordx8 s[4:11], s[0:1], 0")
    A("s_load_dwordx8 s[12:19], s[0:1], 32")
    A(f"s_load_dwordx2 {sr(sWS,2)}, s[0:1], {KA_WS}")
    A.c("decode: xcd = id&7, j = id>>3; rb = 4*(xcd&1) + (j&3); cb = 8*(xcd>>1) + (j>>2)")
    A(f"s_and_b32 s{sT}, s2, 1")
    A(f"s_lshl_b32 s{sT}, s{sT}, 2")
    A(f"s_lshr_b32 s{sT2}, s2, 3")
    A(f"s_and_b32 s{sT3}, s{sT2}, 3")
    A(f"s_add_u32 s{sRB}, s{sT}, s{sT3}")
    A(f"s_and_b32 s{sT}, s2, 6")
    A(f"s_lshl_b32 s{sT}, s{sT}, 2")
    A(f"s_lshr_b32 s{sT2}, s{sT2}, 2")
    A(f"s_add_u32 s{sCB}, s{sT}, s{sT2}")
    A(f"s_min_u32 s{sCA}, s{sCB}, 29")
    A(f"s_mul_i32 s{sTYPE}, s{sCA}, 26")
    A(f"s_lshr_b32 s{sTYPE}, s{sTYPE}, 8")
    A("v_lshrrev_b32 v1, 6, v0")
    A("v_and_b32 v2, 63, v0")
    A(f"v_readfirstlane_b32 s{sW}, v1")
    def srd(r, p, nb):
        A(f"s_mov_b32 s{r}, s{p}")
        A(f"s_and_b32 s{r+1}, s{p+1}, 0xffff")
        if isinstance(nb, int): A(f"s_mov_b32 s{r+2}, {nb}")
        A(f"s_mov_b32 s{r+3}, 0x20000")
    def x_voffsets(vXO):
        A("v_lshrrev_b32 v3, 3, v2")
        A("v_lshrrev_b32 v4, 4, v2")
        A("v_and_b32 v5, 7, v2")
        A("v_xor_b32 v5, v5, v4")
        A("v_xor_b32 v6, 4, v5")
        A(f"s_lshl_b32 s{sT}, s{sW}, 6")
        A(f"v_add_u32 v3, s{sT}, v3")
        A("v_mul_u32_u24 v3, 1280, v3")
        A("v_lshl_add_u32 v5, v5, 4, v3")
        A("v_lshl_add_u32 v6, v6, 4, v3")
        for j in range(8):
            A(f"v_add_u32 v{vXO+j}, {j*10240}, v{5 if j % 2 == 0 else 6}")
    A("s_nop 2")
    A(f"s_cmp_ge_u32 s{sW}, 4")
    A(f"s_cbranch_scc1 {name}_loader")

    ACC = 96
    FA = [8, 24]; FB = [40, 56]
    vXA = 72; vWA = 76; vWB = 77
    def acc(tt, mt, n): return ACC + (tt*n + mt)*16
    x_voffsets(80)
    A(f"s_mul_i32 s{sXO}, s{sRB}, {256*1280}")
    A(f"s_lshl_b32 s{sT2}, s{sW}, 13")
    A("s_waitcnt lgkmcnt(0)")
    srd(SRD_X, sX, 2048*1280)
    srd(SRD_WS, sWS, WS_SIZE)
    for st in range(2):
        for j in range(8):
            A(f"s_add_u32 m0, s{sT2}, {st*STG + j*1024}")
            A("s_nop 0")
            A(f"buffer_load_dwordx4 v{80+j}, {sr(SRD_X,4)}, s{sXO} offen lds")
        A(f"s_add_u32 s{sXO}, s{sXO}, 128")
    A.c("LDS read addresses")
    A("v_and_b32 v3, 31, v2")
    A("v_lshrrev_b32 v4, 5, v2")
    A(f"s_lshl_b32 s{sT}, s{sW}, 6")
    A(f"v_add_u32 v5, s{sT}, v3")
    A("v_lshlrev_b32 v5, 7, v5")
    A("v_bfe_u32 v6, v3, 1, 3")
    for sp in range(4):
        A(f"v_or_b32 v7, {2*sp}, v4")
        A("v_xor_b32 v7, v7, v6")
        A(f"v_lshl_add_u32 v{vXA+sp}, v7, 4, v5")
    A("v_bfe_u32 v5, v2, 4, 1")
    A("v_bfe_u32 v6, v2, 2, 2")
    A("v_lshl_add_u32 v6, v4, 3, v6")
    A("v_and_b32 v7, 3, v2")
    A("v_lshlrev_b32 v7, 3, v7")
    A(f"v_add_u32 v7, {XB}, v7")
    A(f"v_mul_u32_u24 v3, {UA}, v5")
    A("v_lshl_add_u32 v3, v6, 6, v3")
    A(f"v_add_u32 v{vWA}, v3, v7")
    A(f"v_mul_u32_u24 v3, {UB}, v5")
    A("v_mul_u32_u24 v6, 96, v6")
    A(f"v_add3_u32 v{vWB}, v3, v6, v7")
    for r in range(ACC, ACC+64): A(f"v_mov_b32 v{r}, 0")

    def reads(ms, st, n, m, vW, rowb):
        L = []
        for kk in range(m):
            sp = ms*m + kk
            b = [f"ds_read_b128 {vr(FB[st]+8*kk+4*tt,4)}, v{vXA+sp} offset:{tt*4096}" for tt in range(2)]
            a = [[f"ds_read_b64_tr_b16 {vr(FA[st]+4*(kk*n+mt)+2*half,2)}, v{vW} offset:{sp*16*rowb+mt*32+half*4*rowb}" for half in range(2)] for mt in range(n)]
            L += [b[0]] + a[0] + [b[1]]
            for mt in range(1, n): L += a[mt]
        return L
    def mfmas(st, n, m, swapped):
        L = []
        for kk in range(m):
            for mt in range(n):
                for tt in range(2):
                    a, b = vr(FA[st]+4*(kk*n+mt),4), vr(FB[st]+8*kk+4*tt,4)
                    if swapped: a, b = b, a
                    d = vr(acc(tt,mt,n),16)
                    L.append(f"v_mfma_f32_32x32x16_bf16 {d}, {a}, {b}, {d}")
        return L
    def interleave(M, R, start=0):
        per = -(-len(R)//max(1, len(M)-start-1)) if len(M)-start > 1 else len(R)
        k = 0
        for i, mm in enumerate(M):
            A(mm)
            if i >= start:
                for l in R[k:k+per]: A(l)
                k += per
        assert k >= len(R)
    def mainloop(tag, n, m, swapped, vW, rowb, firstpass):
        nms = 4//m
        for l in reads(0, 0, n, m, vW, rowb): A(l)
        A(f"s_mov_b32 s{sCNT}, 0")
        A(".p2align 6")
        A.label(f"{name}_loop_{tag}")
        for ms in range(nms):
            cur = ms & 1; nxt = cur ^ 1
            M = mfmas(cur, n, m, swapped)
            A("s_waitcnt lgkmcnt(0)")
            if ms < nms-1:
                interleave(M, reads(ms+1, nxt, n, m, vW, rowb))
            else:
                A(M[0]); A(M[1])
                A(f"s_add_u32 s{sBUF}, s{sBUF}, 1")
                A(f"s_cmp_eq_u32 s{sBUF}, 3")
                A(f"s_cselect_b32 s{sT}, s{sDN}, s{sDP}")
                A(f"s_cselect_b32 s{sBUF}, 0, s{sBUF}")
                if firstpass:
                    A(f"s_cmp_eq_u32 s{sCNT}, 0")
                    A(f"s_cbranch_scc0 {name}_nw_{tag}")
                    A("s_waitcnt vmcnt(0)")
                    A.label(f"{name}_nw_{tag}")
                A("s_barrier")
                for j in range(4): A(f"v_add_u32 v{vXA+j}, s{sT}, v{vXA+j}")
                A(f"v_add_u32 v{vWA}, s{sT}, v{vWA}")
                A(f"v_add_u32 v{vWB}, s{sT}, v{vWB}")
                R = reads(0, nxt, n, m, vW, rowb)
                for mm in M[2:3]: A(mm)
                interleave(M[3:] if len(M) > 3 else [], R) if len(M) > 3 else [A(l) for l in R]
        assert nms % 2 == 0
        A(f"s_add_u32 s{sCNT}, s{sCNT}, 1")
        A(f"s_cmp_lt_u32 s{sCNT}, 10")
        A(f"s_cbranch_scc1 {name}_loop_{tag}")
        A("s_waitcnt lgkmcnt(0)")
        A("s_nop 15")
    A("s_waitcnt vmcnt(8)")
    A("s_barrier")
    stamp(A, 1)
    A(f"s_mov_b32 s{sBUF}, 0")
    A(f"s_mov_b32 s{sDP}, {STG}")
    A(f"s_mov_b32 s{sDN}, {(-2*STG) & 0xffffffff}")
    A(f"s_cmp_eq_u32 s{sTYPE}, 2")
    A(f"s_cbranch_scc1 {name}_vblock")
    mainloop("qk", 2, 2, False, vWA, 64, True)
    if asmlib.OPT.get("stampA"): stamp(A, 2)

    A.c("epilogue Q/K: chunk c4 = column/4 -> head c4/5, part c4%5")
    vT16, vT8, vC4, vHd, vP_, vAd, vTmp = 8, 9, 10, 11, 12, 13, 14
    D0 = 16
    sBASE, sHS, sSC = 61, 62, 60
    A("v_and_b32 v3, 31, v2")
    A(f"v_lshlrev_b32 v{vT16}, 4, v3")
    A(f"v_lshlrev_b32 v{vT8}, 3, v3")
    A(f"v_add_u32 v{vT8}, 1024, v{vT8}")
    A("v_lshrrev_b32 v4, 5, v2")
    A(f"s_cmp_eq_u32 s{sTYPE}, 0")
    A(f"s_cbranch_scc0 {name}_kparams")
    A(f"s_mov_b32 s{sHS}, {HS_Q}")
    A(f"s_lshl_b32 s{sT2}, s{sRB}, 3")
    A(f"s_lshl_b32 s{sT3}, s{sW}, 1")
    A(f"s_add_u32 s{sT2}, s{sT2}, s{sT3}")
    A(f"s_mul_i32 s{sBASE}, s{sT2}, 1280")
    if QF: A(f"s_add_u32 s{sBASE}, s{sBASE}, {QF}")
    A(f"s_mov_b32 s{sSC}, 0x3ea52b5c")
    A(f"s_mov_b32 s{sT}, s{sCA}")
    A(f"s_branch {name}_qk_go")
    A.label(f"{name}_kparams")
    A(f"s_mov_b32 s{sHS}, {HS_KV}")
    A(f"s_lshl_b32 s{sT2}, s{sRB}, 1")
    A(f"s_lshr_b32 s{sT3}, s{sW}, 1")
    A(f"s_add_u32 s{sT2}, s{sT2}, s{sT3}")
    A(f"s_mul_i32 s{sBASE}, s{sT2}, {CH}")
    A(f"s_and_b32 s{sT3}, s{sW}, 1")
    A(f"s_mul_i32 s{sT3}, s{sT3}, 2560")
    A(f"s_add_u32 s{sBASE}, s{sBASE}, s{sT3}")
    A(f"s_add_u32 s{sBASE}, s{sBASE}, {KV}")
    A(f"s_mov_b32 s{sSC}, 1.0")
    A(f"s_sub_u32 s{sT}, s{sCA}, 10")
    A.label(f"{name}_qk_go")
    A(f"s_lshl_b32 s{sT}, s{sT}, 4")
    A(f"v_add_u32 v4, s{sT}, v4")
    A(f"v_mov_b32 v6, s{sSC}")
    A(f"v_mov_b32 v7, s{sSC}")
    n_ = 0
    for mt in range(2):
        for i in range(4):
            co = (0 if i < 2 else 8) + 4*mt + 2*(i & 1)
            A(f"v_add_u32 v{vC4}, {co}, v4")
            A(f"v_mul_u32_u24 v{vHd}, 52429, v{vC4}")
            A(f"v_lshrrev_b32 v{vHd}, 18, v{vHd}")
            A(f"v_mul_u32_u24 v{vP_}, 5, v{vHd}")
            A(f"v_sub_u32 v{vP_}, v{vC4}, v{vP_}")
            A(f"v_cmp_eq_u32 vcc, 4, v{vP_}")
            A(f"v_lshrrev_b32 v{vTmp}, 1, v{vP_}")
            A(f"v_lshl_add_u32 v{vAd}, v{vTmp}, 9, v{vT16}")
            A(f"v_and_b32 v{vTmp}, 1, v{vP_}")
            A(f"v_lshl_add_u32 v{vAd}, v{vTmp}, 3, v{vAd}")
            A(f"v_cndmask_b32 v{vAd}, v{vAd}, v{vT8}, vcc")
            A(f"v_mul_lo_u32 v{vHd}, v{vHd}, s{sHS}")
            A(f"v_add_u32 v{vAd}, v{vAd}, v{vHd}")
            for tt in range(2):
                a = acc(tt, mt, 2) + 4*i
                d = D0 + 2*(n_ % 8); n_ += 1
                A(f"v_pk_mul_f32 {vr(a,2)}, {vr(a,2)}, v[6:7]")
                A(f"v_pk_mul_f32 {vr(a+2,2)}, {vr(a+2,2)}, v[6:7]")
                A(f"v_cvt_pk_bf16_f32 v{d}, v{a}, v{a+1}")
                A(f"v_cvt_pk_bf16_f32 v{d+1}, v{a+2}, v{a+3}")
                A(f"buffer_store_dwordx2 {vr(d,2)}, v{vAd}, {sr(SRD_WS,4)}, s{sBASE} offen offset:{tt*1280}{SC1}")
    A(f"s_branch {name}_phaseb")

    A.label(f"{name}_vblock")
    mainloop("v", 2, 2, True, vWA, 64, True)
    if asmlib.OPT.get("stampA"): stamp(A, 2)
    A.c("epilogue V: lane = weight column; V^T fragments; rows 20..31 (ones / zeros) of the heads whose d=0 column is in this block")
    sBASE, sHS = 61, 62
    vCol, vHead, vD, vAd2 = 8, 9, 10, 11
    D1 = 16
    A(f"s_mov_b32 s{sHS}, {HS_KV}")
    A("v_and_b32 v3, 31, v2")
    A("v_bfe_u32 v5, v2, 4, 1")
    A("v_lshl_add_u32 v3, v5, 4, v3")
    A(f"s_sub_u32 s{sT}, s{sCA}, 20")
    A(f"s_lshl_b32 s{sT}, s{sT}, 6")
    A(f"v_add_u32 v3, s{sT}, v3")
    A("v_lshrrev_b32 v4, 5, v2")
    A("v_lshlrev_b32 v4, 9, v4")
    A(f"s_lshl_b32 s{sT2}, s{sRB}, 1")
    A(f"s_lshr_b32 s{sT3}, s{sW}, 1")
    A(f"s_add_u32 s{sT2}, s{sT2}, s{sT3}")
    A(f"s_mul_i32 s{sBASE}, s{sT2}, {CH}")
    A(f"s_and_b32 s{sT3}, s{sW}, 1")
    A(f"s_lshl_b32 s{sT3}, s{sT3}, 12")
    A(f"s_add_u32 s{sBASE}, s{sBASE}, s{sT3}")
    A(f"s_add_u32 s{sBASE}, s{sBASE}, {KV+5120}")
    for j in range(4): A(f"v_mov_b32 v{48+j}, 0x3f803f80")
    for j in range(4): A(f"v_mov_b32 v{52+j}, 0")
    n_ = 0
    for mt in range(2):
        A(f"v_add_u32 v{vCol}, {16*mt}, v3")
        A(f"v_mul_u32_u24 v{vHead}, 3277, v{vCol}")
        A(f"v_lshrrev_b32 v{vHead}, 16, v{vHead}")
        A(f"v_mul_u32_u24 v{vD}, 20, v{vHead}")
        A(f"v_sub_u32 v{vD}, v{vCol}, v{vD}")
        A(f"v_mul_lo_u32 v{vAd2}, v{vHead}, s{sHS}")
        A(f"v_lshl_add_u32 v{vAd2}, v{vD}, 4, v{vAd2}")
        A(f"v_add_u32 v{vAd2}, v{vAd2}, v4")
        for tt in range(2):
            for f in range(2):
                a = acc(tt, mt, 2) + 8*f
                d = D1 + 4*(n_ % 8); n_ += 1
                for j in range(4):
                    A(f"v_cvt_pk_bf16_f32 v{d+j}, v{a+2*j}, v{a+2*j+1}")
                A(f"buffer_store_dwordx4 {vr(d,4)}, v{vAd2}, {sr(SRD_WS,4)}, s{sBASE} offen offset:{tt*2048+f*1024}{SC1}")
        A(f"v_cmp_gt_u32 vcc, 12, v{vD}")
        A(f"v_cmp_eq_u32 s[50:51], 0, v{vD}")
        A(f"v_add_u32 v{vAd2}, 320, v{vAd2}")
        A("v_mov_b32 v12, 0x7ff00000")
        for j in range(4): A(f"v_cndmask_b32 v{56+j}, v52, v48, s[50:51]")
        A(f"v_cndmask_b32 v{vAd2}, v12, v{vAd2}, vcc")
        for tt in range(2):
            for f in range(2):
                A(f"buffer_store_dwordx4 v[56:59], v{vAd2}, {sr(SRD_WS,4)}, s{sBASE} offen offset:{tt*2048+f*1024}{SC1}")
        A("s_nop 1")

    A.label(f"{name}_phaseb")
    if not asmlib.OPT.get("stampA"): stamp(A, 2)
    for r in range(ACC, ACC+96): A(f"v_mov_b32 v{r}, 0")
    mainloop("f", 3, 1, False, vWB, 96, False)
    A.c("epilogue FFN: h = gelu_tanh(g) * u")
    vC0, vC1, vONE = 8, 10, 12
    vTt, vP, vE, vGU = 14, 16, 18, 20
    vOUT = 24
    c0 = -2.0*math.sqrt(2.0/math.pi)*math.log2(math.e)
    c1 = c0*0.044715
    for j in range(2):
        A(f"v_mov_b32 v{vC0+j}, {hex(f2u(c0))}")
        A(f"v_mov_b32 v{vC1+j}, {hex(f2u(c1))}")
        A(f"v_mov_b32 v{vONE+j}, 1.0")
    A(f"v_lshlrev_b32 v3, 4, v2")
    A(f"s_lshl_b32 s{sT2}, s{sRB}, 3")
    A(f"s_lshl_b32 s{sT3}, s{sW}, 1")
    A(f"s_add_u32 s{sT2}, s{sT2}, s{sT3}")
    A(f"s_mul_i32 s{sT2}, s{sT2}, {96*1024}")
    A(f"s_mul_i32 s{sT3}, s{sCB}, {3*1024}")
    A(f"s_add_u32 s{sT2}, s{sT2}, s{sT3}")
    A(f"s_add_u32 s{sT2}, s{sT2}, {HF}")
    A(f"s_add_u32 s{sT3}, s{sT2}, {96*1024}")
    n_ = 0
    for mt in range(3):
        for tt in range(2):
            a = acc(tt, mt, 3)
            o = vOUT + 4*(n_ & 1); n_ += 1
            for pr in range(4):
                g = a + 2*pr; u = a + 8 + 2*pr
                A(f"v_pk_mul_f32 {vr(vTt,2)}, {vr(g,2)}, {vr(g,2)}")
                A(f"v_pk_mul_f32 {vr(vGU,2)}, {vr(g,2)}, {vr(u,2)}")
                A(f"v_pk_fma_f32 {vr(vP,2)}, {vr(vTt,2)}, {vr(vC1,2)}, {vr(vC0,2)}")
                A(f"v_pk_mul_f32 {vr(vP,2)}, {vr(vP,2)}, {vr(g,2)}")
                A(f"v_exp_f32 v{vE}, v{vP}")
                A(f"v_exp_f32 v{vE+1}, v{vP+1}")
                A("s_nop 0")
                A(f"v_pk_add_f32 {vr(vE,2)}, {vr(vE,2)}, {vr(vONE,2)}")
                A(f"v_rcp_f32 v{vE}, v{vE}")
                A(f"v_rcp_f32 v{vE+1}, v{vE+1}")
                A("s_nop 0")
                A(f"v_pk_mul_f32 {vr(vGU,2)}, {vr(vGU,2)}, {vr(vE,2)}")
                A(f"v_cvt_pk_bf16_f32 v{o+pr}, v{vGU}, v{vGU+1}")
            A(f"buffer_store_dwordx4 {vr(o,4)}, v3, {sr(SRD_WS,4)}, s{sT2 if tt == 0 else sT3} offen offset:{mt*1024}{SC1}")
    A(f"s_branch {name}_fin")

    A.label(f"{name}_loader")
    vXO = 8; vWOA = 16; vWOB = 18
    A(f"s_sub_u32 s{sW}, s{sW}, 4")
    A(f"s_mul_i32 s{sXO}, s{sRB}, {256*1280}")
    sXB = 59
    A(f"s_mov_b32 s{sXB}, s{sXO}")
    A(f"s_add_u32 s{sXO}, s{sXO}, 256")
    A("v_lshrrev_b32 v3, 2, v2")
    A("v_and_b32 v4, 3, v2")
    A(f"s_and_b32 s{sT}, s{sW}, 1")
    A(f"s_lshl_b32 s{sT}, s{sT}, 5")
    A(f"v_add_u32 v3, s{sT}, v3")
    A("v_mul_u32_u24 v5, 3840, v3")
    A(f"v_lshl_add_u32 v{vWOA}, v4, 4, v5")
    A(f"v_add_u32 v{vWOA+1}, {16*3840}, v{vWOA}")
    sLX, sLWA, sLWB = 61, 62, 63
    A(f"s_lshl_b32 s{sLX}, s{sW}, 13")
    A(f"s_lshr_b32 s{sT}, s{sW}, 1")
    A(f"s_mul_i32 s{sLWA}, s{sT}, {UA}")
    A(f"s_mul_i32 s{sLWB}, s{sT}, {UB}")
    A(f"s_and_b32 s{sT2}, s{sW}, 1")
    A(f"s_lshl_b32 s{sT3}, s{sT2}, 11")
    A(f"s_add_u32 s{sLWA}, s{sLWA}, s{sT3}")
    A(f"s_add_u32 s{sLWA}, s{sLWA}, {XB}")
    A(f"s_mul_i32 s{sT3}, s{sT2}, 3072")
    A(f"s_add_u32 s{sLWB}, s{sLWB}, s{sT3}")
    A(f"s_add_u32 s{sLWB}, s{sLWB}, {XB}")
    A(f"s_lshl_b32 s{sWO_}, s{sCA}, 7")
    A(f"s_lshl_b32 s{sT}, s{sT}, 6")
    A(f"s_add_u32 s{sWO_}, s{sWO_}, s{sT}")
    A("s_waitcnt lgkmcnt(0)")
    srd(SRD_W, sWQ, 640*3840)
    A(f"s_mov_b32 s{sBUF}, 0")
    q = Seq()
    def issue_w(ph, st):
        if ph == 0:
            A(f"s_add_u32 s{sT}, s{sBUF}, s{sLWA}")
            for i in range(2):
                A(f"s_add_u32 m0, s{sT}, {i*1024}")
                A("s_nop 0")
                A(f"buffer_load_dwordx4 v{vWOA+i}, {sr(SRD_W,4)}, s{sWO_} offen lds")
            A(f"s_add_u32 s{sWO_}, s{sWO_}, {64*3840}")
            q.add(("st", st), 2)
        else:
            A(f"s_add_u32 s{sT}, s{sBUF}, s{sLWB}")
            for i in range(3):
                A(f"s_add_u32 m0, s{sT}, {i*1024}")
                A("s_nop 0")
                A(f"buffer_load_dwordx4 v{vWOB+i}, {sr(SRD_W,4)}, s{sWO_} offen lds")
            A(f"s_add_u32 s{sWO_}, s{sWO_}, {64*3072}")
            q.add(("st", st), 3)
    def next_buf():
        A(f"s_add_u32 s{sBUF}, s{sBUF}, {STG}")
        A(f"s_cmp_eq_u32 s{sBUF}, {3*STG}")
        A(f"s_cselect_b32 s{sBUF}, 0, s{sBUF}")
    def issue_stage(st):
        ph = st // 10
        if st == 10:
            A.c("switch to phase B: weights w_gate / w_up, column offset 96*cb bytes, x from column 0 again")
            A(f"s_cmp_ge_u32 s{sW}, 2")
            A(f"s_cselect_b32 s{SRD_W}, s{sWU}, s{sWG}")
            A(f"s_cselect_b32 s{SRD_W+1}, s{sWU+1}, s{sWG+1}")
            A(f"s_and_b32 s{SRD_W+1}, s{SRD_W+1}, 0xffff")
            A(f"s_mov_b32 s{SRD_W+2}, {640*3072}")
            A(f"s_mul_i32 s{sWO_}, s{sCB}, 96")
            A(f"s_mov_b32 s{sXO}, s{sXB}")
        issue_w(ph, st)
        A(f"s_add_u32 s{sT}, s{sBUF}, s{sLX}")
        for j in range(8):
            A(f"s_add_u32 m0, s{sT}, {j*1024}")
            A("s_nop 0")
            A(f"buffer_load_dwordx4 v{vXO+j}, {sr(SRD_X,4)}, s{sXO} offen lds")
        A(f"s_add_u32 s{sXO}, s{sXO}, 128")
        q.add(("st", st), 8)
        next_buf()
    issue_w(0, 0); next_buf()
    issue_w(0, 1); next_buf()
    srd(SRD_X, sX, 2048*1280)
    srd(SRD_WS, sWS, WS_SIZE)
    x_voffsets(vXO)
    A(f"s_and_b32 s{sT}, s{sW}, 1")
    A(f"s_mul_i32 s{sT}, s{sT}, 192")
    for i in range(3):
        A(f"v_add_u32 v3, s{sT}, v2")
        A(f"v_add_u32 v3, {64*i}, v3")
        A("v_mul_u32_u24 v4, 10923, v3")
        A("v_lshrrev_b32 v4, 16, v4")
        A("v_mul_u32_u24 v5, 6, v4")
        A("v_sub_u32 v5, v3, v5")
        A("v_mul_u32_u24 v4, 3072, v4")
        A(f"v_lshl_add_u32 v{vWOB+i}, v5, 4, v4")
    import k1side
    side = k1side.Side(A, name, locals())
    for S in range(20):
        A(f"s_waitcnt vmcnt({min(63, q.n_after(('st', S)))})")
        A("s_barrier")
        if S + 2 < 20: issue_stage(S+2)
        if S == 0: side.prefetch_inputs(q)
        if S == 17: side.side_loads(q)
    side.const_stores(q)
    A("s_barrier")
    A(f"s_waitcnt vmcnt({q.n_after('side')})")
    side.side_process(q)
    A.label(f"{name}_fin")
    if asmlib.PROFILE:
        A("s_waitcnt vmcnt(0)")
        stamp(A, 3)
        A("v_readfirstlane_b32 s83, v0")
        A("s_nop 3")
        A("s_lshr_b32 s83, s83, 6")
        stamp_flush(A, 0, SRD_WS, 83, 4)
    A.label(f"{name}_end")
    A("s_endpgm")
    return 256
```

```python
import sys
from asmlib import *
from layout import *
import k1, k23, k2v2, p1two
HEADER = open('gated_mix__mha_block__glu_gated_geglu__prompt.s.ref').read().split('; Override launch geometry')[0]
def build_fused():
    A = Asm()
    name = "gated_mix__mha_block__glu_gated_geglu__prompt_kernel"
    hdr = HEADER
    hdr += f"; @launch grid=(256,1,1) block=(512,1,1) lds={max(k1.K1_LDS, k2v2.K2_LDS)}\n"
    A('.amdgcn_target "amdgcn-amd-amdhsa--gfx950"')
    kernel_header_done = False
    k1.gen_k1(A, name, fused=True)
    k2v2.gen_k2(A, name + "_p2", fused=True)
    kernel_desc(A, name, 256)
    txt = A.text().replace(name + "_p2_end:", name + "_end:")
    return hdr + txt

def build():
    import asmlib
    if asmlib.OPT.get("fused"): return build_fused()
    A = Asm()
    names = ("gm_k1_kernel", "gm_k2_kernel", "gm_k3_kernel")
    hdr = HEADER
    hdr += f"; @launch kernel={names[0]} grid=(256,1,1) block=(512,1,1) lds={k1.K1_LDS}\n"
    hdr += f"; @launch kernel={names[1]} grid=(256,1,1) block=(512,1,1) lds={k2v2.K2_LDS}\n"
    A('.amdgcn_target "amdgcn-amd-amdhsa--gfx950"')
    import asmlib
    if asmlib.OPT.get("p1two"):
        v1 = p1two.gen_p1(A, names[0])
        hdr = hdr.replace(f"lds={k1.K1_LDS}", f"lds={p1two.P1_LDS}")
    else:
        v1 = k1.gen_k1(A, names[0])
    v2 = k2v2.gen_k2(A, names[1])
    kernel_desc(A, names[0], v1)
    kernel_desc(A, names[1], v2)
    return hdr + A.text()
if __name__ == "__main__":
    import asmlib
    if "--prof" in sys.argv:
        sys.argv.remove("--prof"); asmlib.PROFILE = True
    for a in list(sys.argv):
        if a.startswith("--opt="):
            sys.argv.remove(a)
            for kv in a[6:].split(","):
                k, _, v = kv.partition("=")
                asmlib.OPT[k] = int(v) if v else 1
    out = sys.argv[1] if len(sys.argv) > 1 else "gated_mix__mha_block__glu_gated_geglu__prompt.s"
    open(out, "w").write(build())
    print("wrote", out)
```

```python
from asmlib import *
import asmlib
from layout import *

STAGE = 53376
WOFF = 32768
UOFF = 10368
K1_LDS = 3*STAGE + 2048

def gen_k1(A, name, fused=False):
    SC1 = ' sc1' if ((fused and not asmlib.OPT.get('wbl2')) or not asmlib.OPT.get('k1plain')) else (' nt' if asmlib.OPT.get('k1nt') else '')
    import math, struct
    c0 = -2.0*math.sqrt(2.0/math.pi)*math.log2(math.e)
    c1 = c0*0.044715
    def f2u(f): return struct.unpack("<I", struct.pack("<f", f))[0]
    kernel_header(A, name)
    sX, sWQ, sWO, sWG, sWU, sWD, sGW, sWS = 4, 6, 8, 12, 14, 16, 18, 48
    sRB, sCB, sW, sT = 20, 21, 22, 23
    sT2, sT3 = 24, 25
    sRS = 26
    sCG, sCU = 27, 28
    sTYPE = 29
    sNU = 30
    sU0 = 31
    SRD_X, SRD_W, SRD_WS = 32, 36, 40
    sBUF = 44; sXO = 45; sWO_ = 46; sCNT = 47
    sHM = 48
    sH = 52
    sSC = 60
    sDP, sDN = 84, 85
    A("s_cmp_ge_u32 s2, 256")
    A(f"s_cbranch_scc1 {name}_end")
    stamp(A, 0)
    A("s_load_dwordx8 s[4:11], s[0:1], 0")
    A("s_load_dwordx8 s[12:19], s[0:1], 32")
    A(f"s_load_dwordx2 {sr(sWS,2)}, s[0:1], {KA_WS}")
    A.c("decode: xcd = id&7, j = id>>3; rb = 4*(xcd&1) + (j&3); cb = 8*(xcd>>1) + (j>>2)")
    A(f"s_and_b32 s{sT}, s2, 1")
    A(f"s_lshl_b32 s{sT}, s{sT}, 2")
    A(f"s_lshr_b32 s{sT2}, s2, 3")
    A(f"s_and_b32 s{sT3}, s{sT2}, 3")
    A(f"s_add_u32 s{sRB}, s{sT}, s{sT3}")
    F6 = asmlib.OPT.get("ffn6")
    if F6:
        A.c("XCD pair p: c = j>>2: 0,1,2 -> Q_p, K_p, V_p; 3..6 -> FFN column block 4p+c-3 (96+96 columns); 7 -> side jobs only")
        A(f"s_bfe_u32 s{sT}, s2, 0x20001")
        A(f"s_lshr_b32 s{sT2}, s{sT2}, 2")
        A(f"s_lshl_b32 s{sT3}, s{sT2}, 2")
        A(f"s_add_u32 s{sCB}, s{sT3}, s{sT}")
        A(f"s_mov_b32 s{sTYPE}, s{sT2}")
        A(f"s_cmp_ge_u32 s{sT2}, 3")
        A(f"s_cbranch_scc0 {name}_dec_done")
        A(f"s_lshl_b32 s{sT3}, s{sT}, 2")
        A(f"s_add_u32 s{sCB}, s{sT3}, s{sT2}")
        A(f"s_sub_u32 s{sCB}, s{sCB}, 3")
        A(f"s_cmp_eq_u32 s{sT2}, 7")
        A(f"s_cselect_b32 s{sTYPE}, 4, 3")
        A.label(f"{name}_dec_done")
    else:
        if not asmlib.OPT.get("map1"):
            A.c("XCD pair p produces Q_p, K_p, V_p (the heads its attention workgroups consume) and five FFN column blocks")
            A(f"s_bfe_u32 s{sT}, s2, 0x20001")
            A(f"s_lshr_b32 s{sT2}, s{sT2}, 2")
            A(f"s_lshl_b32 s{sT3}, s{sT2}, 2")
            A(f"s_add_u32 s{sCB}, s{sT3}, s{sT}")
            A(f"s_mul_i32 s{sT3}, s{sT}, 5")
            A(f"s_add_u32 s{sT3}, s{sT3}, s{sT2}")
            A(f"s_add_u32 s{sT3}, s{sT3}, 9")
            A(f"s_cmp_ge_u32 s{sT2}, 3")
            A(f"s_cselect_b32 s{sCB}, s{sT3}, s{sCB}")
        else:
            A(f"s_and_b32 s{sT}, s2, 6")
            if not asmlib.OPT.get("oldmap"):
                A.c("column-block groups in reverse XCD order: the blocks with the longer epilogue (FFN) go to the workgroups that start first")
                A(f"s_sub_u32 s{sT}, 6, s{sT}")
            A(f"s_lshl_b32 s{sT}, s{sT}, 2")
            A(f"s_lshr_b32 s{sT2}, s{sT2}, 2")
            A(f"s_add_u32 s{sCB}, s{sT}, s{sT2}")
    A("v_lshrrev_b32 v1, 6, v0")
    A("v_and_b32 v2, 63, v0")
    A(f"v_readfirstlane_b32 s{sW}, v1")
    if F6:
        A(f"s_movk_i32 s{sRS}, 3840")
        A(f"s_mul_i32 s{sCG}, s{sCB}, 160")
        A(f"s_add_u32 s{sCU}, s{sCG}, 80")
    else:
        A.c("block params")
        A(f"s_cmp_ge_u32 s{sCB}, 12")
        A(f"s_cbranch_scc1 {name}_ffn_params")
        A(f"s_movk_i32 s{sRS}, 3840")
        A(f"s_mul_i32 s{sCG}, s{sCB}, 160")
        A(f"s_add_u32 s{sCU}, s{sCG}, 80")
        A(f"s_lshr_b32 s{sTYPE}, s{sCB}, 2")
        A(f"s_mov_b32 s{sNU}, 5")
        A(f"s_mov_b32 s{sU0}, 0")
        A(f"s_branch {name}_params_done")
        A.label(f"{name}_ffn_params")
        A(f"s_movk_i32 s{sRS}, 3072")
        A(f"s_sub_u32 s{sT}, s{sCB}, 12")
        A(f"s_mul_i32 s{sU0}, s{sT}, 5")
        A(f"s_mov_b32 s{sNU}, 5")
        A(f"s_cmp_lt_u32 s{sT}, 16")
        A(f"s_cbranch_scc1 {name}_ffn_p2")
        A(f"s_lshl_b32 s{sU0}, s{sT}, 2")
        A(f"s_add_u32 s{sU0}, s{sU0}, 16")
        A(f"s_mov_b32 s{sNU}, 4")
        A.label(f"{name}_ffn_p2")
        A(f"s_lshl_b32 s{sCG}, s{sU0}, 4")
        A(f"s_mov_b32 s{sCU}, s{sCG}")
        A(f"s_mov_b32 s{sTYPE}, 3")
        A.label(f"{name}_params_done")
    SP = asmlib.OPT.get("startprof")
    def srd_ws():
        A(f"s_mov_b32 s{SRD_WS}, s{sWS}")
        A(f"s_and_b32 s{SRD_WS+1}, s{sWS+1}, 0xffff")
        A(f"s_mov_b32 s{SRD_WS+2}, {WS_SIZE}")
        A(f"s_mov_b32 s{SRD_WS+3}, 0x20000")
    def srd_x():
        A(f"s_mov_b32 s{SRD_X}, s{sX}")
        A(f"s_and_b32 s{SRD_X+1}, s{sX+1}, 0xffff")
        A(f"s_mov_b32 s{SRD_X+2}, {2048*1280}")
        A(f"s_mov_b32 s{SRD_X+3}, 0x20000")
    def x_voffsets(vXO):
        A("v_lshrrev_b32 v3, 3, v2")
        A("v_lshrrev_b32 v4, 4, v2")
        A("v_and_b32 v5, 7, v2")
        A("v_xor_b32 v5, v5, v4")
        A("v_xor_b32 v6, 4, v5")
        A(f"s_lshl_b32 s{sT}, s{sW}, 6")
        A(f"v_add_u32 v3, s{sT}, v3")
        A("v_mul_u32_u24 v3, 1280, v3")
        A("v_lshl_add_u32 v5, v5, 4, v3")
        A("v_lshl_add_u32 v6, v6, 4, v3")
        for j in range(8):
            A(f"v_add_u32 v{vXO+j}, {j*10240}, v{5 if j % 2 == 0 else 6}")
    A(f"s_cmp_ge_u32 s{sW}, 4")
    A(f"s_cbranch_scc1 {name}_loader")

    if F6:
        A(f"s_cmp_eq_u32 s{sTYPE}, 4")
        A(f"s_cbranch_scc1 {name}_idlec")
        A(f"s_cmp_eq_u32 s{sTYPE}, 3")
        A(f"s_cbranch_scc1 {name}_f6c")
    ACC = 96
    def acc(tt, mt): return ACC + (tt*5 + mt)*16
    FA = [8, 36]
    FB = [28, 56]
    vXA = 64
    vWA = 68
    vWA2 = 69
    A.c("compute waves fetch the x rows of stages 0 and 1 themselves (the loaders fetch the weights)")
    x_voffsets(70)
    A(f"s_mul_i32 s{sXO}, s{sRB}, {256*1280}")
    A(f"s_lshl_b32 s{sT2}, s{sW}, 13")
    A("s_waitcnt lgkmcnt(0)")
    srd_x()
    srd_ws()
    for st in range(2):
        for j in range(8):
            A(f"s_add_u32 m0, s{sT2}, {st*STAGE + j*1024}")
            A("s_nop 0")
            A(f"buffer_load_dwordx4 v{70+j}, {sr(SRD_X,4)}, s{sXO} offen lds")
        A(f"s_add_u32 s{sXO}, s{sXO}, 128")
    if asmlib.OPT.get("wtouch"):
        A.c("touch the pages this wave will store to at the end (translation warm-up)")
        A(f"s_lshl_b32 s{sT2}, s{sRB}, 3")
        A(f"s_lshl_b32 s{sT3}, s{sW}, 1")
        A(f"s_add_u32 s{sT2}, s{sT2}, s{sT3}")
        A(f"s_cmp_eq_u32 s{sTYPE}, 3")
        A(f"s_cbranch_scc1 {name}_wt_f")
        A(f"s_and_b32 s{sT}, s{sCB}, 3")
        A(f"s_lshl_b32 s{sT}, s{sT}, 3")
        A("v_and_b32 v3, 7, v2")
        A(f"v_add_u32 v3, s{sT}, v3")
        A(f"s_cmp_eq_u32 s{sTYPE}, 0")
        A(f"s_mov_b32 s{sT}, {HS_KV}")
        A(f"s_mov_b32 s{sT3}, {HS_Q}")
        A(f"s_cselect_b32 s{sT}, s{sT3}, s{sT}")
        A(f"v_mul_lo_u32 v3, v3, s{sT}")
        A(f"s_mul_i32 s{sT3}, s{sT2}, 1280")
        A(f"s_lshr_b32 s{sT2}, s{sT2}, 2")
        A(f"s_mul_i32 s{sT2}, s{sT2}, {CH}")
        A(f"s_add_u32 s{sT2}, s{sT2}, {KV}")
        A(f"s_cmp_eq_u32 s{sTYPE}, 0")
        A(f"s_cselect_b32 s{sT2}, s{sT3}, s{sT2}")
        A(f"s_branch {name}_wt_go")
        A.label(f"{name}_wt_f")
        A("v_and_b32 v3, 1, v2")
        A(f"v_mul_u32_u24 v3, {96*1024}, v3")
        A(f"s_mul_i32 s{sT2}, s{sT2}, {96*1024}")
        A(f"s_lshl_b32 s{sT3}, s{sU0}, 10")
        A(f"s_add_u32 s{sT2}, s{sT2}, s{sT3}")
        A(f"s_add_u32 s{sT2}, s{sT2}, {HF}")
        A.label(f"{name}_wt_go")
        A("s_mov_b64 exec, 0xff")
        A(f"buffer_load_dword v80, v3, {sr(SRD_WS,4)}, s{sT2} offen")
        A("s_mov_b64 exec, -1")
    if asmlib.OPT.get("k1prio"): A(f"s_setprio {asmlib.OPT.get('k1prio')}")
    A.c("compute wave: LDS read addresses")
    A("v_and_b32 v3, 31, v2")
    A("v_lshrrev_b32 v4, 5, v2")
    A(f"s_lshl_b32 s{sT}, s{sW}, 6")
    A(f"v_add_u32 v5, s{sT}, v3")
    A("v_lshlrev_b32 v5, 7, v5")
    A("v_bfe_u32 v6, v3, 1, 3")
    for sp in range(4):
        A(f"v_or_b32 v7, {2*sp}, v4")
        A("v_xor_b32 v7, v7, v6")
        A(f"v_lshl_add_u32 v{vXA+sp}, v7, 4, v5")
    RW = 320 if F6 else 160
    UO = 160 if F6 else UOFF
    A("v_bfe_u32 v5, v2, 4, 1")
    A(f"v_mul_u32_u24 v5, {UO}, v5")
    A("v_bfe_u32 v6, v2, 2, 2")
    A("v_lshl_add_u32 v6, v4, 3, v6")
    A(f"v_mul_u32_u24 v6, {RW}, v6")
    A("v_and_b32 v7, 3, v2")
    A("v_lshlrev_b32 v7, 3, v7")
    A("v_add3_u32 v5, v5, v6, v7")
    A(f"v_add_u32 v{vWA}, {WOFF}, v5")
    A.c("Q/K/V blocks: unit 4 gathers d=16..19 of four heads: column byte offset 40c+32 instead of 8c")
    A("v_lshlrev_b32 v7, 2, v7")
    A(f"v_add3_u32 v{vWA2}, v{vWA}, v7, 32")
    for r in range(ACC, ACC+160):
        A(f"v_mov_b32 v{r}, 0")

    def fill_of(R, sIdx=64):
        A.c("fill a share of the O' hand-off area with the not-ready pattern")
        for j in range(4): A(f"v_mov_b32 v{R+j}, -1")
        A("v_lshlrev_b32 v3, 4, v2")
        A(f"s_mul_i32 s{sT}, s{sIdx}, 2560")
        A(f"s_add_u32 s{sT}, s{sT}, {OF}")
        A(f"buffer_store_dwordx4 {vr(R,4)}, v3, {sr(SRD_WS,4)}, s{sT} offen{SC1}")
        A(f"buffer_store_dwordx4 {vr(R,4)}, v3, {sr(SRD_WS,4)}, s{sT} offen offset:1024{SC1}")
        A("s_mov_b32 exec_hi, 0")
        A(f"buffer_store_dwordx4 {vr(R,4)}, v3, {sr(SRD_WS,4)}, s{sT} offen offset:2048{SC1}")
        A("s_mov_b64 exec, -1")
    def vpad(tag, R):
        A.c("rows 20..31 of the V^T fragments: row 20 = ones (row sums), rows 21..31 = zeros")
        A("v_and_b32 v3, 15, v2")
        A("v_add_u32 v3, 16, v3")
        A("v_lshrrev_b32 v4, 4, v2")
        A("v_lshlrev_b32 v4, 9, v4")
        A("v_lshl_add_u32 v4, v3, 4, v4")
        A("v_cmp_gt_u32 vcc, 20, v3")
        A("v_mov_b32 v5, 0x7ff00000")
        A(f"v_mov_b32 v{R+4}, 0x3f803f80")
        A("v_cndmask_b32 v4, v4, v5, vcc")
        A("v_cmp_eq_u32 vcc, 20, v3")
        A("s_nop 1")
        A(f"v_cndmask_b32 v{R+4}, 0, v{R+4}, vcc")
        A("s_nop 0")
        for j in range(1, 4): A(f"v_mov_b32 v{R+4+j}, v{R+4}")
        A(f"s_sub_u32 s{sT}, s{sCB}, 8")
        A(f"s_lshl_b32 s{sT}, s{sT}, 3")
        A(f"s_lshl_b32 s{sT2}, s{sW}, 1")
        A(f"s_add_u32 s{sT}, s{sT}, s{sT2}")
        A(f"s_mul_i32 s{sT}, s{sT}, {HS_KV}")
        A(f"s_lshl_b32 s{sT2}, s{sRB}, 1")
        A(f"s_mul_i32 s{sT2}, s{sT2}, {CH}")
        A(f"s_add_u32 s{sT}, s{sT}, s{sT2}")
        A(f"s_add_u32 s{sT}, s{sT}, {KV+5120}")
        for hh in range(2):
            for ck in range(2):
                for tl in range(4):
                    A(f"s_add_u32 s{sT2}, s{sT}, {hh*HS_KV + ck*CH + tl*2048}")
                    A(f"buffer_store_dwordx4 {vr(R+4,4)}, v4, {sr(SRD_WS,4)}, s{sT2} offen{SC1}")
    def const_stores(tag, R=70):
        A(f"s_lshl_b32 s{sT3}, s2, 2")
        A(f"s_add_u32 s{sT3}, s{sT3}, s{sW}")
        fill_of(R, sT3)
        A(f"s_cmp_eq_u32 s{sTYPE}, 2")
        A(f"s_cbranch_scc0 {name}_novpad_{tag}")
        vpad(tag, R)
        A.label(f"{name}_novpad_{tag}")

    def reads(sp, st, qkv):
        L = []
        for tt in range(2):
            L.append(f"ds_read_b128 {vr(FB[st]+4*tt,4)}, v{vXA+sp} offset:{tt*4096}")
        for mt in range(5):
            for half in range(2):
                if not qkv:
                    L.append(f"ds_read_b64_tr_b16 {vr(FA[st]+4*mt+2*half,2)}, v{vWA} offset:{sp*16*RW+mt*32+half*4*RW}")
                elif mt < 4:
                    L.append(f"ds_read_b64_tr_b16 {vr(FA[st]+4*mt+2*half,2)}, v{vWA} offset:{sp*16*RW+mt*40+half*4*RW}")
                else:
                    L.append(f"ds_read_b64_tr_b16 {vr(FA[st]+4*mt+2*half,2)}, v{vWA2} offset:{sp*16*RW+half*4*RW}")
        return [L[0], L[2], L[3], L[1]] + L[4:]
    def mfmas(st, swapped):
        L = []
        for mt in range(5):
            for tt in range(2):
                a, b = vr(FA[st]+4*mt,4), vr(FB[st]+4*tt,4)
                if swapped: a, b = b, a
                L.append(f"v_mfma_f32_32x32x16_bf16 {vr(acc(tt,mt),16)}, {a}, {b}, {vr(acc(tt,mt),16)}")
        return L
    def mainloop(swapped, tag, qkv):
        A("s_waitcnt vmcnt(8)")
        A("s_barrier")
        stamp(A, 1)
        for l in reads(0, 0, qkv): A(l)
        A(f"s_mov_b32 s{sCNT}, 0")
        A(f"s_mov_b32 s{sBUF}, 0")
        A(f"s_mov_b32 s{sDP}, {STAGE}")
        A(f"s_mov_b32 s{sDN}, {(-2*STAGE) & 0xffffffff}")
        A(".p2align 6")
        A.label(f"{name}_loop_{tag}")
        for sp in range(4):
            cur = sp & 1; nxt = cur ^ 1
            M = mfmas(cur, swapped)
            A("s_waitcnt lgkmcnt(0)")
            if sp < 3:
                R = reads(sp+1, nxt, qkv)
                k = 0
                for i, m in enumerate(M):
                    A(m)
                    for l in R[k:k+2]: A(l)
                    k += 2
            else:
                A(M[0]); A(M[1])
                A(f"s_add_u32 s{sBUF}, s{sBUF}, 1")
                A(f"s_cmp_eq_u32 s{sBUF}, 3")
                A(f"s_cselect_b32 s{sT}, s{sDN}, s{sDP}")
                A(f"s_cselect_b32 s{sBUF}, 0, s{sBUF}")
                A(f"s_cmp_eq_u32 s{sCNT}, 0")
                A(f"s_cbranch_scc0 {name}_nw_{tag}")
                A("s_waitcnt vmcnt(0)")
                A.label(f"{name}_nw_{tag}")
                A("s_barrier")
                for j in range(4): A(f"v_add_u32 v{vXA+j}, s{sT}, v{vXA+j}")
                A(f"v_add_u32 v{vWA}, s{sT}, v{vWA}")
                if qkv: A(f"v_add_u32 v{vWA2}, s{sT}, v{vWA2}")
                R = reads(0, nxt, qkv)
                k = 0
                for m in M[2:]:
                    A(m)
                    for l in R[k:k+2]: A(l)
                    k += 2
        if asmlib.OPT.get("earlyconst"):
            A(f"s_cmp_eq_u32 s{sCNT}, 2")
            A(f"s_cbranch_scc0 {name}_nc_{tag}")
            const_stores(tag)
            A.label(f"{name}_nc_{tag}")
        A(f"s_add_u32 s{sCNT}, s{sCNT}, 1")
        A(f"s_cmp_lt_u32 s{sCNT}, 10")
        A(f"s_cbranch_scc1 {name}_loop_{tag}")
        A("s_waitcnt lgkmcnt(0)")
        A("s_nop 15")
        stamp(A, 2)
    A(f"s_cmp_eq_u32 s{sTYPE}, 2")
    A(f"s_cbranch_scc1 {name}_vblock")
    if not F6:
        A(f"s_cmp_eq_u32 s{sTYPE}, 3")
        A(f"s_cbranch_scc1 {name}_ffnblock")
    mainloop(False, "qk", True)

    A.c("epilogue Q/K: unit mt<4 = d 0..15 of head mt (rows 0..15) and head 4+mt (rows 16..31); unit 4 = d 16..19 of the 8 heads")
    vL16q, vTail = 8, 9
    D0 = 16
    sBASE, sHS = 61, 62
    A(f"v_lshlrev_b32 v{vL16q}, 4, v2")
    A(f"s_and_b32 s{sT}, s{sCB}, 3")
    A(f"s_cmp_eq_u32 s{sTYPE}, 0")
    A(f"s_cbranch_scc0 {name}_kparams")
    A(f"s_mov_b32 s{sHS}, {HS_Q}")
    A(f"s_mul_i32 s{sBASE}, s{sT}, {8*HS_Q}")
    A(f"s_lshl_b32 s{sT2}, s{sRB}, 3")
    A(f"s_lshl_b32 s{sT3}, s{sW}, 1")
    A(f"s_add_u32 s{sT2}, s{sT2}, s{sT3}")
    A(f"s_mul_i32 s{sT2}, s{sT2}, 1280")
    A(f"s_add_u32 s{sBASE}, s{sBASE}, s{sT2}")
    if QF: A(f"s_add_u32 s{sBASE}, s{sBASE}, {QF}")
    A(f"s_mov_b32 s{sSC}, 0x3ea52b5c")
    A(f"s_branch {name}_qk_go")
    A.label(f"{name}_kparams")
    A(f"s_mov_b32 s{sHS}, {HS_KV}")
    A(f"s_mul_i32 s{sBASE}, s{sT}, {8*HS_KV}")
    A(f"s_lshl_b32 s{sT2}, s{sRB}, 1")
    A(f"s_lshr_b32 s{sT3}, s{sW}, 1")
    A(f"s_add_u32 s{sT2}, s{sT2}, s{sT3}")
    A(f"s_mul_i32 s{sT2}, s{sT2}, {CH}")
    A(f"s_add_u32 s{sBASE}, s{sBASE}, s{sT2}")
    A(f"s_and_b32 s{sT3}, s{sW}, 1")
    A(f"s_mul_i32 s{sT3}, s{sT3}, 2560")
    A(f"s_add_u32 s{sBASE}, s{sBASE}, s{sT3}")
    A(f"s_add_u32 s{sBASE}, s{sBASE}, {KV}")
    A(f"s_mov_b32 s{sSC}, 1.0")
    A.label(f"{name}_qk_go")
    A(f"s_mov_b32 s{sH}, s{sBASE}")
    for i in range(1, 8):
        A(f"s_add_u32 s{sH+i}, s{sH+i-1}, s{sHS}")
    A("v_and_b32 v3, 31, v2")
    A("v_lshrrev_b32 v4, 5, v2")
    A(f"v_mul_lo_u32 v4, v4, s{sHS}")
    A("v_lshl_add_u32 v4, v3, 3, v4")
    A(f"v_add_u32 v{vTail}, 1024, v4")
    A(f"v_mov_b32 v10, s{sSC}")
    A(f"v_mov_b32 v11, s{sSC}")
    n = 0
    for mt in range(4):
        for tt in range(2):
            for part in range(2):
                a = acc(tt, mt) + 8*part
                d = D0 + 4*(n % 8); n += 1
                for j in range(4):
                    A(f"v_pk_mul_f32 {vr(a+2*j,2)}, {vr(a+2*j,2)}, v[10:11]")
                for j in range(4):
                    A(f"v_cvt_pk_bf16_f32 v{d+j}, v{a+2*j}, v{a+2*j+1}")
                A("s_nop 1")
                A(f"v_permlane32_swap_b32 v{d}, v{d+2}")
                A(f"v_permlane32_swap_b32 v{d+1}, v{d+3}")
                A(f"buffer_store_dwordx4 {vr(d,4)}, v{vL16q}, {sr(SRD_WS,4)}, s{sH+4*part+mt} offen offset:{tt*1280}{SC1}")
    for tt in range(2):
        for i in range(4):
            a = acc(tt, 4) + 4*i
            d = D0 + 4*(n % 8); n += 1
            for j in range(2):
                A(f"v_pk_mul_f32 {vr(a+2*j,2)}, {vr(a+2*j,2)}, v[10:11]")
            A(f"v_cvt_pk_bf16_f32 v{d}, v{a}, v{a+1}")
            A(f"v_cvt_pk_bf16_f32 v{d+1}, v{a+2}, v{a+3}")
            A(f"buffer_store_dwordx2 {vr(d,2)}, v{vTail}, {sr(SRD_WS,4)}, s{sH+2*i} offen offset:{tt*1280}{SC1}")
    A(f"s_branch {name}_fin")

    if not F6:
        A.label(f"{name}_ffnblock")
        mainloop(False, "f", False)
        A.c("epilogue FFN: h = gelu_tanh(g) * u")
        vC0, vC1, vONE = 8, 10, 12
        vTt, vP, vE, vGU = 14, 16, 18, 20
        vOUT = 24
        for j in range(2):
            A(f"v_mov_b32 v{vC0+j}, {hex(f2u(c0))}")
            A(f"v_mov_b32 v{vC1+j}, {hex(f2u(c1))}")
            A(f"v_mov_b32 v{vONE+j}, 1.0")
        A(f"v_lshlrev_b32 v3, 4, v2")
        A(f"s_lshl_b32 s{sT2}, s{sRB}, 3")
        A(f"s_lshl_b32 s{sT3}, s{sW}, 1")
        A(f"s_add_u32 s{sT2}, s{sT2}, s{sT3}")
        A(f"s_mul_i32 s{sT2}, s{sT2}, {96*1024}")
        A(f"s_lshl_b32 s{sT3}, s{sU0}, 10")
        A(f"s_add_u32 s{sT2}, s{sT2}, s{sT3}")
        A(f"s_add_u32 s{sT2}, s{sT2}, {HF}")
        A(f"s_add_u32 s{sT3}, s{sT2}, {96*1024}")
        n = 0
        for mt in range(5):
            if mt == 4:
                A(f"s_cmp_eq_u32 s{sNU}, 4")
                A(f"s_cbranch_scc1 {name}_fin")
            for tt in range(2):
                a = acc(tt, mt)
                o = vOUT + 4*(n & 1); n += 1
                for pr in range(4):
                    g = a + 2*pr; u = a + 8 + 2*pr
                    A(f"v_pk_mul_f32 {vr(vTt,2)}, {vr(g,2)}, {vr(g,2)}")
                    A(f"v_pk_mul_f32 {vr(vGU,2)}, {vr(g,2)}, {vr(u,2)}")
                    A(f"v_pk_fma_f32 {vr(vP,2)}, {vr(vTt,2)}, {vr(vC1,2)}, {vr(vC0,2)}")
                    A(f"v_pk_mul_f32 {vr(vP,2)}, {vr(vP,2)}, {vr(g,2)}")
                    A(f"v_exp_f32 v{vE}, v{vP}")
                    A(f"v_exp_f32 v{vE+1}, v{vP+1}")
                    A("s_nop 0")
                    A(f"v_pk_add_f32 {vr(vE,2)}, {vr(vE,2)}, {vr(vONE,2)}")
                    A(f"v_rcp_f32 v{vE}, v{vE}")
                    A(f"v_rcp_f32 v{vE+1}, v{vE+1}")
                    A("s_nop 0")
                    A(f"v_pk_mul_f32 {vr(vGU,2)}, {vr(vGU,2)}, {vr(vE,2)}")
                    A(f"v_cvt_pk_bf16_f32 v{o+pr}, v{vGU}, v{vGU+1}")
                A(f"buffer_store_dwordx4 {vr(o,4)}, v3, {sr(SRD_WS,4)}, s{sT2 if tt == 0 else sT3} offen offset:{mt*1024 if mt*1024 < 4096 else 0}{SC1}" if mt < 4 else
                  f"s_add_u32 s{sT}, s{sT2 if tt == 0 else sT3}, 4096\n" + f"buffer_store_dwordx4 {vr(o,4)}, v3, {sr(SRD_WS,4)}, s{sT} offen{SC1}")
        A(f"s_branch {name}_fin")

    A.label(f"{name}_vblock")
    mainloop(True, "v", True)
    A.c("epilogue V: lane = weight column n; unit mt<4: head mt (n<16) / 4+mt (n>=16), d = n&15; unit 4: head (n>>2)&3 (+4), d = 16+(n&3)")
    sBASE, sHS = 61, 62
    vA1, vA2 = 8, 9
    D1 = 16
    A(f"s_mov_b32 s{sHS}, {HS_KV}")
    A("v_bfe_u32 v5, v2, 4, 1")
    A("v_lshlrev_b32 v5, 2, v5")
    A("v_lshrrev_b32 v4, 5, v2")
    A("v_lshlrev_b32 v4, 9, v4")
    A(f"v_mul_lo_u32 v6, v5, s{sHS}")
    A("v_and_b32 v3, 15, v2")
    A("v_lshl_add_u32 v6, v3, 4, v6")
    A(f"v_add_u32 v{vA1}, v6, v4")
    A("v_bfe_u32 v6, v2, 2, 2")
    A("v_add_u32 v6, v6, v5")
    A(f"v_mul_lo_u32 v6, v6, s{sHS}")
    A("v_and_b32 v3, 3, v2")
    A("v_lshl_add_u32 v6, v3, 4, v6")
    A(f"v_add3_u32 v{vA2}, v6, v4, 0")
    A(f"v_add_u32 v{vA2}, 256, v{vA2}")
    A(f"s_sub_u32 s{sT}, s{sCB}, 8")
    A(f"s_mul_i32 s{sBASE}, s{sT}, {8*HS_KV}")
    A(f"s_lshl_b32 s{sT2}, s{sRB}, 1")
    A(f"s_lshr_b32 s{sT3}, s{sW}, 1")
    A(f"s_add_u32 s{sT2}, s{sT2}, s{sT3}")
    A(f"s_mul_i32 s{sT2}, s{sT2}, {CH}")
    A(f"s_add_u32 s{sBASE}, s{sBASE}, s{sT2}")
    A(f"s_and_b32 s{sT3}, s{sW}, 1")
    A(f"s_lshl_b32 s{sT3}, s{sT3}, 12")
    A(f"s_add_u32 s{sBASE}, s{sBASE}, s{sT3}")
    A(f"s_add_u32 s{sBASE}, s{sBASE}, {KV+5120}")
    n = 0
    for mt in range(5):
        if 0 < mt < 4: A(f"s_add_u32 s{sBASE}, s{sBASE}, s{sHS}")
        if mt == 4: A(f"s_sub_u32 s{sBASE}, s{sBASE}, {3*HS_KV}")
        for tt in range(2):
            for f in range(2):
                a = acc(tt, mt) + 8*f
                d = D1 + 4*(n % 8); n += 1
                for j in range(4):
                    A(f"v_cvt_pk_bf16_f32 v{d+j}, v{a+2*j}, v{a+2*j+1}")
                A(f"buffer_store_dwordx4 {vr(d,4)}, v{vA1 if mt < 4 else vA2}, {sr(SRD_WS,4)}, s{sBASE} offen offset:{tt*2048+f*1024}{SC1}")
    A(f"s_branch {name}_fin")

    if F6:
        XR, WB6, WST, UO6 = 32768, 98304, 12320, 6176
        A.label(f"{name}_f6c")
        ACC6 = 64; FA6 = 8; FB6 = [32, 40]; vXA6 = 48; vW6 = 52
        def acc6(tt, mt): return ACC6 + (tt*6 + mt)*16
        x_voffsets(54)
        A(f"s_mul_i32 s{sXO}, s{sRB}, {256*1280}")
        A(f"s_lshl_b32 s{sT2}, s{sW}, 13")
        A("s_waitcnt lgkmcnt(0)")
        srd_x()
        srd_ws()
        for st in range(2):
            for j in range(8):
                A(f"s_add_u32 m0, s{sT2}, {st*XR + j*1024}")
                A("s_nop 0")
                A(f"buffer_load_dwordx4 v{54+j}, {sr(SRD_X,4)}, s{sXO} offen lds")
            A(f"s_add_u32 s{sXO}, s{sXO}, 128")
        A("v_and_b32 v3, 31, v2")
        A("v_lshrrev_b32 v4, 5, v2")
        A(f"s_lshl_b32 s{sT}, s{sW}, 6")
        A(f"v_add_u32 v5, s{sT}, v3")
        A("v_lshlrev_b32 v5, 7, v5")
        A("v_bfe_u32 v6, v3, 1, 3")
        for sp in range(4):
            A(f"v_or_b32 v7, {2*sp}, v4")
            A("v_xor_b32 v7, v7, v6")
            A(f"v_lshl_add_u32 v{vXA6+sp}, v7, 4, v5")
        A("v_bfe_u32 v5, v2, 4, 1")
        A(f"v_mul_u32_u24 v5, {UO6}, v5")
        A("v_bfe_u32 v6, v2, 2, 2")
        A("v_lshl_add_u32 v6, v4, 3, v6")
        A("v_mul_u32_u24 v6, 192, v6")
        A("v_and_b32 v7, 3, v2")
        A("v_lshlrev_b32 v7, 3, v7")
        A("v_add3_u32 v5, v5, v6, v7")
        A(f"v_add_u32 v{vW6}, {WB6}, v5")
        for r in range(ACC6, ACC6+192): A(f"v_mov_b32 v{r}, 0")
        def bread(sp, st): return [f"ds_read_b128 {vr(FB6[st]+4*tt,4)}, v{vXA6+sp} offset:{tt*4096}" for tt in range(2)]
        def aread(mt, second): return [f"ds_read_b64_tr_b16 {vr(FA6+4*mt+2*half,2)}, v{vW6} offset:{second*3072+mt*32+half*768}" for half in range(2)]
        A("s_waitcnt vmcnt(8)")
        A("s_barrier")
        stamp(A, 1)
        for l in bread(0, 0): A(l)
        for mt in range(6):
            for l in aread(mt, 0): A(l)
        sWI, sXI = 44, 45
        sWP, sWN, sXP, sXN = 84, 85, 82, 83
        A(f"s_mov_b32 s{sCNT}, 0")
        A(f"s_mov_b32 s{sWI}, 0")
        A(f"s_mov_b32 s{sXI}, 0")
        A(f"s_mov_b32 s{sWP}, {WST}")
        A(f"s_mov_b32 s{sWN}, {(-4*WST) & 0xffffffff}")
        A(f"s_mov_b32 s{sXP}, {XR}")
        A(f"s_mov_b32 s{sXN}, {(-2*XR) & 0xffffffff}")
        A("s_waitcnt lgkmcnt(0)")
        A(".p2align 6")
        A.label(f"{name}_loop_f6")
        for sp in range(4):
            cur = sp & 1; nxt = cur ^ 1
            def grp(mt, wait):
                A(f"s_waitcnt lgkmcnt({wait})")
                for tt in range(2):
                    d = vr(acc6(tt, mt), 16)
                    A(f"v_mfma_f32_32x32x16_bf16 {d}, {vr(FA6+4*mt,4)}, {vr(FB6[cur]+4*tt,4)}, {d}")
            if sp & 1:
                grp(0, 10)
                A(f"s_add_u32 s{sWI}, s{sWI}, 1")
                A(f"s_cmp_eq_u32 s{sWI}, 5")
                A(f"s_cselect_b32 s{sT}, s{sWN}, s{sWP}")
                A(f"s_cselect_b32 s{sWI}, 0, s{sWI}")
                if sp == 3:
                    A(f"s_add_u32 s{sXI}, s{sXI}, 1")
                    A(f"s_cmp_eq_u32 s{sXI}, 3")
                    A(f"s_cselect_b32 s{sT2}, s{sXN}, s{sXP}")
                    A(f"s_cselect_b32 s{sXI}, 0, s{sXI}")
                    A(f"s_cmp_eq_u32 s{sCNT}, 0")
                    A(f"s_cbranch_scc0 {name}_nw_f6")
                    A("s_waitcnt vmcnt(0)")
                    A.label(f"{name}_nw_f6")
                A("s_barrier")
                A(f"v_add_u32 v{vW6}, s{sT}, v{vW6}")
                if sp == 3:
                    for j in range(4): A(f"v_add_u32 v{vXA6+j}, s{sT2}, v{vXA6+j}")
                for l in bread((sp+1) & 3, nxt): A(l)
                for l in aread(0, 0): A(l)
                for mt in range(1, 6):
                    grp(mt, 12)
                    for l in aread(mt, 0): A(l)
            else:
                for l in bread(sp+1, nxt): A(l)
                for mt in range(6):
                    grp(mt, 12)
                    for l in aread(mt, 1): A(l)
        A(f"s_add_u32 s{sCNT}, s{sCNT}, 1")
        A(f"s_cmp_lt_u32 s{sCNT}, 10")
        A(f"s_cbranch_scc1 {name}_loop_f6")
        A("s_waitcnt lgkmcnt(0)")
        if fused and asmlib.OPT.get("early"): A("s_barrier")
        A("s_nop 15")
        stamp(A, 2)
        A.c("epilogue FFN: h = gelu_tanh(g) * u")
        vC0, vC1, vONE = 8, 10, 12
        vTt, vP, vE, vGU = 14, 16, 18, 20
        vOUT = 24
        for j in range(2):
            A(f"v_mov_b32 v{vC0+j}, {hex(f2u(c0))}")
            A(f"v_mov_b32 v{vC1+j}, {hex(f2u(c1))}")
            A(f"v_mov_b32 v{vONE+j}, 1.0")
        A(f"v_lshlrev_b32 v3, 4, v2")
        A(f"v_add_u32 v4, 4096, v3")
        A(f"s_lshl_b32 s{sT2}, s{sRB}, 3")
        A(f"s_lshl_b32 s{sT3}, s{sW}, 1")
        A(f"s_add_u32 s{sT2}, s{sT2}, s{sT3}")
        A(f"s_mul_i32 s{sT2}, s{sT2}, {96*1024}")
        A(f"s_mul_i32 s{sT3}, s{sCB}, {6*1024}")
        A(f"s_add_u32 s{sT2}, s{sT2}, s{sT3}")
        A(f"s_add_u32 s{sT2}, s{sT2}, {HF}")
        A(f"s_add_u32 s{sT3}, s{sT2}, {96*1024}")
        n = 0
        for mt in range(6):
            for tt in range(2):
                a = acc6(tt, mt)
                o = vOUT + 4*(n & 1); n += 1
                for pr in range(4):
                    g = a + 2*pr; u = a + 8 + 2*pr
                    A(f"v_pk_mul_f32 {vr(vTt,2)}, {vr(g,2)}, {vr(g,2)}")
                    A(f"v_pk_mul_f32 {vr(vGU,2)}, {vr(g,2)}, {vr(u,2)}")
                    A(f"v_pk_fma_f32 {vr(vP,2)}, {vr(vTt,2)}, {vr(vC1,2)}, {vr(vC0,2)}")
                    A(f"v_pk_mul_f32 {vr(vP,2)}, {vr(vP,2)}, {vr(g,2)}")
                    A(f"v_exp_f32 v{vE}, v{vP}")
                    A(f"v_exp_f32 v{vE+1}, v{vP+1}")
                    A("s_nop 0")
                    A(f"v_pk_add_f32 {vr(vE,2)}, {vr(vE,2)}, {vr(vONE,2)}")
                    A(f"v_rcp_f32 v{vE}, v{vE}")
                    A(f"v_rcp_f32 v{vE+1}, v{vE+1}")
                    A("s_nop 0")
                    A(f"v_pk_mul_f32 {vr(vGU,2)}, {vr(vGU,2)}, {vr(vE,2)}")
                    A(f"v_cvt_pk_bf16_f32 v{o+pr}, v{vGU}, v{vGU+1}")
                A(f"buffer_store_dwordx4 {vr(o,4)}, v{3 if mt < 4 else 4}, {sr(SRD_WS,4)}, s{sT2 if tt == 0 else sT3} offen offset:{(mt % 4)*1024}{SC1}")
        if fused and asmlib.OPT.get("early"):
            A(f"s_branch {name}_f6fin")
        else:
            A(f"s_branch {name}_fin")

    A.label(f"{name}_loader")
    vXO = 8
    vWO = 16
    A(f"s_sub_u32 s{sW}, s{sW}, 4")
    if fused and asmlib.OPT.get("early"):
        A(f"v_mov_b32 v3, {K1_LDS}")
        A("v_mov_b32 v4, 0")
        A("ds_write_b32 v3, v4")
    def dbg_srd(r):
        A(f"s_load_dwordx2 s[{r+4}:{r+5}], s[0:1], {KA_DBG}")
        A("s_waitcnt lgkmcnt(0)")
        A(f"s_mov_b32 s{r}, s{r+4}")
        A(f"s_and_b32 s{r+1}, s{r+5}, 0xffff")
        A(f"s_mov_b32 s{r+2}, 256")
        A(f"s_mov_b32 s{r+3}, 0x20000")
    def tag_load():
        dbg_srd(88 if not asmlib.PROFILE else 52)
        r = 88 if not asmlib.PROFILE else 52
        A("v_mov_b32 v131, 240")
        A(f"buffer_load_dword v130, v131, {sr(r,4)}, 0 offen sc1")
    sL = 64
    A(f"s_lshl_b32 s{sL}, s2, 2")
    A(f"s_add_u32 s{sL}, s{sL}, s{sW}")
    A(f"s_mul_i32 s{sXO}, s{sRB}, {256*1280}")
    A(f"s_add_u32 s{sXO}, s{sXO}, 256")
    if F6:
        A(f"s_cmp_eq_u32 s{sTYPE}, 3")
        A(f"s_cbranch_scc1 {name}_f6l")
        A(f"s_cmp_eq_u32 s{sTYPE}, 4")
        A(f"s_cbranch_scc1 {name}_idlel")
    sLX, sLW, sWSTEP = 61, 62, 63
    if F6:
        A(f"s_mul_i32 s{sT}, s{sW}, 320")
        for i in range(5):
            A(f"v_add_u32 v3, s{sT}, v2")
            A(f"v_add_u32 v3, {64*i}, v3")
            A("v_mul_u32_u24 v4, 3277, v3")
            A("v_lshrrev_b32 v4, 16, v4")
            A("v_mul_u32_u24 v5, 20, v4")
            A("v_sub_u32 v5, v3, v5")
            A("v_mul_u32_u24 v4, 3840, v4")
            A(f"v_lshl_add_u32 v{vWO+i}, v5, 4, v4")
        A(f"s_lshl_b32 s{sLX}, s{sW}, 13")
        A(f"s_mul_i32 s{sLW}, s{sW}, 5120")
        A(f"s_add_u32 s{sLW}, s{sLW}, {WOFF}")
        A(f"s_lshl_b32 s{sWSTEP}, s{sRS}, 6")
    else:
        A(f"s_and_b32 s{sT}, s{sW}, 1")
        A(f"s_mul_i32 s{sT}, s{sT}, 320")
        for i in range(5):
            A(f"v_add_u32 v3, s{sT}, v2")
            A(f"v_add_u32 v3, {64*i}, v3")
            A("v_mul_u32_u24 v4, 6554, v3")
            A("v_lshrrev_b32 v4, 16, v4")
            A("v_mul_u32_u24 v5, 10, v4")
            A("v_sub_u32 v5, v3, v5")
            A(f"v_mul_lo_u32 v4, v4, s{sRS}")
            A(f"v_lshl_add_u32 v{vWO+i}, v5, 4, v4")
        A(f"s_lshl_b32 s{sLX}, s{sW}, 13")
        A(f"s_lshr_b32 s{sT}, s{sW}, 1")
        A(f"s_mul_i32 s{sLW}, s{sT}, {UOFF}")
        A(f"s_and_b32 s{sT}, s{sW}, 1")
        A(f"s_mul_i32 s{sT}, s{sT}, 5120")
        A(f"s_add_u32 s{sLW}, s{sLW}, s{sT}")
        A(f"s_add_u32 s{sLW}, s{sLW}, {WOFF}")
        A(f"s_lshl_b32 s{sWSTEP}, s{sRS}, 6")
    def issue_w():
        A(f"s_add_u32 s{sT}, s{sBUF}, s{sLW}")
        for i in range(5):
            A(f"s_add_u32 m0, s{sT}, {i*1024}")
            A("s_nop 0")
            A(f"buffer_load_dwordx4 v{vWO+i}, {sr(SRD_W,4)}, s{sWO_} offen lds")
        A(f"s_add_u32 s{sWO_}, s{sWO_}, s{sWSTEP}")
    def next_buf():
        A(f"s_add_u32 s{sBUF}, s{sBUF}, {STAGE}")
        A(f"s_cmp_eq_u32 s{sBUF}, {3*STAGE}")
        A(f"s_cselect_b32 s{sBUF}, 0, s{sBUF}")
    def issue_stage():
        if asmlib.OPT.get("k1nodma"): return
        issue_w()
        A(f"s_add_u32 s{sT}, s{sBUF}, s{sLX}")
        for j in range(8):
            A(f"s_add_u32 m0, s{sT}, {j*1024}")
            A("s_nop 0")
            A(f"buffer_load_dwordx4 v{vXO+j}, {sr(SRD_X,4)}, s{sXO} offen lds")
        A(f"s_add_u32 s{sXO}, s{sXO}, 128")
        next_buf()
    A("s_waitcnt lgkmcnt(0)")
    if F6:
        A(f"s_mov_b32 s{SRD_W}, s{sWQ}")
        A(f"s_mov_b32 s{SRD_W+1}, s{sWQ+1}")
        A(f"s_lshl_b32 s{sWO_}, s{sCG}, 1")
    else:
        A.c("SRD w (QKV blocks: wqkv; FFN blocks: w_gate for loaders 0,1 and w_up for 2,3)")
        A(f"s_cmp_ge_u32 s{sW}, 2")
        A(f"s_cselect_b32 s{SRD_W}, s{sWU}, s{sWG}")
        A(f"s_cselect_b32 s{SRD_W+1}, s{sWU+1}, s{sWG+1}")
        A(f"s_cselect_b32 s{sT}, s{sCU}, s{sCG}")
        A(f"s_lshl_b32 s{sWO_}, s{sT}, 1")
        A(f"s_cmp_eq_u32 s{sTYPE}, 3")
        A(f"s_cselect_b32 s{SRD_W}, s{SRD_W}, s{sWQ}")
        A(f"s_cselect_b32 s{SRD_W+1}, s{SRD_W+1}, s{sWQ+1}")
    A(f"s_and_b32 s{SRD_W+1}, s{SRD_W+1}, 0xffff")
    A(f"s_mul_i32 s{SRD_W+2}, s{sRS}, 640")
    A(f"s_mov_b32 s{SRD_W+3}, 0x20000")
    A(f"s_mov_b32 s{sBUF}, 0")
    if SP: stamp(A, 1)
    issue_w(); next_buf()
    if SP: stamp(A, 2)
    issue_w(); next_buf()
    srd_x()
    srd_ws()
    x_voffsets(vXO)
    SRD_D, SRD_O, SRD_G, SRD_P = 68, 76, 80, 68
    vPW = 64
    vGX, vGW = 76, 88
    vS1, vS2, vTK = 100, 101, 102
    sN = 84
    sN = 56
    def prefetch_inputs():
        n = 0
        if not asmlib.OPT.get("pf2"):
            A.c("warm-up: stream a 1/1024 share of every GEMM input linearly, so that the strided tile loads of the later stages hit the memory-side cache")
            A("v_lshlrev_b32 v3, 4, v2")
            mats = ((sX, 2048*1280, 3, 68), (sWQ, 640*3840, 3, 72), (sWG, 640*3072, 2, 76), (sWU, 640*3072, 2, 80))
            if asmlib.OPT.get("pfo", 1):
                for (ptr, nb, pieces, r) in mats:
                    A(f"s_mov_b32 s{r}, s{ptr}")
                    A(f"s_and_b32 s{r+1}, s{ptr+1}, 0xffff")
                    A(f"s_mov_b32 s{r+2}, {nb}")
                    A(f"s_mov_b32 s{r+3}, 0x20000")
                A(f"s_lshl_b32 s{sT2}, s{sL}, 10")
                A(f"v_add_u32 v3, s{sT2}, v3")
                A(f"v_add_u32 v4, {1 << 20}, v3")
                A(f"v_add_u32 v5, {2 << 20}, v3")
                order = [(1,0),(2,0),(3,0),(0,0),(0,1),(0,2),(1,1),(2,1),(3,1),(1,2)]
                cur = 0
                for (mi, j) in order:
                    A(f"buffer_load_dwordx4 v[60:63], v{3+j}, {sr(mats[mi][3],4)}, 0 offen")
                    n += 1
            else:
                for (ptr, nb, pieces, r) in mats:
                    A(f"s_mov_b32 s{SRD_P}, s{ptr}")
                    A(f"s_and_b32 s{SRD_P+1}, s{ptr+1}, 0xffff")
                    A(f"s_mov_b32 s{SRD_P+2}, {nb}")
                    A(f"s_mov_b32 s{SRD_P+3}, 0x20000")
                    A(f"s_mul_i32 s{sT2}, s{sL}, {pieces*1024}")
                    for i in range(pieces):
                        A(f"buffer_load_dwordx4 v[60:63], v3, {sr(SRD_P,4)}, s{sT2} offen offset:{i*1024}")
                        n += 1
            return n
        A.c("L2 warm-up (speed only): the workgroups that share operand lines split the job of pulling them in early.")
        A.c("x: this workgroup streams 32 of the 256 rows of its row block (all K); w: it fetches two later stages of its column block")
        A("v_lshlrev_b32 v3, 4, v2")
        A(f"s_lshr_b32 s{sT}, s2, 5")
        A(f"s_lshl_b32 s{sT}, s{sT}, 2")
        A(f"s_add_u32 s{sT}, s{sT}, s{sW}")
        A(f"s_mul_i32 s{sT}, s{sT}, {8*1280}")
        A(f"s_mul_i32 s{sT2}, s{sRB}, {256*1280}")
        A(f"s_add_u32 s{sT}, s{sT}, s{sT2}")
        NX = asmlib.OPT.get("pfx", 10)
        for i in range(NX):
            if i % 4 == 0 and i: A(f"s_add_u32 s{sT}, s{sT}, 4096")
            A(f"buffer_load_dwordx4 v[60:63], v3, {sr(SRD_X,4)}, s{sT} offen offset:{(i % 4)*1024}")
            n += 1
        for st in range(2):
            A(f"s_bfe_u32 s{sT}, s2, 0x20003")
            A(f"s_lshl_b32 s{sT}, s{sT}, 1")
            A(f"s_add_u32 s{sT}, s{sT}, {st}")
            A(f"s_min_u32 s{sT}, s{sT}, 6")
            A(f"s_mul_i32 s{sT}, s{sT}, s{sWSTEP}")
            A(f"s_add_u32 s{sT}, s{sT}, s{sWO_}")
            for i in range(5):
                A(f"buffer_load_dwordx4 v[60:63], v{vWO+i}, {sr(SRD_W,4)}, s{sT} offen")
                n += 1
        return n
    def side_loads(tag=''):
        for srd, p, nb in ((SRD_D, sWD, 1536*1280), (SRD_O, sWO, 640*1280), (SRD_G, sGW, 1280)):
            A(f"s_mov_b32 s{srd}, s{p}")
            A(f"s_and_b32 s{srd+1}, s{p+1}, 0xffff")
            A(f"s_mov_b32 s{srd+2}, {nb}")
            A(f"s_mov_b32 s{srd+3}, 0x20000")
        A("v_lshrrev_b32 v3, 2, v2")
        A("v_mul_u32_u24 v3, 1280, v3")
        A("v_and_b32 v4, 3, v2")
        A(f"v_lshl_add_u32 v{vS1}, v4, 4, v3")
        A("v_bfe_u32 v5, v2, 4, 1")
        A("v_lshrrev_b32 v6, 5, v2")
        A("v_lshl_add_u32 v5, v5, 1, v6")
        A("v_mul_u32_u24 v5, 20, v5")
        A("v_bfe_u32 v6, v2, 2, 2")
        A("v_add3_u32 v5, v5, v6, 16")
        A("v_mul_u32_u24 v5, 1280, v5")
        A(f"v_lshl_add_u32 v{vS2}, v4, 4, v5")
        for m in range(3):
            A(f"s_add_u32 s{sN+m}, s{sL}, {1024*m}")
            A(f"s_cmp_ge_u32 s{sN+m}, 1920")
            A(f"s_cbranch_scc1 {name}_pl_o{m}{tag}")
            A(f"s_mul_i32 s{sT}, s{sN+m}, 683")
            A(f"s_lshr_b32 s{sT}, s{sT}, 16")
            A(f"s_mul_i32 s{sT2}, s{sT}, 96")
            A(f"s_sub_u32 s{sT2}, s{sN+m}, s{sT2}")
            A(f"s_mul_i32 s{sT2}, s{sT2}, {16*1280}")
            A(f"s_lshl_b32 s{sT}, s{sT}, 6")
            A(f"s_add_u32 s{sT}, s{sT}, s{sT2}")
            A(f"buffer_load_dwordx4 {vr(vPW+4*m,4)}, v{vS1}, {sr(SRD_D,4)}, s{sT} offen")
            A(f"s_branch {name}_pl_n{m}{tag}")
            A.label(f"{name}_pl_o{m}{tag}")
            A(f"s_sub_u32 s{sT3}, s{sN+m}, 1920")
            A(f"s_mul_i32 s{sT}, s{sT3}, 1639")
            A(f"s_lshr_b32 s{sT}, s{sT}, 16")
            A(f"s_mul_i32 s{sT2}, s{sT}, 40")
            A(f"s_sub_u32 s{sT2}, s{sT3}, s{sT2}")
            A(f"s_lshl_b32 s{sT}, s{sT}, 6")
            A(f"s_cmp_ge_u32 s{sT2}, 32")
            A(f"s_cbranch_scc1 {name}_pl_t{m}{tag}")
            A.c("main step (one head): rows 20*head .. +15")
            A(f"s_mul_i32 s{sT2}, s{sT2}, {20*1280}")
            A(f"s_add_u32 s{sT}, s{sT}, s{sT2}")
            A(f"buffer_load_dwordx4 {vr(vPW+4*m,4)}, v{vS1}, {sr(SRD_O,4)}, s{sT} offen")
            A(f"s_branch {name}_pl_n{m}{tag}")
            A.label(f"{name}_pl_t{m}{tag}")
            A.c("tail step: d=16..19 of four heads (blocks past 2720 read zeros or junk, never stored)")
            A(f"s_sub_u32 s{sT2}, s{sT2}, 32")
            A(f"s_mul_i32 s{sT2}, s{sT2}, {80*1280}")
            A(f"s_add_u32 s{sT}, s{sT}, s{sT2}")
            A(f"buffer_load_dwordx4 {vr(vPW+4*m,4)}, v{vS2}, {sr(SRD_O,4)}, s{sT} offen")
            A.label(f"{name}_pl_n{m}{tag}")
        A("v_and_b32 v3, 31, v2")
        A("v_lshlrev_b32 v3, 4, v3")
        A(f"v_lshrrev_b32 v{vTK}, 5, v2")
        A(f"s_lshl_b32 s{sT}, s{sL}, 1")
        A(f"v_add_u32 v{vTK}, s{sT}, v{vTK}")
        A(f"v_mul_u32_u24 v5, 1280, v{vTK}")
        A("v_add_u32 v5, v5, v3")
        A("v_and_b32 v6, 16, v2")
        A("v_cmp_ne_u32 vcc, 0, v6")
        A(f"v_mov_b32 v7, 0x7ff00000")
        A("v_add_u32 v6, 1024, v5")
        A("v_add_u32 v4, 1024, v3")
        A("v_cndmask_b32 v6, v6, v7, vcc")
        A("v_cndmask_b32 v4, v4, v7, vcc")
        A(f"buffer_load_dwordx4 {vr(vGX,4)}, v5, {sr(SRD_X,4)}, 0 offen")
        A(f"buffer_load_dwordx4 {vr(vGX+4,4)}, v5, {sr(SRD_X,4)}, 0 offen offset:512")
        A(f"buffer_load_dwordx4 {vr(vGX+8,4)}, v6, {sr(SRD_X,4)}, 0 offen")
        A(f"buffer_load_dwordx4 {vr(vGW,4)}, v3, {sr(SRD_G,4)}, 0 offen")
        A(f"buffer_load_dwordx4 {vr(vGW+4,4)}, v3, {sr(SRD_G,4)}, 0 offen offset:512")
        A(f"buffer_load_dwordx4 {vr(vGW+8,4)}, v4, {sr(SRD_G,4)}, 0 offen")
        return 9
    def side_process(tag='', scr_shift=9, scr_base=None):
        A.c("side job: gate g = sigmoid(x . gate_w)")
        A("v_mov_b32 v3, 0")
        for j in range(12):
            A(f"v_dot2c_f32_bf16 v3, v{vGX+j}, v{vGW+j}")
        A("s_nop 3")
        for sh in (1, 2, 4, 8):
            A(f"v_add_f32_dpp v3, v3, v3 row_shr:{sh} row_mask:0xf bank_mask:0xf bound_ctrl:0")
            A("s_nop 1")
        A("v_add_f32_dpp v3, v3, v3 row_bcast:15 row_mask:0xa bank_mask:0xf")
        A("s_nop 1")
        A("v_mul_f32 v3, 0xbfb8aa3b, v3")
        A("v_exp_f32 v3, v3")
        A("s_nop 0")
        A("v_add_f32 v3, 1.0, v3")
        A("v_rcp_f32 v3, v3")
        A(f"v_lshlrev_b32 v{vTK}, 2, v{vTK}")
        A("v_and_b32 v6, 31, v2")
        A("v_cmp_eq_u32 vcc, 31, v6")
        A(f"s_mov_b32 s{sT}, {GG}")
        A("s_and_saveexec_b64 s[50:51], vcc")
        A(f"s_cbranch_execz {name}_gate_done{tag}")
        A(f"buffer_store_dword v3, v{vTK}, {sr(SRD_WS,4)}, s{sT} offen{SC1}")
        A.label(f"{name}_gate_done{tag}")
        A("s_mov_b64 exec, s[50:51]")
        A.c("side job: transpose Wd / Wo blocks into MFMA A-fragment order through a 512-byte LDS scratch per wave")
        A(f"s_lshl_b32 s{sT}, s{sW}, 9")
        A(f"s_add_u32 s{sT}, s{sT}, {K1_LDS - 2048 if scr_base is None else scr_base}")
        A("v_and_b32 v4, 31, v2")
        A("v_lshlrev_b32 v4, 4, v4")
        A(f"v_add_u32 v4, s{sT}, v4")
        A("v_lshrrev_b32 v7, 5, v2")
        A("v_bfe_u32 v5, v2, 2, 2")
        A("v_lshl_add_u32 v5, v7, 2, v5")
        A("v_lshlrev_b32 v5, 6, v5")
        A("v_bfe_u32 v6, v2, 4, 1")
        A("v_lshl_add_u32 v5, v6, 5, v5")
        A("v_and_b32 v6, 3, v2")
        A("v_lshl_add_u32 v5, v6, 3, v5")
        A(f"v_add_u32 v5, s{sT}, v5")
        A("v_lshlrev_b32 v7, 4, v2")
        OUT = 104
        for m in range(3):
            if m == 2:
                A(f"s_cmp_ge_u32 s{sN+m}, 2720")
                A(f"s_cbranch_scc1 {name}_prep_done{tag}")
            for half in range(2):
                A("s_mov_b32 exec_hi, 0" if half == 0 else "s_mov_b32 exec_lo, 0")
                A(f"ds_write_b128 v4, {vr(vPW+4*m,4)}")
                A("s_mov_b64 exec, -1")
                A("s_waitcnt lgkmcnt(0)")
                A(f"ds_read_b64_tr_b16 {vr(OUT+4*m+2*half,2)}, v5")
                A("s_waitcnt lgkmcnt(0)")
            A(f"s_lshl_b32 s{sT}, s{sN+m}, 10")
            A(f"s_add_u32 s{sT}, s{sT}, {WDF}")
            A(f"buffer_store_dwordx4 {vr(OUT+4*m,4)}, v7, {sr(SRD_WS,4)}, s{sT} offen{SC1}")
        A.label(f"{name}_prep_done{tag}")
    A("s_waitcnt vmcnt(5)")
    A("s_barrier")
    issue_stage()
    NPF = prefetch_inputs() if not asmlib.OPT.get("nopf") else 0
    A(f"s_waitcnt vmcnt({13+NPF})")
    A("s_barrier")
    issue_stage()
    A(f"s_waitcnt vmcnt({13+NPF})")
    A("s_barrier")
    issue_stage()
    if F6:
        for S in range(3, 8):
            A("s_waitcnt vmcnt(13)")
            A("s_barrier")
            issue_stage()
        if fused and asmlib.OPT.get("early"): tag_load()
        A("s_waitcnt vmcnt(13)")
        A("s_barrier")
        if not SP: stamp(A, 1)
        A("s_waitcnt vmcnt(0)")
        A("s_barrier")
        A(f"s_cmp_eq_u32 s{sTYPE}, 2")
        A(f"s_cbranch_scc0 {name}_novp")
        vpad("q", 120)
        A.label(f"{name}_novp")
        A("s_barrier")
        if not SP: stamp(A, 2)
    elif not asmlib.OPT.get("earlyside"):
        for S in range(3, 8):
            A("s_waitcnt vmcnt(13)")
            A("s_barrier")
            issue_stage()
        NS = side_loads()
        A(f"s_waitcnt vmcnt({13+NS})")
        A("s_barrier")
        if not SP: stamp(A, 1)
        A(f"s_waitcnt vmcnt({NS})")
        A("s_barrier")
        if not asmlib.OPT.get("earlyconst"): const_stores("l", 120)
        A("s_barrier")
        if not SP: stamp(A, 2)
        A("s_waitcnt vmcnt(3)" if not asmlib.OPT.get("earlyconst") else "s_waitcnt vmcnt(0)")
        side_process()
    else:
        A("s_waitcnt vmcnt(13)")
        A("s_barrier")
        issue_stage()
        A("s_waitcnt vmcnt(13)")
        A("s_barrier")
        NS = side_loads()
        issue_stage()
        A(f"s_waitcnt vmcnt({13+NS})")
        A("s_barrier")
        issue_stage()
        A("s_waitcnt vmcnt(13)")
        A("s_barrier")
        issue_stage()
        side_process()
        A("s_waitcnt vmcnt(16)")
        A("s_barrier")
        issue_stage()
        A("s_waitcnt vmcnt(16)")
        A("s_barrier")
        if not SP: stamp(A, 1)
        A("s_waitcnt vmcnt(0)")
        A("s_barrier")
        A("s_barrier")
        if not SP: stamp(A, 2)
    if F6:
        from p1two import Seq
        A(f"s_branch {name}_fin")
        XR, WB6, WST, UO6 = 32768, 98304, 12320, 6176
        A.label(f"{name}_f6l")
        vW6O = 16
        A(f"s_and_b32 s{sT}, s{sW}, 1")
        A(f"s_mul_i32 s{sT}, s{sT}, 192")
        for i in range(3):
            A(f"v_add_u32 v3, s{sT}, v2")
            A(f"v_add_u32 v3, {64*i}, v3")
            A("v_mul_u32_u24 v4, 5462, v3")
            A("v_lshrrev_b32 v4, 16, v4")
            A("v_mul_u32_u24 v5, 12, v4")
            A("v_sub_u32 v5, v3, v5")
            A("v_mul_u32_u24 v4, 3072, v4")
            A(f"v_lshl_add_u32 v{vW6O+i}, v5, 4, v4")
        sLX, sLW = 61, 62
        A(f"s_lshl_b32 s{sLX}, s{sW}, 13")
        A(f"s_lshr_b32 s{sT}, s{sW}, 1")
        A(f"s_mul_i32 s{sLW}, s{sT}, {UO6}")
        A(f"s_and_b32 s{sT}, s{sW}, 1")
        A(f"s_mul_i32 s{sT}, s{sT}, 3072")
        A(f"s_add_u32 s{sLW}, s{sLW}, s{sT}")
        A(f"s_add_u32 s{sLW}, s{sLW}, {WB6}")
        A(f"s_mul_i32 s{sWO_}, s{sCB}, 192")
        A("s_waitcnt lgkmcnt(0)")
        A(f"s_cmp_ge_u32 s{sW}, 2")
        A(f"s_cselect_b32 s{SRD_W}, s{sWU}, s{sWG}")
        A(f"s_cselect_b32 s{SRD_W+1}, s{sWU+1}, s{sWG+1}")
        A(f"s_and_b32 s{SRD_W+1}, s{SRD_W+1}, 0xffff")
        A(f"s_mov_b32 s{SRD_W+2}, {640*3072}")
        A(f"s_mov_b32 s{SRD_W+3}, 0x20000")
        q = Seq()
        def w6(j):
            for i in range(3):
                A(f"s_add_u32 m0, s{sLW}, {(j % 5)*WST + i*1024}")
                A("s_nop 0")
                A(f"buffer_load_dwordx4 v{vW6O+i}, {sr(SRD_W,4)}, s{sWO_} offen lds")
            A(f"s_add_u32 s{sWO_}, s{sWO_}, {32*3072}")
            q.add(("w", j), 3)
        def x6(i):
            for j in range(8):
                A(f"s_add_u32 m0, s{sLX}, {(i % 3)*XR + j*1024}")
                A("s_nop 0")
                A(f"buffer_load_dwordx4 v{vXO+j}, {sr(SRD_X,4)}, s{sXO} offen lds")
            A(f"s_add_u32 s{sXO}, s{sXO}, 128")
            q.add(("x", i), 8)
        w6(0); w6(1)
        srd_x(); srd_ws(); x_voffsets(vXO)
        w6(2); w6(3); x6(2)
        A(f"s_waitcnt vmcnt({q.n_after(('w', 0))})")
        A("s_barrier")
        q.add("pf", prefetch_inputs() if not asmlib.OPT.get("nopf") else 0)
        for j in range(20):
            need = []
            if j + 1 <= 19: need.append(("w", j+1))
            if j & 1 and 2 <= (j+1)//2 <= 9: need.append(("x", (j+1)//2))
            if need: A(f"s_waitcnt vmcnt({min(63, min(q.n_after(t) for t in need))})")
            A("s_barrier")
            if j + 4 <= 19: w6(j+4)
            if j & 1:
                i = (j+1)//2
                if i + 2 <= 9: x6(i+2)
            if j == 15 and fused and asmlib.OPT.get("early"):
                tag_load(); q.add("tag")
        A(f"s_branch {name}_f6ldone")
        A.label(f"{name}_idlel")
        A("s_waitcnt lgkmcnt(0)")
        if fused and asmlib.OPT.get("early"):
            A("s_cmp_eq_u32 s2, 224")
            A(f"s_cbranch_scc0 {name}_notag")
            A(f"s_cmp_eq_u32 s{sW}, 0")
            A(f"s_cbranch_scc0 {name}_notag")
            dbg_srd(68)
            A("s_memrealtime s[74:75]")
            A("s_waitcnt lgkmcnt(0)")
            A("s_or_b32 s74, s74, 1")
            A("s_mov_b64 exec, 1")
            A("v_mov_b32 v4, s74")
            A("v_mov_b32 v3, 240")
            A("buffer_store_dword v4, v3, s[68:71], 0 offen sc1")
            A("s_mov_b64 exec, -1")
            A.label(f"{name}_notag")
        if not asmlib.OPT.get("nopf"): prefetch_inputs()
        A(f"s_add_u32 s{sW}, s{sW}, 4")
        A.label(f"{name}_idlec")
        A("s_waitcnt lgkmcnt(0)")
        srd_x(); srd_ws()
        sIW, sIT = 65, 66
        A(f"s_lshr_b32 s{sT}, s2, 3")
        A(f"s_sub_u32 s{sT}, s{sT}, 28")
        A(f"s_lshl_b32 s{sT}, s{sT}, 3")
        A(f"s_and_b32 s{sT2}, s2, 7")
        A(f"s_add_u32 s{sT}, s{sT}, s{sT2}")
        A(f"s_lshl_b32 s{sT}, s{sT}, 3")
        A(f"s_add_u32 s{sIW}, s{sT}, s{sW}")
        A(f"s_mov_b32 s{sIT}, 0")
        A.label(f"{name}_idleloop")
        A(f"s_lshl_b32 s{sL}, s{sIW}, 2")
        A(f"s_add_u32 s{sL}, s{sL}, s{sIT}")
        side_loads("_id")
        A("s_waitcnt vmcnt(0)")
        side_process("_id", scr_shift=8, scr_base=0)
        fill_of(120)
        A(f"s_add_u32 s{sIT}, s{sIT}, 1")
        A(f"s_cmp_lt_u32 s{sIT}, 4")
        A(f"s_cbranch_scc1 {name}_idleloop")
        if fused and asmlib.OPT.get("early"): tag_load()
        A(f"s_branch {name}_fin")
        A.label(f"{name}_f6ldone")
        if fused and asmlib.OPT.get("early"):
            A("s_barrier")
            A(f"s_branch {name}_f6fin")
    A.label(f"{name}_fin")
    if asmlib.PROFILE:
        A("s_waitcnt vmcnt(0)")
        if SP:
            A("v_readfirstlane_b32 s83, v0")
            A("s_nop 3")
            A("s_cmp_ge_u32 s83, 256")
            A(f"s_cbranch_scc1 {name}_fin_sp")
        stamp(A, 3)
        if SP:
            A(f"s_branch {name}_fin_sp2")
            A.label(f"{name}_fin_sp")
            A("s_mov_b32 s92, s66")
            A.label(f"{name}_fin_sp2")
        A("v_readfirstlane_b32 s83, v0")
        A("s_nop 3")
        A("s_lshr_b32 s83, s83, 6")
        stamp_flush(A, 0, SRD_WS, 83, 4)
    if not fused:
        A.label(f"{name}_end")
        A("s_endpgm")
        return 256
    if F6 and asmlib.OPT.get("early"):
        A("s_mov_b64 exec, -1")
        A("s_waitcnt vmcnt(0) lgkmcnt(0)")
        A("s_barrier")
        A(f"s_lshl_b32 s70, s{sTYPE}, 3")
        A(f"s_add_u32 s70, s70, s{sRB}")
        A(f"s_lshr_b32 s{sT}, s2, 3")
        A(f"s_sub_u32 s{sT}, s{sT}, 28")
        A(f"s_lshl_b32 s{sT}, s{sT}, 3")
        A(f"s_and_b32 s{sT2}, s2, 7")
        A(f"s_add_u32 s{sT}, s{sT}, s{sT2}")
        A(f"s_add_u32 s{sT}, s{sT}, 64")
        A(f"s_cmp_eq_u32 s{sTYPE}, 4")
        A(f"s_cselect_b32 s70, s{sT}, s70")
        A("s_mov_b32 s71, -1")
        A(f"s_branch {name}_p2_entry")
        A.label(f"{name}_f6fin")
        A("s_mov_b64 exec, -1")
        A("s_mov_b32 s70, -1")
        A(f"s_lshl_b32 s71, s{sRB}, 8")
        A(f"s_add_u32 s71, s71, s{sCB}")
        A.label(f"{name}_p2_entry")
        return 256
    A.c("every wave drains its write-through stores, then one lane signals for the workgroup")
    A("s_mov_b64 exec, -1")
    A("s_waitcnt vmcnt(0) lgkmcnt(0)")
    A("s_barrier")
    sDBG, SRD_D2 = 4, 8
    A(f"s_load_dwordx2 {sr(sDBG,2)}, s[0:1], {KA_DBG}")
    A("v_readfirstlane_b32 s83, v0")
    A("s_nop 3")
    A("s_cmp_lt_u32 s83, 64")
    A(f"s_cbranch_scc0 {name}_p1polled")
    if asmlib.OPT.get('wbl2'):
        A("buffer_wbl2 sc1")
        A("s_waitcnt vmcnt(0)")
    A("s_waitcnt lgkmcnt(0)")
    A(f"s_mov_b32 s{SRD_D2}, s{sDBG}")
    A(f"s_and_b32 s{SRD_D2+1}, s{sDBG+1}, 0xffff")
    A(f"s_mov_b32 s{SRD_D2+2}, 256")
    A(f"s_mov_b32 s{SRD_D2+3}, 0x20000")
    if F6:
        A(f"s_bfe_u32 s{sT3}, s2, 0x20001")
        A(f"s_add_u32 s{sT2}, s{sRB}, 32")
        A(f"s_cmp_eq_u32 s{sTYPE}, 3")
        A(f"s_cselect_b32 s{sT}, s{sT2}, s{sT3}")
        A(f"s_cmp_eq_u32 s{sTYPE}, 4")
        A(f"s_cselect_b32 s{sT}, 40, s{sT}")
        A(f"s_lshl_b32 s{sT}, s{sT}, 2")
        A("s_mov_b64 exec, 1")
        A(f"v_mov_b32 v3, s{sT}")
        A("v_mov_b32 v4, 1")
        if not asmlib.OPT.get("noatomic"): A(f"buffer_atomic_add v4, v3, {sr(SRD_D2,4)}, 0 offen sc1")
        A(f"s_lshl_b32 s{sT3}, s{sT3}, 2")
        A(f"v_mov_b32 v3, s{sT3}")
        A("v_mov_b32 v5, 24")
    else:
        A(f"s_and_b32 s{sT}, s{sCB}, 3")
        A(f"s_add_u32 s{sT2}, s{sRB}, 32")
        A(f"s_cmp_ge_u32 s{sCB}, 12")
        A(f"s_cselect_b32 s{sT}, s{sT2}, s{sT}")
        A(f"s_lshl_b32 s{sT}, s{sT}, 2")
        A("s_mov_b64 exec, 1")
        A(f"v_mov_b32 v3, s{sT}")
        A("v_mov_b32 v4, 1")
        A(f"buffer_atomic_add v4, v3, {sr(SRD_D2,4)}, 0 offen sc1")
        A("s_mov_b64 exec, 0xfff")
        A("v_cmp_gt_u32 vcc, 4, v2")
        A("v_add_u32 v3, 28, v2")
        A("v_mov_b32 v5, 20")
        A("v_mov_b32 v6, 24")
        A("v_cndmask_b32 v3, v3, v2, vcc")
        A("v_cndmask_b32 v5, v5, v6, vcc")
        A("v_lshlrev_b32 v3, 2, v3")
    A(f"s_mov_b32 s{sT2}, 0")
    if asmlib.OPT.get("nopoll"): A(f"s_branch {name}_p1done")
    if F6:
        A(f"s_cmp_eq_u32 s{sTYPE}, 3")
        A(f"s_cbranch_scc1 {name}_p1poll")
        A(f"s_cmp_eq_u32 s{sTYPE}, 4")
        A(f"s_cbranch_scc0 {name}_p1bk")
        A.label(f"{name}_p1idle")
        A(f"buffer_load_dword v4, v3, {sr(SRD_D2,4)}, 0 offen sc1")
        A("s_waitcnt vmcnt(0)")
        A("v_cmp_gt_u32 vcc, 1, v4")
        A(f"s_add_u32 s{sT2}, s{sT2}, 1")
        A("s_nop 1")
        A(f"s_cbranch_vccz {name}_p1bk")
        A("s_sleep 127")
        A(f"s_cmp_lt_u32 s{sT2}, 0x4000")
        A(f"s_cbranch_scc1 {name}_p1idle")
        A.label(f"{name}_p1bk")
        A(f"s_sleep {asmlib.OPT.get('slp0', 40)}")
    A.label(f"{name}_p1poll")
    A(f"buffer_load_dword v4, v3, {sr(SRD_D2,4)}, 0 offen sc1")
    A("s_waitcnt vmcnt(0)")
    A("v_cmp_lt_u32 vcc, v4, v5")
    A(f"s_add_u32 s{sT2}, s{sT2}, 1")
    A("s_nop 1")
    A(f"s_cbranch_vccz {name}_p1done")
    A(f"s_sleep {asmlib.OPT.get('slp', 16)}")
    A(f"s_cmp_lt_u32 s{sT2}, 0x40000")
    A(f"s_cbranch_scc1 {name}_p1poll")
    A.label(f"{name}_p1done")
    A("s_mov_b64 exec, -1")
    A.label(f"{name}_p1polled")
    A("s_waitcnt lgkmcnt(0)")
    A("s_barrier")
    return 256
```

```python
from asmlib import *
import asmlib
from layout import *
from k23 import ws_srd

K2_LDS = 8*CH + 24576

class VmTrack:
    def __init__(self):
        self.seq = []
        self.need = {}
    def issue(self, tag): self.seq.append(tag)
    def wait(self, wid, tags):
        idx = [i for i, t in enumerate(self.seq) if t in tags]
        if not idx: return
        n = len(self.seq) - 1 - max(idx)
        self.need[wid] = min(self.need.get(wid, 63), n)

def gen_k2(A, name, fused=False):
    if not fused: kernel_header(A, name)
    LD1 = ' sc1' if (fused and asmlib.OPT.get("ldsc1")) else ''
    sWS = 4; SRD = 8; sW = 12; sT, sT2, sT3 = 13, 14, 15
    sHEAD, sQT, sKV, sM0, sCNT, sG, sHF = 16, 17, 18, 19, 20, 21, 22
    sTT, sCBK = 23, 24
    sA0, sB0 = 26, 31
    if not fused:
        A("s_cmp_ge_u32 s2, 256")
        A(f"s_cbranch_scc1 {name}_end")
    TP = asmlib.OPT.get("tailprof")
    if not TP or TP == 5: stamp(A, 0)
    A(f"s_load_dwordx2 {sr(sWS,2)}, s[0:1], {KA_WS}")
    A(f"s_load_dwordx2 s[38:39], s[0:1], {KA_DBG}")
    A(f"s_load_dwordx2 s[48:49], s[0:1], {KA_OUT}")
    A("v_lshrrev_b32 v1, 6, v0")
    A("v_and_b32 v2, 63, v0")
    A(f"v_readfirstlane_b32 s{sW}, v1")
    A(f"s_and_b32 s{sT}, s2, 7")
    A(f"s_lshr_b32 s{sT2}, s2, 3")
    A(f"s_and_b32 s{sT3}, s{sT2}, 3")
    A(f"s_lshl_b32 s{sHEAD}, s{sT}, 2")
    A(f"s_add_u32 s{sHEAD}, s{sHEAD}, s{sT3}")
    A(f"s_and_b32 s{sG}, s{sW}, 3")
    A(f"s_lshr_b32 s{sHF}, s{sW}, 2")
    A(f"s_lshr_b32 s{sQT}, s{sT2}, 2")
    A(f"s_lshl_b32 s{sQT}, s{sQT}, 3")
    A(f"s_lshl_b32 s{sT3}, s{sG}, 1")
    A(f"s_add_u32 s{sQT}, s{sQT}, s{sT3}")
    A(f"s_lshl_b32 s{sTT}, s{sT}, 3")
    A(f"s_and_b32 s{sT3}, s{sT2}, 7")
    A(f"s_add_u32 s{sTT}, s{sTT}, s{sT3}")
    A(f"s_lshr_b32 s{sCBK}, s{sT2}, 3")
    A("s_waitcnt lgkmcnt(0)")
    if TP == 5: stamp(A, 1)
    ws_srd(A, SRD, sWS)
    if asmlib.OPT.get("lone"):
        A(f"s_cmp_ge_u32 s{sW}, 4")
        A(f"s_cbranch_scc1 {name}_end")
    SA, SB = 16, 32; P = 48; OA, OB = 56, 72
    Q16A, Q4A, Q16B, Q4B = 88, 92, 94, 98
    K16 = 100; K4 = [104, 106]; V1 = 108; V2 = 112; E = [116, 120]
    FR = 124; ACC = 172
    vL16, vKV, vK4a, vDma, vFo = 4, 5, 6, 7, 8
    A(f"v_lshlrev_b32 v{vL16}, 4, v2")
    A(f"s_mul_i32 s{sT}, s{sHF}, {4*CH}")
    A(f"v_add_u32 v{vKV}, s{sT}, v{vL16}")
    A("v_and_b32 v3, 31, v2")
    A(f"v_lshlrev_b32 v9, 3, v3")
    A(f"v_add_u32 v9, 1024, v9")
    A(f"v_add_u32 v{vK4a}, s{sT}, v9")
    A(f"v_mov_b32 v{vDma}, v{vL16}")
    A(f"v_mov_b32 v{vFo}, v{vL16}")
    A(f"s_mul_i32 s{sM0}, s{sG}, 3072")
    A(f"s_add_u32 s{sM0}, s{sM0}, s{sT}")
    A(f"s_mul_i32 s{sKV}, s{sHEAD}, {HS_KV}")
    A(f"s_mul_i32 s{sT2}, s{sHF}, {8*CH}")
    A(f"s_add_u32 s{sKV}, s{sKV}, s{sT2}")
    A(f"s_mul_i32 s{sT2}, s{sG}, 3072")
    A(f"s_add_u32 s{sKV}, s{sKV}, s{sT2}")
    A(f"s_add_u32 s{sKV}, s{sKV}, {KV}")
    A("s_mov_b32 s52, 0x30800000")
    A("s_mov_b32 s53, 0x58800000")
    vm = VmTrack()
    def dma_piece(chunk, i, emit):
        if emit and not (asmlib.OPT.get("nodma") and chunk > 2):
            if i == 0:
                A(f"s_add_u32 m0, s{sM0}, {(chunk & 3)*CH}")
                A("s_nop 0")
            A(f"buffer_load_dwordx4 v{vDma}, {sr(SRD,4)}, s{sKV} offen offset:{i*1024}{LD1} lds")
            if i == 3:
                A(f"s_add_u32 s{sKV}, s{sKV}, {CH}")
        vm.issue(("dma", chunk))
    def dma(chunk, emit):
        for i in range(4): dma_piece(chunk, i, emit)
    def fslot(s): return FR + (s & 1)*24
    def fload(s, which, imm, emit):
        b = fslot(s)
        if emit and not (asmlib.OPT.get("noffnload") and s >= 2):
            if which < 5:
                A(f"buffer_load_dwordx4 {vr(b+4*which,4)}, v{vFo}, {sr(SRD,4)}, s{sA0+which} offen offset:{imm}{LD1}")
            else:
                A(f"buffer_load_dwordx4 {vr(b+20,4)}, v{vFo}, {sr(SRD,4)}, s{sB0} offen offset:{imm}{LD1}")
        vm.issue(("f", s))
    A(f"s_mul_i32 s{sT}, s{sHEAD}, {HS_Q}")
    A(f"s_mul_i32 s{sT2}, s{sQT}, 1280")
    A(f"s_add_u32 s{sT}, s{sT}, s{sT2}")
    if QF: A(f"s_add_u32 s{sT}, s{sT}, {QF}")
    A(f"buffer_load_dwordx4 {vr(Q16A,4)}, v{vL16}, {sr(SRD,4)}, s{sT} offen{LD1}")
    A(f"buffer_load_dwordx2 {vr(Q4A,2)}, v9, {sr(SRD,4)}, s{sT} offen{LD1}")
    A(f"buffer_load_dwordx4 {vr(Q16B,4)}, v{vL16}, {sr(SRD,4)}, s{sT} offen offset:1280{LD1}")
    A(f"buffer_load_dwordx2 {vr(Q4B,2)}, v9, {sr(SRD,4)}, s{sT} offen offset:1280{LD1}")
    for i in range(4): vm.issue(("q", 0))
    dma(0, True)
    A("s_barrier")
    dma(1, True)
    A(f"s_mul_i32 s{sT}, s{sW}, {12*1024}")
    A(f"s_mul_i32 s{sT2}, s{sCBK}, {5*96*1024}")
    A(f"s_add_u32 s{sT2}, s{sT2}, s{sT}")
    A(f"s_add_u32 s{sA0}, s{sT2}, {WDF}")
    for mt in range(1, 5): A(f"s_add_u32 s{sA0+mt}, s{sA0+mt-1}, {96*1024}")
    A(f"s_mul_i32 s{sT2}, s{sTT}, {96*1024}")
    A(f"s_add_u32 s{sT2}, s{sT2}, s{sT}")
    A(f"s_add_u32 s{sB0}, s{sT2}, {HF}")
    dma(2, True)
    vG1, vG2 = 252, 253
    A("v_lshlrev_b32 v14, 2, v3")
    A(f"s_add_u32 s{sT}, s{sQT}, s{sHF}")
    A(f"s_lshl_b32 s{sT}, s{sT}, 7")
    A(f"s_add_u32 s{sT}, s{sT}, {GG}")
    A(f"buffer_load_dword v{vG1}, v14, {sr(SRD,4)}, s{sT} offen{LD1}")
    A(f"s_lshl_b32 s{sT}, s{sTT}, 7")
    A(f"s_add_u32 s{sT}, s{sT}, {GG}")
    A(f"buffer_load_dword v{vG2}, v14, {sr(SRD,4)}, s{sT} offen{LD1}")
    vm.issue(("g", 0)); vm.issue(("g", 0))
    sWo = 32
    A(f"s_mul_i32 s{sT}, s{sW}, {5*1024}")
    A(f"s_mul_i32 s{sT2}, s{sCBK}, {5*40*1024}")
    A(f"s_add_u32 s{sT2}, s{sT2}, s{sT}")
    A(f"s_add_u32 s{sWo}, s{sT2}, {WOF}")
    for mt in range(1, 5): A(f"s_add_u32 s{sWo+mt}, s{sWo+mt-1}, {40*1024}")
    for s in range(2):
        for w in (5, 0, 1, 2, 3, 4): fload(s, w, s*1024, True)
    A(f"v_add_u32 v{vFo}, 2048, v{vFo}")
    A("v_cmp_lt_u32 vcc, 31, v2")
    for r in list(range(OA, OA+32)) + list(range(P, P+8)) + list(range(V2, V2+4)) + list(range(E[0], E[0]+8)):
        A(f"v_mov_b32 v{r}, 0")
    vm.wait("pro", [("dma", 0), ("q", 0)])
    A(f"s_waitcnt vmcnt({vm.need['pro']})")
    if TP == 5: stamp(A, 3)
    for r in (Q4A, Q4A+1, Q4B, Q4B+1):
        A(f"v_cndmask_b32 v{r}, v{r}, v{P}, vcc")
    A("s_barrier")
    def koff(t): return ((t >> 2) & 3)*CH + (t & 3)*1280
    def voff(t, f): return ((t >> 2) & 3)*CH + 5120 + (t & 3)*2048 + f*1024
    rdK16 = lambda t: f"ds_read_b128 {vr(K16,4)}, v{vKV} offset:{koff(t)}"
    rdK4 = lambda t: f"ds_read_b64 {vr(K4[t & 1],2)}, v{vK4a} offset:{koff(t)}"
    rdV1 = lambda t: f"ds_read_b128 {vr(V1,4)}, v{vKV} offset:{voff(t,0)}"
    rdV2 = lambda t: f"ds_read_b128 {vr(V2,4)}, v{vKV} offset:{voff(t,1)}"
    mS1 = lambda d, q: f"v_mfma_f32_32x32x16_bf16 {vr(d,16)}, {vr(K16,4)}, {vr(q,4)}, 0"
    mS2 = lambda d, q, t: f"v_mfma_f32_32x32x8_bf16 {vr(d,16)}, {vr(K4[t & 1],2)}, {vr(q,2)}, {vr(d,16)}"
    mP1 = lambda o: f"v_mfma_f32_32x32x16_bf16 {vr(o,16)}, {vr(V1,4)}, {vr(P,4)}, {vr(o,16)}"
    mP2 = lambda o: f"v_mfma_f32_32x32x16_bf16 {vr(o,16)}, {vr(V2,4)}, {vr(P+4,4)}, {vr(o,16)}"
    A(rdK16(0)); A(rdK4(0)); A(rdV1(0))
    A("s_waitcnt lgkmcnt(0)")
    A(mS1(SA, Q16A))
    for r in range(ACC, ACC+40): A(f"v_mov_b32 v{r}, 0")
    A(mS2(SA, Q4A, 0))
    for r in range(ACC+40, ACC+80): A(f"v_mov_b32 v{r}, 0")
    A(f"s_mov_b32 s{sCNT}, 0")
    if not TP: stamp(A, 1)
    def valu(cur, q):
        e = E[q & 1]; pe = E[(q+1) & 1]; pp = P + 2*((q-1) & 3)
        return [f"v_cvt_pk_bf16_f32 v{pp}, v{pe}, v{pe+1}",
                f"v_exp_f32 v{e}, v{cur+4*q}", f"v_exp_f32 v{e+1}, v{cur+4*q+1}",
                f"v_cvt_pk_bf16_f32 v{pp+1}, v{pe+2}, v{pe+3}",
                f"v_exp_f32 v{e+2}, v{cur+4*q+2}", f"v_exp_f32 v{e+3}, v{cur+4*q+3}"]
    def body(it, emit):
        def E_(s):
            if not emit: return
            if asmlib.OPT.get("nolds") and (s.startswith("ds_read") or "lgkmcnt" in s): return
            if asmlib.OPT.get("nomfma") and s.startswith("v_mfma"): return
            if asmlib.OPT.get("noexp") and s.startswith("v_exp"): return
            A(s)
        for u in range(32):
            t = u >> 1
            gt = it*16 + t
            ev = (u & 1) == 0
            if ev and (t & 3) == 3:
                c = gt >> 2
                wid = ("bar", u)
                vm.wait(wid, [("dma", c+1)])
                if not asmlib.OPT.get("nobar"):
                    E_(f"s_waitcnt vmcnt(@{wid}@)")
                    E_("s_barrier")
                if asmlib.OPT.get("prio") == 2:
                    par = (t >> 2) & 1
                    lab = f"{name}_p{u}"
                    E_(f"s_cmp_eq_u32 s{sHF}, {par}")
                    E_(f"s_cbranch_scc1 {lab}a")
                    E_("s_setprio 0")
                    E_(f"s_branch {lab}b")
                    if emit: A.label(f"{lab}a")
                    E_("s_setprio 1")
                    if emit: A.label(f"{lab}b")
                if u == 14:
                    E_(f"s_cmp_eq_u32 s{sCNT}, 1")
                    E_(f"s_cselect_b32 s{sT}, 0x7fff0000, 0")
                    E_(f"v_or_b32 v{vDma}, s{sT}, v{vL16}")
                pend_dma = c+3
            fs, fmt = divmod(max(u-2, 0), 5)
            gs = it*6 + fs
            dof = u >= 2 and not asmlib.OPT.get("noffn2")
            def ffn():
                if not dof: return
                b = fslot(fs)
                if u == 22:
                    E_(f"s_cmp_eq_u32 s{sCNT}, 1")
                    E_(f"s_cbranch_scc0 {name}_nowo")
                    for mt in range(5): E_(f"s_mov_b32 s{sA0+mt}, s{sWo+mt}")
                    E_(f"s_add_u32 s{sB0}, s{sWo}, 2048")
                    E_(f"v_mov_b32 v{vFo}, v{vL16}")
                    if emit: A.label(f"{name}_nowo")
                if fmt == 0:
                    wid = ("f", u)
                    vm.wait(wid, [("f", gs)])
                    E_(f"s_waitcnt vmcnt(@{wid}@)")
                d = vr(ACC+16*fmt,16)
                if not asmlib.OPT.get("noffnmfma"): E_(f"v_mfma_f32_32x32x16_bf16 {d}, {vr(b+4*fmt,4)}, {vr(b+20,4)}, {d}")
                imm = (fs & 1)*1024
                fload(gs+2, fmt, imm, emit)
                if fmt == 4:
                    fload(gs+2, 5, imm, emit)
                    if fs & 1:
                        E_(f"v_add_u32 v{vFo}, 2048, v{vFo}")
            cur = SA if ev else SB
            vv = valu(cur, 0) + valu(cur, 1) + valu(cur, 2) + valu(cur, 3)
            if ev:
                m = {"S1": [mS1(SB, Q16B), rdK16(t+1), rdK4(t+1)],
                     "P2": [mP2(OB), rdV2(t)],
                     "S2": [mS2(SB, Q4B, t)],
                     "P1": ["s_waitcnt lgkmcnt(3)", mP1(OA)]}
            else:
                m = {"S1": ["s_waitcnt lgkmcnt(0)", mS1(SA, Q16A)],
                     "P2": [mP2(OA)],
                     "S2": [mS2(SA, Q4A, t+1)],
                     "P1": [mP1(OB), rdV1(t+1)]}
            if dof: pos = {0: "S1", 5: "F", 10: "P2", 14: "S2", 19: "P1"}
            else:   pos = {0: "S1", 6: "P2", 12: "S2", 18: "P1"}
            dpos = {}
            if ev and (t & 3) == 3: dpos = {3: 0, 16: 1}
            if (not ev) and (t & 3) == 3: dpos = {3: 2, 16: 3}
            for i, l in enumerate(vv):
                if i in dpos:
                    dma_piece((gt >> 2) + 3, dpos[i], emit)
                if i in pos:
                    k = pos[i]
                    if k == "F": ffn()
                    else:
                        for x in m[k]: E_(x)
                E_(l)
    PR = asmlib.OPT.get("prio", 0)
    if PR == 1:
        A(f"s_cmp_eq_u32 s{sHF}, 1")
        A(f"s_cbranch_scc0 {name}_noprio")
        A("s_setprio 1")
        A.label(f"{name}_noprio")
    body(0, False); body(1, False)
    start = len(A.lines)
    A(".p2align 6")
    A.label(f"{name}_aloop")
    saved = (list(vm.seq), dict(vm.need))
    body(0, True)
    vm.seq, vm.need = saved
    for i in range(start, len(A.lines)):
        l = A.lines[i]
        if "@" in l:
            key = eval(l.split("@")[1])
            A.lines[i] = l.split("@")[0] + str(vm.need[key]) + l.split("@")[2]
    A(f"s_add_u32 s{sCNT}, s{sCNT}, 1")
    A(f"s_cmp_lt_u32 s{sCNT}, 2")
    A(f"s_cbranch_scc1 {name}_aloop")
    A("s_setprio 0")
    A(f"v_cvt_pk_bf16_f32 v{P+6}, v{E[1]}, v{E[1]+1}")
    A(f"v_cvt_pk_bf16_f32 v{P+7}, v{E[1]+2}, v{E[1]+3}")
    A("s_waitcnt lgkmcnt(0)")
    A("s_nop 1")
    A(mP2(OB))
    if TP not in (4, 5): stamp(A, 0 if TP else 2)
    def wo_reg(st, mt):
        if st == 0: return FR + 4*mt
        if st == 1: return FR + 24 + 4*mt
        if mt == 0 and st == 2: return FR + 20
        if mt == 0 and st == 3: return FR + 44
        rest = [(2,1),(2,2),(2,3),(2,4),(3,1),(3,2),(3,3),(3,4),(4,0),(4,1),(4,2),(4,3),(4,4)]
        i = rest.index((st, mt))
        return 16 + 4*i if i < 10 else 88 + 4*(i-10)
    BFR = 100
    CATT, RA, RB = 8*CH, 0, 65536
    vWr, vRd, vC1, vC2 = 9, 10, 11, 12
    A(f"s_mul_i32 s{sT}, s{sW}, 3072")
    A(f"s_add_u32 s{sT}, s{sT}, {CATT}")
    A(f"v_add_u32 v{vC1}, s{sT}, v{vL16}")
    A(f"s_xor_b32 s{sT2}, s{sW}, 4")
    A(f"s_mul_i32 s{sT2}, s{sT2}, 3072")
    A(f"s_add_u32 s{sT2}, s{sT2}, {CATT}")
    A(f"v_add_u32 v{vC2}, s{sT2}, v{vL16}")
    A("s_nop 7")
    A(f"s_cmp_eq_u32 s{sHF}, 0")
    A(f"s_cbranch_scc0 {name}_cmb1")
    A("s_nop 3")
    for j in range(3): A(f"ds_write_b128 v{vC1}, {vr(OB+4*j,4)} offset:{j*1024}")
    A(f"s_branch {name}_cmb2")
    A.label(f"{name}_cmb1")
    for j in range(3): A(f"ds_write_b128 v{vC1}, {vr(OA+4*j,4)} offset:{j*1024}")
    A("s_nop 1")
    for j in range(12): A(f"v_mov_b32 v{OA+j}, v{OB+j}")
    A.label(f"{name}_cmb2")
    A("s_waitcnt lgkmcnt(0)")
    A("s_barrier")
    for j in range(3): A(f"ds_read_b128 {vr(OB+4*j,4)}, v{vC2} offset:{j*1024}")
    A("s_waitcnt lgkmcnt(0)")
    O = OA
    for j in range(12): A(f"v_add_f32 v{O+j}, v{O+j}, v{OB+j}")
    vLs, vR = OB, OB+1
    def rowsum():
        A(f"v_mov_b32 v{vLs}, v{O+8}")
        A(f"v_mov_b32 v{vR}, v{O+8}")
        A("s_nop 1")
        A(f"v_permlane32_swap_b32 v{vLs}, v{vR}")
        A("s_nop 1")
    rowsum()
    A(f"v_mov_b32 v{OB+2}, 0")
    for r in range(12): A(f"v_fma_f32 v{OB+2}, v{O+r}, 0, v{OB+2}")
    A(f"v_cmp_o_f32 vcc, v{OB+2}, v{OB+2}")
    A(f"v_cmp_le_f32 s[50:51], s52, v{vR}")
    A(f"v_cmp_ge_f32 s[54:55], s53, v{vR}")
    A("s_nop 3")
    A("s_and_b64 vcc, vcc, s[50:51]")
    A("s_and_b64 vcc, vcc, s[54:55]")
    A("s_cmp_eq_u64 vcc, -1")
    A(f"s_cbranch_scc1 {name}_fastok")
    FS, FP, FK16, FK4, FV1, FV2, FM, FA, FT = 16, 48, 100, 104, 108, 112, 116, 117, 118
    FQ16, FQ4 = 32, 36
    A(f"s_cmp_eq_u32 s{sHF}, 0")
    A(f"s_cbranch_scc0 {name}_fb_b")
    for j in range(4): A(f"v_mov_b32 v{FQ16+j}, v{Q16A+j}")
    for j in range(2): A(f"v_mov_b32 v{FQ4+j}, v{Q4A+j}")
    A(f"s_branch {name}_fb_go")
    A.label(f"{name}_fb_b")
    for j in range(4): A(f"v_mov_b32 v{FQ16+j}, v{Q16B+j}")
    for j in range(2): A(f"v_mov_b32 v{FQ4+j}, v{Q4B+j}")
    A.label(f"{name}_fb_go")
    for r in range(16): A(f"v_mov_b32 v{O+r}, 0")
    A(f"v_mov_b32 v{FM}, 0xff7fffff")
    A("v_and_b32 v3, 31, v2")
    A("v_lshlrev_b32 v14, 3, v3")
    A("v_add_u32 v14, 1024, v14")
    A(f"s_mul_i32 s56, s{sHEAD}, {HS_KV}")
    A(f"s_add_u32 s56, s56, {KV}")
    A("s_mov_b32 s57, 0")
    A.label(f"{name}_fb_loop")
    A("s_lshr_b32 s58, s57, 2")
    A(f"s_mul_i32 s58, s58, {CH}")
    A("s_add_u32 s58, s58, s56")
    A("s_and_b32 s59, s57, 3")
    A("s_mul_i32 s60, s59, 1280")
    A("s_add_u32 s60, s60, s58")
    A("s_lshl_b32 s59, s59, 11")
    A("s_add_u32 s59, s59, s58")
    A("s_add_u32 s59, s59, 5120")
    A(f"buffer_load_dwordx4 {vr(FK16,4)}, v{vL16}, {sr(SRD,4)}, s60 offen{LD1}")
    A(f"buffer_load_dwordx2 {vr(FK4,2)}, v14, {sr(SRD,4)}, s60 offen{LD1}")
    A(f"buffer_load_dwordx4 {vr(FV1,4)}, v{vL16}, {sr(SRD,4)}, s59 offen{LD1}")
    A(f"buffer_load_dwordx4 {vr(FV2,4)}, v{vL16}, {sr(SRD,4)}, s59 offen offset:1024{LD1}")
    A("s_waitcnt vmcnt(0)")
    A(f"v_mfma_f32_32x32x16_bf16 {vr(FS,16)}, {vr(FK16,4)}, {vr(FQ16,4)}, 0")
    A("s_nop 15")
    A(f"v_mfma_f32_32x32x8_bf16 {vr(FS,16)}, {vr(FK4,2)}, {vr(FQ4,2)}, {vr(FS,16)}")
    A("s_nop 15")
    A(f"v_max3_f32 v{FT}, v{FS}, v{FS+1}, v{FS+2}")
    for j in range(3, 15, 2): A(f"v_max3_f32 v{FT}, v{FT}, v{FS+j}, v{FS+j+1}")
    A(f"v_max_f32 v{FT}, v{FT}, v{FS+15}")
    A(f"v_mov_b32 v{FT+1}, v{FT}")
    A("s_nop 1")
    A(f"v_permlane32_swap_b32 v{FT}, v{FT+1}")
    A("s_nop 1")
    A(f"v_max3_f32 v{FT}, v{FT}, v{FT+1}, v{FM}")
    A(f"v_sub_f32 v{FA}, v{FM}, v{FT}")
    A(f"v_exp_f32 v{FA}, v{FA}")
    A(f"v_mov_b32 v{FM}, v{FT}")
    for j in range(16): A(f"v_sub_f32 v{FS+j}, v{FS+j}, v{FM}")
    for j in range(16): A(f"v_exp_f32 v{FS+j}, v{FS+j}")
    A("s_nop 0")
    for j in range(8): A(f"v_cvt_pk_bf16_f32 v{FP+j}, v{FS+2*j}, v{FS+2*j+1}")
    for j in range(16): A(f"v_mul_f32 v{O+j}, v{O+j}, v{FA}")
    A("s_nop 1")
    A(f"v_mfma_f32_32x32x16_bf16 {vr(O,16)}, {vr(FV1,4)}, {vr(FP,4)}, {vr(O,16)}")
    A(f"v_mfma_f32_32x32x16_bf16 {vr(O,16)}, {vr(FV2,4)}, {vr(FP+4,4)}, {vr(O,16)}")
    A("s_nop 15")
    A("s_add_u32 s57, s57, 1")
    A("s_cmp_lt_u32 s57, 64")
    A(f"s_cbranch_scc1 {name}_fb_loop")
    rowsum()
    A.label(f"{name}_fastok")
    A(f"v_rcp_f32 v{vR}, v{vR}")
    A("s_nop 0")
    A(f"v_mul_f32 v{vR}, v{vR}, v{vG1}")
    for r in range(12): A(f"v_mul_f32 v{O+r}, v{O+r}, v{vR}")
    OP = OB + 4
    for j in range(6): A(f"v_cvt_pk_bf16_f32 v{OP+j}, v{O+2*j}, v{O+2*j+1}")
    A(f"s_add_u32 s{sT}, s{sQT}, s{sHF}")
    A(f"s_mul_i32 s{sT}, s{sT}, 40960")
    A(f"s_add_u32 s{sT}, s{sT}, {OF}")
    A(f"s_lshl_b32 s{sT2}, s{sHEAD}, 10")
    A(f"s_add_u32 s{sT2}, s{sT2}, s{sT}")
    A(f"buffer_store_dwordx4 {vr(OP,4)}, v{vL16}, {sr(SRD,4)}, s{sT2} offen sc1")
    A(f"s_lshr_b32 s{sT2}, s{sHEAD}, 2")
    A(f"s_add_u32 s{sT2}, s{sT2}, 32")
    A(f"s_lshl_b32 s{sT2}, s{sT2}, 10")
    A(f"s_add_u32 s{sT}, s{sT}, s{sT2}")
    A(f"s_bfe_u32 s{sT2}, s{sHEAD}, 0x10001")
    A(f"s_lshl_b32 s{sT2}, s{sT2}, 9")
    A(f"s_add_u32 s{sT}, s{sT}, s{sT2}")
    A(f"s_and_b32 s{sT2}, s{sHEAD}, 1")
    A(f"s_lshl_b32 s{sT2}, s{sT2}, 3")
    A(f"s_add_u32 s{sT}, s{sT}, s{sT2}")
    A("s_mov_b32 exec_hi, 0")
    A(f"buffer_store_dwordx2 {vr(OP+4,2)}, v{vL16}, {sr(SRD,4)}, s{sT} offen sc1")
    A("s_mov_b64 exec, -1")
    if TP == 1: stamp(A, 1)
    sOF = 37
    A(f"s_mul_i32 s{sOF}, s{sTT}, 40960")
    A(f"s_mul_i32 s{sT2}, s{sW}, {5*1024}")
    A(f"s_add_u32 s{sOF}, s{sOF}, s{sT2}")
    A(f"s_add_u32 s{sOF}, s{sOF}, {OF}")
    A(f"v_add_u32 v15, 4096, v{vL16}")
    def ofloads():
        for st in range(5):
            if st < 4:
                A(f"buffer_load_dwordx4 {vr(BFR+4*st,4)}, v{vL16}, {sr(SRD,4)}, s{sOF} offen offset:{st*1024} sc1")
            else:
                A(f"buffer_load_dwordx4 {vr(BFR+4*st,4)}, v15, {sr(SRD,4)}, s{sOF} offen sc1")
    def ofcheck():
        A(f"v_max3_u32 v14, v{BFR}, v{BFR+1}, v{BFR+2}")
        for j in range(3, 19, 2):
            A(f"v_max3_u32 v14, v14, v{BFR+j}, v{BFR+j+1}")
        A(f"v_max_u32 v14, v14, v{BFR+19}")
        A("v_cmp_eq_u32 vcc, -1, v14")
    A(f"v_sub_f32 v{vG2}, 1.0, v{vG2}")
    k = 0
    for st in range(2, 5):
        for mt in range(5):
            if st < 4 and mt == 0: continue
            if st < 4:
                A(f"buffer_load_dwordx4 {vr(wo_reg(st,mt),4)}, v{vL16}, {sr(SRD,4)}, s{sWo+mt} offen offset:{st*1024}{LD1}")
            else:
                A(f"buffer_load_dwordx4 {vr(wo_reg(st,mt),4)}, v15, {sr(SRD,4)}, s{sWo+mt} offen{LD1}")
            for r in range(ACC+k, min(ACC+k+7, ACC+80)): A(f"v_mul_f32 v{r}, v{r}, v{vG2}")
            k = min(k+7, 80)
    assert k == 80
    A(f"s_mov_b32 s{sT2}, 0")
    A.label(f"{name}_poll")
    ofloads()
    A("s_waitcnt vmcnt(0)")
    ofcheck()
    A(f"s_add_u32 s{sT2}, s{sT2}, 1")
    A("s_nop 1")
    A(f"s_cbranch_vccz {name}_polldone")
    A(f"s_cmp_lt_u32 s{sT2}, 0x40000")
    A(f"s_cbranch_scc1 {name}_poll")
    A.label(f"{name}_polldone")
    if TP == 1: stamp(A, 2)
    if TP == 4: stamp(A, 0)
    for st in range(5):
        for mt in range(5):
            d = vr(ACC+16*mt,16)
            A(f"v_mfma_f32_32x32x16_bf16 {d}, {vr(wo_reg(st,mt),4)}, {vr(BFR+4*st,4)}, {d}")
    RB2 = 65536
    if TP == 4: stamp(A, 1)
    PK = 16
    A("s_nop 15")
    G4 = 56
    for mt in (0, 1, 2, 3, 4):
        for q in range(4):
            a = ACC + 16*mt + 4*q
            d = PK + 32 + 2*q if mt == 4 else G4 + 4*((mt & 1)*4 + q) + 2*(mt >> 1)
            A(f"v_cvt_pk_bf16_f32 v{d}, v{a}, v{a+1}")
            A(f"v_cvt_pk_bf16_f32 v{d+1}, v{a+2}, v{a+3}")
    A(f"s_lshl_b32 s{sT}, s{sW}, 13")
    A(f"v_add_u32 v{vWr}, s{sT}, v{vL16}")
    A(f"s_lshl_b32 s{sT}, s{sW}, 11")
    A(f"s_add_u32 s{sT}, s{sT}, {RB2}")
    A("v_lshlrev_b32 v13, 3, v2")
    A(f"v_add_u32 v14, s{sT}, v13")
    for d in range(8):
        A(f"ds_write_b128 v{vWr}, {vr(G4+4*d,4)} offset:{d*1024}")
    for q in range(4):
        A(f"ds_write_b64 v14, {vr(PK+32+2*q,2)} offset:{q*512}")
    A(f"s_lshl_b32 s{sT}, s{sW}, 10")
    A(f"v_add_u32 v{vRd}, s{sT}, v{vL16}")
    A(f"s_lshl_b32 s{sT}, s{sG}, 9")
    A(f"s_add_u32 s{sT}, s{sT}, {RB2}")
    A(f"v_add_u32 v14, s{sT}, v13")
    A("v_mov_b32 v12, 0x3f80")
    A("v_mov_b32 v11, 0x3f800000")
    SUMA, SUMB, SUMC = 56, 60, 64
    A("s_waitcnt lgkmcnt(0)")
    A("s_barrier")
    if TP == 4: stamp(A, 2)
    T0 = 16
    for s_ in range(8):
        A(f"ds_read_b128 {vr(T0+4*s_,4)}, v{vRd} offset:{s_*8192}")
    for s_ in range(8):
        A(f"ds_read_b64 {vr(88+2*s_,2)}, v14 offset:{s_*2048}")
    for r in range(SUMA, SUMA+12): A(f"v_mov_b32 v{r}, 0")
    for s_ in range(8):
        A(f"s_waitcnt lgkmcnt({min(15, 7-s_+8)})")
        for j in range(2):
            A(f"v_dot2_f32_bf16 v{SUMA+2*j}, v{T0+4*s_+j}, v12, v{SUMA+2*j}")
            A(f"v_dot2_f32_bf16 v{SUMA+2*j+1}, v{T0+4*s_+j}, v11, v{SUMA+2*j+1}")
            A(f"v_dot2_f32_bf16 v{SUMB+2*j}, v{T0+4*s_+2+j}, v12, v{SUMB+2*j}")
            A(f"v_dot2_f32_bf16 v{SUMB+2*j+1}, v{T0+4*s_+2+j}, v11, v{SUMB+2*j+1}")
    A("s_waitcnt lgkmcnt(0)")
    for s_ in range(8):
        for j in range(2):
            A(f"v_dot2_f32_bf16 v{SUMC+2*j}, v{88+2*s_+j}, v12, v{SUMC+2*j}")
            A(f"v_dot2_f32_bf16 v{SUMC+2*j+1}, v{88+2*s_+j}, v11, v{SUMC+2*j+1}")
    SRD_O = 44; sOUT = 48
    A("v_and_b32 v3, 31, v2")
    A(f"s_lshl_b32 s{sT}, s{sTT}, 5")
    A(f"v_add_u32 v3, s{sT}, v3")
    A("v_mul_u32_u24 v3, 1280, v3")
    A("v_lshrrev_b32 v14, 5, v2")
    A("v_lshl_add_u32 v3, v14, 3, v3")
    A(f"s_mul_i32 s{sT}, s{sCBK}, 320")
    A(f"s_lshl_b32 s{sT2}, s{sG}, 4")
    A(f"s_add_u32 s{sT}, s{sT}, s{sT2}")
    A(f"s_lshl_b32 s{sT2}, s{sHF}, 6")
    A(f"s_add_u32 s{sT2}, s{sT2}, s{sT}")
    A(f"s_mov_b32 s{SRD_O}, s{sOUT}")
    A(f"s_and_b32 s{SRD_O+1}, s{sOUT+1}, 0xffff")
    A(f"s_mov_b32 s{SRD_O+2}, {2048*1280}")
    A(f"s_mov_b32 s{SRD_O+3}, 0x20000")
    A("s_nop 3")
    for src, d in ((SUMA, 68), (SUMB, 70)):
        A(f"v_cvt_pk_bf16_f32 v{d}, v{src}, v{src+1}")
        A(f"v_cvt_pk_bf16_f32 v{d+1}, v{src+2}, v{src+3}")
    A(f"buffer_store_dwordx2 v[68:69], v3, {sr(SRD_O,4)}, s{sT2} offen")
    A(f"buffer_store_dwordx2 v[70:71], v3, {sr(SRD_O,4)}, s{sT2} offen offset:128")
    A(f"s_cmp_eq_u32 s{sHF}, 0")
    A(f"s_cbranch_scc0 {name}_fin")
    A(f"v_cvt_pk_bf16_f32 v72, v{SUMC}, v{SUMC+1}")
    A(f"v_cvt_pk_bf16_f32 v73, v{SUMC+2}, v{SUMC+3}")
    A(f"buffer_store_dwordx2 v[72:73], v3, {sr(SRD_O,4)}, s{sT} offen offset:256")
    A.label(f"{name}_fin")
    if asmlib.PROFILE:
        A("s_waitcnt vmcnt(0)")
        if TP != 5: stamp(A, 3)
        stamp_flush(A, 1, SRD, sW, 4)
    A.label(f"{name}_end")
    A("s_endpgm")
    return 256
```

```python
from asmlib import *
import asmlib
from layout import *
from k23 import ws_srd

K2_LDS = 8*CH + 24576

class VmTrack:
    def __init__(self):
        self.seq = []
        self.need = {}
    def issue(self, tag): self.seq.append(tag)
    def wait(self, wid, tags):
        idx = [i for i, t in enumerate(self.seq) if t in tags]
        if not idx: return
        n = len(self.seq) - 1 - max(idx)
        self.need[wid] = min(self.need.get(wid, 63), n)

def gen_k2(A, name, fused=False, env=None):
    if not fused: kernel_header(A, name)
    LD1 = ' sc1' if (fused and asmlib.OPT.get("ldsc1")) else ''
    sWS = 4; SRD = 8; sW = 12; sT, sT2, sT3 = 13, 14, 15
    sHEAD, sQT, sKV, sM0, sCNT, sG, sHF = 16, 17, 18, 19, 20, 21, 22
    sTT, sCBK = 23, 24
    sA0, sB0 = 26, 31
    if not fused:
        A("s_cmp_ge_u32 s2, 256")
        A(f"s_cbranch_scc1 {name}_end")
    TP = asmlib.OPT.get("tailprof")
    if not TP or TP == 5: stamp(A, 0)
    A(f"s_load_dwordx2 {sr(sWS,2)}, s[0:1], {KA_WS}")
    A(f"s_load_dwordx2 s[38:39], s[0:1], {KA_DBG}")
    A(f"s_load_dwordx2 s[48:49], s[0:1], {KA_OUT}")
    A("v_lshrrev_b32 v1, 6, v0")
    A("v_and_b32 v2, 63, v0")
    A(f"v_readfirstlane_b32 s{sW}, v1")
    A(f"s_and_b32 s{sT}, s2, 7")
    A(f"s_lshr_b32 s{sT2}, s2, 3")
    A(f"s_and_b32 s{sT3}, s{sT2}, 3")
    A(f"s_lshl_b32 s{sHEAD}, s{sT}, 2")
    A(f"s_add_u32 s{sHEAD}, s{sHEAD}, s{sT3}")
    A(f"s_and_b32 s{sG}, s{sW}, 3")
    A(f"s_lshr_b32 s{sHF}, s{sW}, 2")
    A(f"s_lshr_b32 s{sQT}, s{sT2}, 2")
    A(f"s_lshl_b32 s{sQT}, s{sQT}, 3")
    A(f"s_lshl_b32 s{sT3}, s{sG}, 1")
    A(f"s_add_u32 s{sQT}, s{sQT}, s{sT3}")
    A(f"s_lshl_b32 s{sTT}, s{sT}, 3")
    A(f"s_and_b32 s{sT3}, s{sT2}, 7")
    A(f"s_add_u32 s{sTT}, s{sTT}, s{sT3}")
    A(f"s_lshr_b32 s{sCBK}, s{sT2}, 3")
    A("s_waitcnt lgkmcnt(0)")
    if TP == 5: stamp(A, 1)
    ws_srd(A, SRD, sWS)
    if asmlib.OPT.get("lone"):
        A(f"s_cmp_ge_u32 s{sW}, 4")
        A(f"s_cbranch_scc1 {name}_end")
    SA, SB = 16, 32; P = 48; OA, OB = 56, 72
    Q16A, Q4A, Q16B, Q4B = 88, 92, 94, 98
    K16 = 100; K4 = [104, 106]; V1 = 108; V2 = 112; E = [116, 120]
    FR = 124; ACC = 172
    vL16, vKV, vK4a, vDma, vFo = 4, 5, 6, 7, 8
    vKVy, vK4y = 10, 11
    sDX, sNB, sCHK = 40, 41, 42
    A(f"v_lshlrev_b32 v{vL16}, 4, v2")
    A(f"s_mul_i32 s{sT}, s{sHF}, {4*CH}")
    A(f"v_add_u32 v{vKV}, s{sT}, v{vL16}")
    A("v_and_b32 v3, 31, v2")
    A(f"v_lshlrev_b32 v9, 3, v3")
    A(f"v_add_u32 v9, 1024, v9")
    A(f"v_add_u32 v{vK4a}, s{sT}, v9")
    A(f"v_add_u32 v{vKVy}, {CH}, v{vKV}")
    A(f"v_add_u32 v{vK4y}, {CH}, v{vK4a}")
    A(f"s_mov_b32 s{sDX}, {2*CH}")
    A(f"s_mov_b32 s{sNB}, {3*CH}")
    A(f"s_mov_b32 s{sCHK}, 3")
    A(f"v_mov_b32 v{vDma}, v{vL16}")
    A(f"v_mov_b32 v{vFo}, v{vL16}")
    A(f"s_mul_i32 s{sM0}, s{sG}, 3072")
    A(f"s_add_u32 s{sM0}, s{sM0}, s{sT}")
    A(f"s_mul_i32 s{sKV}, s{sHEAD}, {HS_KV}")
    A(f"s_mul_i32 s{sT2}, s{sHF}, {8*CH}")
    A(f"s_add_u32 s{sKV}, s{sKV}, s{sT2}")
    A(f"s_mul_i32 s{sT2}, s{sG}, 3072")
    A(f"s_add_u32 s{sKV}, s{sKV}, s{sT2}")
    A(f"s_add_u32 s{sKV}, s{sKV}, {KV}")
    A("s_mov_b32 s52, 0x30800000")
    A("s_mov_b32 s53, 0x58800000")
    vm = VmTrack()
    def dma_piece(chunk, i, emit, dyn=False):
        if emit:
            if i == 0:
                if dyn:
                    A(f"s_cmp_ge_u32 s{sCHK}, 8")
                    A(f"s_cselect_b32 s{sT}, 0x7fff0000, 0")
                    A(f"s_add_u32 m0, s{sM0}, s{sNB}")
                    A(f"v_or_b32 v{vDma}, s{sT}, v{vL16}")
                else:
                    A(f"s_add_u32 m0, s{sM0}, {(chunk & 3)*CH}")
                    A("s_nop 0")
            A(f"buffer_load_dwordx4 v{vDma}, {sr(SRD,4)}, s{sKV} offen offset:{i*1024}{LD1} lds")
            if i == 3:
                A(f"s_add_u32 s{sKV}, s{sKV}, {CH}")
                if dyn:
                    A(f"s_add_u32 s{sCHK}, s{sCHK}, 1")
                    A(f"s_add_u32 s{sNB}, s{sNB}, {CH}")
                    A(f"s_cmp_eq_u32 s{sNB}, {4*CH}")
                    A(f"s_cselect_b32 s{sNB}, 0, s{sNB}")
        vm.issue(("dma", chunk))
    def dma(chunk, emit):
        for i in range(4): dma_piece(chunk, i, emit)
    def fslot(s): return FR + (s & 1)*24
    def fload(s, which, imm, emit):
        b = fslot(s)
        if emit and not (asmlib.OPT.get("noffnload") and s >= 2):
            if which < 5:
                A(f"buffer_load_dwordx4 {vr(b+4*which,4)}, v{vFo}, {sr(SRD,4)}, s{sA0+which} offen offset:{imm}{LD1}")
            else:
                A(f"buffer_load_dwordx4 {vr(b+20,4)}, v{vFo}, {sr(SRD,4)}, s{sB0} offen offset:{imm}{LD1}")
        vm.issue(("f", s))
    EARLY = bool(env and env.get("early"))
    if EARLY:
        QS = 8*CH
        LF = env["LF"]
        A(f"s_cmp_lt_u32 s{sW}, 4")
        A(f"s_cbranch_scc1 {name}_gwait")
        env["sync_hook"]()
        A(f"s_mul_i32 s{sT}, s{sHEAD}, {HS_Q}")
        A(f"s_mul_i32 s{sT2}, s{sQT}, 1280")
        A(f"s_add_u32 s{sT}, s{sT}, s{sT2}")
        if QF: A(f"s_add_u32 s{sT}, s{sT}, {QF}")
        A(f"s_mul_i32 s{sT2}, s{sG}, 3072")
        A(f"s_add_u32 m0, s{sT2}, {QS}")
        A("s_nop 0")
        for i in range(3):
            A(f"buffer_load_dwordx4 v{vL16}, {sr(SRD,4)}, s{sT} offen offset:{i*1024}{LD1} lds")
            vm.issue(("q", 0))
        A(f"s_mul_i32 s{sT}, s{sHEAD}, {HS_KV}")
        A(f"s_add_u32 s{sT}, s{sT}, s{sT2}")
        A(f"s_add_u32 s{sT}, s{sT}, {KV}")
        for c in range(3):
            for hf in range(2):
                A(f"s_add_u32 s{sT3}, s{sT}, {(8*hf + c)*CH}")
                A(f"s_add_u32 m0, s{sT2}, {hf*4*CH + c*CH}")
                A("s_nop 0")
                for i in range(4):
                    A(f"buffer_load_dwordx4 v{vL16}, {sr(SRD,4)}, s{sT3} offen offset:{i*1024}{LD1} lds")
                    vm.issue(("dma", c))
        vm.wait("pro", [("dma", 0), ("q", 0)])
        A(f"s_waitcnt vmcnt({vm.need['pro']})")
        A.label(f"{name}_gwait")
        A(f"s_add_u32 s{sKV}, s{sKV}, {3*CH}")
    else:
        A(f"s_mul_i32 s{sT}, s{sHEAD}, {HS_Q}")
        A(f"s_mul_i32 s{sT2}, s{sQT}, 1280")
        A(f"s_add_u32 s{sT}, s{sT}, s{sT2}")
        if QF: A(f"s_add_u32 s{sT}, s{sT}, {QF}")
        A(f"buffer_load_dwordx4 {vr(Q16A,4)}, v{vL16}, {sr(SRD,4)}, s{sT} offen{LD1}")
        A(f"buffer_load_dwordx2 {vr(Q4A,2)}, v9, {sr(SRD,4)}, s{sT} offen{LD1}")
        A(f"buffer_load_dwordx4 {vr(Q16B,4)}, v{vL16}, {sr(SRD,4)}, s{sT} offen offset:1280{LD1}")
        A(f"buffer_load_dwordx2 {vr(Q4B,2)}, v9, {sr(SRD,4)}, s{sT} offen offset:1280{LD1}")
        for i in range(4): vm.issue(("q", 0))
        dma(0, True)
        A("s_barrier")
        dma(1, True)
    A(f"s_mul_i32 s{sT}, s{sW}, {12*1024}")
    A(f"s_mul_i32 s{sT2}, s{sCBK}, {5*96*1024}")
    A(f"s_add_u32 s{sT2}, s{sT2}, s{sT}")
    A(f"s_add_u32 s{sA0}, s{sT2}, {WDF}")
    for mt in range(1, 5): A(f"s_add_u32 s{sA0+mt}, s{sA0+mt-1}, {96*1024}")
    A(f"s_mul_i32 s{sT2}, s{sTT}, {96*1024}")
    A(f"s_add_u32 s{sT2}, s{sT2}, s{sT}")
    A(f"s_add_u32 s{sB0}, s{sT2}, {HF}")
    if not EARLY: dma(2, True)
    vG1, vG2 = 252, 253
    sWo = 32
    A(f"s_mul_i32 s{sT}, s{sW}, {5*1024}")
    A(f"s_mul_i32 s{sT2}, s{sCBK}, {5*40*1024}")
    A(f"s_add_u32 s{sT2}, s{sT2}, s{sT}")
    A(f"s_add_u32 s{sWo}, s{sT2}, {WOF}")
    for mt in range(1, 5): A(f"s_add_u32 s{sWo+mt}, s{sWo+mt-1}, {40*1024}")
    A("v_cmp_lt_u32 vcc, 31, v2")
    for r in list(range(OA, OA+32)) + list(range(P, P+8)) + list(range(V2, V2+4)) + list(range(E[0], E[0]+8)):
        A(f"v_mov_b32 v{r}, 0")
    if EARLY:
        A("s_barrier")
        A(f"s_mul_i32 s{sT}, s{sG}, 3072")
        A(f"s_add_u32 s{sT}, s{sT}, {QS}")
        A(f"v_add_u32 v12, s{sT}, v{vL16}")
        A(f"v_add_u32 v13, s{sT}, v9")
        A(f"ds_read_b128 {vr(Q16A,4)}, v12")
        A(f"ds_read_b64 {vr(Q4A,2)}, v13")
        A(f"ds_read_b128 {vr(Q16B,4)}, v12 offset:1280")
        A(f"ds_read_b64 {vr(Q4B,2)}, v13 offset:1280")
        A("s_waitcnt lgkmcnt(0)")
        for r in (Q4A, Q4A+1, Q4B, Q4B+1):
            A(f"v_cndmask_b32 v{r}, v{r}, v{P}, vcc")
    else:
        vm.wait("pro", [("dma", 0), ("q", 0)])
        A(f"s_waitcnt vmcnt({vm.need['pro']})")
        if TP == 5: stamp(A, 3)
        for r in (Q4A, Q4A+1, Q4B, Q4B+1):
            A(f"v_cndmask_b32 v{r}, v{r}, v{P}, vcc")
        A("s_barrier")
    def reg(t, k4): return ((vK4a if k4 else vKV) if (t & 7) < 4 else (vK4y if k4 else vKVy))
    def koff(t): return (t & 3)*1280
    def voff(t, f): return 5120 + (t & 3)*2048 + f*1024
    rdK16 = lambda t: f"ds_read_b128 {vr(K16,4)}, v{reg(t,0)} offset:{koff(t)}"
    rdK4 = lambda t: f"ds_read_b64 {vr(K4[t & 1],2)}, v{reg(t,1)} offset:{koff(t)}"
    rdV1 = lambda t: f"ds_read_b128 {vr(V1,4)}, v{reg(t,0)} offset:{voff(t,0)}"
    rdV2 = lambda t: f"ds_read_b128 {vr(V2,4)}, v{reg(t,0)} offset:{voff(t,1)}"
    mS1 = lambda d, q: f"v_mfma_f32_32x32x16_bf16 {vr(d,16)}, {vr(K16,4)}, {vr(q,4)}, 0"
    mS2 = lambda d, q, t: f"v_mfma_f32_32x32x8_bf16 {vr(d,16)}, {vr(K4[t & 1],2)}, {vr(q,2)}, {vr(d,16)}"
    mP1 = lambda o: f"v_mfma_f32_32x32x16_bf16 {vr(o,16)}, {vr(V1,4)}, {vr(P,4)}, {vr(o,16)}"
    mP2 = lambda o: f"v_mfma_f32_32x32x16_bf16 {vr(o,16)}, {vr(V2,4)}, {vr(P+4,4)}, {vr(o,16)}"
    A(rdK16(0)); A(rdK4(0)); A(rdV1(0))
    A("s_waitcnt lgkmcnt(0)")
    A(mS1(SA, Q16A))
    for r in range(ACC, ACC+40): A(f"v_mov_b32 v{r}, 0")
    A(mS2(SA, Q4A, 0))
    for r in range(ACC+40, ACC+80): A(f"v_mov_b32 v{r}, 0")
    A(f"s_mov_b32 s{sCNT}, 0")
    if not TP: stamp(A, 1)
    def valu(cur, q):
        e = E[q & 1]; pe = E[(q+1) & 1]; pp = P + 2*((q-1) & 3)
        return [f"v_cvt_pk_bf16_f32 v{pp}, v{pe}, v{pe+1}",
                f"v_exp_f32 v{e}, v{cur+4*q}", f"v_exp_f32 v{e+1}, v{cur+4*q+1}",
                f"v_cvt_pk_bf16_f32 v{pp+1}, v{pe+2}, v{pe+3}",
                f"v_exp_f32 v{e+2}, v{cur+4*q+2}", f"v_exp_f32 v{e+3}, v{cur+4*q+3}"]
    FSLOT = {}
    k = 0
    for u in range(2, 16):
        FSLOT[u] = [(5, k)]; k += 1
        if u in (4, 6, 8, 10, 12, 14): FSLOT[u].append((16, k)); k += 1
    assert k == 20
    def gate_loads(emit):
        if emit:
            A("v_lshlrev_b32 v14, 2, v3")
            A(f"s_add_u32 s{sT}, s{sQT}, s{sHF}")
            A(f"s_lshl_b32 s{sT}, s{sT}, 7")
            A(f"s_add_u32 s{sT}, s{sT}, {GG}")
            A(f"buffer_load_dword v{vG1}, v14, {sr(SRD,4)}, s{sT} offen{LD1}")
            A(f"s_lshl_b32 s{sT}, s{sTT}, 7")
            A(f"s_add_u32 s{sT}, s{sT}, {GG}")
            A(f"buffer_load_dword v{vG2}, v14, {sr(SRD,4)}, s{sT} offen{LD1}")
        vm.issue(("g", 0)); vm.issue(("g", 0))
    def body(kind, it, emit):
        def E_(s):
            if emit: A(s)
        for u in range(16):
            t = u >> 1
            gt = it*8 + t
            ev = (u & 1) == 0
            if ev and (t & 3) == 3:
                c = gt >> 2
                wid = ("bar", kind, u)
                vm.wait(wid, [("dma", c+1)])
                E_(f"s_waitcnt vmcnt(@{wid}@)")
                if kind == 0 and u == 14 and emit and gate_hook: gate_hook()
                if kind == 0 and u == 6 and emit and env and env.get("pre_b"): env["pre_b"]()
                E_("s_barrier")
                if kind == 0 and u == 6 and emit and env and env.get("post_b"): env["post_b"]()
            if u == 8:
                E_(f"v_add_u32 v{vKV}, s{sDX}, v{vKV}")
                E_(f"v_add_u32 v{vK4a}, s{sDX}, v{vK4a}")
            if u == 15:
                E_(f"v_add_u32 v{vKVy}, s{sDX}, v{vKVy}")
                E_(f"v_add_u32 v{vK4y}, s{sDX}, v{vK4y}")
            def ffn(k):
                fs, fmt = divmod(k, 5)
                gs = (it-1)*4 + fs
                b = fslot(fs)
                if k == 10:
                    E_(f"s_cmp_eq_u32 s{sCNT}, 2")
                    E_(f"s_cbranch_scc0 {name}_nowo")
                    for mt in range(5): E_(f"s_mov_b32 s{sA0+mt}, s{sWo+mt}")
                    E_(f"s_add_u32 s{sB0}, s{sWo}, 2048")
                    E_(f"v_mov_b32 v{vFo}, v{vL16}")
                    if emit: A.label(f"{name}_nowo")
                if fmt == 0:
                    wid = ("f", k)
                    vm.wait(wid, [("f", gs)])
                    E_(f"s_waitcnt vmcnt(@{wid}@)")
                d = vr(ACC+16*fmt,16)
                E_(f"v_mfma_f32_32x32x16_bf16 {d}, {vr(b+4*fmt,4)}, {vr(b+20,4)}, {d}")
                imm = (fs & 1)*1024
                fload(gs+2, fmt, imm, emit)
                if fmt == 4:
                    fload(gs+2, 5, imm, emit)
                    if fs & 1:
                        E_(f"v_add_u32 v{vFo}, 2048, v{vFo}")
            cur = SA if ev else SB
            vv = valu(cur, 0) + valu(cur, 1) + valu(cur, 2) + valu(cur, 3)
            if ev:
                m = {"S1": [mS1(SB, Q16B), rdK16(t+1), rdK4(t+1)],
                     "P2": [mP2(OB), rdV2(t)],
                     "S2": [mS2(SB, Q4B, t)],
                     "P1": ["s_waitcnt lgkmcnt(3)", mP1(OA)]}
            else:
                m = {"S1": ["s_waitcnt lgkmcnt(0)", mS1(SA, Q16A)],
                     "P2": [mP2(OA)],
                     "S2": [mS2(SA, Q4A, t+1)],
                     "P1": [mP1(OB), rdV1(t+1)]}
            fsl = dict(FSLOT.get(u, [])) if kind == 1 else {}
            if len(fsl) == 2:   pos = {0: "S1", 8: "P2", 12: "S2", 20: "P1"}; fsl = {4: fsl[5], 16: fsl[16]}
            elif len(fsl) == 1: pos = {0: "S1", 10: "P2", 14: "S2", 19: "P1"}
            else:               pos = {0: "S1", 6: "P2", 12: "S2", 18: "P1"}
            dpos = {}
            if (t & 3) == 3: dpos = {3: 0, 17: 1} if ev else {3: 2, 17: 3}
            xl = {}
            if kind == 0 and u == 14: xl = {8: [("g",)], 10: [(0,5)], 12: [(0,0)], 14: [(0,1)], 20: [(0,2)], 22: [(0,3)]}
            if kind == 0 and u == 15: xl = {1: [(0,4)], 5: [(1,5)], 8: [(1,0)], 10: [(1,1)], 14: [(1,2)], 20: [(1,3)], 22: [(1,4)]}
            for i, l in enumerate(vv):
                if i in dpos:
                    dma_piece((gt >> 2) + 3, dpos[i], emit, dyn=True)
                if i in xl:
                    for x in xl[i]:
                        if x[0] == "g": gate_loads(emit)
                        else: fload(x[0], x[1], x[0]*1024, emit)
                if i in fsl: ffn(fsl[i])
                if i in pos:
                    for x in m[pos[i]]: E_(x)
                E_(l)
            if kind == 0 and u == 15: E_(f"v_add_u32 v{vFo}, 2048, v{vFo}")
        E_(f"s_sub_u32 s{sDX}, 0, s{sDX}")
    gate_hook = env.get("gate_hook") if env else None
    pre = list(vm.seq)
    body(0, 0, False)
    for it in (1, 2, 3): body(1, it, False)
    need = dict(vm.need)
    def emit_body(kind, it):
        start = len(A.lines)
        sv = (list(vm.seq), dict(vm.need))
        body(kind, it, True)
        vm.seq, vm.need = sv
        for i in range(start, len(A.lines)):
            l = A.lines[i]
            if "@" in l:
                key = eval(l.split("@")[1])
                A.lines[i] = l.split("@")[0] + str(need[key]) + l.split("@")[2]
    emit_body(0, 0)
    A(f"s_mov_b32 s{sCNT}, 0")
    A(".p2align 6")
    A.label(f"{name}_aloop")
    emit_body(1, 1)
    A(f"s_add_u32 s{sCNT}, s{sCNT}, 1")
    A(f"s_cmp_lt_u32 s{sCNT}, 3")
    A(f"s_cbranch_scc1 {name}_aloop")
    A("s_setprio 0")
    A(f"v_cvt_pk_bf16_f32 v{P+6}, v{E[1]}, v{E[1]+1}")
    A(f"v_cvt_pk_bf16_f32 v{P+7}, v{E[1]+2}, v{E[1]+3}")
    A("s_waitcnt lgkmcnt(0)")
    A("s_nop 1")
    A(mP2(OB))
    if TP not in (4, 5): stamp(A, 0 if TP else 2)
    def wo_reg(st, mt):
        if st == 0: return FR + 4*mt
        if st == 1: return FR + 24 + 4*mt
        if mt == 0 and st == 2: return FR + 20
        if mt == 0 and st == 3: return FR + 44
        rest = [(2,1),(2,2),(2,3),(2,4),(3,1),(3,2),(3,3),(3,4),(4,0),(4,1),(4,2),(4,3),(4,4)]
        i = rest.index((st, mt))
        return 16 + 4*i if i < 10 else 88 + 4*(i-10)
    BFR = 100
    CATT, RA, RB = 8*CH, 0, 65536
    vWr, vRd, vC1, vC2 = 9, 10, 11, 12
    A(f"s_mul_i32 s{sT}, s{sW}, 3072")
    A(f"s_add_u32 s{sT}, s{sT}, {CATT}")
    A(f"v_add_u32 v{vC1}, s{sT}, v{vL16}")
    A(f"s_xor_b32 s{sT2}, s{sW}, 4")
    A(f"s_mul_i32 s{sT2}, s{sT2}, 3072")
    A(f"s_add_u32 s{sT2}, s{sT2}, {CATT}")
    A(f"v_add_u32 v{vC2}, s{sT2}, v{vL16}")
    A("s_nop 7")
    A(f"s_cmp_eq_u32 s{sHF}, 0")
    A(f"s_cbranch_scc0 {name}_cmb1")
    A("s_nop 3")
    for j in range(3): A(f"ds_write_b128 v{vC1}, {vr(OB+4*j,4)} offset:{j*1024}")
    A(f"s_branch {name}_cmb2")
    A.label(f"{name}_cmb1")
    for j in range(3): A(f"ds_write_b128 v{vC1}, {vr(OA+4*j,4)} offset:{j*1024}")
    A("s_nop 1")
    for j in range(12): A(f"v_mov_b32 v{OA+j}, v{OB+j}")
    A.label(f"{name}_cmb2")
    A("s_waitcnt lgkmcnt(0)")
    A("s_barrier")
    for j in range(3): A(f"ds_read_b128 {vr(OB+4*j,4)}, v{vC2} offset:{j*1024}")
    A("s_waitcnt lgkmcnt(0)")
    O = OA
    for j in range(12): A(f"v_add_f32 v{O+j}, v{O+j}, v{OB+j}")
    vLs, vR = OB, OB+1
    def rowsum():
        A(f"v_mov_b32 v{vLs}, v{O+8}")
        A(f"v_mov_b32 v{vR}, v{O+8}")
        A("s_nop 1")
        A(f"v_permlane32_swap_b32 v{vLs}, v{vR}")
        A("s_nop 1")
    rowsum()
    A(f"v_mov_b32 v{OB+2}, 0")
    for r in range(12): A(f"v_fma_f32 v{OB+2}, v{O+r}, 0, v{OB+2}")
    A(f"v_cmp_o_f32 vcc, v{OB+2}, v{OB+2}")
    A(f"v_cmp_le_f32 s[50:51], s52, v{vR}")
    A(f"v_cmp_ge_f32 s[54:55], s53, v{vR}")
    A("s_nop 3")
    A("s_and_b64 vcc, vcc, s[50:51]")
    A("s_and_b64 vcc, vcc, s[54:55]")
    A("s_cmp_eq_u64 vcc, -1")
    A(f"s_cbranch_scc1 {name}_fastok")
    FS, FP, FK16, FK4, FV1, FV2, FM, FA, FT = 16, 48, 100, 104, 108, 112, 116, 117, 118
    FQ16, FQ4 = 32, 36
    A(f"s_cmp_eq_u32 s{sHF}, 0")
    A(f"s_cbranch_scc0 {name}_fb_b")
    for j in range(4): A(f"v_mov_b32 v{FQ16+j}, v{Q16A+j}")
    for j in range(2): A(f"v_mov_b32 v{FQ4+j}, v{Q4A+j}")
    A(f"s_branch {name}_fb_go")
    A.label(f"{name}_fb_b")
    for j in range(4): A(f"v_mov_b32 v{FQ16+j}, v{Q16B+j}")
    for j in range(2): A(f"v_mov_b32 v{FQ4+j}, v{Q4B+j}")
    A.label(f"{name}_fb_go")
    for r in range(16): A(f"v_mov_b32 v{O+r}, 0")
    A(f"v_mov_b32 v{FM}, 0xff7fffff")
    A("v_and_b32 v3, 31, v2")
    A("v_lshlrev_b32 v14, 3, v3")
    A("v_add_u32 v14, 1024, v14")
    A(f"s_mul_i32 s56, s{sHEAD}, {HS_KV}")
    A(f"s_add_u32 s56, s56, {KV}")
    A("s_mov_b32 s57, 0")
    A.label(f"{name}_fb_loop")
    A("s_lshr_b32 s58, s57, 2")
    A(f"s_mul_i32 s58, s58, {CH}")
    A("s_add_u32 s58, s58, s56")
    A("s_and_b32 s59, s57, 3")
    A("s_mul_i32 s60, s59, 1280")
    A("s_add_u32 s60, s60, s58")
    A("s_lshl_b32 s59, s59, 11")
    A("s_add_u32 s59, s59, s58")
    A("s_add_u32 s59, s59, 5120")
    A(f"buffer_load_dwordx4 {vr(FK16,4)}, v{vL16}, {sr(SRD,4)}, s60 offen{LD1}")
    A(f"buffer_load_dwordx2 {vr(FK4,2)}, v14, {sr(SRD,4)}, s60 offen{LD1}")
    A(f"buffer_load_dwordx4 {vr(FV1,4)}, v{vL16}, {sr(SRD,4)}, s59 offen{LD1}")
    A(f"buffer_load_dwordx4 {vr(FV2,4)}, v{vL16}, {sr(SRD,4)}, s59 offen offset:1024{LD1}")
    A("s_waitcnt vmcnt(0)")
    A(f"v_mfma_f32_32x32x16_bf16 {vr(FS,16)}, {vr(FK16,4)}, {vr(FQ16,4)}, 0")
    A("s_nop 15")
    A(f"v_mfma_f32_32x32x8_bf16 {vr(FS,16)}, {vr(FK4,2)}, {vr(FQ4,2)}, {vr(FS,16)}")
    A("s_nop 15")
    A(f"v_max3_f32 v{FT}, v{FS}, v{FS+1}, v{FS+2}")
    for j in range(3, 15, 2): A(f"v_max3_f32 v{FT}, v{FT}, v{FS+j}, v{FS+j+1}")
    A(f"v_max_f32 v{FT}, v{FT}, v{FS+15}")
    A(f"v_mov_b32 v{FT+1}, v{FT}")
    A("s_nop 1")
    A(f"v_permlane32_swap_b32 v{FT}, v{FT+1}")
    A("s_nop 1")
    A(f"v_max3_f32 v{FT}, v{FT}, v{FT+1}, v{FM}")
    A(f"v_sub_f32 v{FA}, v{FM}, v{FT}")
    A(f"v_exp_f32 v{FA}, v{FA}")
    A(f"v_mov_b32 v{FM}, v{FT}")
    for j in range(16): A(f"v_sub_f32 v{FS+j}, v{FS+j}, v{FM}")
    for j in range(16): A(f"v_exp_f32 v{FS+j}, v{FS+j}")
    A("s_nop 0")
    for j in range(8): A(f"v_cvt_pk_bf16_f32 v{FP+j}, v{FS+2*j}, v{FS+2*j+1}")
    for j in range(16): A(f"v_mul_f32 v{O+j}, v{O+j}, v{FA}")
    A("s_nop 1")
    A(f"v_mfma_f32_32x32x16_bf16 {vr(O,16)}, {vr(FV1,4)}, {vr(FP,4)}, {vr(O,16)}")
    A(f"v_mfma_f32_32x32x16_bf16 {vr(O,16)}, {vr(FV2,4)}, {vr(FP+4,4)}, {vr(O,16)}")
    A("s_nop 15")
    A("s_add_u32 s57, s57, 1")
    A("s_cmp_lt_u32 s57, 64")
    A(f"s_cbranch_scc1 {name}_fb_loop")
    rowsum()
    A.label(f"{name}_fastok")
    A(f"v_rcp_f32 v{vR}, v{vR}")
    A("s_nop 0")
    A(f"v_mul_f32 v{vR}, v{vR}, v{vG1}")
    for r in range(12): A(f"v_mul_f32 v{O+r}, v{O+r}, v{vR}")
    OP = OB + 4
    for j in range(6): A(f"v_cvt_pk_bf16_f32 v{OP+j}, v{O+2*j}, v{O+2*j+1}")
    A(f"s_add_u32 s{sT}, s{sQT}, s{sHF}")
    A(f"s_mul_i32 s{sT}, s{sT}, 40960")
    A(f"s_add_u32 s{sT}, s{sT}, {OF}")
    A(f"s_lshl_b32 s{sT2}, s{sHEAD}, 10")
    A(f"s_add_u32 s{sT2}, s{sT2}, s{sT}")
    A(f"buffer_store_dwordx4 {vr(OP,4)}, v{vL16}, {sr(SRD,4)}, s{sT2} offen sc1")
    A(f"s_lshr_b32 s{sT2}, s{sHEAD}, 2")
    A(f"s_add_u32 s{sT2}, s{sT2}, 32")
    A(f"s_lshl_b32 s{sT2}, s{sT2}, 10")
    A(f"s_add_u32 s{sT}, s{sT}, s{sT2}")
    A(f"s_bfe_u32 s{sT2}, s{sHEAD}, 0x10001")
    A(f"s_lshl_b32 s{sT2}, s{sT2}, 9")
    A(f"s_add_u32 s{sT}, s{sT}, s{sT2}")
    A(f"s_and_b32 s{sT2}, s{sHEAD}, 1")
    A(f"s_lshl_b32 s{sT2}, s{sT2}, 3")
    A(f"s_add_u32 s{sT}, s{sT}, s{sT2}")
    A("s_mov_b32 exec_hi, 0")
    A(f"buffer_store_dwordx2 {vr(OP+4,2)}, v{vL16}, {sr(SRD,4)}, s{sT} offen sc1")
    A("s_mov_b64 exec, -1")
    if TP == 1: stamp(A, 1)
    sOF = 37
    A(f"s_mul_i32 s{sOF}, s{sTT}, 40960")
    A(f"s_mul_i32 s{sT2}, s{sW}, {5*1024}")
    A(f"s_add_u32 s{sOF}, s{sOF}, s{sT2}")
    A(f"s_add_u32 s{sOF}, s{sOF}, {OF}")
    A(f"v_add_u32 v15, 4096, v{vL16}")
    def ofloads():
        for st in range(5):
            if st < 4:
                A(f"buffer_load_dwordx4 {vr(BFR+4*st,4)}, v{vL16}, {sr(SRD,4)}, s{sOF} offen offset:{st*1024} sc1")
            else:
                A(f"buffer_load_dwordx4 {vr(BFR+4*st,4)}, v15, {sr(SRD,4)}, s{sOF} offen sc1")
    def ofcheck():
        A(f"v_max3_u32 v14, v{BFR}, v{BFR+1}, v{BFR+2}")
        for j in range(3, 19, 2):
            A(f"v_max3_u32 v14, v14, v{BFR+j}, v{BFR+j+1}")
        A(f"v_max_u32 v14, v14, v{BFR+19}")
        A("v_cmp_eq_u32 vcc, -1, v14")
    A(f"v_sub_f32 v{vG2}, 1.0, v{vG2}")
    k = 0
    for st in range(2, 5):
        for mt in range(5):
            if st < 4 and mt == 0: continue
            if st < 4:
                A(f"buffer_load_dwordx4 {vr(wo_reg(st,mt),4)}, v{vL16}, {sr(SRD,4)}, s{sWo+mt} offen offset:{st*1024}{LD1}")
            else:
                A(f"buffer_load_dwordx4 {vr(wo_reg(st,mt),4)}, v15, {sr(SRD,4)}, s{sWo+mt} offen{LD1}")
            for r in range(ACC+k, min(ACC+k+7, ACC+80)): A(f"v_mul_f32 v{r}, v{r}, v{vG2}")
            k = min(k+7, 80)
    assert k == 80
    A(f"s_mov_b32 s{sT2}, 0")
    A.label(f"{name}_poll")
    ofloads()
    A("s_waitcnt vmcnt(0)")
    ofcheck()
    A(f"s_add_u32 s{sT2}, s{sT2}, 1")
    A("s_nop 1")
    A(f"s_cbranch_vccz {name}_polldone")
    A(f"s_cmp_lt_u32 s{sT2}, 0x40000")
    A(f"s_cbranch_scc1 {name}_poll")
    A.label(f"{name}_polldone")
    if TP == 1: stamp(A, 2)
    if TP == 4: stamp(A, 0)
    for st in range(5):
        for mt in range(5):
            d = vr(ACC+16*mt,16)
            A(f"v_mfma_f32_32x32x16_bf16 {d}, {vr(wo_reg(st,mt),4)}, {vr(BFR+4*st,4)}, {d}")
    RB2 = 65536
    if TP == 4: stamp(A, 1)
    PK = 16
    A("s_nop 15")
    G4 = 56
    for mt in (0, 1, 2, 3, 4):
        for q in range(4):
            a = ACC + 16*mt + 4*q
            d = PK + 32 + 2*q if mt == 4 else G4 + 4*((mt & 1)*4 + q) + 2*(mt >> 1)
            A(f"v_cvt_pk_bf16_f32 v{d}, v{a}, v{a+1}")
            A(f"v_cvt_pk_bf16_f32 v{d+1}, v{a+2}, v{a+3}")
    A(f"s_lshl_b32 s{sT}, s{sW}, 13")
    A(f"v_add_u32 v{vWr}, s{sT}, v{vL16}")
    A(f"s_lshl_b32 s{sT}, s{sW}, 11")
    A(f"s_add_u32 s{sT}, s{sT}, {RB2}")
    A("v_lshlrev_b32 v13, 3, v2")
    A(f"v_add_u32 v14, s{sT}, v13")
    for d in range(8):
        A(f"ds_write_b128 v{vWr}, {vr(G4+4*d,4)} offset:{d*1024}")
    for q in range(4):
        A(f"ds_write_b64 v14, {vr(PK+32+2*q,2)} offset:{q*512}")
    A(f"s_lshl_b32 s{sT}, s{sW}, 10")
    A(f"v_add_u32 v{vRd}, s{sT}, v{vL16}")
    A(f"s_lshl_b32 s{sT}, s{sG}, 9")
    A(f"s_add_u32 s{sT}, s{sT}, {RB2}")
    A(f"v_add_u32 v14, s{sT}, v13")
    A("v_mov_b32 v12, 0x3f80")
    A("v_mov_b32 v11, 0x3f800000")
    SUMA, SUMB, SUMC = 56, 60, 64
    A("s_waitcnt lgkmcnt(0)")
    A("s_barrier")
    if TP == 4: stamp(A, 2)
    T0 = 16
    for s_ in range(8):
        A(f"ds_read_b128 {vr(T0+4*s_,4)}, v{vRd} offset:{s_*8192}")
    for s_ in range(8):
        A(f"ds_read_b64 {vr(88+2*s_,2)}, v14 offset:{s_*2048}")
    for r in range(SUMA, SUMA+12): A(f"v_mov_b32 v{r}, 0")
    for s_ in range(8):
        A(f"s_waitcnt lgkmcnt({min(15, 7-s_+8)})")
        for j in range(2):
            A(f"v_dot2_f32_bf16 v{SUMA+2*j}, v{T0+4*s_+j}, v12, v{SUMA+2*j}")
            A(f"v_dot2_f32_bf16 v{SUMA+2*j+1}, v{T0+4*s_+j}, v11, v{SUMA+2*j+1}")
            A(f"v_dot2_f32_bf16 v{SUMB+2*j}, v{T0+4*s_+2+j}, v12, v{SUMB+2*j}")
            A(f"v_dot2_f32_bf16 v{SUMB+2*j+1}, v{T0+4*s_+2+j}, v11, v{SUMB+2*j+1}")
    A("s_waitcnt lgkmcnt(0)")
    for s_ in range(8):
        for j in range(2):
            A(f"v_dot2_f32_bf16 v{SUMC+2*j}, v{88+2*s_+j}, v12, v{SUMC+2*j}")
            A(f"v_dot2_f32_bf16 v{SUMC+2*j+1}, v{88+2*s_+j}, v11, v{SUMC+2*j+1}")
    SRD_O = 44; sOUT = 48
    A("v_and_b32 v3, 31, v2")
    A(f"s_lshl_b32 s{sT}, s{sTT}, 5")
    A(f"v_add_u32 v3, s{sT}, v3")
    A("v_mul_u32_u24 v3, 1280, v3")
    A("v_lshrrev_b32 v14, 5, v2")
    A("v_lshl_add_u32 v3, v14, 3, v3")
    A(f"s_mul_i32 s{sT}, s{sCBK}, 320")
    A(f"s_lshl_b32 s{sT2}, s{sG}, 4")
    A(f"s_add_u32 s{sT}, s{sT}, s{sT2}")
    A(f"s_lshl_b32 s{sT2}, s{sHF}, 6")
    A(f"s_add_u32 s{sT2}, s{sT2}, s{sT}")
    A(f"s_mov_b32 s{SRD_O}, s{sOUT}")
    A(f"s_and_b32 s{SRD_O+1}, s{sOUT+1}, 0xffff")
    A(f"s_mov_b32 s{SRD_O+2}, {2048*1280}")
    A(f"s_mov_b32 s{SRD_O+3}, 0x20000")
    A("s_nop 3")
    for src, d in ((SUMA, 68), (SUMB, 70)):
        A(f"v_cvt_pk_bf16_f32 v{d}, v{src}, v{src+1}")
        A(f"v_cvt_pk_bf16_f32 v{d+1}, v{src+2}, v{src+3}")
    A(f"buffer_store_dwordx2 v[68:69], v3, {sr(SRD_O,4)}, s{sT2} offen")
    A(f"buffer_store_dwordx2 v[70:71], v3, {sr(SRD_O,4)}, s{sT2} offen offset:128")
    A(f"s_cmp_eq_u32 s{sHF}, 0")
    A(f"s_cbranch_scc0 {name}_fin")
    A(f"v_cvt_pk_bf16_f32 v72, v{SUMC}, v{SUMC+1}")
    A(f"v_cvt_pk_bf16_f32 v73, v{SUMC+2}, v{SUMC+3}")
    A(f"buffer_store_dwordx2 v[72:73], v3, {sr(SRD_O,4)}, s{sT} offen offset:256")
    A.label(f"{name}_fin")
    if asmlib.PROFILE:
        A("s_waitcnt vmcnt(0)")
        if TP != 5: stamp(A, 3)
        stamp_flush(A, 1, SRD, sW, 4)
    A.label(f"{name}_end")
    A("s_endpgm")
    return 256
```

```python
import sys
from asmlib import *
from layout import *
import k1, k23, k2v2, p1two, k2v3
HEADER = open('gated_mix__mha_block__glu_gated_geglu__prompt.s.ref').read().split('; Override launch geometry')[0]
def build_fused():
    import asmlib
    A = Asm()
    name = "gated_mix__mha_block__glu_gated_geglu__prompt_kernel"
    hdr = HEADER
    hdr += f"; @launch grid=(256,1,1) block=(512,1,1) lds={max(k1.K1_LDS, k2v2.K2_LDS)}\n"
    A('.amdgcn_target "amdgcn-amd-amdhsa--gfx950"')
    k1.gen_k1(A, name, fused=True)
    if asmlib.OPT.get("early"):
        LF = k1.K1_LDS
        hdr = hdr.replace(f"lds={max(k1.K1_LDS, k2v2.K2_LDS)}", f"lds={LF + 16}")
        from layout import MK
        SRD = 8; sW = 12
        def dbg_srd():
            A("s_mov_b32 s56, s38")
            A("s_and_b32 s57, s39, 0xffff")
            A("s_mov_b32 s58, 256")
            A("s_mov_b32 s59, 0x20000")
        def poll(tag, vaddr, vtag, sleep):
            A("s_mov_b32 s60, 0")
            A.label(f"{name}_{tag}_poll")
            A(f"buffer_load_dword v15, v{vaddr}, s[{SRD}:{SRD+3}], 0 offen sc1")
            A("s_waitcnt vmcnt(0)")
            A(f"v_cmp_ne_u32 vcc, v15, v{vtag}")
            A("s_add_u32 s60, s60, 1")
            A("s_nop 1")
            A(f"s_cbranch_vccz {name}_{tag}_done")
            A(f"s_sleep {sleep}")
            A("s_cmp_lt_u32 s60, 0x40000")
            A(f"s_cbranch_scc1 {name}_{tag}_poll")
            A.label(f"{name}_{tag}_done")
        def sync_hook():
            A(f"v_mov_b32 v12, {LF}")
            A(f"s_cmp_eq_u32 s{sW}, 4")
            A(f"s_cbranch_scc0 {name}_sy_spin")
            dbg_srd()
            A("s_waitcnt vmcnt(0)")
            A("v_readfirstlane_b32 s61, v130")
            A("s_mov_b32 s60, 0")
            A.label(f"{name}_tg_loop")
            A("s_cmp_lg_u32 s61, 0")
            A(f"s_cbranch_scc1 {name}_tg_ok")
            A("v_mov_b32 v131, 240")
            A("buffer_load_dword v130, v131, s[56:59], 0 offen sc1")
            A("s_waitcnt vmcnt(0)")
            A("v_readfirstlane_b32 s61, v130")
            A("s_add_u32 s60, s60, 1")
            A("s_cmp_lt_u32 s60, 0x40000")
            A(f"s_cbranch_scc1 {name}_tg_loop")
            A.label(f"{name}_tg_ok")
            A("v_mov_b32 v14, s61")
            A("s_mov_b64 exec, 1")
            A("ds_write_b32 v12, v14 offset:4")
            A("s_mov_b64 exec, -1")
            A("s_cmp_eq_u32 s70, -1")
            A(f"s_cbranch_scc1 {name}_sy_noarr")
            A("s_cmp_ge_u32 s70, 64")
            A(f"s_cbranch_scc1 {name}_sy_side")
            A("s_and_b32 s60, s2, 6")
            A("v_lshrrev_b32 v13, 1, v2")
            A("v_lshlrev_b32 v13, 3, v13")
            A("v_and_b32 v15, 1, v2")
            A("v_add3_u32 v13, v13, v15, s60")
            A("v_lshlrev_b32 v13, 9, v13")
            A("s_lshl_b32 s60, s70, 2")
            A(f"s_add_u32 s60, s60, {MK}")
            A(f"buffer_store_dword v14, v13, s[{SRD}:{SRD+3}], s60 offen sc1")
            A(f"s_branch {name}_sy_noarr")
            A.label(f"{name}_sy_side")
            A("s_lshl_b32 s60, s70, 2")
            A(f"s_add_u32 s60, s60, {MK}")
            A("v_lshlrev_b32 v13, 9, v2")
            for m in range(4):
                A(f"buffer_store_dword v14, v13, s[{SRD}:{SRD+3}], s60 offen sc1")
                if m < 3: A("s_add_u32 s60, s60, 32768")
            A.label(f"{name}_sy_noarr")
            A("s_mov_b64 exec, 0xffffff")
            A("v_lshlrev_b32 v13, 2, v2")
            A("s_lshl_b32 s60, s2, 9")
            A(f"s_add_u32 s60, s60, {MK}")
            A("v_add_u32 v13, s60, v13")
            poll("sy", 13, 14, asmlib.OPT.get('slp', 8))
            A("s_mov_b64 exec, 1")
            A("v_mov_b32 v15, 1")
            A("ds_write_b32 v12, v15")
            A("s_mov_b64 exec, -1")
            A("s_waitcnt lgkmcnt(0)")
            A(f"s_branch {name}_sy_go")
            A.label(f"{name}_sy_spin")
            A("s_mov_b32 s60, 0")
            A.label(f"{name}_sy_spin2")
            A("ds_read_b32 v15, v12")
            A("s_waitcnt lgkmcnt(0)")
            A("v_readfirstlane_b32 s56, v15")
            A("s_add_u32 s60, s60, 1")
            A("s_cmp_eq_u32 s56, 1")
            A(f"s_cbranch_scc1 {name}_sy_go")
            A("s_sleep 2")
            A("s_cmp_lt_u32 s60, 0x1000000")
            A(f"s_cbranch_scc1 {name}_sy_spin2")
            A.label(f"{name}_sy_go")
        def pre_b():
            A("s_cmp_eq_u32 s71, -1")
            A(f"s_cbranch_scc1 {name}_pb_a")
            A("s_cmp_lt_u32 s12, 4")
            A(f"s_cbranch_scc0 {name}_pb_a")
            A("s_waitcnt vmcnt(0)")
            A.label(f"{name}_pb_a")
        def post_b():
            A("s_cmp_eq_u32 s71, -1")
            A(f"s_cbranch_scc1 {name}_pb_b")
            A("s_cmp_eq_u32 s12, 0")
            A(f"s_cbranch_scc0 {name}_pb_b")
            A(f"v_mov_b32 v12, {LF}")
            A("ds_read_b32 v14, v12 offset:4")
            A("s_lshr_b32 s60, s71, 8")
            A("v_lshlrev_b32 v13, 3, v2")
            A("v_add_u32 v13, s60, v13")
            A("v_lshlrev_b32 v13, 9, v13")
            A("s_and_b32 s60, s71, 0xff")
            A("s_add_u32 s60, s60, 32")
            A("s_lshl_b32 s60, s60, 2")
            A(f"s_add_u32 s60, s60, {MK}")
            A("s_waitcnt lgkmcnt(0)")
            A("s_mov_b32 exec_hi, 0")
            A(f"buffer_store_dword v14, v13, s[{SRD}:{SRD+3}], s60 offen sc1")
            A("s_mov_b64 exec, -1")
            A.label(f"{name}_pb_b")
        def gate_hook():
            A("s_cmp_eq_u32 s12, 0")
            A(f"s_cbranch_scc0 {name}_gate_ok")
            A(f"v_mov_b32 v12, {LF}")
            A("ds_read_b32 v14, v12 offset:4")
            A("v_cmp_gt_u32 vcc, 16, v2")
            A("v_add_u32 v13, 48, v2")
            A("v_add_u32 v12, 32, v2")
            A("v_cndmask_b32 v13, v13, v12, vcc")
            A("v_lshlrev_b32 v13, 2, v13")
            A("s_lshl_b32 s60, s2, 9")
            A(f"s_add_u32 s60, s60, {MK}")
            A("v_add_u32 v13, s60, v13")
            A("s_waitcnt lgkmcnt(0)")
            A("s_mov_b32 exec_hi, 0xffff")
            poll("gate", 13, 14, 8)
            A("s_mov_b64 exec, -1")
            A.label(f"{name}_gate_ok")
        k2v3.gen_k2(A, name + "_p2", fused=True, env={"gate_hook": gate_hook, "early": True, "LF": LF, "sync_hook": sync_hook, "pre_b": pre_b, "post_b": post_b})
    elif asmlib.OPT.get("v3"):
        def gate_hook():
            sW, sT2 = 12, 14
            A(f"s_cmp_eq_u32 s{sW}, 0")
            A(f"s_cbranch_scc0 {name}_gate_ok")
            A("s_mov_b32 s56, s38")
            A("s_and_b32 s57, s39, 0xffff")
            A("s_mov_b32 s58, 256")
            A("s_mov_b32 s59, 0x20000")
            A("s_mov_b64 exec, 0x1fff")
            A("v_add_u32 v12, 28, v2")
            A("v_mov_b32 v13, 16")
            A("v_cmp_gt_u32 vcc, 4, v2")
            A("v_mov_b32 v15, 24")
            A("s_nop 0")
            A("v_cndmask_b32 v12, v12, v2, vcc")
            A("v_cndmask_b32 v13, v13, v15, vcc")
            A("v_cmp_eq_u32 vcc, 12, v2")
            A("v_mov_b32 v15, 32")
            A("s_nop 0")
            A("v_cndmask_b32 v13, v13, v15, vcc")
            A("v_lshlrev_b32 v12, 2, v12")
            A("s_mov_b32 s60, 0")
            A.label(f"{name}_gate_poll")
            A("buffer_load_dword v15, v12, s[56:59], 0 offen sc1")
            A("s_waitcnt vmcnt(0)")
            A("v_cmp_lt_u32 vcc, v15, v13")
            A("s_add_u32 s60, s60, 1")
            A("s_nop 1")
            A(f"s_cbranch_vccz {name}_gate_done2")
            A("s_sleep 8")
            A("s_cmp_lt_u32 s60, 0x40000")
            A(f"s_cbranch_scc1 {name}_gate_poll")
            A.label(f"{name}_gate_done2")
            A("s_mov_b64 exec, -1")
            A.label(f"{name}_gate_ok")
        k2v3.gen_k2(A, name + "_p2", fused=True, env={"gate_hook": gate_hook})
    else:
        k2v2.gen_k2(A, name + "_p2", fused=True)
    kernel_desc(A, name, 256)
    txt = A.text().replace(name + "_p2_end:", name + "_end:")
    return hdr + txt

def build():
    import asmlib
    if asmlib.OPT.get("fused"): return build_fused()
    A = Asm()
    names = ("gm_k1_kernel", "gm_k2_kernel", "gm_k3_kernel")
    hdr = HEADER
    hdr += f"; @launch kernel={names[0]} grid=(256,1,1) block=(512,1,1) lds={k1.K1_LDS}\n"
    hdr += f"; @launch kernel={names[1]} grid=(256,1,1) block=(512,1,1) lds={k2v2.K2_LDS}\n"
    A('.amdgcn_target "amdgcn-amd-amdhsa--gfx950"')
    import asmlib
    if asmlib.OPT.get("p1two"):
        v1 = p1two.gen_p1(A, names[0])
        hdr = hdr.replace(f"lds={k1.K1_LDS}", f"lds={p1two.P1_LDS}")
    else:
        v1 = k1.gen_k1(A, names[0])
    v2 = (k2v3 if asmlib.OPT.get('v3') else k2v2).gen_k2(A, names[1])
    kernel_desc(A, names[0], v1)
    kernel_desc(A, names[1], v2)
    return hdr + A.text()
if __name__ == "__main__":
    import asmlib
    if "--prof" in sys.argv:
        sys.argv.remove("--prof"); asmlib.PROFILE = True
    for a in list(sys.argv):
        if a.startswith("--opt="):
            sys.argv.remove(a)
            for kv in a[6:].split(","):
                k, _, v = kv.partition("=")
                asmlib.OPT[k] = int(v) if v else 1
    out = sys.argv[1] if len(sys.argv) > 1 else "gated_mix__mha_block__glu_gated_geglu__prompt.s"
    open(out, "w").write(build())
    print("wrote", out)
```

```python
from asmlib import *
import asmlib
from layout import *

STAGE = 53376
WOFF = 32768
UOFF = 10368
K1_LDS = 3*STAGE + 2048

def gen_k1(A, name, fused=False):
    SC1 = ' sc1' if ((fused and not asmlib.OPT.get('wbl2')) or not asmlib.OPT.get('k1plain')) else (' nt' if asmlib.OPT.get('k1nt') else '')
    import math, struct
    c0 = -2.0*math.sqrt(2.0/math.pi)*math.log2(math.e)
    c1 = c0*0.044715
    def f2u(f): return struct.unpack("<I", struct.pack("<f", f))[0]
    kernel_header(A, name)
    sX, sWQ, sWO, sWG, sWU, sWD, sGW, sWS = 4, 6, 8, 12, 14, 16, 18, 48
    sRB, sCB, sW, sT = 20, 21, 22, 23
    sT2, sT3 = 24, 25
    sRS = 26
    sCG, sCU = 27, 28
    sTYPE = 29
    sNU = 30
    sU0 = 31
    SRD_X, SRD_W, SRD_WS = 32, 36, 40
    sBUF = 44; sXO = 45; sWO_ = 46; sCNT = 47
    sHM = 48
    sH = 52
    sSC = 60
    sDP, sDN = 84, 85
    A("s_cmp_ge_u32 s2, 256")
    A(f"s_cbranch_scc1 {name}_end")
    stamp(A, 0)
    A("s_load_dwordx8 s[4:11], s[0:1], 0")
    A("s_load_dwordx8 s[12:19], s[0:1], 32")
    A(f"s_load_dwordx2 {sr(sWS,2)}, s[0:1], {KA_WS}")
    A.c("decode: xcd = id&7, j = id>>3; rb = 4*(xcd&1) + (j&3); cb = 8*(xcd>>1) + (j>>2)")
    A(f"s_and_b32 s{sT}, s2, 1")
    A(f"s_lshl_b32 s{sT}, s{sT}, 2")
    A(f"s_lshr_b32 s{sT2}, s2, 3")
    A(f"s_and_b32 s{sT3}, s{sT2}, 3")
    A(f"s_add_u32 s{sRB}, s{sT}, s{sT3}")
    F6 = asmlib.OPT.get("ffn6")
    if F6:
        A.c("XCD pair p: c = j>>2: 0,1,2 -> Q_p, K_p, V_p; 3..6 -> FFN column block 4p+c-3 (96+96 columns); 7 -> side jobs only")
        A(f"s_bfe_u32 s{sT}, s2, 0x20001")
        A(f"s_lshr_b32 s{sT2}, s{sT2}, 2")
        A(f"s_lshl_b32 s{sT3}, s{sT2}, 2")
        A(f"s_add_u32 s{sCB}, s{sT3}, s{sT}")
        A(f"s_mov_b32 s{sTYPE}, s{sT2}")
        A(f"s_cmp_ge_u32 s{sT2}, 3")
        A(f"s_cbranch_scc0 {name}_dec_done")
        A(f"s_lshl_b32 s{sT3}, s{sT}, 2")
        A(f"s_add_u32 s{sCB}, s{sT3}, s{sT2}")
        A(f"s_sub_u32 s{sCB}, s{sCB}, 3")
        A(f"s_cmp_eq_u32 s{sT2}, 7")
        A(f"s_cselect_b32 s{sTYPE}, 4, 3")
        A.label(f"{name}_dec_done")
    else:
        if not asmlib.OPT.get("map1"):
            A.c("XCD pair p produces Q_p, K_p, V_p (the heads its attention workgroups consume) and five FFN column blocks")
            A(f"s_bfe_u32 s{sT}, s2, 0x20001")
            A(f"s_lshr_b32 s{sT2}, s{sT2}, 2")
            A(f"s_lshl_b32 s{sT3}, s{sT2}, 2")
            A(f"s_add_u32 s{sCB}, s{sT3}, s{sT}")
            A(f"s_mul_i32 s{sT3}, s{sT}, 5")
            A(f"s_add_u32 s{sT3}, s{sT3}, s{sT2}")
            A(f"s_add_u32 s{sT3}, s{sT3}, 9")
            A(f"s_cmp_ge_u32 s{sT2}, 3")
            A(f"s_cselect_b32 s{sCB}, s{sT3}, s{sCB}")
        else:
            A(f"s_and_b32 s{sT}, s2, 6")
            if not asmlib.OPT.get("oldmap"):
                A.c("column-block groups in reverse XCD order: the blocks with the longer epilogue (FFN) go to the workgroups that start first")
                A(f"s_sub_u32 s{sT}, 6, s{sT}")
            A(f"s_lshl_b32 s{sT}, s{sT}, 2")
            A(f"s_lshr_b32 s{sT2}, s{sT2}, 2")
            A(f"s_add_u32 s{sCB}, s{sT}, s{sT2}")
    A("v_lshrrev_b32 v1, 6, v0")
    A("v_and_b32 v2, 63, v0")
    A(f"v_readfirstlane_b32 s{sW}, v1")
    if F6:
        A(f"s_movk_i32 s{sRS}, 3840")
        A(f"s_mul_i32 s{sCG}, s{sCB}, 160")
        A(f"s_add_u32 s{sCU}, s{sCG}, 80")
    else:
        A.c("block params")
        A(f"s_cmp_ge_u32 s{sCB}, 12")
        A(f"s_cbranch_scc1 {name}_ffn_params")
        A(f"s_movk_i32 s{sRS}, 3840")
        A(f"s_mul_i32 s{sCG}, s{sCB}, 160")
        A(f"s_add_u32 s{sCU}, s{sCG}, 80")
        A(f"s_lshr_b32 s{sTYPE}, s{sCB}, 2")
        A(f"s_mov_b32 s{sNU}, 5")
        A(f"s_mov_b32 s{sU0}, 0")
        A(f"s_branch {name}_params_done")
        A.label(f"{name}_ffn_params")
        A(f"s_movk_i32 s{sRS}, 3072")
        A(f"s_sub_u32 s{sT}, s{sCB}, 12")
        A(f"s_mul_i32 s{sU0}, s{sT}, 5")
        A(f"s_mov_b32 s{sNU}, 5")
        A(f"s_cmp_lt_u32 s{sT}, 16")
        A(f"s_cbranch_scc1 {name}_ffn_p2")
        A(f"s_lshl_b32 s{sU0}, s{sT}, 2")
        A(f"s_add_u32 s{sU0}, s{sU0}, 16")
        A(f"s_mov_b32 s{sNU}, 4")
        A.label(f"{name}_ffn_p2")
        A(f"s_lshl_b32 s{sCG}, s{sU0}, 4")
        A(f"s_mov_b32 s{sCU}, s{sCG}")
        A(f"s_mov_b32 s{sTYPE}, 3")
        A.label(f"{name}_params_done")
    SP = asmlib.OPT.get("startprof")
    def srd_ws():
        A(f"s_mov_b32 s{SRD_WS}, s{sWS}")
        A(f"s_and_b32 s{SRD_WS+1}, s{sWS+1}, 0xffff")
        A(f"s_mov_b32 s{SRD_WS+2}, {WS_SIZE}")
        A(f"s_mov_b32 s{SRD_WS+3}, 0x20000")
    def srd_x():
        A(f"s_mov_b32 s{SRD_X}, s{sX}")
        A(f"s_and_b32 s{SRD_X+1}, s{sX+1}, 0xffff")
        A(f"s_mov_b32 s{SRD_X+2}, {2048*1280}")
        A(f"s_mov_b32 s{SRD_X+3}, 0x20000")
    def x_voffsets(vXO):
        A("v_lshrrev_b32 v3, 3, v2")
        A("v_lshrrev_b32 v4, 4, v2")
        A("v_and_b32 v5, 7, v2")
        A("v_xor_b32 v5, v5, v4")
        A("v_xor_b32 v6, 4, v5")
        A(f"s_lshl_b32 s{sT}, s{sW}, 6")
        A(f"v_add_u32 v3, s{sT}, v3")
        A("v_mul_u32_u24 v3, 1280, v3")
        A("v_lshl_add_u32 v5, v5, 4, v3")
        A("v_lshl_add_u32 v6, v6, 4, v3")
        for j in range(8):
            A(f"v_add_u32 v{vXO+j}, {j*10240}, v{5 if j % 2 == 0 else 6}")
    A(f"s_cmp_ge_u32 s{sW}, 4")
    A(f"s_cbranch_scc1 {name}_loader")

    if F6:
        A(f"s_cmp_eq_u32 s{sTYPE}, 4")
        A(f"s_cbranch_scc1 {name}_idlec")
        A(f"s_cmp_eq_u32 s{sTYPE}, 3")
        A(f"s_cbranch_scc1 {name}_f6c")
    ACC = 96
    def acc(tt, mt): return ACC + (tt*5 + mt)*16
    FA = [8, 36]
    FB = [28, 56]
    vXA = 64
    vWA = 68
    vWA2 = 69
    A.c("compute waves fetch the x rows of stages 0 and 1 themselves (the loaders fetch the weights)")
    x_voffsets(70)
    A(f"s_mul_i32 s{sXO}, s{sRB}, {256*1280}")
    A(f"s_lshl_b32 s{sT2}, s{sW}, 13")
    A("s_waitcnt lgkmcnt(0)")
    srd_x()
    srd_ws()
    for st in range(2):
        for j in range(8):
            A(f"s_add_u32 m0, s{sT2}, {st*STAGE + j*1024}")
            A("s_nop 0")
            A(f"buffer_load_dwordx4 v{70+j}, {sr(SRD_X,4)}, s{sXO} offen lds")
        A(f"s_add_u32 s{sXO}, s{sXO}, 128")
    if asmlib.OPT.get("wtouch"):
        A.c("touch the pages this wave will store to at the end (translation warm-up)")
        A(f"s_lshl_b32 s{sT2}, s{sRB}, 3")
        A(f"s_lshl_b32 s{sT3}, s{sW}, 1")
        A(f"s_add_u32 s{sT2}, s{sT2}, s{sT3}")
        A(f"s_cmp_eq_u32 s{sTYPE}, 3")
        A(f"s_cbranch_scc1 {name}_wt_f")
        A(f"s_and_b32 s{sT}, s{sCB}, 3")
        A(f"s_lshl_b32 s{sT}, s{sT}, 3")
        A("v_and_b32 v3, 7, v2")
        A(f"v_add_u32 v3, s{sT}, v3")
        A(f"s_cmp_eq_u32 s{sTYPE}, 0")
        A(f"s_mov_b32 s{sT}, {HS_KV}")
        A(f"s_mov_b32 s{sT3}, {HS_Q}")
        A(f"s_cselect_b32 s{sT}, s{sT3}, s{sT}")
        A(f"v_mul_lo_u32 v3, v3, s{sT}")
        A(f"s_mul_i32 s{sT3}, s{sT2}, 1280")
        A(f"s_lshr_b32 s{sT2}, s{sT2}, 2")
        A(f"s_mul_i32 s{sT2}, s{sT2}, {CH}")
        A(f"s_add_u32 s{sT2}, s{sT2}, {KV}")
        A(f"s_cmp_eq_u32 s{sTYPE}, 0")
        A(f"s_cselect_b32 s{sT2}, s{sT3}, s{sT2}")
        A(f"s_branch {name}_wt_go")
        A.label(f"{name}_wt_f")
        A("v_and_b32 v3, 1, v2")
        A(f"v_mul_u32_u24 v3, {96*1024}, v3")
        A(f"s_mul_i32 s{sT2}, s{sT2}, {96*1024}")
        A(f"s_lshl_b32 s{sT3}, s{sU0}, 10")
        A(f"s_add_u32 s{sT2}, s{sT2}, s{sT3}")
        A(f"s_add_u32 s{sT2}, s{sT2}, {HF}")
        A.label(f"{name}_wt_go")
        A("s_mov_b64 exec, 0xff")
        A(f"buffer_load_dword v80, v3, {sr(SRD_WS,4)}, s{sT2} offen")
        A("s_mov_b64 exec, -1")
    if asmlib.OPT.get("k1prio"): A(f"s_setprio {asmlib.OPT.get('k1prio')}")
    A.c("compute wave: LDS read addresses")
    A("v_and_b32 v3, 31, v2")
    A("v_lshrrev_b32 v4, 5, v2")
    A(f"s_lshl_b32 s{sT}, s{sW}, 6")
    A(f"v_add_u32 v5, s{sT}, v3")
    A("v_lshlrev_b32 v5, 7, v5")
    A("v_bfe_u32 v6, v3, 1, 3")
    for sp in range(4):
        A(f"v_or_b32 v7, {2*sp}, v4")
        A("v_xor_b32 v7, v7, v6")
        A(f"v_lshl_add_u32 v{vXA+sp}, v7, 4, v5")
    RW = 320 if F6 else 160
    UO = 160 if F6 else UOFF
    A("v_bfe_u32 v5, v2, 4, 1")
    A(f"v_mul_u32_u24 v5, {UO}, v5")
    A("v_bfe_u32 v6, v2, 2, 2")
    A("v_lshl_add_u32 v6, v4, 3, v6")
    A(f"v_mul_u32_u24 v6, {RW}, v6")
    A("v_and_b32 v7, 3, v2")
    A("v_lshlrev_b32 v7, 3, v7")
    A("v_add3_u32 v5, v5, v6, v7")
    A(f"v_add_u32 v{vWA}, {WOFF}, v5")
    A.c("Q/K/V blocks: unit 4 gathers d=16..19 of four heads: column byte offset 40c+32 instead of 8c")
    A("v_lshlrev_b32 v7, 2, v7")
    A(f"v_add3_u32 v{vWA2}, v{vWA}, v7, 32")
    for r in range(ACC, ACC+160):
        A(f"v_mov_b32 v{r}, 0")

    def fill_of(R, sIdx=64):
        A.c("fill a share of the O' hand-off area with the not-ready pattern")
        for j in range(4): A(f"v_mov_b32 v{R+j}, -1")
        A("v_lshlrev_b32 v3, 4, v2")
        A(f"s_mul_i32 s{sT}, s{sIdx}, 2560")
        A(f"s_add_u32 s{sT}, s{sT}, {OF}")
        A(f"buffer_store_dwordx4 {vr(R,4)}, v3, {sr(SRD_WS,4)}, s{sT} offen{SC1}")
        A(f"buffer_store_dwordx4 {vr(R,4)}, v3, {sr(SRD_WS,4)}, s{sT} offen offset:1024{SC1}")
        A("s_mov_b32 exec_hi, 0")
        A(f"buffer_store_dwordx4 {vr(R,4)}, v3, {sr(SRD_WS,4)}, s{sT} offen offset:2048{SC1}")
        A("s_mov_b64 exec, -1")
    def vpad(tag, R):
        A.c("rows 20..31 of the V^T fragments: row 20 = ones (row sums), rows 21..31 = zeros")
        A("v_and_b32 v3, 15, v2")
        A("v_add_u32 v3, 16, v3")
        A("v_lshrrev_b32 v4, 4, v2")
        A("v_lshlrev_b32 v4, 9, v4")
        A("v_lshl_add_u32 v4, v3, 4, v4")
        A("v_cmp_gt_u32 vcc, 20, v3")
        A("v_mov_b32 v5, 0x7ff00000")
        A(f"v_mov_b32 v{R+4}, 0x3f803f80")
        A("v_cndmask_b32 v4, v4, v5, vcc")
        A("v_cmp_eq_u32 vcc, 20, v3")
        A("s_nop 1")
        A(f"v_cndmask_b32 v{R+4}, 0, v{R+4}, vcc")
        A("s_nop 0")
        for j in range(1, 4): A(f"v_mov_b32 v{R+4+j}, v{R+4}")
        A(f"s_sub_u32 s{sT}, s{sCB}, 8")
        A(f"s_lshl_b32 s{sT}, s{sT}, 3")
        A(f"s_lshl_b32 s{sT2}, s{sW}, 1")
        A(f"s_add_u32 s{sT}, s{sT}, s{sT2}")
        A(f"s_mul_i32 s{sT}, s{sT}, {HS_KV}")
        A(f"s_lshl_b32 s{sT2}, s{sRB}, 1")
        A(f"s_mul_i32 s{sT2}, s{sT2}, {CH}")
        A(f"s_add_u32 s{sT}, s{sT}, s{sT2}")
        A(f"s_add_u32 s{sT}, s{sT}, {KV+5120}")
        for hh in range(2):
            for ck in range(2):
                for tl in range(4):
                    A(f"s_add_u32 s{sT2}, s{sT}, {hh*HS_KV + ck*CH + tl*2048}")
                    A(f"buffer_store_dwordx4 {vr(R+4,4)}, v4, {sr(SRD_WS,4)}, s{sT2} offen{SC1}")
    def const_stores(tag, R=70):
        A(f"s_lshl_b32 s{sT3}, s2, 2")
        A(f"s_add_u32 s{sT3}, s{sT3}, s{sW}")
        fill_of(R, sT3)
        A(f"s_cmp_eq_u32 s{sTYPE}, 2")
        A(f"s_cbranch_scc0 {name}_novpad_{tag}")
        vpad(tag, R)
        A.label(f"{name}_novpad_{tag}")

    def reads(sp, st, qkv):
        L = []
        for tt in range(2):
            L.append(f"ds_read_b128 {vr(FB[st]+4*tt,4)}, v{vXA+sp} offset:{tt*4096}")
        for mt in range(5):
            for half in range(2):
                if not qkv:
                    L.append(f"ds_read_b64_tr_b16 {vr(FA[st]+4*mt+2*half,2)}, v{vWA} offset:{sp*16*RW+mt*32+half*4*RW}")
                elif mt < 4:
                    L.append(f"ds_read_b64_tr_b16 {vr(FA[st]+4*mt+2*half,2)}, v{vWA} offset:{sp*16*RW+mt*40+half*4*RW}")
                else:
                    L.append(f"ds_read_b64_tr_b16 {vr(FA[st]+4*mt+2*half,2)}, v{vWA2} offset:{sp*16*RW+half*4*RW}")
        return [L[0], L[2], L[3], L[1]] + L[4:]
    def mfmas(st, swapped):
        L = []
        for mt in range(5):
            for tt in range(2):
                a, b = vr(FA[st]+4*mt,4), vr(FB[st]+4*tt,4)
                if swapped: a, b = b, a
                L.append(f"v_mfma_f32_32x32x16_bf16 {vr(acc(tt,mt),16)}, {a}, {b}, {vr(acc(tt,mt),16)}")
        return L
    def mainloop(swapped, tag, qkv):
        A("s_waitcnt vmcnt(8)")
        A("s_barrier")
        stamp(A, 1)
        for l in reads(0, 0, qkv): A(l)
        A(f"s_mov_b32 s{sCNT}, 0")
        A(f"s_mov_b32 s{sBUF}, 0")
        A(f"s_mov_b32 s{sDP}, {STAGE}")
        A(f"s_mov_b32 s{sDN}, {(-2*STAGE) & 0xffffffff}")
        A(".p2align 6")
        A.label(f"{name}_loop_{tag}")
        for sp in range(4):
            cur = sp & 1; nxt = cur ^ 1
            M = mfmas(cur, swapped)
            A("s_waitcnt lgkmcnt(0)")
            if sp < 3:
                R = reads(sp+1, nxt, qkv)
                k = 0
                for i, m in enumerate(M):
                    A(m)
                    for l in R[k:k+2]: A(l)
                    k += 2
            else:
                A(M[0]); A(M[1])
                A(f"s_add_u32 s{sBUF}, s{sBUF}, 1")
                A(f"s_cmp_eq_u32 s{sBUF}, 3")
                A(f"s_cselect_b32 s{sT}, s{sDN}, s{sDP}")
                A(f"s_cselect_b32 s{sBUF}, 0, s{sBUF}")
                A(f"s_cmp_eq_u32 s{sCNT}, 0")
                A(f"s_cbranch_scc0 {name}_nw_{tag}")
                A("s_waitcnt vmcnt(0)")
                A.label(f"{name}_nw_{tag}")
                A("s_barrier")
                for j in range(4): A(f"v_add_u32 v{vXA+j}, s{sT}, v{vXA+j}")
                A(f"v_add_u32 v{vWA}, s{sT}, v{vWA}")
                if qkv: A(f"v_add_u32 v{vWA2}, s{sT}, v{vWA2}")
                R = reads(0, nxt, qkv)
                k = 0
                for m in M[2:]:
                    A(m)
                    for l in R[k:k+2]: A(l)
                    k += 2
        if asmlib.OPT.get("earlyconst"):
            A(f"s_cmp_eq_u32 s{sCNT}, 2")
            A(f"s_cbranch_scc0 {name}_nc_{tag}")
            const_stores(tag)
            A.label(f"{name}_nc_{tag}")
        MS = asmlib.OPT.get("midstamp")
        if MS and asmlib.PROFILE:
            A(f"s_cmp_eq_u32 s{sCNT}, {MS-1}")
            A(f"s_cbranch_scc0 {name}_nms_{tag}")
            stamp(A, 2)
            A.label(f"{name}_nms_{tag}")
        A(f"s_add_u32 s{sCNT}, s{sCNT}, 1")
        A(f"s_cmp_lt_u32 s{sCNT}, 10")
        A(f"s_cbranch_scc1 {name}_loop_{tag}")
        A("s_waitcnt lgkmcnt(0)")
        A("s_nop 15")
        if not MS: stamp(A, 2)
    A(f"s_cmp_eq_u32 s{sTYPE}, 2")
    A(f"s_cbranch_scc1 {name}_vblock")
    if not F6:
        A(f"s_cmp_eq_u32 s{sTYPE}, 3")
        A(f"s_cbranch_scc1 {name}_ffnblock")
    mainloop(False, "qk", True)

    A.c("epilogue Q/K: unit mt<4 = d 0..15 of head mt (rows 0..15) and head 4+mt (rows 16..31); unit 4 = d 16..19 of the 8 heads")
    vL16q, vTail = 8, 9
    D0 = 16
    sBASE, sHS = 61, 62
    A(f"v_lshlrev_b32 v{vL16q}, 4, v2")
    A(f"s_and_b32 s{sT}, s{sCB}, 3")
    A(f"s_cmp_eq_u32 s{sTYPE}, 0")
    A(f"s_cbranch_scc0 {name}_kparams")
    A(f"s_mov_b32 s{sHS}, {HS_Q}")
    A(f"s_mul_i32 s{sBASE}, s{sT}, {8*HS_Q}")
    A(f"s_lshl_b32 s{sT2}, s{sRB}, 3")
    A(f"s_lshl_b32 s{sT3}, s{sW}, 1")
    A(f"s_add_u32 s{sT2}, s{sT2}, s{sT3}")
    A(f"s_mul_i32 s{sT2}, s{sT2}, 1280")
    A(f"s_add_u32 s{sBASE}, s{sBASE}, s{sT2}")
    if QF: A(f"s_add_u32 s{sBASE}, s{sBASE}, {QF}")
    A(f"s_mov_b32 s{sSC}, 0x3ea52b5c")
    A(f"s_branch {name}_qk_go")
    A.label(f"{name}_kparams")
    A(f"s_mov_b32 s{sHS}, {HS_KV}")
    A(f"s_mul_i32 s{sBASE}, s{sT}, {8*HS_KV}")
    A(f"s_lshl_b32 s{sT2}, s{sRB}, 1")
    A(f"s_lshr_b32 s{sT3}, s{sW}, 1")
    A(f"s_add_u32 s{sT2}, s{sT2}, s{sT3}")
    A(f"s_mul_i32 s{sT2}, s{sT2}, {CH}")
    A(f"s_add_u32 s{sBASE}, s{sBASE}, s{sT2}")
    A(f"s_and_b32 s{sT3}, s{sW}, 1")
    A(f"s_mul_i32 s{sT3}, s{sT3}, 2560")
    A(f"s_add_u32 s{sBASE}, s{sBASE}, s{sT3}")
    A(f"s_add_u32 s{sBASE}, s{sBASE}, {KV}")
    A(f"s_mov_b32 s{sSC}, 1.0")
    A.label(f"{name}_qk_go")
    A(f"s_mov_b32 s{sH}, s{sBASE}")
    for i in range(1, 8):
        A(f"s_add_u32 s{sH+i}, s{sH+i-1}, s{sHS}")
    A("v_and_b32 v3, 31, v2")
    A("v_lshrrev_b32 v4, 5, v2")
    A(f"v_mul_lo_u32 v4, v4, s{sHS}")
    A("v_lshl_add_u32 v4, v3, 3, v4")
    A(f"v_add_u32 v{vTail}, 1024, v4")
    A(f"v_mov_b32 v10, s{sSC}")
    A(f"v_mov_b32 v11, s{sSC}")
    n = 0
    for mt in range(4):
        for tt in range(2):
            for part in range(2):
                a = acc(tt, mt) + 8*part
                d = D0 + 4*(n % 8); n += 1
                for j in range(4):
                    A(f"v_pk_mul_f32 {vr(a+2*j,2)}, {vr(a+2*j,2)}, v[10:11]")
                for j in range(4):
                    A(f"v_cvt_pk_bf16_f32 v{d+j}, v{a+2*j}, v{a+2*j+1}")
                A("s_nop 1")
                A(f"v_permlane32_swap_b32 v{d}, v{d+2}")
                A(f"v_permlane32_swap_b32 v{d+1}, v{d+3}")
                A(f"buffer_store_dwordx4 {vr(d,4)}, v{vL16q}, {sr(SRD_WS,4)}, s{sH+4*part+mt} offen offset:{tt*1280}{SC1}")
    for tt in range(2):
        for i in range(4):
            a = acc(tt, 4) + 4*i
            d = D0 + 4*(n % 8); n += 1
            for j in range(2):
                A(f"v_pk_mul_f32 {vr(a+2*j,2)}, {vr(a+2*j,2)}, v[10:11]")
            A(f"v_cvt_pk_bf16_f32 v{d}, v{a}, v{a+1}")
            A(f"v_cvt_pk_bf16_f32 v{d+1}, v{a+2}, v{a+3}")
            A(f"buffer_store_dwordx2 {vr(d,2)}, v{vTail}, {sr(SRD_WS,4)}, s{sH+2*i} offen offset:{tt*1280}{SC1}")
    A(f"s_branch {name}_fin")

    if not F6:
        A.label(f"{name}_ffnblock")
        mainloop(False, "f", False)
        A.c("epilogue FFN: h = gelu_tanh(g) * u")
        vC0, vC1, vONE = 8, 10, 12
        vTt, vP, vE, vGU = 14, 16, 18, 20
        vOUT = 24
        for j in range(2):
            A(f"v_mov_b32 v{vC0+j}, {hex(f2u(c0))}")
            A(f"v_mov_b32 v{vC1+j}, {hex(f2u(c1))}")
            A(f"v_mov_b32 v{vONE+j}, 1.0")
        A(f"v_lshlrev_b32 v3, 4, v2")
        A(f"s_lshl_b32 s{sT2}, s{sRB}, 3")
        A(f"s_lshl_b32 s{sT3}, s{sW}, 1")
        A(f"s_add_u32 s{sT2}, s{sT2}, s{sT3}")
        A(f"s_mul_i32 s{sT2}, s{sT2}, {96*1024}")
        A(f"s_lshl_b32 s{sT3}, s{sU0}, 10")
        A(f"s_add_u32 s{sT2}, s{sT2}, s{sT3}")
        A(f"s_add_u32 s{sT2}, s{sT2}, {HF}")
        A(f"s_add_u32 s{sT3}, s{sT2}, {96*1024}")
        n = 0
        for mt in range(5):
            if mt == 4:
                A(f"s_cmp_eq_u32 s{sNU}, 4")
                A(f"s_cbranch_scc1 {name}_fin")
            for tt in range(2):
                a = acc(tt, mt)
                o = vOUT + 4*(n & 1); n += 1
                for pr in range(4):
                    g = a + 2*pr; u = a + 8 + 2*pr
                    A(f"v_pk_mul_f32 {vr(vTt,2)}, {vr(g,2)}, {vr(g,2)}")
                    A(f"v_pk_mul_f32 {vr(vGU,2)}, {vr(g,2)}, {vr(u,2)}")
                    A(f"v_pk_fma_f32 {vr(vP,2)}, {vr(vTt,2)}, {vr(vC1,2)}, {vr(vC0,2)}")
                    A(f"v_pk_mul_f32 {vr(vP,2)}, {vr(vP,2)}, {vr(g,2)}")
                    A(f"v_exp_f32 v{vE}, v{vP}")
                    A(f"v_exp_f32 v{vE+1}, v{vP+1}")
                    A("s_nop 0")
                    A(f"v_pk_add_f32 {vr(vE,2)}, {vr(vE,2)}, {vr(vONE,2)}")
                    A(f"v_rcp_f32 v{vE}, v{vE}")
                    A(f"v_rcp_f32 v{vE+1}, v{vE+1}")
                    A("s_nop 0")
                    A(f"v_pk_mul_f32 {vr(vGU,2)}, {vr(vGU,2)}, {vr(vE,2)}")
                    A(f"v_cvt_pk_bf16_f32 v{o+pr}, v{vGU}, v{vGU+1}")
                A(f"buffer_store_dwordx4 {vr(o,4)}, v3, {sr(SRD_WS,4)}, s{sT2 if tt == 0 else sT3} offen offset:{mt*1024 if mt*1024 < 4096 else 0}{SC1}" if mt < 4 else
                  f"s_add_u32 s{sT}, s{sT2 if tt == 0 else sT3}, 4096\n" + f"buffer_store_dwordx4 {vr(o,4)}, v3, {sr(SRD_WS,4)}, s{sT} offen{SC1}")
        A(f"s_branch {name}_fin")

    A.label(f"{name}_vblock")
    mainloop(True, "v", True)
    A.c("epilogue V: lane = weight column n; unit mt<4: head mt (n<16) / 4+mt (n>=16), d = n&15; unit 4: head (n>>2)&3 (+4), d = 16+(n&3)")
    sBASE, sHS = 61, 62
    vA1, vA2 = 8, 9
    D1 = 16
    A(f"s_mov_b32 s{sHS}, {HS_KV}")
    A("v_bfe_u32 v5, v2, 4, 1")
    A("v_lshlrev_b32 v5, 2, v5")
    A("v_lshrrev_b32 v4, 5, v2")
    A("v_lshlrev_b32 v4, 9, v4")
    A(f"v_mul_lo_u32 v6, v5, s{sHS}")
    A("v_and_b32 v3, 15, v2")
    A("v_lshl_add_u32 v6, v3, 4, v6")
    A(f"v_add_u32 v{vA1}, v6, v4")
    A("v_bfe_u32 v6, v2, 2, 2")
    A("v_add_u32 v6, v6, v5")
    A(f"v_mul_lo_u32 v6, v6, s{sHS}")
    A("v_and_b32 v3, 3, v2")
    A("v_lshl_add_u32 v6, v3, 4, v6")
    A(f"v_add3_u32 v{vA2}, v6, v4, 0")
    A(f"v_add_u32 v{vA2}, 256, v{vA2}")
    A(f"s_sub_u32 s{sT}, s{sCB}, 8")
    A(f"s_mul_i32 s{sBASE}, s{sT}, {8*HS_KV}")
    A(f"s_lshl_b32 s{sT2}, s{sRB}, 1")
    A(f"s_lshr_b32 s{sT3}, s{sW}, 1")
    A(f"s_add_u32 s{sT2}, s{sT2}, s{sT3}")
    A(f"s_mul_i32 s{sT2}, s{sT2}, {CH}")
    A(f"s_add_u32 s{sBASE}, s{sBASE}, s{sT2}")
    A(f"s_and_b32 s{sT3}, s{sW}, 1")
    A(f"s_lshl_b32 s{sT3}, s{sT3}, 12")
    A(f"s_add_u32 s{sBASE}, s{sBASE}, s{sT3}")
    A(f"s_add_u32 s{sBASE}, s{sBASE}, {KV+5120}")
    n = 0
    for mt in range(5):
        if 0 < mt < 4: A(f"s_add_u32 s{sBASE}, s{sBASE}, s{sHS}")
        if mt == 4: A(f"s_sub_u32 s{sBASE}, s{sBASE}, {3*HS_KV}")
        for tt in range(2):
            for f in range(2):
                a = acc(tt, mt) + 8*f
                d = D1 + 4*(n % 8); n += 1
                for j in range(4):
                    A(f"v_cvt_pk_bf16_f32 v{d+j}, v{a+2*j}, v{a+2*j+1}")
                A(f"buffer_store_dwordx4 {vr(d,4)}, v{vA1 if mt < 4 else vA2}, {sr(SRD_WS,4)}, s{sBASE} offen offset:{tt*2048+f*1024}{SC1}")
    A(f"s_branch {name}_fin")

    if F6:
        XR, WB6, WST, UO6 = 32768, 98304, 12320, 6176
        A.label(f"{name}_f6c")
        ACC6 = 64; FA6 = 8; FB6 = [32, 40]; vXA6 = 48; vW6 = 52
        def acc6(tt, mt): return ACC6 + (tt*6 + mt)*16
        x_voffsets(54)
        A(f"s_mul_i32 s{sXO}, s{sRB}, {256*1280}")
        A(f"s_lshl_b32 s{sT2}, s{sW}, 13")
        A("s_waitcnt lgkmcnt(0)")
        srd_x()
        srd_ws()
        for st in range(2):
            for j in range(8):
                A(f"s_add_u32 m0, s{sT2}, {st*XR + j*1024}")
                A("s_nop 0")
                A(f"buffer_load_dwordx4 v{54+j}, {sr(SRD_X,4)}, s{sXO} offen lds")
            A(f"s_add_u32 s{sXO}, s{sXO}, 128")
        A("v_and_b32 v3, 31, v2")
        A("v_lshrrev_b32 v4, 5, v2")
        A(f"s_lshl_b32 s{sT}, s{sW}, 6")
        A(f"v_add_u32 v5, s{sT}, v3")
        A("v_lshlrev_b32 v5, 7, v5")
        A("v_bfe_u32 v6, v3, 1, 3")
        for sp in range(4):
            A(f"v_or_b32 v7, {2*sp}, v4")
            A("v_xor_b32 v7, v7, v6")
            A(f"v_lshl_add_u32 v{vXA6+sp}, v7, 4, v5")
        A("v_bfe_u32 v5, v2, 4, 1")
        A(f"v_mul_u32_u24 v5, {UO6}, v5")
        A("v_bfe_u32 v6, v2, 2, 2")
        A("v_lshl_add_u32 v6, v4, 3, v6")
        A("v_mul_u32_u24 v6, 192, v6")
        A("v_and_b32 v7, 3, v2")
        A("v_lshlrev_b32 v7, 3, v7")
        A("v_add3_u32 v5, v5, v6, v7")
        A(f"v_add_u32 v{vW6}, {WB6}, v5")
        for r in range(ACC6, ACC6+192): A(f"v_mov_b32 v{r}, 0")
        def bread(sp, st): return [f"ds_read_b128 {vr(FB6[st]+4*tt,4)}, v{vXA6+sp} offset:{tt*4096}" for tt in range(2)]
        def aread(mt, second): return [f"ds_read_b64_tr_b16 {vr(FA6+4*mt+2*half,2)}, v{vW6} offset:{second*3072+mt*32+half*768}" for half in range(2)]
        A("s_waitcnt vmcnt(8)")
        A("s_barrier")
        stamp(A, 1)
        for l in bread(0, 0): A(l)
        for mt in range(6):
            for l in aread(mt, 0): A(l)
        sWI, sXI = 44, 45
        sWP, sWN, sXP, sXN = 84, 85, 82, 83
        A(f"s_mov_b32 s{sCNT}, 0")
        A(f"s_mov_b32 s{sWI}, 0")
        A(f"s_mov_b32 s{sXI}, 0")
        A(f"s_mov_b32 s{sWP}, {WST}")
        A(f"s_mov_b32 s{sWN}, {(-4*WST) & 0xffffffff}")
        A(f"s_mov_b32 s{sXP}, {XR}")
        A(f"s_mov_b32 s{sXN}, {(-2*XR) & 0xffffffff}")
        A("s_waitcnt lgkmcnt(0)")
        A(".p2align 6")
        A.label(f"{name}_loop_f6")
        for sp in range(4):
            cur = sp & 1; nxt = cur ^ 1
            def grp(mt, wait):
                A(f"s_waitcnt lgkmcnt({wait})")
                for tt in range(2):
                    d = vr(acc6(tt, mt), 16)
                    A(f"v_mfma_f32_32x32x16_bf16 {d}, {vr(FA6+4*mt,4)}, {vr(FB6[cur]+4*tt,4)}, {d}")
            if sp & 1:
                grp(0, 10)
                A(f"s_add_u32 s{sWI}, s{sWI}, 1")
                A(f"s_cmp_eq_u32 s{sWI}, 5")
                A(f"s_cselect_b32 s{sT}, s{sWN}, s{sWP}")
                A(f"s_cselect_b32 s{sWI}, 0, s{sWI}")
                if sp == 3:
                    A(f"s_add_u32 s{sXI}, s{sXI}, 1")
                    A(f"s_cmp_eq_u32 s{sXI}, 3")
                    A(f"s_cselect_b32 s{sT2}, s{sXN}, s{sXP}")
                    A(f"s_cselect_b32 s{sXI}, 0, s{sXI}")
                    A(f"s_cmp_eq_u32 s{sCNT}, 0")
                    A(f"s_cbranch_scc0 {name}_nw_f6")
                    A("s_waitcnt vmcnt(0)")
                    A.label(f"{name}_nw_f6")
                A("s_barrier")
                A(f"v_add_u32 v{vW6}, s{sT}, v{vW6}")
                if sp == 3:
                    for j in range(4): A(f"v_add_u32 v{vXA6+j}, s{sT2}, v{vXA6+j}")
                for l in bread((sp+1) & 3, nxt): A(l)
                for l in aread(0, 0): A(l)
                for mt in range(1, 6):
                    grp(mt, 12)
                    for l in aread(mt, 0): A(l)
            else:
                for l in bread(sp+1, nxt): A(l)
                for mt in range(6):
                    grp(mt, 12)
                    for l in aread(mt, 1): A(l)
        A(f"s_add_u32 s{sCNT}, s{sCNT}, 1")
        A(f"s_cmp_lt_u32 s{sCNT}, 10")
        A(f"s_cbranch_scc1 {name}_loop_f6")
        A("s_waitcnt lgkmcnt(0)")
        if fused and asmlib.OPT.get("early"): A("s_barrier")
        A("s_nop 15")
        stamp(A, 2)
        A.c("epilogue FFN: h = gelu_tanh(g) * u")
        vC0, vC1, vONE = 8, 10, 12
        vTt, vP, vE, vGU = 14, 16, 18, 20
        vOUT = 24
        for j in range(2):
            A(f"v_mov_b32 v{vC0+j}, {hex(f2u(c0))}")
            A(f"v_mov_b32 v{vC1+j}, {hex(f2u(c1))}")
            A(f"v_mov_b32 v{vONE+j}, 1.0")
        A(f"v_lshlrev_b32 v3, 4, v2")
        A(f"v_add_u32 v4, 4096, v3")
        A(f"s_lshl_b32 s{sT2}, s{sRB}, 3")
        A(f"s_lshl_b32 s{sT3}, s{sW}, 1")
        A(f"s_add_u32 s{sT2}, s{sT2}, s{sT3}")
        A(f"s_mul_i32 s{sT2}, s{sT2}, {96*1024}")
        A(f"s_mul_i32 s{sT3}, s{sCB}, {6*1024}")
        A(f"s_add_u32 s{sT2}, s{sT2}, s{sT3}")
        A(f"s_add_u32 s{sT2}, s{sT2}, {HF}")
        A(f"s_add_u32 s{sT3}, s{sT2}, {96*1024}")
        n = 0
        for mt in range(6):
            for tt in range(2):
                a = acc6(tt, mt)
                o = vOUT + 4*(n & 1); n += 1
                for pr in range(4):
                    g = a + 2*pr; u = a + 8 + 2*pr
                    A(f"v_pk_mul_f32 {vr(vTt,2)}, {vr(g,2)}, {vr(g,2)}")
                    A(f"v_pk_mul_f32 {vr(vGU,2)}, {vr(g,2)}, {vr(u,2)}")
                    A(f"v_pk_fma_f32 {vr(vP,2)}, {vr(vTt,2)}, {vr(vC1,2)}, {vr(vC0,2)}")
                    A(f"v_pk_mul_f32 {vr(vP,2)}, {vr(vP,2)}, {vr(g,2)}")
                    A(f"v_exp_f32 v{vE}, v{vP}")
                    A(f"v_exp_f32 v{vE+1}, v{vP+1}")
                    A("s_nop 0")
                    A(f"v_pk_add_f32 {vr(vE,2)}, {vr(vE,2)}, {vr(vONE,2)}")
                    A(f"v_rcp_f32 v{vE}, v{vE}")
                    A(f"v_rcp_f32 v{vE+1}, v{vE+1}")
                    A("s_nop 0")
                    A(f"v_pk_mul_f32 {vr(vGU,2)}, {vr(vGU,2)}, {vr(vE,2)}")
                    A(f"v_cvt_pk_bf16_f32 v{o+pr}, v{vGU}, v{vGU+1}")
                A(f"buffer_store_dwordx4 {vr(o,4)}, v{3 if mt < 4 else 4}, {sr(SRD_WS,4)}, s{sT2 if tt == 0 else sT3} offen offset:{(mt % 4)*1024}{SC1}")
        if fused and asmlib.OPT.get("early"):
            A(f"s_branch {name}_f6fin")
        else:
            A(f"s_branch {name}_fin")

    A.label(f"{name}_loader")
    vXO = 8
    vWO = 16
    A(f"s_sub_u32 s{sW}, s{sW}, 4")
    if fused and asmlib.OPT.get("early"):
        A(f"v_mov_b32 v3, {K1_LDS}")
        A("v_mov_b32 v4, 0")
        A("ds_write_b32 v3, v4")
    def dbg_srd(r):
        A(f"s_load_dwordx2 s[{r+4}:{r+5}], s[0:1], {KA_DBG}")
        A("s_waitcnt lgkmcnt(0)")
        A(f"s_mov_b32 s{r}, s{r+4}")
        A(f"s_and_b32 s{r+1}, s{r+5}, 0xffff")
        A(f"s_mov_b32 s{r+2}, 256")
        A(f"s_mov_b32 s{r+3}, 0x20000")
    def tag_load():
        dbg_srd(88 if not asmlib.PROFILE else 52)
        r = 88 if not asmlib.PROFILE else 52
        A("v_mov_b32 v131, 240")
        A(f"buffer_load_dword v130, v131, {sr(r,4)}, 0 offen sc1")
    sL = 64
    A(f"s_lshl_b32 s{sL}, s2, 2")
    A(f"s_add_u32 s{sL}, s{sL}, s{sW}")
    A(f"s_mul_i32 s{sXO}, s{sRB}, {256*1280}")
    A(f"s_add_u32 s{sXO}, s{sXO}, 256")
    if F6:
        A(f"s_cmp_eq_u32 s{sTYPE}, 3")
        A(f"s_cbranch_scc1 {name}_f6l")
        A(f"s_cmp_eq_u32 s{sTYPE}, 4")
        A(f"s_cbranch_scc1 {name}_idlel")
    sLX, sLW, sWSTEP = 61, 62, 63
    if F6:
        A(f"s_mul_i32 s{sT}, s{sW}, 320")
        for i in range(5):
            A(f"v_add_u32 v3, s{sT}, v2")
            A(f"v_add_u32 v3, {64*i}, v3")
            A("v_mul_u32_u24 v4, 3277, v3")
            A("v_lshrrev_b32 v4, 16, v4")
            A("v_mul_u32_u24 v5, 20, v4")
            A("v_sub_u32 v5, v3, v5")
            A("v_mul_u32_u24 v4, 3840, v4")
            A(f"v_lshl_add_u32 v{vWO+i}, v5, 4, v4")
        A(f"s_lshl_b32 s{sLX}, s{sW}, 13")
        A(f"s_mul_i32 s{sLW}, s{sW}, 5120")
        A(f"s_add_u32 s{sLW}, s{sLW}, {WOFF}")
        A(f"s_lshl_b32 s{sWSTEP}, s{sRS}, 6")
    else:
        A(f"s_and_b32 s{sT}, s{sW}, 1")
        A(f"s_mul_i32 s{sT}, s{sT}, 320")
        for i in range(5):
            A(f"v_add_u32 v3, s{sT}, v2")
            A(f"v_add_u32 v3, {64*i}, v3")
            A("v_mul_u32_u24 v4, 6554, v3")
            A("v_lshrrev_b32 v4, 16, v4")
            A("v_mul_u32_u24 v5, 10, v4")
            A("v_sub_u32 v5, v3, v5")
            A(f"v_mul_lo_u32 v4, v4, s{sRS}")
            A(f"v_lshl_add_u32 v{vWO+i}, v5, 4, v4")
        A(f"s_lshl_b32 s{sLX}, s{sW}, 13")
        A(f"s_lshr_b32 s{sT}, s{sW}, 1")
        A(f"s_mul_i32 s{sLW}, s{sT}, {UOFF}")
        A(f"s_and_b32 s{sT}, s{sW}, 1")
        A(f"s_mul_i32 s{sT}, s{sT}, 5120")
        A(f"s_add_u32 s{sLW}, s{sLW}, s{sT}")
        A(f"s_add_u32 s{sLW}, s{sLW}, {WOFF}")
        A(f"s_lshl_b32 s{sWSTEP}, s{sRS}, 6")
    def issue_w():
        A(f"s_add_u32 s{sT}, s{sBUF}, s{sLW}")
        for i in range(5):
            A(f"s_add_u32 m0, s{sT}, {i*1024}")
            A("s_nop 0")
            A(f"buffer_load_dwordx4 v{vWO+i}, {sr(SRD_W,4)}, s{sWO_} offen lds")
        A(f"s_add_u32 s{sWO_}, s{sWO_}, s{sWSTEP}")
    def next_buf():
        A(f"s_add_u32 s{sBUF}, s{sBUF}, {STAGE}")
        A(f"s_cmp_eq_u32 s{sBUF}, {3*STAGE}")
        A(f"s_cselect_b32 s{sBUF}, 0, s{sBUF}")
    def issue_stage():
        if asmlib.OPT.get("k1nodma"): return
        issue_w()
        A(f"s_add_u32 s{sT}, s{sBUF}, s{sLX}")
        for j in range(8):
            A(f"s_add_u32 m0, s{sT}, {j*1024}")
            A("s_nop 0")
            A(f"buffer_load_dwordx4 v{vXO+j}, {sr(SRD_X,4)}, s{sXO} offen lds")
        A(f"s_add_u32 s{sXO}, s{sXO}, 128")
        next_buf()
    A("s_waitcnt lgkmcnt(0)")
    if F6:
        A(f"s_mov_b32 s{SRD_W}, s{sWQ}")
        A(f"s_mov_b32 s{SRD_W+1}, s{sWQ+1}")
        A(f"s_lshl_b32 s{sWO_}, s{sCG}, 1")
    else:
        A.c("SRD w (QKV blocks: wqkv; FFN blocks: w_gate for loaders 0,1 and w_up for 2,3)")
        A(f"s_cmp_ge_u32 s{sW}, 2")
        A(f"s_cselect_b32 s{SRD_W}, s{sWU}, s{sWG}")
        A(f"s_cselect_b32 s{SRD_W+1}, s{sWU+1}, s{sWG+1}")
        A(f"s_cselect_b32 s{sT}, s{sCU}, s{sCG}")
        A(f"s_lshl_b32 s{sWO_}, s{sT}, 1")
        A(f"s_cmp_eq_u32 s{sTYPE}, 3")
        A(f"s_cselect_b32 s{SRD_W}, s{SRD_W}, s{sWQ}")
        A(f"s_cselect_b32 s{SRD_W+1}, s{SRD_W+1}, s{sWQ+1}")
    A(f"s_and_b32 s{SRD_W+1}, s{SRD_W+1}, 0xffff")
    A(f"s_mul_i32 s{SRD_W+2}, s{sRS}, 640")
    A(f"s_mov_b32 s{SRD_W+3}, 0x20000")
    A(f"s_mov_b32 s{sBUF}, 0")
    if SP: stamp(A, 1)
    issue_w(); next_buf()
    if SP: stamp(A, 2)
    issue_w(); next_buf()
    srd_x()
    srd_ws()
    x_voffsets(vXO)
    SRD_D, SRD_O, SRD_G, SRD_P = 68, 76, 80, 68
    vPW = 64
    vGX, vGW = 76, 88
    vS1, vS2, vTK = 100, 101, 102
    sN = 84
    sN = 56
    def prefetch_setup():
        A("v_lshlrev_b32 v21, 4, v2")
        mats = ((sX, 2048*1280, 3, 68), (sWQ, 640*3840, 3, 72), (sWG, 640*3072, 2, 76), (sWU, 640*3072, 2, 80))
        for (ptr, nb, pieces, r) in mats:
            A(f"s_mov_b32 s{r}, s{ptr}")
            A(f"s_and_b32 s{r+1}, s{ptr+1}, 0xffff")
            A(f"s_mov_b32 s{r+2}, {nb}")
            A(f"s_mov_b32 s{r+3}, 0x20000")
        A(f"s_lshl_b32 s{sT2}, s{sL}, 10")
        A(f"v_add_u32 v21, s{sT2}, v21")
        A(f"v_add_u32 v22, {1 << 20}, v21")
        A(f"v_add_u32 v23, {2 << 20}, v21")
        order = [(1,0),(2,0),(3,0),(0,0),(0,1),(0,2),(1,1),(2,1),(3,1),(1,2)]
        return [f"buffer_load_dwordx4 v[60:63], v{21+j}, {sr(mats[mi][3],4)}, 0 offen" for (mi, j) in order]
    def prefetch_inputs():
        n = 0
        if not asmlib.OPT.get("pf2"):
            A.c("warm-up: stream a 1/1024 share of every GEMM input linearly, so that the strided tile loads of the later stages hit the memory-side cache")
            A("v_lshlrev_b32 v3, 4, v2")
            mats = ((sX, 2048*1280, 3, 68), (sWQ, 640*3840, 3, 72), (sWG, 640*3072, 2, 76), (sWU, 640*3072, 2, 80))
            if asmlib.OPT.get("pfo", 1):
                for (ptr, nb, pieces, r) in mats:
                    A(f"s_mov_b32 s{r}, s{ptr}")
                    A(f"s_and_b32 s{r+1}, s{ptr+1}, 0xffff")
                    A(f"s_mov_b32 s{r+2}, {nb}")
                    A(f"s_mov_b32 s{r+3}, 0x20000")
                A(f"s_lshl_b32 s{sT2}, s{sL}, 10")
                A(f"v_add_u32 v3, s{sT2}, v3")
                A(f"v_add_u32 v4, {1 << 20}, v3")
                A(f"v_add_u32 v5, {2 << 20}, v3")
                order = [(1,0),(2,0),(3,0),(0,0),(0,1),(0,2),(1,1),(2,1),(3,1),(1,2)]
                cur = 0
                for (mi, j) in order:
                    A(f"buffer_load_dwordx4 v[60:63], v{3+j}, {sr(mats[mi][3],4)}, 0 offen")
                    n += 1
            else:
                for (ptr, nb, pieces, r) in mats:
                    A(f"s_mov_b32 s{SRD_P}, s{ptr}")
                    A(f"s_and_b32 s{SRD_P+1}, s{ptr+1}, 0xffff")
                    A(f"s_mov_b32 s{SRD_P+2}, {nb}")
                    A(f"s_mov_b32 s{SRD_P+3}, 0x20000")
                    A(f"s_mul_i32 s{sT2}, s{sL}, {pieces*1024}")
                    for i in range(pieces):
                        A(f"buffer_load_dwordx4 v[60:63], v3, {sr(SRD_P,4)}, s{sT2} offen offset:{i*1024}")
                        n += 1
            return n
        A.c("L2 warm-up (speed only): the workgroups that share operand lines split the job of pulling them in early.")
        A.c("x: this workgroup streams 32 of the 256 rows of its row block (all K); w: it fetches two later stages of its column block")
        A("v_lshlrev_b32 v3, 4, v2")
        A(f"s_lshr_b32 s{sT}, s2, 5")
        A(f"s_lshl_b32 s{sT}, s{sT}, 2")
        A(f"s_add_u32 s{sT}, s{sT}, s{sW}")
        A(f"s_mul_i32 s{sT}, s{sT}, {8*1280}")
        A(f"s_mul_i32 s{sT2}, s{sRB}, {256*1280}")
        A(f"s_add_u32 s{sT}, s{sT}, s{sT2}")
        NX = asmlib.OPT.get("pfx", 10)
        for i in range(NX):
            if i % 4 == 0 and i: A(f"s_add_u32 s{sT}, s{sT}, 4096")
            A(f"buffer_load_dwordx4 v[60:63], v3, {sr(SRD_X,4)}, s{sT} offen offset:{(i % 4)*1024}")
            n += 1
        for st in range(2):
            A(f"s_bfe_u32 s{sT}, s2, 0x20003")
            A(f"s_lshl_b32 s{sT}, s{sT}, 1")
            A(f"s_add_u32 s{sT}, s{sT}, {st}")
            A(f"s_min_u32 s{sT}, s{sT}, 6")
            A(f"s_mul_i32 s{sT}, s{sT}, s{sWSTEP}")
            A(f"s_add_u32 s{sT}, s{sT}, s{sWO_}")
            for i in range(5):
                A(f"buffer_load_dwordx4 v[60:63], v{vWO+i}, {sr(SRD_W,4)}, s{sT} offen")
                n += 1
        return n
    def side_loads(tag=''):
        for srd, p, nb in ((SRD_D, sWD, 1536*1280), (SRD_O, sWO, 640*1280), (SRD_G, sGW, 1280)):
            A(f"s_mov_b32 s{srd}, s{p}")
            A(f"s_and_b32 s{srd+1}, s{p+1}, 0xffff")
            A(f"s_mov_b32 s{srd+2}, {nb}")
            A(f"s_mov_b32 s{srd+3}, 0x20000")
        A("v_lshrrev_b32 v3, 2, v2")
        A("v_mul_u32_u24 v3, 1280, v3")
        A("v_and_b32 v4, 3, v2")
        A(f"v_lshl_add_u32 v{vS1}, v4, 4, v3")
        A("v_bfe_u32 v5, v2, 4, 1")
        A("v_lshrrev_b32 v6, 5, v2")
        A("v_lshl_add_u32 v5, v5, 1, v6")
        A("v_mul_u32_u24 v5, 20, v5")
        A("v_bfe_u32 v6, v2, 2, 2")
        A("v_add3_u32 v5, v5, v6, 16")
        A("v_mul_u32_u24 v5, 1280, v5")
        A(f"v_lshl_add_u32 v{vS2}, v4, 4, v5")
        for m in range(3):
            A(f"s_add_u32 s{sN+m}, s{sL}, {1024*m}")
            A(f"s_cmp_ge_u32 s{sN+m}, 1920")
            A(f"s_cbranch_scc1 {name}_pl_o{m}{tag}")
            A(f"s_mul_i32 s{sT}, s{sN+m}, 683")
            A(f"s_lshr_b32 s{sT}, s{sT}, 16")
            A(f"s_mul_i32 s{sT2}, s{sT}, 96")
            A(f"s_sub_u32 s{sT2}, s{sN+m}, s{sT2}")
            A(f"s_mul_i32 s{sT2}, s{sT2}, {16*1280}")
            A(f"s_lshl_b32 s{sT}, s{sT}, 6")
            A(f"s_add_u32 s{sT}, s{sT}, s{sT2}")
            A(f"buffer_load_dwordx4 {vr(vPW+4*m,4)}, v{vS1}, {sr(SRD_D,4)}, s{sT} offen")
            A(f"s_branch {name}_pl_n{m}{tag}")
            A.label(f"{name}_pl_o{m}{tag}")
            A(f"s_sub_u32 s{sT3}, s{sN+m}, 1920")
            A(f"s_mul_i32 s{sT}, s{sT3}, 1639")
            A(f"s_lshr_b32 s{sT}, s{sT}, 16")
            A(f"s_mul_i32 s{sT2}, s{sT}, 40")
            A(f"s_sub_u32 s{sT2}, s{sT3}, s{sT2}")
            A(f"s_lshl_b32 s{sT}, s{sT}, 6")
            A(f"s_cmp_ge_u32 s{sT2}, 32")
            A(f"s_cbranch_scc1 {name}_pl_t{m}{tag}")
            A.c("main step (one head): rows 20*head .. +15")
            A(f"s_mul_i32 s{sT2}, s{sT2}, {20*1280}")
            A(f"s_add_u32 s{sT}, s{sT}, s{sT2}")
            A(f"buffer_load_dwordx4 {vr(vPW+4*m,4)}, v{vS1}, {sr(SRD_O,4)}, s{sT} offen")
            A(f"s_branch {name}_pl_n{m}{tag}")
            A.label(f"{name}_pl_t{m}{tag}")
            A.c("tail step: d=16..19 of four heads (blocks past 2720 read zeros or junk, never stored)")
            A(f"s_sub_u32 s{sT2}, s{sT2}, 32")
            A(f"s_mul_i32 s{sT2}, s{sT2}, {80*1280}")
            A(f"s_add_u32 s{sT}, s{sT}, s{sT2}")
            A(f"buffer_load_dwordx4 {vr(vPW+4*m,4)}, v{vS2}, {sr(SRD_O,4)}, s{sT} offen")
            A.label(f"{name}_pl_n{m}{tag}")
        A("v_and_b32 v3, 31, v2")
        A("v_lshlrev_b32 v3, 4, v3")
        A(f"v_lshrrev_b32 v{vTK}, 5, v2")
        A(f"s_lshl_b32 s{sT}, s{sL}, 1")
        A(f"v_add_u32 v{vTK}, s{sT}, v{vTK}")
        A(f"v_mul_u32_u24 v5, 1280, v{vTK}")
        A("v_add_u32 v5, v5, v3")
        A("v_and_b32 v6, 16, v2")
        A("v_cmp_ne_u32 vcc, 0, v6")
        A(f"v_mov_b32 v7, 0x7ff00000")
        A("v_add_u32 v6, 1024, v5")
        A("v_add_u32 v4, 1024, v3")
        A("v_cndmask_b32 v6, v6, v7, vcc")
        A("v_cndmask_b32 v4, v4, v7, vcc")
        A(f"buffer_load_dwordx4 {vr(vGX,4)}, v5, {sr(SRD_X,4)}, 0 offen")
        A(f"buffer_load_dwordx4 {vr(vGX+4,4)}, v5, {sr(SRD_X,4)}, 0 offen offset:512")
        A(f"buffer_load_dwordx4 {vr(vGX+8,4)}, v6, {sr(SRD_X,4)}, 0 offen")
        A(f"buffer_load_dwordx4 {vr(vGW,4)}, v3, {sr(SRD_G,4)}, 0 offen")
        A(f"buffer_load_dwordx4 {vr(vGW+4,4)}, v3, {sr(SRD_G,4)}, 0 offen offset:512")
        A(f"buffer_load_dwordx4 {vr(vGW+8,4)}, v4, {sr(SRD_G,4)}, 0 offen")
        return 9
    def side_process(tag='', scr_shift=9, scr_base=None):
        A.c("side job: gate g = sigmoid(x . gate_w)")
        A("v_mov_b32 v3, 0")
        for j in range(12):
            A(f"v_dot2c_f32_bf16 v3, v{vGX+j}, v{vGW+j}")
        A("s_nop 3")
        for sh in (1, 2, 4, 8):
            A(f"v_add_f32_dpp v3, v3, v3 row_shr:{sh} row_mask:0xf bank_mask:0xf bound_ctrl:0")
            A("s_nop 1")
        A("v_add_f32_dpp v3, v3, v3 row_bcast:15 row_mask:0xa bank_mask:0xf")
        A("s_nop 1")
        A("v_mul_f32 v3, 0xbfb8aa3b, v3")
        A("v_exp_f32 v3, v3")
        A("s_nop 0")
        A("v_add_f32 v3, 1.0, v3")
        A("v_rcp_f32 v3, v3")
        A(f"v_lshlrev_b32 v{vTK}, 2, v{vTK}")
        A("v_and_b32 v6, 31, v2")
        A("v_cmp_eq_u32 vcc, 31, v6")
        A(f"s_mov_b32 s{sT}, {GG}")
        A("s_and_saveexec_b64 s[50:51], vcc")
        A(f"s_cbranch_execz {name}_gate_done{tag}")
        A(f"buffer_store_dword v3, v{vTK}, {sr(SRD_WS,4)}, s{sT} offen{SC1}")
        A.label(f"{name}_gate_done{tag}")
        A("s_mov_b64 exec, s[50:51]")
        A.c("side job: transpose Wd / Wo blocks into MFMA A-fragment order through a 512-byte LDS scratch per wave")
        A(f"s_lshl_b32 s{sT}, s{sW}, 9")
        A(f"s_add_u32 s{sT}, s{sT}, {K1_LDS - 2048 if scr_base is None else scr_base}")
        A("v_and_b32 v4, 31, v2")
        A("v_lshlrev_b32 v4, 4, v4")
        A(f"v_add_u32 v4, s{sT}, v4")
        A("v_lshrrev_b32 v7, 5, v2")
        A("v_bfe_u32 v5, v2, 2, 2")
        A("v_lshl_add_u32 v5, v7, 2, v5")
        A("v_lshlrev_b32 v5, 6, v5")
        A("v_bfe_u32 v6, v2, 4, 1")
        A("v_lshl_add_u32 v5, v6, 5, v5")
        A("v_and_b32 v6, 3, v2")
        A("v_lshl_add_u32 v5, v6, 3, v5")
        A(f"v_add_u32 v5, s{sT}, v5")
        A("v_lshlrev_b32 v7, 4, v2")
        OUT = 104
        for m in range(3):
            if m == 2:
                A(f"s_cmp_ge_u32 s{sN+m}, 2720")
                A(f"s_cbranch_scc1 {name}_prep_done{tag}")
            for half in range(2):
                A("s_mov_b32 exec_hi, 0" if half == 0 else "s_mov_b32 exec_lo, 0")
                A(f"ds_write_b128 v4, {vr(vPW+4*m,4)}")
                A("s_mov_b64 exec, -1")
                A("s_waitcnt lgkmcnt(0)")
                A(f"ds_read_b64_tr_b16 {vr(OUT+4*m+2*half,2)}, v5")
                A("s_waitcnt lgkmcnt(0)")
            A(f"s_lshl_b32 s{sT}, s{sN+m}, 10")
            A(f"s_add_u32 s{sT}, s{sT}, {WDF}")
            A(f"buffer_store_dwordx4 {vr(OUT+4*m,4)}, v7, {sr(SRD_WS,4)}, s{sT} offen{SC1}")
        A.label(f"{name}_prep_done{tag}")
    if F6:
        from p1two import Seq
        q = Seq()
        q.add(("st", 0), 5); q.add(("st", 1), 5)
        PFL = prefetch_setup() if not asmlib.OPT.get("nopf") else []
        NPS = asmlib.OPT.get("nps", 10)
        if not asmlib.OPT.get("late2"):
            issue_stage(); q.add(("st", 2), 13)
        for S in range(10):
            A(f"s_waitcnt vmcnt({q.n_after(('st', S))})")
            A("s_barrier")
            if S == 8 and not SP: stamp(A, 1)
            if S + 2 <= 9 and (S > 0 or asmlib.OPT.get("late2")):
                issue_stage(); q.add(("st", S+2), 13)
            for l in PFL[:NPS]:
                A(l); q.add("pf")
            PFL = PFL[NPS:]
            if S == 7 and fused and asmlib.OPT.get("early"):
                tag_load(); q.add("tag")
        A(f"s_cmp_eq_u32 s{sTYPE}, 2")
        A(f"s_cbranch_scc0 {name}_novp")
        vpad("q", 120)
        A.label(f"{name}_novp")
        A("s_barrier")
        if not SP: stamp(A, 2)
    else:
        if asmlib.OPT.get("late2"):
            A("s_waitcnt vmcnt(5)")
            A("s_barrier")
            issue_stage()
            NPF = prefetch_inputs() if not (asmlib.OPT.get("nopf") or (F6 and not asmlib.OPT.get("pfall"))) else 0
            A(f"s_waitcnt vmcnt({13+NPF})")
            A("s_barrier")
            issue_stage()
            A(f"s_waitcnt vmcnt({13+NPF})")
            A("s_barrier")
            issue_stage()
        else:
            issue_stage()
            A("s_waitcnt vmcnt(18)")
            A("s_barrier")
            NPF = prefetch_inputs() if not (asmlib.OPT.get("nopf") or (F6 and not asmlib.OPT.get("pfall"))) else 0
            A(f"s_waitcnt vmcnt({13+NPF})")
            A("s_barrier")
            issue_stage()
            A(f"s_waitcnt vmcnt({NPF+13})")
            A("s_barrier")
            issue_stage()
    if F6:
        pass
    elif not asmlib.OPT.get("earlyside"):
        for S in range(3, 8):
            A("s_waitcnt vmcnt(13)")
            A("s_barrier")
            issue_stage()
        NS = side_loads()
        A(f"s_waitcnt vmcnt({13+NS})")
        A("s_barrier")
        if not SP: stamp(A, 1)
        A(f"s_waitcnt vmcnt({NS})")
        A("s_barrier")
        if not asmlib.OPT.get("earlyconst"): const_stores("l", 120)
        A("s_barrier")
        if not SP: stamp(A, 2)
        A("s_waitcnt vmcnt(3)" if not asmlib.OPT.get("earlyconst") else "s_waitcnt vmcnt(0)")
        side_process()
    else:
        A("s_waitcnt vmcnt(13)")
        A("s_barrier")
        issue_stage()
        A("s_waitcnt vmcnt(13)")
        A("s_barrier")
        NS = side_loads()
        issue_stage()
        A(f"s_waitcnt vmcnt({13+NS})")
        A("s_barrier")
        issue_stage()
        A("s_waitcnt vmcnt(13)")
        A("s_barrier")
        issue_stage()
        side_process()
        A("s_waitcnt vmcnt(16)")
        A("s_barrier")
        issue_stage()
        A("s_waitcnt vmcnt(16)")
        A("s_barrier")
        if not SP: stamp(A, 1)
        A("s_waitcnt vmcnt(0)")
        A("s_barrier")
        A("s_barrier")
        if not SP: stamp(A, 2)
    if F6:
        from p1two import Seq
        A(f"s_branch {name}_fin")
        XR, WB6, WST, UO6 = 32768, 98304, 12320, 6176
        A.label(f"{name}_f6l")
        vW6O = 16
        A(f"s_and_b32 s{sT}, s{sW}, 1")
        A(f"s_mul_i32 s{sT}, s{sT}, 192")
        for i in range(3):
            A(f"v_add_u32 v3, s{sT}, v2")
            A(f"v_add_u32 v3, {64*i}, v3")
            A("v_mul_u32_u24 v4, 5462, v3")
            A("v_lshrrev_b32 v4, 16, v4")
            A("v_mul_u32_u24 v5, 12, v4")
            A("v_sub_u32 v5, v3, v5")
            A("v_mul_u32_u24 v4, 3072, v4")
            A(f"v_lshl_add_u32 v{vW6O+i}, v5, 4, v4")
        sLX, sLW = 61, 62
        A(f"s_lshl_b32 s{sLX}, s{sW}, 13")
        A(f"s_lshr_b32 s{sT}, s{sW}, 1")
        A(f"s_mul_i32 s{sLW}, s{sT}, {UO6}")
        A(f"s_and_b32 s{sT}, s{sW}, 1")
        A(f"s_mul_i32 s{sT}, s{sT}, 3072")
        A(f"s_add_u32 s{sLW}, s{sLW}, s{sT}")
        A(f"s_add_u32 s{sLW}, s{sLW}, {WB6}")
        A(f"s_mul_i32 s{sWO_}, s{sCB}, 192")
        A("s_waitcnt lgkmcnt(0)")
        A(f"s_cmp_ge_u32 s{sW}, 2")
        A(f"s_cselect_b32 s{SRD_W}, s{sWU}, s{sWG}")
        A(f"s_cselect_b32 s{SRD_W+1}, s{sWU+1}, s{sWG+1}")
        A(f"s_and_b32 s{SRD_W+1}, s{SRD_W+1}, 0xffff")
        A(f"s_mov_b32 s{SRD_W+2}, {640*3072}")
        A(f"s_mov_b32 s{SRD_W+3}, 0x20000")
        q = Seq()
        def w6(j):
            for i in range(3):
                A(f"s_add_u32 m0, s{sLW}, {(j % 5)*WST + i*1024}")
                A("s_nop 0")
                A(f"buffer_load_dwordx4 v{vW6O+i}, {sr(SRD_W,4)}, s{sWO_} offen lds")
            A(f"s_add_u32 s{sWO_}, s{sWO_}, {32*3072}")
            q.add(("w", j), 3)
        def x6(i):
            for j in range(8):
                A(f"s_add_u32 m0, s{sLX}, {(i % 3)*XR + j*1024}")
                A("s_nop 0")
                A(f"buffer_load_dwordx4 v{vXO+j}, {sr(SRD_X,4)}, s{sXO} offen lds")
            A(f"s_add_u32 s{sXO}, s{sXO}, 128")
            q.add(("x", i), 8)
        w6(0); w6(1)
        srd_x(); srd_ws(); x_voffsets(vXO)
        w6(2); w6(3); x6(2)
        if not asmlib.OPT.get("late2"): w6(4)
        A(f"s_waitcnt vmcnt({q.n_after(('w', 0))})")
        A("s_barrier")
        PFL = prefetch_setup() if not asmlib.OPT.get("nopf") else []
        NPS = asmlib.OPT.get("nps6", 10)
        for j in range(20):
            need = []
            if j + 1 <= 19: need.append(("w", j+1))
            if j & 1 and 2 <= (j+1)//2 <= 9: need.append(("x", (j+1)//2))
            if need: A(f"s_waitcnt vmcnt({min(63, min(q.n_after(t) for t in need))})")
            A("s_barrier")
            if j + 4 <= 19 and (j > 0 or asmlib.OPT.get("late2")): w6(j+4)
            if j & 1:
                i = (j+1)//2
                if i + 2 <= 9: x6(i+2)
            for l in PFL[:NPS]:
                A(l); q.add("pf")
            PFL = PFL[NPS:]
            if j == 15 and fused and asmlib.OPT.get("early"):
                tag_load(); q.add("tag")
        A(f"s_branch {name}_f6ldone")
        A.label(f"{name}_idlel")
        A("s_waitcnt lgkmcnt(0)")
        if fused and asmlib.OPT.get("early"):
            A("s_cmp_eq_u32 s2, 224")
            A(f"s_cbranch_scc0 {name}_notag")
            A(f"s_cmp_eq_u32 s{sW}, 0")
            A(f"s_cbranch_scc0 {name}_notag")
            dbg_srd(68)
            A("s_memrealtime s[74:75]")
            A("s_waitcnt lgkmcnt(0)")
            A("s_or_b32 s74, s74, 1")
            A("s_mov_b64 exec, 1")
            A("v_mov_b32 v4, s74")
            A("v_mov_b32 v3, 240")
            A("buffer_store_dword v4, v3, s[68:71], 0 offen sc1")
            A("s_mov_b64 exec, -1")
            A.label(f"{name}_notag")
        if not asmlib.OPT.get("nopf"):
            for l in prefetch_setup(): A(l)
        A(f"s_add_u32 s{sW}, s{sW}, 4")
        A.label(f"{name}_idlec")
        A("s_waitcnt lgkmcnt(0)")
        srd_x(); srd_ws()
        sIW, sIT = 65, 66
        A(f"s_lshr_b32 s{sT}, s2, 3")
        A(f"s_sub_u32 s{sT}, s{sT}, 28")
        A(f"s_lshl_b32 s{sT}, s{sT}, 3")
        A(f"s_and_b32 s{sT2}, s2, 7")
        A(f"s_add_u32 s{sT}, s{sT}, s{sT2}")
        A(f"s_lshl_b32 s{sT}, s{sT}, 3")
        A(f"s_add_u32 s{sIW}, s{sT}, s{sW}")
        if asmlib.OPT.get("pf0"):
            A.c("first thing: these otherwise idle waves stream x and the first weight rows linearly (cold start: the tile loads of the first stages then hit the memory-side cache)")
            A("v_lshlrev_b32 v3, 4, v2")
            for (ptr, nb, r) in ((sX, 2048*1280, 68), (sWQ, 192*3840, 72), (sWG, 192*3072, 76), (sWU, 192*3072, 80)):
                A(f"s_mov_b32 s{r}, s{ptr}")
                A(f"s_and_b32 s{r+1}, s{ptr+1}, 0xffff")
                A(f"s_mov_b32 s{r+2}, {nb}")
                A(f"s_mov_b32 s{r+3}, 0x20000")
            A(f"s_lshl_b32 s{sT}, s{sIW}, 10")
            A(f"v_add_u32 v3, s{sT}, v3")
            for j in range(10):
                for (r, n) in ((72, 3), (76, 3), (80, 3), (68, 10)):
                    if j < n:
                        A(f"buffer_load_dwordx4 v[60:63], v3, {sr(r,4)}, 0 offen")
                A(f"v_add_u32 v3, {256*1024}, v3")
        A(f"s_mov_b32 s{sIT}, 0")
        A.label(f"{name}_idleloop")
        A(f"s_lshl_b32 s{sL}, s{sIW}, 2")
        A(f"s_add_u32 s{sL}, s{sL}, s{sIT}")
        side_loads("_id")
        A("s_waitcnt vmcnt(0)")
        side_process("_id", scr_shift=8, scr_base=0)
        fill_of(120)
        A(f"s_add_u32 s{sIT}, s{sIT}, 1")
        A(f"s_cmp_lt_u32 s{sIT}, 4")
        A(f"s_cbranch_scc1 {name}_idleloop")
        if fused and asmlib.OPT.get("early"): tag_load()
        A(f"s_branch {name}_fin")
        A.label(f"{name}_f6ldone")
        if fused and asmlib.OPT.get("early"):
            A("s_barrier")
            A(f"s_branch {name}_f6fin")
    A.label(f"{name}_fin")
    if asmlib.PROFILE and not asmlib.OPT.get("noflush0"):
        A("s_waitcnt vmcnt(0)")
        if SP:
            A("v_readfirstlane_b32 s83, v0")
            A("s_nop 3")
            A("s_cmp_ge_u32 s83, 256")
            A(f"s_cbranch_scc1 {name}_fin_sp")
        stamp(A, 3)
        if SP:
            A(f"s_branch {name}_fin_sp2")
            A.label(f"{name}_fin_sp")
            A("s_mov_b32 s92, s66")
            A.label(f"{name}_fin_sp2")
        A("v_readfirstlane_b32 s83, v0")
        A("s_nop 3")
        A("s_lshr_b32 s83, s83, 6")
        stamp_flush(A, 0, SRD_WS, 83, 4)
    if not fused:
        A.label(f"{name}_end")
        A("s_endpgm")
        return 256
    if F6 and asmlib.OPT.get("early"):
        A("s_mov_b64 exec, -1")
        A("s_waitcnt vmcnt(0) lgkmcnt(0)")
        A("s_barrier")
        A(f"s_lshl_b32 s70, s{sTYPE}, 3")
        A(f"s_add_u32 s70, s70, s{sRB}")
        A(f"s_lshr_b32 s{sT}, s2, 3")
        A(f"s_sub_u32 s{sT}, s{sT}, 28")
        A(f"s_lshl_b32 s{sT}, s{sT}, 3")
        A(f"s_and_b32 s{sT2}, s2, 7")
        A(f"s_add_u32 s{sT}, s{sT}, s{sT2}")
        A(f"s_add_u32 s{sT}, s{sT}, 64")
        A(f"s_cmp_eq_u32 s{sTYPE}, 4")
        A(f"s_cselect_b32 s70, s{sT}, s70")
        A("s_mov_b32 s71, -1")
        A(f"s_branch {name}_p2_entry")
        A.label(f"{name}_f6fin")
        A("s_mov_b64 exec, -1")
        A("s_mov_b32 s70, -1")
        A(f"s_lshl_b32 s71, s{sRB}, 8")
        A(f"s_add_u32 s71, s71, s{sCB}")
        A.label(f"{name}_p2_entry")
        return 256
    A.c("every wave drains its write-through stores, then one lane signals for the workgroup")
    A("s_mov_b64 exec, -1")
    A("s_waitcnt vmcnt(0) lgkmcnt(0)")
    A("s_barrier")
    sDBG, SRD_D2 = 4, 8
    A(f"s_load_dwordx2 {sr(sDBG,2)}, s[0:1], {KA_DBG}")
    A("v_readfirstlane_b32 s83, v0")
    A("s_nop 3")
    A("s_cmp_lt_u32 s83, 64")
    A(f"s_cbranch_scc0 {name}_p1polled")
    if asmlib.OPT.get('wbl2'):
        A("buffer_wbl2 sc1")
        A("s_waitcnt vmcnt(0)")
    A("s_waitcnt lgkmcnt(0)")
    A(f"s_mov_b32 s{SRD_D2}, s{sDBG}")
    A(f"s_and_b32 s{SRD_D2+1}, s{sDBG+1}, 0xffff")
    A(f"s_mov_b32 s{SRD_D2+2}, 256")
    A(f"s_mov_b32 s{SRD_D2+3}, 0x20000")
    if F6:
        A(f"s_bfe_u32 s{sT3}, s2, 0x20001")
        A(f"s_add_u32 s{sT2}, s{sRB}, 32")
        A(f"s_cmp_eq_u32 s{sTYPE}, 3")
        A(f"s_cselect_b32 s{sT}, s{sT2}, s{sT3}")
        A(f"s_cmp_eq_u32 s{sTYPE}, 4")
        A(f"s_cselect_b32 s{sT}, 40, s{sT}")
        A(f"s_lshl_b32 s{sT}, s{sT}, 2")
        A("s_mov_b64 exec, 1")
        A(f"v_mov_b32 v3, s{sT}")
        A("v_mov_b32 v4, 1")
        if not asmlib.OPT.get("noatomic"): A(f"buffer_atomic_add v4, v3, {sr(SRD_D2,4)}, 0 offen sc1")
        A(f"s_lshl_b32 s{sT3}, s{sT3}, 2")
        A(f"v_mov_b32 v3, s{sT3}")
        A("v_mov_b32 v5, 24")
    else:
        A(f"s_and_b32 s{sT}, s{sCB}, 3")
        A(f"s_add_u32 s{sT2}, s{sRB}, 32")
        A(f"s_cmp_ge_u32 s{sCB}, 12")
        A(f"s_cselect_b32 s{sT}, s{sT2}, s{sT}")
        A(f"s_lshl_b32 s{sT}, s{sT}, 2")
        A("s_mov_b64 exec, 1")
        A(f"v_mov_b32 v3, s{sT}")
        A("v_mov_b32 v4, 1")
        A(f"buffer_atomic_add v4, v3, {sr(SRD_D2,4)}, 0 offen sc1")
        A("s_mov_b64 exec, 0xfff")
        A("v_cmp_gt_u32 vcc, 4, v2")
        A("v_add_u32 v3, 28, v2")
        A("v_mov_b32 v5, 20")
        A("v_mov_b32 v6, 24")
        A("v_cndmask_b32 v3, v3, v2, vcc")
        A("v_cndmask_b32 v5, v5, v6, vcc")
        A("v_lshlrev_b32 v3, 2, v3")
    A(f"s_mov_b32 s{sT2}, 0")
    if asmlib.OPT.get("nopoll"): A(f"s_branch {name}_p1done")
    if F6:
        A(f"s_cmp_eq_u32 s{sTYPE}, 3")
        A(f"s_cbranch_scc1 {name}_p1poll")
        A(f"s_cmp_eq_u32 s{sTYPE}, 4")
        A(f"s_cbranch_scc0 {name}_p1bk")
        A.label(f"{name}_p1idle")
        A(f"buffer_load_dword v4, v3, {sr(SRD_D2,4)}, 0 offen sc1")
        A("s_waitcnt vmcnt(0)")
        A("v_cmp_gt_u32 vcc, 1, v4")
        A(f"s_add_u32 s{sT2}, s{sT2}, 1")
        A("s_nop 1")
        A(f"s_cbranch_vccz {name}_p1bk")
        A("s_sleep 127")
        A(f"s_cmp_lt_u32 s{sT2}, 0x4000")
        A(f"s_cbranch_scc1 {name}_p1idle")
        A.label(f"{name}_p1bk")
        A(f"s_sleep {asmlib.OPT.get('slp0', 40)}")
    A.label(f"{name}_p1poll")
    A(f"buffer_load_dword v4, v3, {sr(SRD_D2,4)}, 0 offen sc1")
    A("s_waitcnt vmcnt(0)")
    A("v_cmp_lt_u32 vcc, v4, v5")
    A(f"s_add_u32 s{sT2}, s{sT2}, 1")
    A("s_nop 1")
    A(f"s_cbranch_vccz {name}_p1done")
    A(f"s_sleep {asmlib.OPT.get('slp', 16)}")
    A(f"s_cmp_lt_u32 s{sT2}, 0x40000")
    A(f"s_cbranch_scc1 {name}_p1poll")
    A.label(f"{name}_p1done")
    A("s_mov_b64 exec, -1")
    A.label(f"{name}_p1polled")
    A("s_waitcnt lgkmcnt(0)")
    A("s_barrier")
    return 256
```

```python
from asmlib import *
import asmlib
from layout import *
from k23 import ws_srd

K2_LDS = 8*CH + 24576

class VmTrack:
    def __init__(self):
        self.seq = []
        self.need = {}
    def issue(self, tag): self.seq.append(tag)
    def wait(self, wid, tags):
        idx = [i for i, t in enumerate(self.seq) if t in tags]
        if not idx: return
        n = len(self.seq) - 1 - max(idx)
        self.need[wid] = min(self.need.get(wid, 63), n)

def gen_k2(A, name, fused=False, env=None):
    if not fused: kernel_header(A, name)
    LD1 = ' sc1' if (fused and asmlib.OPT.get("ldsc1")) else ''
    sWS = 4; SRD = 8; sW = 12; sT, sT2, sT3 = 13, 14, 15
    sHEAD, sQT, sKV, sM0, sCNT, sG, sHF = 16, 17, 18, 19, 20, 21, 22
    sTT, sCBK = 23, 24
    sA0, sB0 = 26, 31
    if not fused:
        A("s_cmp_ge_u32 s2, 256")
        A(f"s_cbranch_scc1 {name}_end")
    TP = asmlib.OPT.get("tailprof")
    if (not TP or TP == 5) and not asmlib.OPT.get('noflush0'): stamp(A, 0)
    A(f"s_load_dwordx2 {sr(sWS,2)}, s[0:1], {KA_WS}")
    A(f"s_load_dwordx2 s[38:39], s[0:1], {KA_DBG}")
    A(f"s_load_dwordx2 s[48:49], s[0:1], {KA_OUT}")
    A("v_lshrrev_b32 v1, 6, v0")
    A("v_and_b32 v2, 63, v0")
    A(f"v_readfirstlane_b32 s{sW}, v1")
    A(f"s_and_b32 s{sT}, s2, 7")
    A(f"s_lshr_b32 s{sT2}, s2, 3")
    A(f"s_and_b32 s{sT3}, s{sT2}, 3")
    A(f"s_lshl_b32 s{sHEAD}, s{sT}, 2")
    A(f"s_add_u32 s{sHEAD}, s{sHEAD}, s{sT3}")
    A(f"s_and_b32 s{sG}, s{sW}, 3")
    A(f"s_lshr_b32 s{sHF}, s{sW}, 2")
    A(f"s_lshr_b32 s{sQT}, s{sT2}, 2")
    A(f"s_lshl_b32 s{sQT}, s{sQT}, 3")
    A(f"s_lshl_b32 s{sT3}, s{sG}, 1")
    A(f"s_add_u32 s{sQT}, s{sQT}, s{sT3}")
    A(f"s_lshl_b32 s{sTT}, s{sT}, 3")
    A(f"s_and_b32 s{sT3}, s{sT2}, 7")
    A(f"s_add_u32 s{sTT}, s{sTT}, s{sT3}")
    A(f"s_lshr_b32 s{sCBK}, s{sT2}, 3")
    A("s_waitcnt lgkmcnt(0)")
    if TP == 5: stamp(A, 1)
    ws_srd(A, SRD, sWS)
    if asmlib.OPT.get("lone"):
        A(f"s_cmp_ge_u32 s{sW}, 4")
        A(f"s_cbranch_scc1 {name}_end")
    SA, SB = 16, 32; P = 48; OA, OB = 56, 72
    Q16A, Q4A, Q16B, Q4B = 88, 92, 94, 98
    K16 = 100; K4 = [104, 106]; V1 = 108; V2 = 112; E = [116, 120]
    FR = 124; ACC = 172
    vL16, vKV, vK4a, vDma, vFo = 4, 5, 6, 7, 8
    vKVy, vK4y = 10, 11
    sDX, sNB, sCHK = 40, 41, 42
    A(f"v_lshlrev_b32 v{vL16}, 4, v2")
    A(f"s_mul_i32 s{sT}, s{sHF}, {4*CH}")
    A(f"v_add_u32 v{vKV}, s{sT}, v{vL16}")
    A("v_and_b32 v3, 31, v2")
    A(f"v_lshlrev_b32 v9, 3, v3")
    A(f"v_add_u32 v9, 1024, v9")
    A(f"v_add_u32 v{vK4a}, s{sT}, v9")
    A(f"v_add_u32 v{vKVy}, {CH}, v{vKV}")
    A(f"v_add_u32 v{vK4y}, {CH}, v{vK4a}")
    A(f"s_mov_b32 s{sDX}, {2*CH}")
    A(f"s_mov_b32 s{sNB}, {3*CH}")
    A(f"s_mov_b32 s{sCHK}, 3")
    A(f"v_mov_b32 v{vDma}, v{vL16}")
    A(f"v_mov_b32 v{vFo}, v{vL16}")
    A(f"s_mul_i32 s{sM0}, s{sG}, 3072")
    A(f"s_add_u32 s{sM0}, s{sM0}, s{sT}")
    A(f"s_mul_i32 s{sKV}, s{sHEAD}, {HS_KV}")
    A(f"s_mul_i32 s{sT2}, s{sHF}, {8*CH}")
    A(f"s_add_u32 s{sKV}, s{sKV}, s{sT2}")
    A(f"s_mul_i32 s{sT2}, s{sG}, 3072")
    A(f"s_add_u32 s{sKV}, s{sKV}, s{sT2}")
    A(f"s_add_u32 s{sKV}, s{sKV}, {KV}")
    A("s_mov_b32 s52, 0x30800000")
    A("s_mov_b32 s53, 0x58800000")
    vm = VmTrack()
    def dma_piece(chunk, i, emit, dyn=False):
        if emit:
            if i == 0:
                if dyn:
                    A(f"s_cmp_ge_u32 s{sCHK}, 8")
                    A(f"s_cselect_b32 s{sT}, 0x7fff0000, 0")
                    A(f"s_add_u32 m0, s{sM0}, s{sNB}")
                    A(f"v_or_b32 v{vDma}, s{sT}, v{vL16}")
                else:
                    A(f"s_add_u32 m0, s{sM0}, {(chunk & 3)*CH}")
                    A("s_nop 0")
            A(f"buffer_load_dwordx4 v{vDma}, {sr(SRD,4)}, s{sKV} offen offset:{i*1024}{LD1} lds")
            if i == 3:
                A(f"s_add_u32 s{sKV}, s{sKV}, {CH}")
                if dyn:
                    A(f"s_add_u32 s{sCHK}, s{sCHK}, 1")
                    A(f"s_add_u32 s{sNB}, s{sNB}, {CH}")
                    A(f"s_cmp_eq_u32 s{sNB}, {4*CH}")
                    A(f"s_cselect_b32 s{sNB}, 0, s{sNB}")
        vm.issue(("dma", chunk))
    def dma(chunk, emit):
        for i in range(4): dma_piece(chunk, i, emit)
    def fslot(s): return FR + (s & 1)*24
    def fload(s, which, imm, emit):
        b = fslot(s)
        if emit and not (asmlib.OPT.get("noffnload") and s >= 2):
            if which < 5:
                A(f"buffer_load_dwordx4 {vr(b+4*which,4)}, v{vFo}, {sr(SRD,4)}, s{sA0+which} offen offset:{imm}{LD1}")
            else:
                A(f"buffer_load_dwordx4 {vr(b+20,4)}, v{vFo}, {sr(SRD,4)}, s{sB0} offen offset:{imm}{LD1}")
        vm.issue(("f", s))
    EARLY = bool(env and env.get("early"))
    if EARLY:
        QS = 8*CH
        LF = env["LF"]
        A(f"s_cmp_lt_u32 s{sW}, 4")
        A(f"s_cbranch_scc1 {name}_gwait")
        env["sync_hook"]()
        A(f"s_mul_i32 s{sT}, s{sHEAD}, {HS_Q}")
        A(f"s_mul_i32 s{sT2}, s{sQT}, 1280")
        A(f"s_add_u32 s{sT}, s{sT}, s{sT2}")
        if QF: A(f"s_add_u32 s{sT}, s{sT}, {QF}")
        A(f"s_mul_i32 s{sT2}, s{sG}, 3072")
        A(f"s_add_u32 m0, s{sT2}, {QS}")
        A("s_nop 0")
        for i in range(3):
            A(f"buffer_load_dwordx4 v{vL16}, {sr(SRD,4)}, s{sT} offen offset:{i*1024}{LD1} lds")
            vm.issue(("q", 0))
        A(f"s_mul_i32 s{sT}, s{sHEAD}, {HS_KV}")
        A(f"s_add_u32 s{sT}, s{sT}, s{sT2}")
        A(f"s_add_u32 s{sT}, s{sT}, {KV}")
        for c in range(3):
            for hf in range(2):
                A(f"s_add_u32 s{sT3}, s{sT}, {(8*hf + c)*CH}")
                A(f"s_add_u32 m0, s{sT2}, {hf*4*CH + c*CH}")
                A("s_nop 0")
                for i in range(4):
                    A(f"buffer_load_dwordx4 v{vL16}, {sr(SRD,4)}, s{sT3} offen offset:{i*1024}{LD1} lds")
                    vm.issue(("dma", c))
        vm.wait("pro", [("dma", 0), ("q", 0)])
        A(f"s_waitcnt vmcnt({vm.need['pro']})")
        A.label(f"{name}_gwait")
        A(f"s_add_u32 s{sKV}, s{sKV}, {3*CH}")
    else:
        A(f"s_mul_i32 s{sT}, s{sHEAD}, {HS_Q}")
        A(f"s_mul_i32 s{sT2}, s{sQT}, 1280")
        A(f"s_add_u32 s{sT}, s{sT}, s{sT2}")
        if QF: A(f"s_add_u32 s{sT}, s{sT}, {QF}")
        A(f"buffer_load_dwordx4 {vr(Q16A,4)}, v{vL16}, {sr(SRD,4)}, s{sT} offen{LD1}")
        A(f"buffer_load_dwordx2 {vr(Q4A,2)}, v9, {sr(SRD,4)}, s{sT} offen{LD1}")
        A(f"buffer_load_dwordx4 {vr(Q16B,4)}, v{vL16}, {sr(SRD,4)}, s{sT} offen offset:1280{LD1}")
        A(f"buffer_load_dwordx2 {vr(Q4B,2)}, v9, {sr(SRD,4)}, s{sT} offen offset:1280{LD1}")
        for i in range(4): vm.issue(("q", 0))
        dma(0, True)
        A("s_barrier")
        dma(1, True)
    A(f"s_mul_i32 s{sT}, s{sW}, {12*1024}")
    A(f"s_mul_i32 s{sT2}, s{sCBK}, {5*96*1024}")
    A(f"s_add_u32 s{sT2}, s{sT2}, s{sT}")
    A(f"s_add_u32 s{sA0}, s{sT2}, {WDF}")
    for mt in range(1, 5): A(f"s_add_u32 s{sA0+mt}, s{sA0+mt-1}, {96*1024}")
    A(f"s_mul_i32 s{sT2}, s{sTT}, {96*1024}")
    A(f"s_add_u32 s{sT2}, s{sT2}, s{sT}")
    A(f"s_add_u32 s{sB0}, s{sT2}, {HF}")
    if not EARLY: dma(2, True)
    vG1, vG2 = 252, 253
    sWo = 32
    A(f"s_mul_i32 s{sT}, s{sW}, {5*1024}")
    A(f"s_mul_i32 s{sT2}, s{sCBK}, {5*40*1024}")
    A(f"s_add_u32 s{sT2}, s{sT2}, s{sT}")
    A(f"s_add_u32 s{sWo}, s{sT2}, {WOF}")
    for mt in range(1, 5): A(f"s_add_u32 s{sWo+mt}, s{sWo+mt-1}, {40*1024}")
    A("v_cmp_lt_u32 vcc, 31, v2")
    for r in list(range(OA, OA+32)) + list(range(P, P+8)) + list(range(V2, V2+4)) + list(range(E[0], E[0]+8)):
        A(f"v_mov_b32 v{r}, 0")
    if EARLY:
        A("s_barrier")
        A(f"s_mul_i32 s{sT}, s{sG}, 3072")
        A(f"s_add_u32 s{sT}, s{sT}, {QS}")
        A(f"v_add_u32 v12, s{sT}, v{vL16}")
        A(f"v_add_u32 v13, s{sT}, v9")
        A(f"ds_read_b128 {vr(Q16A,4)}, v12")
        A(f"ds_read_b64 {vr(Q4A,2)}, v13")
        A(f"ds_read_b128 {vr(Q16B,4)}, v12 offset:1280")
        A(f"ds_read_b64 {vr(Q4B,2)}, v13 offset:1280")
        A("s_waitcnt lgkmcnt(0)")
        for r in (Q4A, Q4A+1, Q4B, Q4B+1):
            A(f"v_cndmask_b32 v{r}, v{r}, v{P}, vcc")
    else:
        vm.wait("pro", [("dma", 0), ("q", 0)])
        A(f"s_waitcnt vmcnt({vm.need['pro']})")
        if TP == 5: stamp(A, 3)
        for r in (Q4A, Q4A+1, Q4B, Q4B+1):
            A(f"v_cndmask_b32 v{r}, v{r}, v{P}, vcc")
        A("s_barrier")
    def reg(t, k4): return ((vK4a if k4 else vKV) if (t & 7) < 4 else (vK4y if k4 else vKVy))
    def koff(t): return (t & 3)*1280
    def voff(t, f): return 5120 + (t & 3)*2048 + f*1024
    rdK16 = lambda t: f"ds_read_b128 {vr(K16,4)}, v{reg(t,0)} offset:{koff(t)}"
    rdK4 = lambda t: f"ds_read_b64 {vr(K4[t & 1],2)}, v{reg(t,1)} offset:{koff(t)}"
    rdV1 = lambda t: f"ds_read_b128 {vr(V1,4)}, v{reg(t,0)} offset:{voff(t,0)}"
    rdV2 = lambda t: f"ds_read_b128 {vr(V2,4)}, v{reg(t,0)} offset:{voff(t,1)}"
    mS1 = lambda d, q: f"v_mfma_f32_32x32x16_bf16 {vr(d,16)}, {vr(K16,4)}, {vr(q,4)}, 0"
    mS2 = lambda d, q, t: f"v_mfma_f32_32x32x8_bf16 {vr(d,16)}, {vr(K4[t & 1],2)}, {vr(q,2)}, {vr(d,16)}"
    mP1 = lambda o: f"v_mfma_f32_32x32x16_bf16 {vr(o,16)}, {vr(V1,4)}, {vr(P,4)}, {vr(o,16)}"
    mP2 = lambda o: f"v_mfma_f32_32x32x16_bf16 {vr(o,16)}, {vr(V2,4)}, {vr(P+4,4)}, {vr(o,16)}"
    A(rdK16(0)); A(rdK4(0)); A(rdV1(0))
    A("s_waitcnt lgkmcnt(0)")
    A(mS1(SA, Q16A))
    for r in range(ACC, ACC+40): A(f"v_mov_b32 v{r}, 0")
    A(mS2(SA, Q4A, 0))
    for r in range(ACC+40, ACC+80): A(f"v_mov_b32 v{r}, 0")
    A(f"s_mov_b32 s{sCNT}, 0")
    if not TP or TP == 7: stamp(A, 1)
    def valu(cur, q):
        e = E[q & 1]; pe = E[(q+1) & 1]; pp = P + 2*((q-1) & 3)
        return [f"v_cvt_pk_bf16_f32 v{pp}, v{pe}, v{pe+1}",
                f"v_exp_f32 v{e}, v{cur+4*q}", f"v_exp_f32 v{e+1}, v{cur+4*q+1}",
                f"v_cvt_pk_bf16_f32 v{pp+1}, v{pe+2}, v{pe+3}",
                f"v_exp_f32 v{e+2}, v{cur+4*q+2}", f"v_exp_f32 v{e+3}, v{cur+4*q+3}"]
    FSLOT = {}
    k = 0
    for u in range(2, 16):
        FSLOT[u] = [(5, k)]; k += 1
        if u in (4, 6, 8, 10, 12, 14): FSLOT[u].append((16, k)); k += 1
    assert k == 20
    def gate_loads(emit):
        if emit:
            A("v_lshlrev_b32 v14, 2, v3")
            A(f"s_add_u32 s{sT}, s{sQT}, s{sHF}")
            A(f"s_lshl_b32 s{sT}, s{sT}, 7")
            A(f"s_add_u32 s{sT}, s{sT}, {GG}")
            A(f"buffer_load_dword v{vG1}, v14, {sr(SRD,4)}, s{sT} offen{LD1}")
            A(f"s_lshl_b32 s{sT}, s{sTT}, 7")
            A(f"s_add_u32 s{sT}, s{sT}, {GG}")
            A(f"buffer_load_dword v{vG2}, v14, {sr(SRD,4)}, s{sT} offen{LD1}")
        vm.issue(("g", 0)); vm.issue(("g", 0))
    def body(kind, it, emit):
        def E_(s):
            if emit: A(s)
        for u in range(16):
            t = u >> 1
            gt = it*8 + t
            ev = (u & 1) == 0
            if ev and (t & 3) == 3:
                c = gt >> 2
                wid = ("bar", kind, u)
                vm.wait(wid, [("dma", c+1)])
                E_(f"s_waitcnt vmcnt(@{wid}@)")
                if kind == 0 and u == 14 and emit and TP == 6: stamp(A, 1)
                if kind == 0 and u == 14 and emit and gate_hook: gate_hook()
                if kind == 0 and u == 6 and emit and env and env.get("pre_b"): env["pre_b"]()
                E_("s_barrier")
                if kind == 0 and u == 6 and emit and env and env.get("post_b"): env["post_b"]()
                if kind == 0 and u == 14 and emit and TP == 6: stamp(A, 2)
            if kind == 0 and u == 11 and emit and env and env.get("gate_issue"): env["gate_issue"]()
            if u == 8:
                E_(f"v_add_u32 v{vKV}, s{sDX}, v{vKV}")
                E_(f"v_add_u32 v{vK4a}, s{sDX}, v{vK4a}")
            if u == 15:
                E_(f"v_add_u32 v{vKVy}, s{sDX}, v{vKVy}")
                E_(f"v_add_u32 v{vK4y}, s{sDX}, v{vK4y}")
            def ffn(k):
                fs, fmt = divmod(k, 5)
                gs = (it-1)*4 + fs
                b = fslot(fs)
                if k == 10:
                    E_(f"s_cmp_eq_u32 s{sCNT}, 2")
                    E_(f"s_cbranch_scc0 {name}_nowo")
                    for mt in range(5): E_(f"s_mov_b32 s{sA0+mt}, s{sWo+mt}")
                    E_(f"s_add_u32 s{sB0}, s{sWo}, 2048")
                    E_(f"v_mov_b32 v{vFo}, v{vL16}")
                    if emit: A.label(f"{name}_nowo")
                if fmt == 0:
                    wid = ("f", k)
                    vm.wait(wid, [("f", gs)])
                    E_(f"s_waitcnt vmcnt(@{wid}@)")
                d = vr(ACC+16*fmt,16)
                E_(f"v_mfma_f32_32x32x16_bf16 {d}, {vr(b+4*fmt,4)}, {vr(b+20,4)}, {d}")
                imm = (fs & 1)*1024
                fload(gs+2, fmt, imm, emit)
                if fmt == 4:
                    fload(gs+2, 5, imm, emit)
                    if fs & 1:
                        E_(f"v_add_u32 v{vFo}, 2048, v{vFo}")
            cur = SA if ev else SB
            vv = valu(cur, 0) + valu(cur, 1) + valu(cur, 2) + valu(cur, 3)
            if ev:
                m = {"S1": [mS1(SB, Q16B), rdK16(t+1), rdK4(t+1)],
                     "P2": [mP2(OB), rdV2(t)],
                     "S2": [mS2(SB, Q4B, t)],
                     "P1": ["s_waitcnt lgkmcnt(3)", mP1(OA)]}
            else:
                m = {"S1": ["s_waitcnt lgkmcnt(0)", mS1(SA, Q16A)],
                     "P2": [mP2(OA)],
                     "S2": [mS2(SA, Q4A, t+1)],
                     "P1": [mP1(OB), rdV1(t+1)]}
            fsl = dict(FSLOT.get(u, [])) if kind == 1 else {}
            if len(fsl) == 2:   pos = {0: "S1", 8: "P2", 12: "S2", 20: "P1"}; fsl = {4: fsl[5], 16: fsl[16]}
            elif len(fsl) == 1: pos = {0: "S1", 10: "P2", 14: "S2", 19: "P1"}
            else:               pos = {0: "S1", 6: "P2", 12: "S2", 18: "P1"}
            dpos = {}
            if (t & 3) == 3: dpos = {3: 0, 17: 1} if ev else {3: 2, 17: 3}
            xl = {}
            if kind == 0 and u == 14: xl = {8: [("g",)], 10: [(0,5)], 12: [(0,0)], 14: [(0,1)], 20: [(0,2)], 22: [(0,3)]}
            if kind == 0 and u == 15: xl = {1: [(0,4)], 5: [(1,5)], 8: [(1,0)], 10: [(1,1)], 14: [(1,2)], 20: [(1,3)], 22: [(1,4)]}
            for i, l in enumerate(vv):
                if i in dpos:
                    dma_piece((gt >> 2) + 3, dpos[i], emit, dyn=True)
                if i in xl:
                    for x in xl[i]:
                        if x[0] == "g": gate_loads(emit)
                        else: fload(x[0], x[1], x[0]*1024, emit)
                if i in fsl: ffn(fsl[i])
                if i in pos:
                    for x in m[pos[i]]: E_(x)
                E_(l)
            if kind == 0 and u == 15: E_(f"v_add_u32 v{vFo}, 2048, v{vFo}")
        E_(f"s_sub_u32 s{sDX}, 0, s{sDX}")
    gate_hook = env.get("gate_hook") if env else None
    pre = list(vm.seq)
    body(0, 0, False)
    for it in (1, 2, 3): body(1, it, False)
    need = dict(vm.need)
    def emit_body(kind, it):
        start = len(A.lines)
        sv = (list(vm.seq), dict(vm.need))
        body(kind, it, True)
        vm.seq, vm.need = sv
        for i in range(start, len(A.lines)):
            l = A.lines[i]
            if "@" in l:
                key = eval(l.split("@")[1])
                A.lines[i] = l.split("@")[0] + str(need[key]) + l.split("@")[2]
    emit_body(0, 0)
    if TP == 7: stamp(A, 2)
    A(f"s_mov_b32 s{sCNT}, 0")
    A(".p2align 6")
    A.label(f"{name}_aloop")
    emit_body(1, 1)
    A(f"s_add_u32 s{sCNT}, s{sCNT}, 1")
    A(f"s_cmp_lt_u32 s{sCNT}, 3")
    A(f"s_cbranch_scc1 {name}_aloop")
    A("s_setprio 0")
    A(f"v_cvt_pk_bf16_f32 v{P+6}, v{E[1]}, v{E[1]+1}")
    A(f"v_cvt_pk_bf16_f32 v{P+7}, v{E[1]+2}, v{E[1]+3}")
    A("s_waitcnt lgkmcnt(0)")
    A("s_nop 1")
    A(mP2(OB))
    if TP == 7: stamp(A, 3)
    if TP not in (4, 5, 6, 7): stamp(A, 0 if TP else 2)
    def wo_reg(st, mt):
        if st == 0: return FR + 4*mt
        if st == 1: return FR + 24 + 4*mt
        if mt == 0 and st == 2: return FR + 20
        if mt == 0 and st == 3: return FR + 44
        rest = [(2,1),(2,2),(2,3),(2,4),(3,1),(3,2),(3,3),(3,4),(4,0),(4,1),(4,2),(4,3),(4,4)]
        i = rest.index((st, mt))
        return 16 + 4*i if i < 10 else 88 + 4*(i-10)
    BFR = 100
    CATT, RA, RB = 8*CH, 0, 65536
    vWr, vRd, vC1, vC2 = 9, 10, 11, 12
    A(f"s_mul_i32 s{sT}, s{sW}, 3072")
    A(f"s_add_u32 s{sT}, s{sT}, {CATT}")
    A(f"v_add_u32 v{vC1}, s{sT}, v{vL16}")
    A(f"s_xor_b32 s{sT2}, s{sW}, 4")
    A(f"s_mul_i32 s{sT2}, s{sT2}, 3072")
    A(f"s_add_u32 s{sT2}, s{sT2}, {CATT}")
    A(f"v_add_u32 v{vC2}, s{sT2}, v{vL16}")
    A("s_nop 7")
    A(f"s_cmp_eq_u32 s{sHF}, 0")
    A(f"s_cbranch_scc0 {name}_cmb1")
    A("s_nop 3")
    for j in range(3): A(f"ds_write_b128 v{vC1}, {vr(OB+4*j,4)} offset:{j*1024}")
    A(f"s_branch {name}_cmb2")
    A.label(f"{name}_cmb1")
    for j in range(3): A(f"ds_write_b128 v{vC1}, {vr(OA+4*j,4)} offset:{j*1024}")
    A("s_nop 1")
    for j in range(12): A(f"v_mov_b32 v{OA+j}, v{OB+j}")
    A.label(f"{name}_cmb2")
    A("s_waitcnt lgkmcnt(0)")
    A("s_barrier")
    for j in range(3): A(f"ds_read_b128 {vr(OB+4*j,4)}, v{vC2} offset:{j*1024}")
    A("s_waitcnt lgkmcnt(0)")
    O = OA
    for j in range(12): A(f"v_add_f32 v{O+j}, v{O+j}, v{OB+j}")
    vLs, vR = OB, OB+1
    def rowsum():
        A(f"v_mov_b32 v{vLs}, v{O+8}")
        A(f"v_mov_b32 v{vR}, v{O+8}")
        A("s_nop 1")
        A(f"v_permlane32_swap_b32 v{vLs}, v{vR}")
        A("s_nop 1")
    rowsum()
    A(f"v_mov_b32 v{OB+2}, 0")
    for r in range(12): A(f"v_fma_f32 v{OB+2}, v{O+r}, 0, v{OB+2}")
    A(f"v_cmp_o_f32 vcc, v{OB+2}, v{OB+2}")
    A(f"v_cmp_le_f32 s[50:51], s52, v{vR}")
    A(f"v_cmp_ge_f32 s[54:55], s53, v{vR}")
    A("s_nop 3")
    A("s_and_b64 vcc, vcc, s[50:51]")
    A("s_and_b64 vcc, vcc, s[54:55]")
    A("s_cmp_eq_u64 vcc, -1")
    A(f"s_cbranch_scc1 {name}_fastok")
    FS, FP, FK16, FK4, FV1, FV2, FM, FA, FT = 16, 48, 100, 104, 108, 112, 116, 117, 118
    FQ16, FQ4 = 32, 36
    A(f"s_cmp_eq_u32 s{sHF}, 0")
    A(f"s_cbranch_scc0 {name}_fb_b")
    for j in range(4): A(f"v_mov_b32 v{FQ16+j}, v{Q16A+j}")
    for j in range(2): A(f"v_mov_b32 v{FQ4+j}, v{Q4A+j}")
    A(f"s_branch {name}_fb_go")
    A.label(f"{name}_fb_b")
    for j in range(4): A(f"v_mov_b32 v{FQ16+j}, v{Q16B+j}")
    for j in range(2): A(f"v_mov_b32 v{FQ4+j}, v{Q4B+j}")
    A.label(f"{name}_fb_go")
    for r in range(16): A(f"v_mov_b32 v{O+r}, 0")
    A(f"v_mov_b32 v{FM}, 0xff7fffff")
    A("v_and_b32 v3, 31, v2")
    A("v_lshlrev_b32 v14, 3, v3")
    A("v_add_u32 v14, 1024, v14")
    A(f"s_mul_i32 s56, s{sHEAD}, {HS_KV}")
    A(f"s_add_u32 s56, s56, {KV}")
    A("s_mov_b32 s57, 0")
    A.label(f"{name}_fb_loop")
    A("s_lshr_b32 s58, s57, 2")
    A(f"s_mul_i32 s58, s58, {CH}")
    A("s_add_u32 s58, s58, s56")
    A("s_and_b32 s59, s57, 3")
    A("s_mul_i32 s60, s59, 1280")
    A("s_add_u32 s60, s60, s58")
    A("s_lshl_b32 s59, s59, 11")
    A("s_add_u32 s59, s59, s58")
    A("s_add_u32 s59, s59, 5120")
    A(f"buffer_load_dwordx4 {vr(FK16,4)}, v{vL16}, {sr(SRD,4)}, s60 offen{LD1}")
    A(f"buffer_load_dwordx2 {vr(FK4,2)}, v14, {sr(SRD,4)}, s60 offen{LD1}")
    A(f"buffer_load_dwordx4 {vr(FV1,4)}, v{vL16}, {sr(SRD,4)}, s59 offen{LD1}")
    A(f"buffer_load_dwordx4 {vr(FV2,4)}, v{vL16}, {sr(SRD,4)}, s59 offen offset:1024{LD1}")
    A("s_waitcnt vmcnt(0)")
    A(f"v_mfma_f32_32x32x16_bf16 {vr(FS,16)}, {vr(FK16,4)}, {vr(FQ16,4)}, 0")
    A("s_nop 15")
    A(f"v_mfma_f32_32x32x8_bf16 {vr(FS,16)}, {vr(FK4,2)}, {vr(FQ4,2)}, {vr(FS,16)}")
    A("s_nop 15")
    A(f"v_max3_f32 v{FT}, v{FS}, v{FS+1}, v{FS+2}")
    for j in range(3, 15, 2): A(f"v_max3_f32 v{FT}, v{FT}, v{FS+j}, v{FS+j+1}")
    A(f"v_max_f32 v{FT}, v{FT}, v{FS+15}")
    A(f"v_mov_b32 v{FT+1}, v{FT}")
    A("s_nop 1")
    A(f"v_permlane32_swap_b32 v{FT}, v{FT+1}")
    A("s_nop 1")
    A(f"v_max3_f32 v{FT}, v{FT}, v{FT+1}, v{FM}")
    A(f"v_sub_f32 v{FA}, v{FM}, v{FT}")
    A(f"v_exp_f32 v{FA}, v{FA}")
    A(f"v_mov_b32 v{FM}, v{FT}")
    for j in range(16): A(f"v_sub_f32 v{FS+j}, v{FS+j}, v{FM}")
    for j in range(16): A(f"v_exp_f32 v{FS+j}, v{FS+j}")
    A("s_nop 0")
    for j in range(8): A(f"v_cvt_pk_bf16_f32 v{FP+j}, v{FS+2*j}, v{FS+2*j+1}")
    for j in range(16): A(f"v_mul_f32 v{O+j}, v{O+j}, v{FA}")
    A("s_nop 1")
    A(f"v_mfma_f32_32x32x16_bf16 {vr(O,16)}, {vr(FV1,4)}, {vr(FP,4)}, {vr(O,16)}")
    A(f"v_mfma_f32_32x32x16_bf16 {vr(O,16)}, {vr(FV2,4)}, {vr(FP+4,4)}, {vr(O,16)}")
    A("s_nop 15")
    A("s_add_u32 s57, s57, 1")
    A("s_cmp_lt_u32 s57, 64")
    A(f"s_cbranch_scc1 {name}_fb_loop")
    rowsum()
    A.label(f"{name}_fastok")
    A(f"v_rcp_f32 v{vR}, v{vR}")
    A("s_nop 0")
    A(f"v_mul_f32 v{vR}, v{vR}, v{vG1}")
    for r in range(12): A(f"v_mul_f32 v{O+r}, v{O+r}, v{vR}")
    OP = OB + 4
    for j in range(6): A(f"v_cvt_pk_bf16_f32 v{OP+j}, v{O+2*j}, v{O+2*j+1}")
    A(f"s_add_u32 s{sT}, s{sQT}, s{sHF}")
    A(f"s_mul_i32 s{sT}, s{sT}, 40960")
    A(f"s_add_u32 s{sT}, s{sT}, {OF}")
    A(f"s_lshl_b32 s{sT2}, s{sHEAD}, 10")
    A(f"s_add_u32 s{sT2}, s{sT2}, s{sT}")
    A(f"buffer_store_dwordx4 {vr(OP,4)}, v{vL16}, {sr(SRD,4)}, s{sT2} offen sc1")
    A(f"s_lshr_b32 s{sT2}, s{sHEAD}, 2")
    A(f"s_add_u32 s{sT2}, s{sT2}, 32")
    A(f"s_lshl_b32 s{sT2}, s{sT2}, 10")
    A(f"s_add_u32 s{sT}, s{sT}, s{sT2}")
    A(f"s_bfe_u32 s{sT2}, s{sHEAD}, 0x10001")
    A(f"s_lshl_b32 s{sT2}, s{sT2}, 9")
    A(f"s_add_u32 s{sT}, s{sT}, s{sT2}")
    A(f"s_and_b32 s{sT2}, s{sHEAD}, 1")
    A(f"s_lshl_b32 s{sT2}, s{sT2}, 3")
    A(f"s_add_u32 s{sT}, s{sT}, s{sT2}")
    A("s_mov_b32 exec_hi, 0")
    A(f"buffer_store_dwordx2 {vr(OP+4,2)}, v{vL16}, {sr(SRD,4)}, s{sT} offen sc1")
    A("s_mov_b64 exec, -1")
    if TP == 1: stamp(A, 1)
    sOF = 37
    A(f"s_mul_i32 s{sOF}, s{sTT}, 40960")
    A(f"s_mul_i32 s{sT2}, s{sW}, {5*1024}")
    A(f"s_add_u32 s{sOF}, s{sOF}, s{sT2}")
    A(f"s_add_u32 s{sOF}, s{sOF}, {OF}")
    A(f"v_add_u32 v15, 4096, v{vL16}")
    def ofloads():
        for st in range(5):
            if st < 4:
                A(f"buffer_load_dwordx4 {vr(BFR+4*st,4)}, v{vL16}, {sr(SRD,4)}, s{sOF} offen offset:{st*1024} sc1")
            else:
                A(f"buffer_load_dwordx4 {vr(BFR+4*st,4)}, v15, {sr(SRD,4)}, s{sOF} offen sc1")
    def ofcheck():
        A(f"v_max3_u32 v14, v{BFR}, v{BFR+1}, v{BFR+2}")
        for j in range(3, 19, 2):
            A(f"v_max3_u32 v14, v14, v{BFR+j}, v{BFR+j+1}")
        A(f"v_max_u32 v14, v14, v{BFR+19}")
        A("v_cmp_eq_u32 vcc, -1, v14")
    A(f"v_sub_f32 v{vG2}, 1.0, v{vG2}")
    k = 0
    for st in range(2, 5):
        for mt in range(5):
            if st < 4 and mt == 0: continue
            if st < 4:
                A(f"buffer_load_dwordx4 {vr(wo_reg(st,mt),4)}, v{vL16}, {sr(SRD,4)}, s{sWo+mt} offen offset:{st*1024}{LD1}")
            else:
                A(f"buffer_load_dwordx4 {vr(wo_reg(st,mt),4)}, v15, {sr(SRD,4)}, s{sWo+mt} offen{LD1}")
            for r in range(ACC+k, min(ACC+k+7, ACC+80)): A(f"v_mul_f32 v{r}, v{r}, v{vG2}")
            k = min(k+7, 80)
    assert k == 80
    A(f"s_mov_b32 s{sT2}, 0")
    A.label(f"{name}_poll")
    ofloads()
    A("s_waitcnt vmcnt(0)")
    ofcheck()
    A(f"s_add_u32 s{sT2}, s{sT2}, 1")
    A("s_nop 1")
    A(f"s_cbranch_vccz {name}_polldone")
    A(f"s_cmp_lt_u32 s{sT2}, 0x40000")
    A(f"s_cbranch_scc1 {name}_poll")
    A.label(f"{name}_polldone")
    if TP == 1: stamp(A, 2)
    if TP == 4: stamp(A, 0)
    for st in range(5):
        for mt in range(5):
            d = vr(ACC+16*mt,16)
            A(f"v_mfma_f32_32x32x16_bf16 {d}, {vr(wo_reg(st,mt),4)}, {vr(BFR+4*st,4)}, {d}")
    RB2 = 65536
    if TP == 4: stamp(A, 1)
    PK = 16
    A("s_nop 15")
    G4 = 56
    for mt in (0, 1, 2, 3, 4):
        for q in range(4):
            a = ACC + 16*mt + 4*q
            d = PK + 32 + 2*q if mt == 4 else G4 + 4*((mt & 1)*4 + q) + 2*(mt >> 1)
            A(f"v_cvt_pk_bf16_f32 v{d}, v{a}, v{a+1}")
            A(f"v_cvt_pk_bf16_f32 v{d+1}, v{a+2}, v{a+3}")
    A(f"s_lshl_b32 s{sT}, s{sW}, 13")
    A(f"v_add_u32 v{vWr}, s{sT}, v{vL16}")
    A(f"s_lshl_b32 s{sT}, s{sW}, 11")
    A(f"s_add_u32 s{sT}, s{sT}, {RB2}")
    A("v_lshlrev_b32 v13, 3, v2")
    A(f"v_add_u32 v14, s{sT}, v13")
    for d in range(8):
        A(f"ds_write_b128 v{vWr}, {vr(G4+4*d,4)} offset:{d*1024}")
    for q in range(4):
        A(f"ds_write_b64 v14, {vr(PK+32+2*q,2)} offset:{q*512}")
    A(f"s_lshl_b32 s{sT}, s{sW}, 10")
    A(f"v_add_u32 v{vRd}, s{sT}, v{vL16}")
    A(f"s_lshl_b32 s{sT}, s{sG}, 9")
    A(f"s_add_u32 s{sT}, s{sT}, {RB2}")
    A(f"v_add_u32 v14, s{sT}, v13")
    A("v_mov_b32 v12, 0x3f80")
    A("v_mov_b32 v11, 0x3f800000")
    SUMA, SUMB, SUMC = 56, 60, 64
    A("s_waitcnt lgkmcnt(0)")
    A("s_barrier")
    if TP == 4: stamp(A, 2)
    T0 = 16
    for s_ in range(8):
        A(f"ds_read_b128 {vr(T0+4*s_,4)}, v{vRd} offset:{s_*8192}")
    for s_ in range(8):
        A(f"ds_read_b64 {vr(88+2*s_,2)}, v14 offset:{s_*2048}")
    for r in range(SUMA, SUMA+12): A(f"v_mov_b32 v{r}, 0")
    for s_ in range(8):
        A(f"s_waitcnt lgkmcnt({min(15, 7-s_+8)})")
        for j in range(2):
            A(f"v_dot2_f32_bf16 v{SUMA+2*j}, v{T0+4*s_+j}, v12, v{SUMA+2*j}")
            A(f"v_dot2_f32_bf16 v{SUMA+2*j+1}, v{T0+4*s_+j}, v11, v{SUMA+2*j+1}")
            A(f"v_dot2_f32_bf16 v{SUMB+2*j}, v{T0+4*s_+2+j}, v12, v{SUMB+2*j}")
            A(f"v_dot2_f32_bf16 v{SUMB+2*j+1}, v{T0+4*s_+2+j}, v11, v{SUMB+2*j+1}")
    A("s_waitcnt lgkmcnt(0)")
    for s_ in range(8):
        for j in range(2):
            A(f"v_dot2_f32_bf16 v{SUMC+2*j}, v{88+2*s_+j}, v12, v{SUMC+2*j}")
            A(f"v_dot2_f32_bf16 v{SUMC+2*j+1}, v{88+2*s_+j}, v11, v{SUMC+2*j+1}")
    SRD_O = 44; sOUT = 48
    A("v_and_b32 v3, 31, v2")
    A(f"s_lshl_b32 s{sT}, s{sTT}, 5")
    A(f"v_add_u32 v3, s{sT}, v3")
    A("v_mul_u32_u24 v3, 1280, v3")
    A("v_lshrrev_b32 v14, 5, v2")
    A("v_lshl_add_u32 v3, v14, 3, v3")
    A(f"s_mul_i32 s{sT}, s{sCBK}, 320")
    A(f"s_lshl_b32 s{sT2}, s{sG}, 4")
    A(f"s_add_u32 s{sT}, s{sT}, s{sT2}")
    A(f"s_lshl_b32 s{sT2}, s{sHF}, 6")
    A(f"s_add_u32 s{sT2}, s{sT2}, s{sT}")
    A(f"s_mov_b32 s{SRD_O}, s{sOUT}")
    A(f"s_and_b32 s{SRD_O+1}, s{sOUT+1}, 0xffff")
    A(f"s_mov_b32 s{SRD_O+2}, {2048*1280}")
    A(f"s_mov_b32 s{SRD_O+3}, 0x20000")
    A("s_nop 3")
    for src, d in ((SUMA, 68), (SUMB, 70)):
        A(f"v_cvt_pk_bf16_f32 v{d}, v{src}, v{src+1}")
        A(f"v_cvt_pk_bf16_f32 v{d+1}, v{src+2}, v{src+3}")
    A(f"buffer_store_dwordx2 v[68:69], v3, {sr(SRD_O,4)}, s{sT2} offen")
    A(f"buffer_store_dwordx2 v[70:71], v3, {sr(SRD_O,4)}, s{sT2} offen offset:128")
    A(f"s_cmp_eq_u32 s{sHF}, 0")
    A(f"s_cbranch_scc0 {name}_fin")
    A(f"v_cvt_pk_bf16_f32 v72, v{SUMC}, v{SUMC+1}")
    A(f"v_cvt_pk_bf16_f32 v73, v{SUMC+2}, v{SUMC+3}")
    A(f"buffer_store_dwordx2 v[72:73], v3, {sr(SRD_O,4)}, s{sT} offen offset:256")
    A.label(f"{name}_fin")
    if asmlib.PROFILE:
        A("s_waitcnt vmcnt(0)")
        if TP not in (5, 7): stamp(A, 3)
        stamp_flush(A, 1, SRD, sW, 4)
    A.label(f"{name}_end")
    A("s_endpgm")
    return 256
```

```python
import sys
from asmlib import *
from layout import *
import k1, k23, k2v2, p1two, k2v3
HEADER = open('gated_mix__mha_block__glu_gated_geglu__prompt.s.ref').read().split('; Override launch geometry')[0]
DOC = """;
"""
def build_fused():
    import asmlib
    A = Asm()
    name = "gated_mix__mha_block__glu_gated_geglu__prompt_kernel"
    hdr = HEADER
    hdr += f"; @launch grid=(256,1,1) block=(512,1,1) lds={max(k1.K1_LDS, k2v2.K2_LDS)}\n"
    hdr += DOC
    A('.amdgcn_target "amdgcn-amd-amdhsa--gfx950"')
    k1.gen_k1(A, name, fused=True)
    if asmlib.OPT.get("early"):
        LF = k1.K1_LDS
        hdr = hdr.replace(f"lds={max(k1.K1_LDS, k2v2.K2_LDS)}", f"lds={LF + 16}")
        from layout import MK
        SRD = 8; sW = 12
        def dbg_srd():
            A("s_mov_b32 s56, s38")
            A("s_and_b32 s57, s39, 0xffff")
            A("s_mov_b32 s58, 256")
            A("s_mov_b32 s59, 0x20000")
        def poll(tag, vaddr, vtag, sleep):
            A("s_mov_b32 s60, 0")
            A.label(f"{name}_{tag}_poll")
            A(f"buffer_load_dword v15, v{vaddr}, s[{SRD}:{SRD+3}], 0 offen sc1")
            A("s_waitcnt vmcnt(0)")
            A(f"v_cmp_ne_u32 vcc, v15, v{vtag}")
            A("s_add_u32 s60, s60, 1")
            A("s_nop 1")
            A(f"s_cbranch_vccz {name}_{tag}_done")
            A(f"s_sleep {sleep}")
            A("s_cmp_lt_u32 s60, 0x40000")
            A(f"s_cbranch_scc1 {name}_{tag}_poll")
            A.label(f"{name}_{tag}_done")
        def sync_hook():
            A(f"v_mov_b32 v12, {LF}")
            A(f"s_cmp_eq_u32 s{sW}, 4")
            A(f"s_cbranch_scc0 {name}_sy_spin")
            dbg_srd()
            A("s_waitcnt vmcnt(0)")
            A("v_readfirstlane_b32 s61, v130")
            A("s_mov_b32 s60, 0")
            A.label(f"{name}_tg_loop")
            A("s_cmp_lg_u32 s61, 0")
            A(f"s_cbranch_scc1 {name}_tg_ok")
            A("v_mov_b32 v131, 240")
            A("buffer_load_dword v130, v131, s[56:59], 0 offen sc1")
            A("s_waitcnt vmcnt(0)")
            A("v_readfirstlane_b32 s61, v130")
            A("s_add_u32 s60, s60, 1")
            A("s_cmp_lt_u32 s60, 0x40000")
            A(f"s_cbranch_scc1 {name}_tg_loop")
            A.label(f"{name}_tg_ok")
            A("v_mov_b32 v14, s61")
            A("s_mov_b64 exec, 1")
            A("ds_write_b32 v12, v14 offset:4")
            A("s_mov_b64 exec, -1")
            A("s_cmp_eq_u32 s70, -1")
            A(f"s_cbranch_scc1 {name}_sy_noarr")
            A("s_cmp_ge_u32 s70, 64")
            A(f"s_cbranch_scc1 {name}_sy_side")
            A("s_and_b32 s60, s2, 6")
            A("v_lshrrev_b32 v13, 1, v2")
            A("v_lshlrev_b32 v13, 3, v13")
            A("v_and_b32 v15, 1, v2")
            A("v_add3_u32 v13, v13, v15, s60")
            A("v_lshlrev_b32 v13, 9, v13")
            A("s_lshl_b32 s60, s70, 2")
            A(f"s_add_u32 s60, s60, {MK}")
            A(f"buffer_store_dword v14, v13, s[{SRD}:{SRD+3}], s60 offen sc1")
            A(f"s_branch {name}_sy_noarr")
            A.label(f"{name}_sy_side")
            A("s_lshl_b32 s60, s70, 2")
            A(f"s_add_u32 s60, s60, {MK}")
            A("v_lshlrev_b32 v13, 9, v2")
            for m in range(4):
                A(f"buffer_store_dword v14, v13, s[{SRD}:{SRD+3}], s60 offen sc1")
                if m < 3: A("s_add_u32 s60, s60, 32768")
            A.label(f"{name}_sy_noarr")
            A("s_mov_b64 exec, 0xffffff")
            A("v_lshlrev_b32 v13, 2, v2")
            A("s_lshl_b32 s60, s2, 9")
            A(f"s_add_u32 s60, s60, {MK}")
            A("v_add_u32 v13, s60, v13")
            poll("sy", 13, 14, asmlib.OPT.get('slp', 8))
            A("s_mov_b64 exec, 1")
            A("v_mov_b32 v15, 1")
            A("ds_write_b32 v12, v15")
            A("s_mov_b64 exec, -1")
            A("s_waitcnt lgkmcnt(0)")
            A(f"s_branch {name}_sy_go")
            A.label(f"{name}_sy_spin")
            A("s_mov_b32 s60, 0")
            A.label(f"{name}_sy_spin2")
            A("ds_read_b32 v15, v12")
            A("s_waitcnt lgkmcnt(0)")
            A("v_readfirstlane_b32 s56, v15")
            A("s_add_u32 s60, s60, 1")
            A("s_cmp_eq_u32 s56, 1")
            A(f"s_cbranch_scc1 {name}_sy_go")
            A("s_sleep 2")
            A("s_cmp_lt_u32 s60, 0x1000000")
            A(f"s_cbranch_scc1 {name}_sy_spin2")
            A.label(f"{name}_sy_go")
        def pre_b():
            A("s_cmp_eq_u32 s71, -1")
            A(f"s_cbranch_scc1 {name}_pb_a")
            A("s_cmp_lt_u32 s12, 4")
            A(f"s_cbranch_scc0 {name}_pb_a")
            A("s_waitcnt vmcnt(0)")
            A.label(f"{name}_pb_a")
        def post_b():
            A("s_cmp_eq_u32 s71, -1")
            A(f"s_cbranch_scc1 {name}_pb_b")
            A("s_cmp_eq_u32 s12, 0")
            A(f"s_cbranch_scc0 {name}_pb_b")
            A(f"v_mov_b32 v12, {LF}")
            A("ds_read_b32 v14, v12 offset:4")
            A("s_lshr_b32 s60, s71, 8")
            A("v_lshlrev_b32 v13, 3, v2")
            A("v_add_u32 v13, s60, v13")
            A("v_lshlrev_b32 v13, 9, v13")
            A("s_and_b32 s60, s71, 0xff")
            A("s_add_u32 s60, s60, 32")
            A("s_lshl_b32 s60, s60, 2")
            A(f"s_add_u32 s60, s60, {MK}")
            A("s_waitcnt lgkmcnt(0)")
            A("s_mov_b32 exec_hi, 0")
            A(f"buffer_store_dword v14, v13, s[{SRD}:{SRD+3}], s60 offen sc1")
            A("s_mov_b64 exec, -1")
            A.label(f"{name}_pb_b")
        def gate_issue():
            A("s_cmp_eq_u32 s12, 0")
            A(f"s_cbranch_scc0 {name}_gate_ni")
            A(f"v_mov_b32 v12, {LF}")
            A("ds_read_b32 v14, v12 offset:4")
            A("v_cmp_gt_u32 vcc, 16, v2")
            A("v_add_u32 v13, 48, v2")
            A("v_add_u32 v12, 32, v2")
            A("v_cndmask_b32 v13, v13, v12, vcc")
            A("v_lshlrev_b32 v13, 2, v13")
            A("s_lshl_b32 s60, s2, 9")
            A(f"s_add_u32 s60, s60, {MK}")
            A("v_add_u32 v13, s60, v13")
            A("s_mov_b32 exec_hi, 0xffff")
            A(f"buffer_load_dword v15, v13, s[{SRD}:{SRD+3}], 0 offen sc1")
            A("s_mov_b64 exec, -1")
            A.label(f"{name}_gate_ni")
        def gate_hook():
            A("s_cmp_eq_u32 s12, 0")
            A(f"s_cbranch_scc0 {name}_gate_ok")
            A("s_waitcnt vmcnt(0) lgkmcnt(0)")
            A("s_mov_b32 exec_hi, 0xffff")
            A("v_cmp_ne_u32 vcc, v15, v14")
            A("s_nop 1")
            A(f"s_cbranch_vccz {name}_gate_pass")
            poll("gatep", 13, 14, 8)
            A.label(f"{name}_gate_pass")
            A("s_mov_b64 exec, -1")
            A.label(f"{name}_gate_ok")
        k2v3.gen_k2(A, name + "_p2", fused=True, env={"gate_hook": gate_hook, "early": True, "LF": LF, "sync_hook": sync_hook, "pre_b": pre_b, "post_b": post_b, "gate_issue": gate_issue})
    elif asmlib.OPT.get("v3"):
        def gate_hook():
            sW, sT2 = 12, 14
            A(f"s_cmp_eq_u32 s{sW}, 0")
            A(f"s_cbranch_scc0 {name}_gate_ok")
            A("s_mov_b32 s56, s38")
            A("s_and_b32 s57, s39, 0xffff")
            A("s_mov_b32 s58, 256")
            A("s_mov_b32 s59, 0x20000")
            A("s_mov_b64 exec, 0x1fff")
            A("v_add_u32 v12, 28, v2")
            A("v_mov_b32 v13, 16")
            A("v_cmp_gt_u32 vcc, 4, v2")
            A("v_mov_b32 v15, 24")
            A("s_nop 0")
            A("v_cndmask_b32 v12, v12, v2, vcc")
            A("v_cndmask_b32 v13, v13, v15, vcc")
            A("v_cmp_eq_u32 vcc, 12, v2")
            A("v_mov_b32 v15, 32")
            A("s_nop 0")
            A("v_cndmask_b32 v13, v13, v15, vcc")
            A("v_lshlrev_b32 v12, 2, v12")
            A("s_mov_b32 s60, 0")
            A.label(f"{name}_gate_poll")
            A("buffer_load_dword v15, v12, s[56:59], 0 offen sc1")
            A("s_waitcnt vmcnt(0)")
            A("v_cmp_lt_u32 vcc, v15, v13")
            A("s_add_u32 s60, s60, 1")
            A("s_nop 1")
            A(f"s_cbranch_vccz {name}_gate_done2")
            A("s_sleep 8")
            A("s_cmp_lt_u32 s60, 0x40000")
            A(f"s_cbranch_scc1 {name}_gate_poll")
            A.label(f"{name}_gate_done2")
            A("s_mov_b64 exec, -1")
            A.label(f"{name}_gate_ok")
        k2v3.gen_k2(A, name + "_p2", fused=True, env={"gate_hook": gate_hook})
    else:
        k2v2.gen_k2(A, name + "_p2", fused=True)
    kernel_desc(A, name, 256)
    txt = A.text().replace(name + "_p2_end:", name + "_end:")
    return hdr + txt

def build():
    import asmlib
    if asmlib.OPT.get("fused"): return build_fused()
    A = Asm()
    names = ("gm_k1_kernel", "gm_k2_kernel", "gm_k3_kernel")
    hdr = HEADER
    hdr += f"; @launch kernel={names[0]} grid=(256,1,1) block=(512,1,1) lds={k1.K1_LDS}\n"
    hdr += f"; @launch kernel={names[1]} grid=(256,1,1) block=(512,1,1) lds={k2v2.K2_LDS}\n"
    A('.amdgcn_target "amdgcn-amd-amdhsa--gfx950"')
    import asmlib
    if asmlib.OPT.get("p1two"):
        v1 = p1two.gen_p1(A, names[0])
        hdr = hdr.replace(f"lds={k1.K1_LDS}", f"lds={p1two.P1_LDS}")
    else:
        v1 = k1.gen_k1(A, names[0])
    v2 = (k2v3 if asmlib.OPT.get('v3') else k2v2).gen_k2(A, names[1])
    kernel_desc(A, names[0], v1)
    kernel_desc(A, names[1], v2)
    return hdr + A.text()
if __name__ == "__main__":
    import asmlib
    if "--prof" in sys.argv:
        sys.argv.remove("--prof"); asmlib.PROFILE = True
    for a in list(sys.argv):
        if a.startswith("--opt="):
            sys.argv.remove(a)
            for kv in a[6:].split(","):
                k, _, v = kv.partition("=")
                asmlib.OPT[k] = int(v) if v else 1
    out = sys.argv[1] if len(sys.argv) > 1 else "gated_mix__mha_block__glu_gated_geglu__prompt.s"
    open(out, "w").write(build())
    print("wrote", out)
```

```python
from asmlib import *
import asmlib
from layout import *

STAGE = 53376
WOFF = 32768
UOFF = 10368
K1_LDS = 3*STAGE + 2048

def gen_k1(A, name, fused=False):
    SC1 = ' sc1' if ((fused and not asmlib.OPT.get('wbl2')) or not asmlib.OPT.get('k1plain')) else (' nt' if asmlib.OPT.get('k1nt') else '')
    import math, struct
    c0 = -2.0*math.sqrt(2.0/math.pi)*math.log2(math.e)
    c1 = c0*0.044715
    def f2u(f): return struct.unpack("<I", struct.pack("<f", f))[0]
    kernel_header(A, name)
    sX, sWQ, sWO, sWG, sWU, sWD, sGW, sWS = 4, 6, 8, 12, 14, 16, 18, 48
    sRB, sCB, sW, sT = 20, 21, 22, 23
    sT2, sT3 = 24, 25
    sRS = 26
    sCG, sCU = 27, 28
    sTYPE = 29
    sNU = 30
    sU0 = 31
    SRD_X, SRD_W, SRD_WS = 32, 36, 40
    sBUF = 44; sXO = 45; sWO_ = 46; sCNT = 47
    sHM = 48
    sH = 52
    sSC = 60
    sDP, sDN = 84, 85
    A("s_cmp_ge_u32 s2, 256")
    A(f"s_cbranch_scc1 {name}_end")
    stamp(A, 0)
    A("s_load_dwordx8 s[4:11], s[0:1], 0")
    A("s_load_dwordx8 s[12:19], s[0:1], 32")
    A(f"s_load_dwordx2 {sr(sWS,2)}, s[0:1], {KA_WS}")
    A.c("decode: xcd = id&7, j = id>>3; rb = 4*(xcd&1) + (j&3); cb = 8*(xcd>>1) + (j>>2)")
    A(f"s_and_b32 s{sT}, s2, 1")
    A(f"s_lshl_b32 s{sT}, s{sT}, 2")
    A(f"s_lshr_b32 s{sT2}, s2, 3")
    A(f"s_and_b32 s{sT3}, s{sT2}, 3")
    A(f"s_add_u32 s{sRB}, s{sT}, s{sT3}")
    F6 = asmlib.OPT.get("ffn6")
    if F6:
        A.c("XCD pair p: c = j>>2: 0,1,2 -> Q_p, K_p, V_p; 3..6 -> FFN column block 4p+c-3 (96+96 columns); 7 -> side jobs only")
        A(f"s_bfe_u32 s{sT}, s2, 0x20001")
        A(f"s_lshr_b32 s{sT2}, s{sT2}, 2")
        A(f"s_lshl_b32 s{sT3}, s{sT2}, 2")
        A(f"s_add_u32 s{sCB}, s{sT3}, s{sT}")
        A(f"s_mov_b32 s{sTYPE}, s{sT2}")
        A(f"s_cmp_ge_u32 s{sT2}, 3")
        A(f"s_cbranch_scc0 {name}_dec_done")
        A(f"s_lshl_b32 s{sT3}, s{sT}, 2")
        A(f"s_add_u32 s{sCB}, s{sT3}, s{sT2}")
        A(f"s_sub_u32 s{sCB}, s{sCB}, 3")
        A(f"s_cmp_eq_u32 s{sT2}, 7")
        A(f"s_cselect_b32 s{sTYPE}, 4, 3")
        A.label(f"{name}_dec_done")
    else:
        if not asmlib.OPT.get("map1"):
            A.c("XCD pair p produces Q_p, K_p, V_p (the heads its attention workgroups consume) and five FFN column blocks")
            A(f"s_bfe_u32 s{sT}, s2, 0x20001")
            A(f"s_lshr_b32 s{sT2}, s{sT2}, 2")
            A(f"s_lshl_b32 s{sT3}, s{sT2}, 2")
            A(f"s_add_u32 s{sCB}, s{sT3}, s{sT}")
            A(f"s_mul_i32 s{sT3}, s{sT}, 5")
            A(f"s_add_u32 s{sT3}, s{sT3}, s{sT2}")
            A(f"s_add_u32 s{sT3}, s{sT3}, 9")
            A(f"s_cmp_ge_u32 s{sT2}, 3")
            A(f"s_cselect_b32 s{sCB}, s{sT3}, s{sCB}")
        else:
            A(f"s_and_b32 s{sT}, s2, 6")
            if not asmlib.OPT.get("oldmap"):
                A.c("column-block groups in reverse XCD order: the blocks with the longer epilogue (FFN) go to the workgroups that start first")
                A(f"s_sub_u32 s{sT}, 6, s{sT}")
            A(f"s_lshl_b32 s{sT}, s{sT}, 2")
            A(f"s_lshr_b32 s{sT2}, s{sT2}, 2")
            A(f"s_add_u32 s{sCB}, s{sT}, s{sT2}")
    A("v_lshrrev_b32 v1, 6, v0")
    A("v_and_b32 v2, 63, v0")
    A(f"v_readfirstlane_b32 s{sW}, v1")
    if F6:
        A(f"s_movk_i32 s{sRS}, 3840")
        A(f"s_mul_i32 s{sCG}, s{sCB}, 160")
        A(f"s_add_u32 s{sCU}, s{sCG}, 80")
    else:
        A.c("block params")
        A(f"s_cmp_ge_u32 s{sCB}, 12")
        A(f"s_cbranch_scc1 {name}_ffn_params")
        A(f"s_movk_i32 s{sRS}, 3840")
        A(f"s_mul_i32 s{sCG}, s{sCB}, 160")
        A(f"s_add_u32 s{sCU}, s{sCG}, 80")
        A(f"s_lshr_b32 s{sTYPE}, s{sCB}, 2")
        A(f"s_mov_b32 s{sNU}, 5")
        A(f"s_mov_b32 s{sU0}, 0")
        A(f"s_branch {name}_params_done")
        A.label(f"{name}_ffn_params")
        A(f"s_movk_i32 s{sRS}, 3072")
        A(f"s_sub_u32 s{sT}, s{sCB}, 12")
        A(f"s_mul_i32 s{sU0}, s{sT}, 5")
        A(f"s_mov_b32 s{sNU}, 5")
        A(f"s_cmp_lt_u32 s{sT}, 16")
        A(f"s_cbranch_scc1 {name}_ffn_p2")
        A(f"s_lshl_b32 s{sU0}, s{sT}, 2")
        A(f"s_add_u32 s{sU0}, s{sU0}, 16")
        A(f"s_mov_b32 s{sNU}, 4")
        A.label(f"{name}_ffn_p2")
        A(f"s_lshl_b32 s{sCG}, s{sU0}, 4")
        A(f"s_mov_b32 s{sCU}, s{sCG}")
        A(f"s_mov_b32 s{sTYPE}, 3")
        A.label(f"{name}_params_done")
    SP = asmlib.OPT.get("startprof")
    def srd_ws():
        A(f"s_mov_b32 s{SRD_WS}, s{sWS}")
        A(f"s_and_b32 s{SRD_WS+1}, s{sWS+1}, 0xffff")
        A(f"s_mov_b32 s{SRD_WS+2}, {WS_SIZE}")
        A(f"s_mov_b32 s{SRD_WS+3}, 0x20000")
    def srd_x():
        A(f"s_mov_b32 s{SRD_X}, s{sX}")
        A(f"s_and_b32 s{SRD_X+1}, s{sX+1}, 0xffff")
        A(f"s_mov_b32 s{SRD_X+2}, {2048*1280}")
        A(f"s_mov_b32 s{SRD_X+3}, 0x20000")
    def x_voffsets(vXO):
        A("v_lshrrev_b32 v3, 3, v2")
        A("v_lshrrev_b32 v4, 4, v2")
        A("v_and_b32 v5, 7, v2")
        A("v_xor_b32 v5, v5, v4")
        A("v_xor_b32 v6, 4, v5")
        A(f"s_lshl_b32 s{sT}, s{sW}, 6")
        A(f"v_add_u32 v3, s{sT}, v3")
        A("v_mul_u32_u24 v3, 1280, v3")
        A("v_lshl_add_u32 v5, v5, 4, v3")
        A("v_lshl_add_u32 v6, v6, 4, v3")
        for j in range(8):
            A(f"v_add_u32 v{vXO+j}, {j*10240}, v{5 if j % 2 == 0 else 6}")
    A(f"s_cmp_ge_u32 s{sW}, 4")
    A(f"s_cbranch_scc1 {name}_loader")

    if F6:
        A(f"s_cmp_eq_u32 s{sTYPE}, 4")
        A(f"s_cbranch_scc1 {name}_idlec")
        A(f"s_cmp_eq_u32 s{sTYPE}, 3")
        A(f"s_cbranch_scc1 {name}_f6c")
    ACC = 96
    def acc(tt, mt): return ACC + (tt*5 + mt)*16
    FA = [8, 36]
    FB = [28, 56]
    vXA = 64
    vWA = 68
    vWA2 = 69
    A.c("compute waves fetch the x rows of stages 0 and 1 themselves (the loaders fetch the weights)")
    x_voffsets(70)
    A(f"s_mul_i32 s{sXO}, s{sRB}, {256*1280}")
    A(f"s_lshl_b32 s{sT2}, s{sW}, 13")
    A("s_waitcnt lgkmcnt(0)")
    srd_x()
    srd_ws()
    for st in range(2):
        for j in range(8):
            A(f"s_add_u32 m0, s{sT2}, {st*STAGE + j*1024}")
            A("s_nop 0")
            A(f"buffer_load_dwordx4 v{70+j}, {sr(SRD_X,4)}, s{sXO} offen lds")
        A(f"s_add_u32 s{sXO}, s{sXO}, 128")
    if asmlib.OPT.get("wtouch"):
        A.c("touch the pages this wave will store to at the end (translation warm-up)")
        A(f"s_lshl_b32 s{sT2}, s{sRB}, 3")
        A(f"s_lshl_b32 s{sT3}, s{sW}, 1")
        A(f"s_add_u32 s{sT2}, s{sT2}, s{sT3}")
        A(f"s_cmp_eq_u32 s{sTYPE}, 3")
        A(f"s_cbranch_scc1 {name}_wt_f")
        A(f"s_and_b32 s{sT}, s{sCB}, 3")
        A(f"s_lshl_b32 s{sT}, s{sT}, 3")
        A("v_and_b32 v3, 7, v2")
        A(f"v_add_u32 v3, s{sT}, v3")
        A(f"s_cmp_eq_u32 s{sTYPE}, 0")
        A(f"s_mov_b32 s{sT}, {HS_KV}")
        A(f"s_mov_b32 s{sT3}, {HS_Q}")
        A(f"s_cselect_b32 s{sT}, s{sT3}, s{sT}")
        A(f"v_mul_lo_u32 v3, v3, s{sT}")
        A(f"s_mul_i32 s{sT3}, s{sT2}, 1280")
        A(f"s_lshr_b32 s{sT2}, s{sT2}, 2")
        A(f"s_mul_i32 s{sT2}, s{sT2}, {CH}")
        A(f"s_add_u32 s{sT2}, s{sT2}, {KV}")
        A(f"s_cmp_eq_u32 s{sTYPE}, 0")
        A(f"s_cselect_b32 s{sT2}, s{sT3}, s{sT2}")
        A(f"s_branch {name}_wt_go")
        A.label(f"{name}_wt_f")
        A("v_and_b32 v3, 1, v2")
        A(f"v_mul_u32_u24 v3, {96*1024}, v3")
        A(f"s_mul_i32 s{sT2}, s{sT2}, {96*1024}")
        A(f"s_lshl_b32 s{sT3}, s{sU0}, 10")
        A(f"s_add_u32 s{sT2}, s{sT2}, s{sT3}")
        A(f"s_add_u32 s{sT2}, s{sT2}, {HF}")
        A.label(f"{name}_wt_go")
        A("s_mov_b64 exec, 0xff")
        A(f"buffer_load_dword v80, v3, {sr(SRD_WS,4)}, s{sT2} offen")
        A("s_mov_b64 exec, -1")
    if asmlib.OPT.get("k1prio"): A(f"s_setprio {asmlib.OPT.get('k1prio')}")
    A.c("compute wave: LDS read addresses")
    A("v_and_b32 v3, 31, v2")
    A("v_lshrrev_b32 v4, 5, v2")
    A(f"s_lshl_b32 s{sT}, s{sW}, 6")
    A(f"v_add_u32 v5, s{sT}, v3")
    A("v_lshlrev_b32 v5, 7, v5")
    A("v_bfe_u32 v6, v3, 1, 3")
    for sp in range(4):
        A(f"v_or_b32 v7, {2*sp}, v4")
        A("v_xor_b32 v7, v7, v6")
        A(f"v_lshl_add_u32 v{vXA+sp}, v7, 4, v5")
    RW = 320 if F6 else 160
    UO = 160 if F6 else UOFF
    A("v_bfe_u32 v5, v2, 4, 1")
    A(f"v_mul_u32_u24 v5, {UO}, v5")
    A("v_bfe_u32 v6, v2, 2, 2")
    A("v_lshl_add_u32 v6, v4, 3, v6")
    A(f"v_mul_u32_u24 v6, {RW}, v6")
    A("v_and_b32 v7, 3, v2")
    A("v_lshlrev_b32 v7, 3, v7")
    A("v_add3_u32 v5, v5, v6, v7")
    A(f"v_add_u32 v{vWA}, {WOFF}, v5")
    A.c("Q/K/V blocks: unit 4 gathers d=16..19 of four heads: column byte offset 40c+32 instead of 8c")
    A("v_lshlrev_b32 v7, 2, v7")
    A(f"v_add3_u32 v{vWA2}, v{vWA}, v7, 32")
    for r in range(ACC, ACC+160):
        A(f"v_mov_b32 v{r}, 0")

    def fill_of(R, sIdx=64):
        A.c("fill a share of the O' hand-off area with the not-ready pattern")
        for j in range(4): A(f"v_mov_b32 v{R+j}, -1")
        A("v_lshlrev_b32 v3, 4, v2")
        A(f"s_mul_i32 s{sT}, s{sIdx}, 2560")
        A(f"s_add_u32 s{sT}, s{sT}, {OF}")
        A(f"buffer_store_dwordx4 {vr(R,4)}, v3, {sr(SRD_WS,4)}, s{sT} offen{SC1}")
        A(f"buffer_store_dwordx4 {vr(R,4)}, v3, {sr(SRD_WS,4)}, s{sT} offen offset:1024{SC1}")
        A("s_mov_b32 exec_hi, 0")
        A(f"buffer_store_dwordx4 {vr(R,4)}, v3, {sr(SRD_WS,4)}, s{sT} offen offset:2048{SC1}")
        A("s_mov_b64 exec, -1")
    def vpad(tag, R):
        A.c("rows 20..31 of the V^T fragments: row 20 = ones (row sums), rows 21..31 = zeros")
        A("v_and_b32 v3, 15, v2")
        A("v_add_u32 v3, 16, v3")
        A("v_lshrrev_b32 v4, 4, v2")
        A("v_lshlrev_b32 v4, 9, v4")
        A("v_lshl_add_u32 v4, v3, 4, v4")
        A("v_cmp_gt_u32 vcc, 20, v3")
        A("v_mov_b32 v5, 0x7ff00000")
        A(f"v_mov_b32 v{R+4}, 0x3f803f80")
        A("v_cndmask_b32 v4, v4, v5, vcc")
        A("v_cmp_eq_u32 vcc, 20, v3")
        A("s_nop 1")
        A(f"v_cndmask_b32 v{R+4}, 0, v{R+4}, vcc")
        A("s_nop 0")
        for j in range(1, 4): A(f"v_mov_b32 v{R+4+j}, v{R+4}")
        A(f"s_sub_u32 s{sT}, s{sCB}, 8")
        A(f"s_lshl_b32 s{sT}, s{sT}, 3")
        A(f"s_lshl_b32 s{sT2}, s{sW}, 1")
        A(f"s_add_u32 s{sT}, s{sT}, s{sT2}")
        A(f"s_mul_i32 s{sT}, s{sT}, {HS_KV}")
        A(f"s_lshl_b32 s{sT2}, s{sRB}, 1")
        A(f"s_mul_i32 s{sT2}, s{sT2}, {CH}")
        A(f"s_add_u32 s{sT}, s{sT}, s{sT2}")
        A(f"s_add_u32 s{sT}, s{sT}, {KV+5120}")
        for hh in range(2):
            for ck in range(2):
                for tl in range(4):
                    A(f"s_add_u32 s{sT2}, s{sT}, {hh*HS_KV + ck*CH + tl*2048}")
                    A(f"buffer_store_dwordx4 {vr(R+4,4)}, v4, {sr(SRD_WS,4)}, s{sT2} offen{SC1}")
    def const_stores(tag, R=70):
        A(f"s_lshl_b32 s{sT3}, s2, 2")
        A(f"s_add_u32 s{sT3}, s{sT3}, s{sW}")
        fill_of(R, sT3)
        A(f"s_cmp_eq_u32 s{sTYPE}, 2")
        A(f"s_cbranch_scc0 {name}_novpad_{tag}")
        vpad(tag, R)
        A.label(f"{name}_novpad_{tag}")

    def reads(sp, st, qkv):
        L = []
        for tt in range(2):
            L.append(f"ds_read_b128 {vr(FB[st]+4*tt,4)}, v{vXA+sp} offset:{tt*4096}")
        for mt in range(5):
            for half in range(2):
                if not qkv:
                    L.append(f"ds_read_b64_tr_b16 {vr(FA[st]+4*mt+2*half,2)}, v{vWA} offset:{sp*16*RW+mt*32+half*4*RW}")
                elif mt < 4:
                    L.append(f"ds_read_b64_tr_b16 {vr(FA[st]+4*mt+2*half,2)}, v{vWA} offset:{sp*16*RW+mt*40+half*4*RW}")
                else:
                    L.append(f"ds_read_b64_tr_b16 {vr(FA[st]+4*mt+2*half,2)}, v{vWA2} offset:{sp*16*RW+half*4*RW}")
        return [L[0], L[2], L[3], L[1]] + L[4:]
    def mfmas(st, swapped):
        L = []
        for mt in range(5):
            for tt in range(2):
                a, b = vr(FA[st]+4*mt,4), vr(FB[st]+4*tt,4)
                if swapped: a, b = b, a
                L.append(f"v_mfma_f32_32x32x16_bf16 {vr(acc(tt,mt),16)}, {a}, {b}, {vr(acc(tt,mt),16)}")
        return L
    def mainloop(swapped, tag, qkv):
        A("s_waitcnt vmcnt(8)")
        A("s_barrier")
        stamp(A, 1)
        for l in reads(0, 0, qkv): A(l)
        A(f"s_mov_b32 s{sCNT}, 0")
        A(f"s_mov_b32 s{sBUF}, 0")
        A(f"s_mov_b32 s{sDP}, {STAGE}")
        A(f"s_mov_b32 s{sDN}, {(-2*STAGE) & 0xffffffff}")
        A(".p2align 6")
        A.label(f"{name}_loop_{tag}")
        for sp in range(4):
            cur = sp & 1; nxt = cur ^ 1
            M = mfmas(cur, swapped)
            A("s_waitcnt lgkmcnt(0)")
            if sp < 3:
                R = reads(sp+1, nxt, qkv)
                k = 0
                for i, m in enumerate(M):
                    A(m)
                    for l in R[k:k+2]: A(l)
                    k += 2
            else:
                A(M[0]); A(M[1])
                A(f"s_add_u32 s{sBUF}, s{sBUF}, 1")
                A(f"s_cmp_eq_u32 s{sBUF}, 3")
                A(f"s_cselect_b32 s{sT}, s{sDN}, s{sDP}")
                A(f"s_cselect_b32 s{sBUF}, 0, s{sBUF}")
                A(f"s_cmp_eq_u32 s{sCNT}, 0")
                A(f"s_cbranch_scc0 {name}_nw_{tag}")
                A("s_waitcnt vmcnt(0)")
                A.label(f"{name}_nw_{tag}")
                A("s_barrier")
                for j in range(4): A(f"v_add_u32 v{vXA+j}, s{sT}, v{vXA+j}")
                A(f"v_add_u32 v{vWA}, s{sT}, v{vWA}")
                if qkv: A(f"v_add_u32 v{vWA2}, s{sT}, v{vWA2}")
                R = reads(0, nxt, qkv)
                k = 0
                for m in M[2:]:
                    A(m)
                    for l in R[k:k+2]: A(l)
                    k += 2
        if asmlib.OPT.get("earlyconst"):
            A(f"s_cmp_eq_u32 s{sCNT}, 2")
            A(f"s_cbranch_scc0 {name}_nc_{tag}")
            const_stores(tag)
            A.label(f"{name}_nc_{tag}")
        MS = asmlib.OPT.get("midstamp")
        if MS and asmlib.PROFILE:
            A(f"s_cmp_eq_u32 s{sCNT}, {MS-1}")
            A(f"s_cbranch_scc0 {name}_nms_{tag}")
            stamp(A, 2)
            A.label(f"{name}_nms_{tag}")
        A(f"s_add_u32 s{sCNT}, s{sCNT}, 1")
        A(f"s_cmp_lt_u32 s{sCNT}, 10")
        A(f"s_cbranch_scc1 {name}_loop_{tag}")
        A("s_waitcnt lgkmcnt(0)")
        A("s_nop 15")
        if not MS: stamp(A, 2)
    A(f"s_cmp_eq_u32 s{sTYPE}, 2")
    A(f"s_cbranch_scc1 {name}_vblock")
    if not F6:
        A(f"s_cmp_eq_u32 s{sTYPE}, 3")
        A(f"s_cbranch_scc1 {name}_ffnblock")
    mainloop(False, "qk", True)

    A.c("epilogue Q/K: unit mt<4 = d 0..15 of head mt (rows 0..15) and head 4+mt (rows 16..31); unit 4 = d 16..19 of the 8 heads")
    vL16q, vTail = 8, 9
    D0 = 16
    sBASE, sHS = 61, 62
    A(f"v_lshlrev_b32 v{vL16q}, 4, v2")
    A(f"s_and_b32 s{sT}, s{sCB}, 3")
    A(f"s_cmp_eq_u32 s{sTYPE}, 0")
    A(f"s_cbranch_scc0 {name}_kparams")
    A(f"s_mov_b32 s{sHS}, {HS_Q}")
    A(f"s_mul_i32 s{sBASE}, s{sT}, {8*HS_Q}")
    A(f"s_lshl_b32 s{sT2}, s{sRB}, 3")
    A(f"s_lshl_b32 s{sT3}, s{sW}, 1")
    A(f"s_add_u32 s{sT2}, s{sT2}, s{sT3}")
    A(f"s_mul_i32 s{sT2}, s{sT2}, 1280")
    A(f"s_add_u32 s{sBASE}, s{sBASE}, s{sT2}")
    if QF: A(f"s_add_u32 s{sBASE}, s{sBASE}, {QF}")
    A(f"s_mov_b32 s{sSC}, 0x3ea52b5c")
    A(f"s_branch {name}_qk_go")
    A.label(f"{name}_kparams")
    A(f"s_mov_b32 s{sHS}, {HS_KV}")
    A(f"s_mul_i32 s{sBASE}, s{sT}, {8*HS_KV}")
    A(f"s_lshl_b32 s{sT2}, s{sRB}, 1")
    A(f"s_lshr_b32 s{sT3}, s{sW}, 1")
    A(f"s_add_u32 s{sT2}, s{sT2}, s{sT3}")
    A(f"s_mul_i32 s{sT2}, s{sT2}, {CH}")
    A(f"s_add_u32 s{sBASE}, s{sBASE}, s{sT2}")
    A(f"s_and_b32 s{sT3}, s{sW}, 1")
    A(f"s_mul_i32 s{sT3}, s{sT3}, 2560")
    A(f"s_add_u32 s{sBASE}, s{sBASE}, s{sT3}")
    A(f"s_add_u32 s{sBASE}, s{sBASE}, {KV}")
    A(f"s_mov_b32 s{sSC}, 1.0")
    A.label(f"{name}_qk_go")
    A(f"s_mov_b32 s{sH}, s{sBASE}")
    for i in range(1, 8):
        A(f"s_add_u32 s{sH+i}, s{sH+i-1}, s{sHS}")
    A("v_and_b32 v3, 31, v2")
    A("v_lshrrev_b32 v4, 5, v2")
    A(f"v_mul_lo_u32 v4, v4, s{sHS}")
    A("v_lshl_add_u32 v4, v3, 3, v4")
    A(f"v_add_u32 v{vTail}, 1024, v4")
    A(f"v_mov_b32 v10, s{sSC}")
    A(f"v_mov_b32 v11, s{sSC}")
    n = 0
    for mt in range(4):
        for tt in range(2):
            for part in range(2):
                a = acc(tt, mt) + 8*part
                d = D0 + 4*(n % 8); n += 1
                for j in range(4):
                    A(f"v_pk_mul_f32 {vr(a+2*j,2)}, {vr(a+2*j,2)}, v[10:11]")
                for j in range(4):
                    A(f"v_cvt_pk_bf16_f32 v{d+j}, v{a+2*j}, v{a+2*j+1}")
                A("s_nop 1")
                A(f"v_permlane32_swap_b32 v{d}, v{d+2}")
                A(f"v_permlane32_swap_b32 v{d+1}, v{d+3}")
                A(f"buffer_store_dwordx4 {vr(d,4)}, v{vL16q}, {sr(SRD_WS,4)}, s{sH+4*part+mt} offen offset:{tt*1280}{SC1}")
    for tt in range(2):
        for i in range(4):
            a = acc(tt, 4) + 4*i
            d = D0 + 4*(n % 8); n += 1
            for j in range(2):
                A(f"v_pk_mul_f32 {vr(a+2*j,2)}, {vr(a+2*j,2)}, v[10:11]")
            A(f"v_cvt_pk_bf16_f32 v{d}, v{a}, v{a+1}")
            A(f"v_cvt_pk_bf16_f32 v{d+1}, v{a+2}, v{a+3}")
            A(f"buffer_store_dwordx2 {vr(d,2)}, v{vTail}, {sr(SRD_WS,4)}, s{sH+2*i} offen offset:{tt*1280}{SC1}")
    A(f"s_branch {name}_fin")

    if not F6:
        A.label(f"{name}_ffnblock")
        mainloop(False, "f", False)
        A.c("epilogue FFN: h = gelu_tanh(g) * u")
        vC0, vC1, vONE = 8, 10, 12
        vTt, vP, vE, vGU = 14, 16, 18, 20
        vOUT = 24
        for j in range(2):
            A(f"v_mov_b32 v{vC0+j}, {hex(f2u(c0))}")
            A(f"v_mov_b32 v{vC1+j}, {hex(f2u(c1))}")
            A(f"v_mov_b32 v{vONE+j}, 1.0")
        A(f"v_lshlrev_b32 v3, 4, v2")
        A(f"s_lshl_b32 s{sT2}, s{sRB}, 3")
        A(f"s_lshl_b32 s{sT3}, s{sW}, 1")
        A(f"s_add_u32 s{sT2}, s{sT2}, s{sT3}")
        A(f"s_mul_i32 s{sT2}, s{sT2}, {96*1024}")
        A(f"s_lshl_b32 s{sT3}, s{sU0}, 10")
        A(f"s_add_u32 s{sT2}, s{sT2}, s{sT3}")
        A(f"s_add_u32 s{sT2}, s{sT2}, {HF}")
        A(f"s_add_u32 s{sT3}, s{sT2}, {96*1024}")
        n = 0
        for mt in range(5):
            if mt == 4:
                A(f"s_cmp_eq_u32 s{sNU}, 4")
                A(f"s_cbranch_scc1 {name}_fin")
            for tt in range(2):
                a = acc(tt, mt)
                o = vOUT + 4*(n & 1); n += 1
                for pr in range(4):
                    g = a + 2*pr; u = a + 8 + 2*pr
                    A(f"v_pk_mul_f32 {vr(vTt,2)}, {vr(g,2)}, {vr(g,2)}")
                    A(f"v_pk_mul_f32 {vr(vGU,2)}, {vr(g,2)}, {vr(u,2)}")
                    A(f"v_pk_fma_f32 {vr(vP,2)}, {vr(vTt,2)}, {vr(vC1,2)}, {vr(vC0,2)}")
                    A(f"v_pk_mul_f32 {vr(vP,2)}, {vr(vP,2)}, {vr(g,2)}")
                    A(f"v_exp_f32 v{vE}, v{vP}")
                    A(f"v_exp_f32 v{vE+1}, v{vP+1}")
                    A("s_nop 0")
                    A(f"v_pk_add_f32 {vr(vE,2)}, {vr(vE,2)}, {vr(vONE,2)}")
                    A(f"v_rcp_f32 v{vE}, v{vE}")
                    A(f"v_rcp_f32 v{vE+1}, v{vE+1}")
                    A("s_nop 0")
                    A(f"v_pk_mul_f32 {vr(vGU,2)}, {vr(vGU,2)}, {vr(vE,2)}")
                    A(f"v_cvt_pk_bf16_f32 v{o+pr}, v{vGU}, v{vGU+1}")
                A(f"buffer_store_dwordx4 {vr(o,4)}, v3, {sr(SRD_WS,4)}, s{sT2 if tt == 0 else sT3} offen offset:{mt*1024 if mt*1024 < 4096 else 0}{SC1}" if mt < 4 else
                  f"s_add_u32 s{sT}, s{sT2 if tt == 0 else sT3}, 4096\n" + f"buffer_store_dwordx4 {vr(o,4)}, v3, {sr(SRD_WS,4)}, s{sT} offen{SC1}")
        A(f"s_branch {name}_fin")

    A.label(f"{name}_vblock")
    mainloop(True, "v", True)
    A.c("epilogue V: lane = weight column n; unit mt<4: head mt (n<16) / 4+mt (n>=16), d = n&15; unit 4: head (n>>2)&3 (+4), d = 16+(n&3)")
    sBASE, sHS = 61, 62
    vA1, vA2 = 8, 9
    D1 = 16
    A(f"s_mov_b32 s{sHS}, {HS_KV}")
    A("v_bfe_u32 v5, v2, 4, 1")
    A("v_lshlrev_b32 v5, 2, v5")
    A("v_lshrrev_b32 v4, 5, v2")
    A("v_lshlrev_b32 v4, 9, v4")
    A(f"v_mul_lo_u32 v6, v5, s{sHS}")
    A("v_and_b32 v3, 15, v2")
    A("v_lshl_add_u32 v6, v3, 4, v6")
    A(f"v_add_u32 v{vA1}, v6, v4")
    A("v_bfe_u32 v6, v2, 2, 2")
    A("v_add_u32 v6, v6, v5")
    A(f"v_mul_lo_u32 v6, v6, s{sHS}")
    A("v_and_b32 v3, 3, v2")
    A("v_lshl_add_u32 v6, v3, 4, v6")
    A(f"v_add3_u32 v{vA2}, v6, v4, 0")
    A(f"v_add_u32 v{vA2}, 256, v{vA2}")
    A(f"s_sub_u32 s{sT}, s{sCB}, 8")
    A(f"s_mul_i32 s{sBASE}, s{sT}, {8*HS_KV}")
    A(f"s_lshl_b32 s{sT2}, s{sRB}, 1")
    A(f"s_lshr_b32 s{sT3}, s{sW}, 1")
    A(f"s_add_u32 s{sT2}, s{sT2}, s{sT3}")
    A(f"s_mul_i32 s{sT2}, s{sT2}, {CH}")
    A(f"s_add_u32 s{sBASE}, s{sBASE}, s{sT2}")
    A(f"s_and_b32 s{sT3}, s{sW}, 1")
    A(f"s_lshl_b32 s{sT3}, s{sT3}, 12")
    A(f"s_add_u32 s{sBASE}, s{sBASE}, s{sT3}")
    A(f"s_add_u32 s{sBASE}, s{sBASE}, {KV+5120}")
    n = 0
    for mt in range(5):
        if 0 < mt < 4: A(f"s_add_u32 s{sBASE}, s{sBASE}, s{sHS}")
        if mt == 4: A(f"s_sub_u32 s{sBASE}, s{sBASE}, {3*HS_KV}")
        for tt in range(2):
            for f in range(2):
                a = acc(tt, mt) + 8*f
                d = D1 + 4*(n % 8); n += 1
                for j in range(4):
                    A(f"v_cvt_pk_bf16_f32 v{d+j}, v{a+2*j}, v{a+2*j+1}")
                A(f"buffer_store_dwordx4 {vr(d,4)}, v{vA1 if mt < 4 else vA2}, {sr(SRD_WS,4)}, s{sBASE} offen offset:{tt*2048+f*1024}{SC1}")
    A(f"s_branch {name}_fin")

    if F6:
        XR, WB6, WST, UO6 = 32768, 98304, 12320, 6176
        A.label(f"{name}_f6c")
        ACC6 = 64; FA6 = 8; FB6 = [32, 40]; vXA6 = 48; vW6 = 52
        def acc6(tt, mt): return ACC6 + (tt*6 + mt)*16
        x_voffsets(54)
        A(f"s_mul_i32 s{sXO}, s{sRB}, {256*1280}")
        A(f"s_lshl_b32 s{sT2}, s{sW}, 13")
        A("s_waitcnt lgkmcnt(0)")
        srd_x()
        srd_ws()
        for st in range(2):
            for j in range(8):
                A(f"s_add_u32 m0, s{sT2}, {st*XR + j*1024}")
                A("s_nop 0")
                A(f"buffer_load_dwordx4 v{54+j}, {sr(SRD_X,4)}, s{sXO} offen lds")
            A(f"s_add_u32 s{sXO}, s{sXO}, 128")
        A("v_and_b32 v3, 31, v2")
        A("v_lshrrev_b32 v4, 5, v2")
        A(f"s_lshl_b32 s{sT}, s{sW}, 6")
        A(f"v_add_u32 v5, s{sT}, v3")
        A("v_lshlrev_b32 v5, 7, v5")
        A("v_bfe_u32 v6, v3, 1, 3")
        for sp in range(4):
            A(f"v_or_b32 v7, {2*sp}, v4")
            A("v_xor_b32 v7, v7, v6")
            A(f"v_lshl_add_u32 v{vXA6+sp}, v7, 4, v5")
        A("v_bfe_u32 v5, v2, 4, 1")
        A(f"v_mul_u32_u24 v5, {UO6}, v5")
        A("v_bfe_u32 v6, v2, 2, 2")
        A("v_lshl_add_u32 v6, v4, 3, v6")
        A("v_mul_u32_u24 v6, 192, v6")
        A("v_and_b32 v7, 3, v2")
        A("v_lshlrev_b32 v7, 3, v7")
        A("v_add3_u32 v5, v5, v6, v7")
        A(f"v_add_u32 v{vW6}, {WB6}, v5")
        for r in range(ACC6, ACC6+192): A(f"v_mov_b32 v{r}, 0")
        def bread(sp, st): return [f"ds_read_b128 {vr(FB6[st]+4*tt,4)}, v{vXA6+sp} offset:{tt*4096}" for tt in range(2)]
        def aread(mt, second): return [f"ds_read_b64_tr_b16 {vr(FA6+4*mt+2*half,2)}, v{vW6} offset:{second*3072+mt*32+half*768}" for half in range(2)]
        A("s_waitcnt vmcnt(8)")
        A("s_barrier")
        stamp(A, 1)
        for l in bread(0, 0): A(l)
        for mt in range(6):
            for l in aread(mt, 0): A(l)
        sWI, sXI = 44, 45
        sWP, sWN, sXP, sXN = 84, 85, 82, 83
        A(f"s_mov_b32 s{sCNT}, 0")
        A(f"s_mov_b32 s{sWI}, 0")
        A(f"s_mov_b32 s{sXI}, 0")
        A(f"s_mov_b32 s{sWP}, {WST}")
        A(f"s_mov_b32 s{sWN}, {(-4*WST) & 0xffffffff}")
        A(f"s_mov_b32 s{sXP}, {XR}")
        A(f"s_mov_b32 s{sXN}, {(-2*XR) & 0xffffffff}")
        A("s_waitcnt lgkmcnt(0)")
        A(".p2align 6")
        A.label(f"{name}_loop_f6")
        for sp in range(4):
            cur = sp & 1; nxt = cur ^ 1
            def grp(mt, wait):
                A(f"s_waitcnt lgkmcnt({wait})")
                for tt in range(2):
                    d = vr(acc6(tt, mt), 16)
                    A(f"v_mfma_f32_32x32x16_bf16 {d}, {vr(FA6+4*mt,4)}, {vr(FB6[cur]+4*tt,4)}, {d}")
            if sp & 1:
                grp(0, 10)
                A(f"s_add_u32 s{sWI}, s{sWI}, 1")
                A(f"s_cmp_eq_u32 s{sWI}, 5")
                A(f"s_cselect_b32 s{sT}, s{sWN}, s{sWP}")
                A(f"s_cselect_b32 s{sWI}, 0, s{sWI}")
                if sp == 3:
                    A(f"s_add_u32 s{sXI}, s{sXI}, 1")
                    A(f"s_cmp_eq_u32 s{sXI}, 3")
                    A(f"s_cselect_b32 s{sT2}, s{sXN}, s{sXP}")
                    A(f"s_cselect_b32 s{sXI}, 0, s{sXI}")
                    A(f"s_cmp_eq_u32 s{sCNT}, 0")
                    A(f"s_cbranch_scc0 {name}_nw_f6")
                    A("s_waitcnt vmcnt(0)")
                    A.label(f"{name}_nw_f6")
                A("s_barrier")
                A(f"v_add_u32 v{vW6}, s{sT}, v{vW6}")
                if sp == 3:
                    for j in range(4): A(f"v_add_u32 v{vXA6+j}, s{sT2}, v{vXA6+j}")
                for l in bread((sp+1) & 3, nxt): A(l)
                for l in aread(0, 0): A(l)
                for mt in range(1, 6):
                    grp(mt, 12)
                    for l in aread(mt, 0): A(l)
            else:
                for l in bread(sp+1, nxt): A(l)
                for mt in range(6):
                    grp(mt, 12)
                    for l in aread(mt, 1): A(l)
        A(f"s_add_u32 s{sCNT}, s{sCNT}, 1")
        A(f"s_cmp_lt_u32 s{sCNT}, 10")
        A(f"s_cbranch_scc1 {name}_loop_f6")
        A("s_waitcnt lgkmcnt(0)")
        if fused and asmlib.OPT.get("early"): A("s_barrier")
        A("s_nop 15")
        stamp(A, 2)
        A.c("epilogue FFN: h = gelu_tanh(g) * u")
        vC0, vC1, vONE = 8, 10, 12
        vTt, vP, vE, vGU = 14, 16, 18, 20
        vOUT = 24
        for j in range(2):
            A(f"v_mov_b32 v{vC0+j}, {hex(f2u(c0))}")
            A(f"v_mov_b32 v{vC1+j}, {hex(f2u(c1))}")
            A(f"v_mov_b32 v{vONE+j}, 1.0")
        A(f"v_lshlrev_b32 v3, 4, v2")
        A(f"v_add_u32 v4, 4096, v3")
        A(f"s_lshl_b32 s{sT2}, s{sRB}, 3")
        A(f"s_lshl_b32 s{sT3}, s{sW}, 1")
        A(f"s_add_u32 s{sT2}, s{sT2}, s{sT3}")
        A(f"s_mul_i32 s{sT2}, s{sT2}, {96*1024}")
        A(f"s_mul_i32 s{sT3}, s{sCB}, {6*1024}")
        A(f"s_add_u32 s{sT2}, s{sT2}, s{sT3}")
        A(f"s_add_u32 s{sT2}, s{sT2}, {HF}")
        A(f"s_add_u32 s{sT3}, s{sT2}, {96*1024}")
        n = 0
        for mt in range(6):
            for tt in range(2):
                a = acc6(tt, mt)
                o = vOUT + 4*(n & 1); n += 1
                for pr in range(4):
                    g = a + 2*pr; u = a + 8 + 2*pr
                    A(f"v_pk_mul_f32 {vr(vTt,2)}, {vr(g,2)}, {vr(g,2)}")
                    A(f"v_pk_mul_f32 {vr(vGU,2)}, {vr(g,2)}, {vr(u,2)}")
                    A(f"v_pk_fma_f32 {vr(vP,2)}, {vr(vTt,2)}, {vr(vC1,2)}, {vr(vC0,2)}")
                    A(f"v_pk_mul_f32 {vr(vP,2)}, {vr(vP,2)}, {vr(g,2)}")
                    A(f"v_exp_f32 v{vE}, v{vP}")
                    A(f"v_exp_f32 v{vE+1}, v{vP+1}")
                    A("s_nop 0")
                    A(f"v_pk_add_f32 {vr(vE,2)}, {vr(vE,2)}, {vr(vONE,2)}")
                    A(f"v_rcp_f32 v{vE}, v{vE}")
                    A(f"v_rcp_f32 v{vE+1}, v{vE+1}")
                    A("s_nop 0")
                    A(f"v_pk_mul_f32 {vr(vGU,2)}, {vr(vGU,2)}, {vr(vE,2)}")
                    A(f"v_cvt_pk_bf16_f32 v{o+pr}, v{vGU}, v{vGU+1}")
                A(f"buffer_store_dwordx4 {vr(o,4)}, v{3 if mt < 4 else 4}, {sr(SRD_WS,4)}, s{sT2 if tt == 0 else sT3} offen offset:{(mt % 4)*1024}{SC1}")
        if fused and asmlib.OPT.get("early"):
            A(f"s_branch {name}_f6fin")
        else:
            A(f"s_branch {name}_fin")

    A.label(f"{name}_loader")
    vXO = 8
    vWO = 16
    A(f"s_sub_u32 s{sW}, s{sW}, 4")
    if fused and asmlib.OPT.get("early"):
        A(f"v_mov_b32 v3, {K1_LDS}")
        A("v_mov_b32 v4, 0")
        A("ds_write_b32 v3, v4")
    def dbg_srd(r):
        A(f"s_load_dwordx2 s[{r+4}:{r+5}], s[0:1], {KA_DBG}")
        A("s_waitcnt lgkmcnt(0)")
        A(f"s_mov_b32 s{r}, s{r+4}")
        A(f"s_and_b32 s{r+1}, s{r+5}, 0xffff")
        A(f"s_mov_b32 s{r+2}, 256")
        A(f"s_mov_b32 s{r+3}, 0x20000")
    def tag_load():
        dbg_srd(88 if not asmlib.PROFILE else 52)
        r = 88 if not asmlib.PROFILE else 52
        A("v_mov_b32 v131, 240")
        A(f"buffer_load_dword v130, v131, {sr(r,4)}, 0 offen sc1")
    sL = 64
    A(f"s_lshl_b32 s{sL}, s2, 2")
    A(f"s_add_u32 s{sL}, s{sL}, s{sW}")
    A(f"s_mul_i32 s{sXO}, s{sRB}, {256*1280}")
    A(f"s_add_u32 s{sXO}, s{sXO}, 256")
    if F6:
        A(f"s_cmp_eq_u32 s{sTYPE}, 3")
        A(f"s_cbranch_scc1 {name}_f6l")
        A(f"s_cmp_eq_u32 s{sTYPE}, 4")
        A(f"s_cbranch_scc1 {name}_idlel")
    sLX, sLW, sWSTEP = 61, 62, 63
    if F6:
        A(f"s_mul_i32 s{sT}, s{sW}, 320")
        for i in range(5):
            A(f"v_add_u32 v3, s{sT}, v2")
            A(f"v_add_u32 v3, {64*i}, v3")
            A("v_mul_u32_u24 v4, 3277, v3")
            A("v_lshrrev_b32 v4, 16, v4")
            A("v_mul_u32_u24 v5, 20, v4")
            A("v_sub_u32 v5, v3, v5")
            A("v_mul_u32_u24 v4, 3840, v4")
            A(f"v_lshl_add_u32 v{vWO+i}, v5, 4, v4")
        A(f"s_lshl_b32 s{sLX}, s{sW}, 13")
        A(f"s_mul_i32 s{sLW}, s{sW}, 5120")
        A(f"s_add_u32 s{sLW}, s{sLW}, {WOFF}")
        A(f"s_lshl_b32 s{sWSTEP}, s{sRS}, 6")
    else:
        A(f"s_and_b32 s{sT}, s{sW}, 1")
        A(f"s_mul_i32 s{sT}, s{sT}, 320")
        for i in range(5):
            A(f"v_add_u32 v3, s{sT}, v2")
            A(f"v_add_u32 v3, {64*i}, v3")
            A("v_mul_u32_u24 v4, 6554, v3")
            A("v_lshrrev_b32 v4, 16, v4")
            A("v_mul_u32_u24 v5, 10, v4")
            A("v_sub_u32 v5, v3, v5")
            A(f"v_mul_lo_u32 v4, v4, s{sRS}")
            A(f"v_lshl_add_u32 v{vWO+i}, v5, 4, v4")
        A(f"s_lshl_b32 s{sLX}, s{sW}, 13")
        A(f"s_lshr_b32 s{sT}, s{sW}, 1")
        A(f"s_mul_i32 s{sLW}, s{sT}, {UOFF}")
        A(f"s_and_b32 s{sT}, s{sW}, 1")
        A(f"s_mul_i32 s{sT}, s{sT}, 5120")
        A(f"s_add_u32 s{sLW}, s{sLW}, s{sT}")
        A(f"s_add_u32 s{sLW}, s{sLW}, {WOFF}")
        A(f"s_lshl_b32 s{sWSTEP}, s{sRS}, 6")
    def issue_w():
        A(f"s_add_u32 s{sT}, s{sBUF}, s{sLW}")
        for i in range(5):
            A(f"s_add_u32 m0, s{sT}, {i*1024}")
            A("s_nop 0")
            A(f"buffer_load_dwordx4 v{vWO+i}, {sr(SRD_W,4)}, s{sWO_} offen lds")
        A(f"s_add_u32 s{sWO_}, s{sWO_}, s{sWSTEP}")
    def next_buf():
        A(f"s_add_u32 s{sBUF}, s{sBUF}, {STAGE}")
        A(f"s_cmp_eq_u32 s{sBUF}, {3*STAGE}")
        A(f"s_cselect_b32 s{sBUF}, 0, s{sBUF}")
    def issue_stage():
        if asmlib.OPT.get("k1nodma"): return
        issue_w()
        A(f"s_add_u32 s{sT}, s{sBUF}, s{sLX}")
        for j in range(8):
            A(f"s_add_u32 m0, s{sT}, {j*1024}")
            A("s_nop 0")
            A(f"buffer_load_dwordx4 v{vXO+j}, {sr(SRD_X,4)}, s{sXO} offen lds")
        A(f"s_add_u32 s{sXO}, s{sXO}, 128")
        next_buf()
    A("s_waitcnt lgkmcnt(0)")
    if F6:
        A(f"s_mov_b32 s{SRD_W}, s{sWQ}")
        A(f"s_mov_b32 s{SRD_W+1}, s{sWQ+1}")
        A(f"s_lshl_b32 s{sWO_}, s{sCG}, 1")
    else:
        A.c("SRD w (QKV blocks: wqkv; FFN blocks: w_gate for loaders 0,1 and w_up for 2,3)")
        A(f"s_cmp_ge_u32 s{sW}, 2")
        A(f"s_cselect_b32 s{SRD_W}, s{sWU}, s{sWG}")
        A(f"s_cselect_b32 s{SRD_W+1}, s{sWU+1}, s{sWG+1}")
        A(f"s_cselect_b32 s{sT}, s{sCU}, s{sCG}")
        A(f"s_lshl_b32 s{sWO_}, s{sT}, 1")
        A(f"s_cmp_eq_u32 s{sTYPE}, 3")
        A(f"s_cselect_b32 s{SRD_W}, s{SRD_W}, s{sWQ}")
        A(f"s_cselect_b32 s{SRD_W+1}, s{SRD_W+1}, s{sWQ+1}")
    A(f"s_and_b32 s{SRD_W+1}, s{SRD_W+1}, 0xffff")
    A(f"s_mul_i32 s{SRD_W+2}, s{sRS}, 640")
    A(f"s_mov_b32 s{SRD_W+3}, 0x20000")
    A(f"s_mov_b32 s{sBUF}, 0")
    if SP: stamp(A, 1)
    issue_w(); next_buf()
    if SP: stamp(A, 2)
    issue_w(); next_buf()
    srd_x()
    srd_ws()
    x_voffsets(vXO)
    SRD_D, SRD_O, SRD_G, SRD_P = 68, 76, 80, 68
    vPW = 64
    vGX, vGW = 76, 88
    vS1, vS2, vTK = 100, 101, 102
    sN = 84
    sN = 56
    def prefetch_setup():
        A("v_lshlrev_b32 v21, 4, v2")
        mats = ((sX, 2048*1280, 3, 68), (sWQ, 640*3840, 3, 72), (sWG, 640*3072, 2, 76), (sWU, 640*3072, 2, 80))
        for (ptr, nb, pieces, r) in mats:
            A(f"s_mov_b32 s{r}, s{ptr}")
            A(f"s_and_b32 s{r+1}, s{ptr+1}, 0xffff")
            A(f"s_mov_b32 s{r+2}, {nb}")
            A(f"s_mov_b32 s{r+3}, 0x20000")
        if asmlib.OPT.get("pfq"):
            A(f"s_lshl_b32 s{sT2}, s{sL}, 10")
            A(f"v_add_u32 v21, s{sT2}, v21")
            A(f"v_add_u32 v22, {1 << 20}, v21")
            A(f"v_add_u32 v23, {2 << 20}, v21")
            order = [(1,0),(2,0),(3,0),(0,0),(0,1),(0,2),(1,1),(2,1),(3,1),(1,2)]
            return [f"buffer_load_dwordx4 v[60:63], v{21+j}, {sr(mats[mi][3],4)}, 0 offen" for (mi, j) in order]
        A(f"s_sub_u32 s{sT2}, s2, 96")
        A(f"s_lshl_b32 s{sT2}, s{sT2}, 2")
        A(f"s_add_u32 s{sT2}, s{sT2}, s{sW}")
        A(f"s_lshl_b32 s{sT2}, s{sT2}, 10")
        A(f"v_add_u32 v21, s{sT2}, v21")
        for j in range(1, 4): A(f"v_add_u32 v{21+j}, {j*640*1024}, v21")
        order = [(1,0),(2,0),(3,0),(0,0),(0,1),(1,1),(2,1),(3,1),(0,2),(0,3),(1,2),(2,2),(3,2),(1,3)]
        return [f"buffer_load_dwordx4 v[60:63], v{21+j}, {sr(mats[mi][3],4)}, 0 offen" for (mi, j) in order]
    def prefetch_inputs():
        n = 0
        if not asmlib.OPT.get("pf2"):
            A.c("warm-up: stream a 1/1024 share of every GEMM input linearly, so that the strided tile loads of the later stages hit the memory-side cache")
            A("v_lshlrev_b32 v3, 4, v2")
            mats = ((sX, 2048*1280, 3, 68), (sWQ, 640*3840, 3, 72), (sWG, 640*3072, 2, 76), (sWU, 640*3072, 2, 80))
            if asmlib.OPT.get("pfo", 1):
                for (ptr, nb, pieces, r) in mats:
                    A(f"s_mov_b32 s{r}, s{ptr}")
                    A(f"s_and_b32 s{r+1}, s{ptr+1}, 0xffff")
                    A(f"s_mov_b32 s{r+2}, {nb}")
                    A(f"s_mov_b32 s{r+3}, 0x20000")
                A(f"s_lshl_b32 s{sT2}, s{sL}, 10")
                A(f"v_add_u32 v3, s{sT2}, v3")
                A(f"v_add_u32 v4, {1 << 20}, v3")
                A(f"v_add_u32 v5, {2 << 20}, v3")
                order = [(1,0),(2,0),(3,0),(0,0),(0,1),(0,2),(1,1),(2,1),(3,1),(1,2)]
                cur = 0
                for (mi, j) in order:
                    A(f"buffer_load_dwordx4 v[60:63], v{3+j}, {sr(mats[mi][3],4)}, 0 offen")
                    n += 1
            else:
                for (ptr, nb, pieces, r) in mats:
                    A(f"s_mov_b32 s{SRD_P}, s{ptr}")
                    A(f"s_and_b32 s{SRD_P+1}, s{ptr+1}, 0xffff")
                    A(f"s_mov_b32 s{SRD_P+2}, {nb}")
                    A(f"s_mov_b32 s{SRD_P+3}, 0x20000")
                    A(f"s_mul_i32 s{sT2}, s{sL}, {pieces*1024}")
                    for i in range(pieces):
                        A(f"buffer_load_dwordx4 v[60:63], v3, {sr(SRD_P,4)}, s{sT2} offen offset:{i*1024}")
                        n += 1
            return n
        A.c("L2 warm-up (speed only): the workgroups that share operand lines split the job of pulling them in early.")
        A.c("x: this workgroup streams 32 of the 256 rows of its row block (all K); w: it fetches two later stages of its column block")
        A("v_lshlrev_b32 v3, 4, v2")
        A(f"s_lshr_b32 s{sT}, s2, 5")
        A(f"s_lshl_b32 s{sT}, s{sT}, 2")
        A(f"s_add_u32 s{sT}, s{sT}, s{sW}")
        A(f"s_mul_i32 s{sT}, s{sT}, {8*1280}")
        A(f"s_mul_i32 s{sT2}, s{sRB}, {256*1280}")
        A(f"s_add_u32 s{sT}, s{sT}, s{sT2}")
        NX = asmlib.OPT.get("pfx", 10)
        for i in range(NX):
            if i % 4 == 0 and i: A(f"s_add_u32 s{sT}, s{sT}, 4096")
            A(f"buffer_load_dwordx4 v[60:63], v3, {sr(SRD_X,4)}, s{sT} offen offset:{(i % 4)*1024}")
            n += 1
        for st in range(2):
            A(f"s_bfe_u32 s{sT}, s2, 0x20003")
            A(f"s_lshl_b32 s{sT}, s{sT}, 1")
            A(f"s_add_u32 s{sT}, s{sT}, {st}")
            A(f"s_min_u32 s{sT}, s{sT}, 6")
            A(f"s_mul_i32 s{sT}, s{sT}, s{sWSTEP}")
            A(f"s_add_u32 s{sT}, s{sT}, s{sWO_}")
            for i in range(5):
                A(f"buffer_load_dwordx4 v[60:63], v{vWO+i}, {sr(SRD_W,4)}, s{sT} offen")
                n += 1
        return n
    def side_loads(tag=''):
        for srd, p, nb in ((SRD_D, sWD, 1536*1280), (SRD_O, sWO, 640*1280), (SRD_G, sGW, 1280)):
            A(f"s_mov_b32 s{srd}, s{p}")
            A(f"s_and_b32 s{srd+1}, s{p+1}, 0xffff")
            A(f"s_mov_b32 s{srd+2}, {nb}")
            A(f"s_mov_b32 s{srd+3}, 0x20000")
        A("v_lshrrev_b32 v3, 2, v2")
        A("v_mul_u32_u24 v3, 1280, v3")
        A("v_and_b32 v4, 3, v2")
        A(f"v_lshl_add_u32 v{vS1}, v4, 4, v3")
        A("v_bfe_u32 v5, v2, 4, 1")
        A("v_lshrrev_b32 v6, 5, v2")
        A("v_lshl_add_u32 v5, v5, 1, v6")
        A("v_mul_u32_u24 v5, 20, v5")
        A("v_bfe_u32 v6, v2, 2, 2")
        A("v_add3_u32 v5, v5, v6, 16")
        A("v_mul_u32_u24 v5, 1280, v5")
        A(f"v_lshl_add_u32 v{vS2}, v4, 4, v5")
        for m in range(3):
            A(f"s_add_u32 s{sN+m}, s{sL}, {1024*m}")
            A(f"s_cmp_ge_u32 s{sN+m}, 1920")
            A(f"s_cbranch_scc1 {name}_pl_o{m}{tag}")
            A(f"s_mul_i32 s{sT}, s{sN+m}, 683")
            A(f"s_lshr_b32 s{sT}, s{sT}, 16")
            A(f"s_mul_i32 s{sT2}, s{sT}, 96")
            A(f"s_sub_u32 s{sT2}, s{sN+m}, s{sT2}")
            A(f"s_mul_i32 s{sT2}, s{sT2}, {16*1280}")
            A(f"s_lshl_b32 s{sT}, s{sT}, 6")
            A(f"s_add_u32 s{sT}, s{sT}, s{sT2}")
            A(f"buffer_load_dwordx4 {vr(vPW+4*m,4)}, v{vS1}, {sr(SRD_D,4)}, s{sT} offen")
            A(f"s_branch {name}_pl_n{m}{tag}")
            A.label(f"{name}_pl_o{m}{tag}")
            A(f"s_sub_u32 s{sT3}, s{sN+m}, 1920")
            A(f"s_mul_i32 s{sT}, s{sT3}, 1639")
            A(f"s_lshr_b32 s{sT}, s{sT}, 16")
            A(f"s_mul_i32 s{sT2}, s{sT}, 40")
            A(f"s_sub_u32 s{sT2}, s{sT3}, s{sT2}")
            A(f"s_lshl_b32 s{sT}, s{sT}, 6")
            A(f"s_cmp_ge_u32 s{sT2}, 32")
            A(f"s_cbranch_scc1 {name}_pl_t{m}{tag}")
            A.c("main step (one head): rows 20*head .. +15")
            A(f"s_mul_i32 s{sT2}, s{sT2}, {20*1280}")
            A(f"s_add_u32 s{sT}, s{sT}, s{sT2}")
            A(f"buffer_load_dwordx4 {vr(vPW+4*m,4)}, v{vS1}, {sr(SRD_O,4)}, s{sT} offen")
            A(f"s_branch {name}_pl_n{m}{tag}")
            A.label(f"{name}_pl_t{m}{tag}")
            A.c("tail step: d=16..19 of four heads (blocks past 2720 read zeros or junk, never stored)")
            A(f"s_sub_u32 s{sT2}, s{sT2}, 32")
            A(f"s_mul_i32 s{sT2}, s{sT2}, {80*1280}")
            A(f"s_add_u32 s{sT}, s{sT}, s{sT2}")
            A(f"buffer_load_dwordx4 {vr(vPW+4*m,4)}, v{vS2}, {sr(SRD_O,4)}, s{sT} offen")
            A.label(f"{name}_pl_n{m}{tag}")
        A("v_and_b32 v3, 31, v2")
        A("v_lshlrev_b32 v3, 4, v3")
        A(f"v_lshrrev_b32 v{vTK}, 5, v2")
        A(f"s_lshl_b32 s{sT}, s{sL}, 1")
        A(f"v_add_u32 v{vTK}, s{sT}, v{vTK}")
        A(f"v_mul_u32_u24 v5, 1280, v{vTK}")
        A("v_add_u32 v5, v5, v3")
        A("v_and_b32 v6, 16, v2")
        A("v_cmp_ne_u32 vcc, 0, v6")
        A(f"v_mov_b32 v7, 0x7ff00000")
        A("v_add_u32 v6, 1024, v5")
        A("v_add_u32 v4, 1024, v3")
        A("v_cndmask_b32 v6, v6, v7, vcc")
        A("v_cndmask_b32 v4, v4, v7, vcc")
        A(f"buffer_load_dwordx4 {vr(vGX,4)}, v5, {sr(SRD_X,4)}, 0 offen")
        A(f"buffer_load_dwordx4 {vr(vGX+4,4)}, v5, {sr(SRD_X,4)}, 0 offen offset:512")
        A(f"buffer_load_dwordx4 {vr(vGX+8,4)}, v6, {sr(SRD_X,4)}, 0 offen")
        A(f"buffer_load_dwordx4 {vr(vGW,4)}, v3, {sr(SRD_G,4)}, 0 offen")
        A(f"buffer_load_dwordx4 {vr(vGW+4,4)}, v3, {sr(SRD_G,4)}, 0 offen offset:512")
        A(f"buffer_load_dwordx4 {vr(vGW+8,4)}, v4, {sr(SRD_G,4)}, 0 offen")
        return 9
    def side_process(tag='', scr_shift=9, scr_base=None):
        A.c("side job: gate g = sigmoid(x . gate_w)")
        A("v_mov_b32 v3, 0")
        for j in range(12):
            A(f"v_dot2c_f32_bf16 v3, v{vGX+j}, v{vGW+j}")
        A("s_nop 3")
        for sh in (1, 2, 4, 8):
            A(f"v_add_f32_dpp v3, v3, v3 row_shr:{sh} row_mask:0xf bank_mask:0xf bound_ctrl:0")
            A("s_nop 1")
        A("v_add_f32_dpp v3, v3, v3 row_bcast:15 row_mask:0xa bank_mask:0xf")
        A("s_nop 1")
        A("v_mul_f32 v3, 0xbfb8aa3b, v3")
        A("v_exp_f32 v3, v3")
        A("s_nop 0")
        A("v_add_f32 v3, 1.0, v3")
        A("v_rcp_f32 v3, v3")
        A(f"v_lshlrev_b32 v{vTK}, 2, v{vTK}")
        A("v_and_b32 v6, 31, v2")
        A("v_cmp_eq_u32 vcc, 31, v6")
        A(f"s_mov_b32 s{sT}, {GG}")
        A("s_and_saveexec_b64 s[50:51], vcc")
        A(f"s_cbranch_execz {name}_gate_done{tag}")
        A(f"buffer_store_dword v3, v{vTK}, {sr(SRD_WS,4)}, s{sT} offen{SC1}")
        A.label(f"{name}_gate_done{tag}")
        A("s_mov_b64 exec, s[50:51]")
        A.c("side job: transpose Wd / Wo blocks into MFMA A-fragment order through a 512-byte LDS scratch per wave")
        A(f"s_lshl_b32 s{sT}, s{sW}, 9")
        A(f"s_add_u32 s{sT}, s{sT}, {K1_LDS - 2048 if scr_base is None else scr_base}")
        A("v_and_b32 v4, 31, v2")
        A("v_lshlrev_b32 v4, 4, v4")
        A(f"v_add_u32 v4, s{sT}, v4")
        A("v_lshrrev_b32 v7, 5, v2")
        A("v_bfe_u32 v5, v2, 2, 2")
        A("v_lshl_add_u32 v5, v7, 2, v5")
        A("v_lshlrev_b32 v5, 6, v5")
        A("v_bfe_u32 v6, v2, 4, 1")
        A("v_lshl_add_u32 v5, v6, 5, v5")
        A("v_and_b32 v6, 3, v2")
        A("v_lshl_add_u32 v5, v6, 3, v5")
        A(f"v_add_u32 v5, s{sT}, v5")
        A("v_lshlrev_b32 v7, 4, v2")
        OUT = 104
        for m in range(3):
            if m == 2:
                A(f"s_cmp_ge_u32 s{sN+m}, 2720")
                A(f"s_cbranch_scc1 {name}_prep_done{tag}")
            for half in range(2):
                A("s_mov_b32 exec_hi, 0" if half == 0 else "s_mov_b32 exec_lo, 0")
                A(f"ds_write_b128 v4, {vr(vPW+4*m,4)}")
                A("s_mov_b64 exec, -1")
                A("s_waitcnt lgkmcnt(0)")
                A(f"ds_read_b64_tr_b16 {vr(OUT+4*m+2*half,2)}, v5")
                A("s_waitcnt lgkmcnt(0)")
            A(f"s_lshl_b32 s{sT}, s{sN+m}, 10")
            A(f"s_add_u32 s{sT}, s{sT}, {WDF}")
            A(f"buffer_store_dwordx4 {vr(OUT+4*m,4)}, v7, {sr(SRD_WS,4)}, s{sT} offen{SC1}")
        A.label(f"{name}_prep_done{tag}")
    if F6:
        from p1two import Seq
        q = Seq()
        q.add(("st", 0), 5); q.add(("st", 1), 5)
        PFL = prefetch_setup() if (not asmlib.OPT.get("nopf") and asmlib.OPT.get("pfq")) else []
        NPS = asmlib.OPT.get("nps", 10)
        if asmlib.OPT.get("early2"):
            issue_stage(); q.add(("st", 2), 13)
        for S in range(10):
            A(f"s_waitcnt vmcnt({q.n_after(('st', S))})")
            A("s_barrier")
            if S == 8 and not SP: stamp(A, 1)
            if S + 2 <= 9 and (S > 0 or not asmlib.OPT.get("early2")):
                issue_stage(); q.add(("st", S+2), 13)
            for l in PFL[:NPS]:
                A(l); q.add("pf")
            PFL = PFL[NPS:]
            if S == 7 and fused and asmlib.OPT.get("early"):
                tag_load(); q.add("tag")
        A(f"s_cmp_eq_u32 s{sTYPE}, 2")
        A(f"s_cbranch_scc0 {name}_novp")
        vpad("q", 120)
        A.label(f"{name}_novp")
        A("s_barrier")
        if not SP: stamp(A, 2)
    else:
        if not asmlib.OPT.get("early2"):
            A("s_waitcnt vmcnt(5)")
            A("s_barrier")
            issue_stage()
            NPF = prefetch_inputs() if not (asmlib.OPT.get("nopf") or (F6 and not asmlib.OPT.get("pfall"))) else 0
            A(f"s_waitcnt vmcnt({13+NPF})")
            A("s_barrier")
            issue_stage()
            A(f"s_waitcnt vmcnt({13+NPF})")
            A("s_barrier")
            issue_stage()
        else:
            issue_stage()
            A("s_waitcnt vmcnt(18)")
            A("s_barrier")
            NPF = prefetch_inputs() if not (asmlib.OPT.get("nopf") or (F6 and not asmlib.OPT.get("pfall"))) else 0
            A(f"s_waitcnt vmcnt({13+NPF})")
            A("s_barrier")
            issue_stage()
            A(f"s_waitcnt vmcnt({NPF+13})")
            A("s_barrier")
            issue_stage()
    if F6:
        pass
    elif not asmlib.OPT.get("earlyside"):
        for S in range(3, 8):
            A("s_waitcnt vmcnt(13)")
            A("s_barrier")
            issue_stage()
        NS = side_loads()
        A(f"s_waitcnt vmcnt({13+NS})")
        A("s_barrier")
        if not SP: stamp(A, 1)
        A(f"s_waitcnt vmcnt({NS})")
        A("s_barrier")
        if not asmlib.OPT.get("earlyconst"): const_stores("l", 120)
        A("s_barrier")
        if not SP: stamp(A, 2)
        A("s_waitcnt vmcnt(3)" if not asmlib.OPT.get("earlyconst") else "s_waitcnt vmcnt(0)")
        side_process()
    else:
        A("s_waitcnt vmcnt(13)")
        A("s_barrier")
        issue_stage()
        A("s_waitcnt vmcnt(13)")
        A("s_barrier")
        NS = side_loads()
        issue_stage()
        A(f"s_waitcnt vmcnt({13+NS})")
        A("s_barrier")
        issue_stage()
        A("s_waitcnt vmcnt(13)")
        A("s_barrier")
        issue_stage()
        side_process()
        A("s_waitcnt vmcnt(16)")
        A("s_barrier")
        issue_stage()
        A("s_waitcnt vmcnt(16)")
        A("s_barrier")
        if not SP: stamp(A, 1)
        A("s_waitcnt vmcnt(0)")
        A("s_barrier")
        A("s_barrier")
        if not SP: stamp(A, 2)
    if F6:
        from p1two import Seq
        A(f"s_branch {name}_fin")
        XR, WB6, WST, UO6 = 32768, 98304, 12320, 6176
        A.label(f"{name}_f6l")
        vW6O = 16
        A(f"s_and_b32 s{sT}, s{sW}, 1")
        A(f"s_mul_i32 s{sT}, s{sT}, 192")
        for i in range(3):
            A(f"v_add_u32 v3, s{sT}, v2")
            A(f"v_add_u32 v3, {64*i}, v3")
            A("v_mul_u32_u24 v4, 5462, v3")
            A("v_lshrrev_b32 v4, 16, v4")
            A("v_mul_u32_u24 v5, 12, v4")
            A("v_sub_u32 v5, v3, v5")
            A("v_mul_u32_u24 v4, 3072, v4")
            A(f"v_lshl_add_u32 v{vW6O+i}, v5, 4, v4")
        sLX, sLW = 61, 62
        A(f"s_lshl_b32 s{sLX}, s{sW}, 13")
        A(f"s_lshr_b32 s{sT}, s{sW}, 1")
        A(f"s_mul_i32 s{sLW}, s{sT}, {UO6}")
        A(f"s_and_b32 s{sT}, s{sW}, 1")
        A(f"s_mul_i32 s{sT}, s{sT}, 3072")
        A(f"s_add_u32 s{sLW}, s{sLW}, s{sT}")
        A(f"s_add_u32 s{sLW}, s{sLW}, {WB6}")
        A(f"s_mul_i32 s{sWO_}, s{sCB}, 192")
        A("s_waitcnt lgkmcnt(0)")
        A(f"s_cmp_ge_u32 s{sW}, 2")
        A(f"s_cselect_b32 s{SRD_W}, s{sWU}, s{sWG}")
        A(f"s_cselect_b32 s{SRD_W+1}, s{sWU+1}, s{sWG+1}")
        A(f"s_and_b32 s{SRD_W+1}, s{SRD_W+1}, 0xffff")
        A(f"s_mov_b32 s{SRD_W+2}, {640*3072}")
        A(f"s_mov_b32 s{SRD_W+3}, 0x20000")
        q = Seq()
        def w6(j):
            for i in range(3):
                A(f"s_add_u32 m0, s{sLW}, {(j % 5)*WST + i*1024}")
                A("s_nop 0")
                A(f"buffer_load_dwordx4 v{vW6O+i}, {sr(SRD_W,4)}, s{sWO_} offen lds")
            A(f"s_add_u32 s{sWO_}, s{sWO_}, {32*3072}")
            q.add(("w", j), 3)
        def x6(i):
            for j in range(8):
                A(f"s_add_u32 m0, s{sLX}, {(i % 3)*XR + j*1024}")
                A("s_nop 0")
                A(f"buffer_load_dwordx4 v{vXO+j}, {sr(SRD_X,4)}, s{sXO} offen lds")
            A(f"s_add_u32 s{sXO}, s{sXO}, 128")
            q.add(("x", i), 8)
        w6(0); w6(1)
        srd_x(); srd_ws(); x_voffsets(vXO)
        w6(2); w6(3); x6(2)
        if asmlib.OPT.get("early2"): w6(4)
        A(f"s_waitcnt vmcnt({q.n_after(('w', 0))})")
        A("s_barrier")
        PFL = prefetch_setup() if not asmlib.OPT.get("nopf") else []
        NPS = asmlib.OPT.get("nps6", 14)
        for j in range(20):
            need = []
            if j + 1 <= 19: need.append(("w", j+1))
            if j & 1 and 2 <= (j+1)//2 <= 9: need.append(("x", (j+1)//2))
            if need: A(f"s_waitcnt vmcnt({min(63, min(q.n_after(t) for t in need))})")
            A("s_barrier")
            if j + 4 <= 19 and (j > 0 or not asmlib.OPT.get("early2")): w6(j+4)
            if j & 1:
                i = (j+1)//2
                if i + 2 <= 9: x6(i+2)
            for l in PFL[:NPS]:
                A(l); q.add("pf")
            PFL = PFL[NPS:]
            if j == 15 and fused and asmlib.OPT.get("early"):
                tag_load(); q.add("tag")
        A(f"s_branch {name}_f6ldone")
        A.label(f"{name}_idlel")
        A("s_waitcnt lgkmcnt(0)")
        if fused and asmlib.OPT.get("early"):
            A("s_cmp_eq_u32 s2, 224")
            A(f"s_cbranch_scc0 {name}_notag")
            A(f"s_cmp_eq_u32 s{sW}, 0")
            A(f"s_cbranch_scc0 {name}_notag")
            dbg_srd(68)
            A("s_memrealtime s[74:75]")
            A("s_waitcnt lgkmcnt(0)")
            A("s_or_b32 s74, s74, 1")
            A("s_mov_b64 exec, 1")
            A("v_mov_b32 v4, s74")
            A("v_mov_b32 v3, 240")
            A("buffer_store_dword v4, v3, s[68:71], 0 offen sc1")
            A("s_mov_b64 exec, -1")
            A.label(f"{name}_notag")
        if not asmlib.OPT.get("nopf"):
            for l in prefetch_setup(): A(l)
        A(f"s_add_u32 s{sW}, s{sW}, 4")
        A.label(f"{name}_idlec")
        A("s_waitcnt lgkmcnt(0)")
        srd_x(); srd_ws()
        sIW, sIT = 65, 66
        A(f"s_lshr_b32 s{sT}, s2, 3")
        A(f"s_sub_u32 s{sT}, s{sT}, 28")
        A(f"s_lshl_b32 s{sT}, s{sT}, 3")
        A(f"s_and_b32 s{sT2}, s2, 7")
        A(f"s_add_u32 s{sT}, s{sT}, s{sT2}")
        A(f"s_lshl_b32 s{sT}, s{sT}, 3")
        A(f"s_add_u32 s{sIW}, s{sT}, s{sW}")
        if asmlib.OPT.get("pf0"):
            A.c("first thing: these otherwise idle waves stream x and the first weight rows linearly (cold start: the tile loads of the first stages then hit the memory-side cache)")
            A("v_lshlrev_b32 v3, 4, v2")
            for (ptr, nb, r) in ((sX, 2048*1280, 68), (sWQ, 192*3840, 72), (sWG, 192*3072, 76), (sWU, 192*3072, 80)):
                A(f"s_mov_b32 s{r}, s{ptr}")
                A(f"s_and_b32 s{r+1}, s{ptr+1}, 0xffff")
                A(f"s_mov_b32 s{r+2}, {nb}")
                A(f"s_mov_b32 s{r+3}, 0x20000")
            A(f"s_lshl_b32 s{sT}, s{sIW}, 10")
            A(f"v_add_u32 v3, s{sT}, v3")
            for j in range(10):
                for (r, n) in ((72, 3), (76, 3), (80, 3), (68, 10)):
                    if j < n:
                        A(f"buffer_load_dwordx4 v[60:63], v3, {sr(r,4)}, 0 offen")
                A(f"v_add_u32 v3, {256*1024}, v3")
        A(f"s_mov_b32 s{sIT}, 0")
        A.label(f"{name}_idleloop")
        A(f"s_lshl_b32 s{sL}, s{sIW}, 2")
        A(f"s_add_u32 s{sL}, s{sL}, s{sIT}")
        side_loads("_id")
        A("s_waitcnt vmcnt(0)")
        side_process("_id", scr_shift=8, scr_base=0)
        fill_of(120)
        A(f"s_add_u32 s{sIT}, s{sIT}, 1")
        A(f"s_cmp_lt_u32 s{sIT}, 4")
        A(f"s_cbranch_scc1 {name}_idleloop")
        if fused and asmlib.OPT.get("early"): tag_load()
        A(f"s_branch {name}_fin")
        A.label(f"{name}_f6ldone")
        if fused and asmlib.OPT.get("early"):
            A("s_barrier")
            A(f"s_branch {name}_f6fin")
    A.label(f"{name}_fin")
    if asmlib.PROFILE and not asmlib.OPT.get("noflush0"):
        A("s_waitcnt vmcnt(0)")
        if SP:
            A("v_readfirstlane_b32 s83, v0")
            A("s_nop 3")
            A("s_cmp_ge_u32 s83, 256")
            A(f"s_cbranch_scc1 {name}_fin_sp")
        stamp(A, 3)
        if SP:
            A(f"s_branch {name}_fin_sp2")
            A.label(f"{name}_fin_sp")
            A("s_mov_b32 s92, s66")
            A.label(f"{name}_fin_sp2")
        A("v_readfirstlane_b32 s83, v0")
        A("s_nop 3")
        A("s_lshr_b32 s83, s83, 6")
        stamp_flush(A, 0, SRD_WS, 83, 4)
    if not fused:
        A.label(f"{name}_end")
        A("s_endpgm")
        return 256
    if F6 and asmlib.OPT.get("early"):
        A("s_mov_b64 exec, -1")
        A("s_waitcnt vmcnt(0) lgkmcnt(0)")
        A("s_barrier")
        A(f"s_lshl_b32 s70, s{sTYPE}, 3")
        A(f"s_add_u32 s70, s70, s{sRB}")
        A(f"s_lshr_b32 s{sT}, s2, 3")
        A(f"s_sub_u32 s{sT}, s{sT}, 28")
        A(f"s_lshl_b32 s{sT}, s{sT}, 3")
        A(f"s_and_b32 s{sT2}, s2, 7")
        A(f"s_add_u32 s{sT}, s{sT}, s{sT2}")
        A(f"s_add_u32 s{sT}, s{sT}, 64")
        A(f"s_cmp_eq_u32 s{sTYPE}, 4")
        A(f"s_cselect_b32 s70, s{sT}, s70")
        A("s_mov_b32 s71, -1")
        A(f"s_branch {name}_p2_entry")
        A.label(f"{name}_f6fin")
        A("s_mov_b64 exec, -1")
        A("s_mov_b32 s70, -1")
        A(f"s_lshl_b32 s71, s{sRB}, 8")
        A(f"s_add_u32 s71, s71, s{sCB}")
        A.label(f"{name}_p2_entry")
        return 256
    A.c("every wave drains its write-through stores, then one lane signals for the workgroup")
    A("s_mov_b64 exec, -1")
    A("s_waitcnt vmcnt(0) lgkmcnt(0)")
    A("s_barrier")
    sDBG, SRD_D2 = 4, 8
    A(f"s_load_dwordx2 {sr(sDBG,2)}, s[0:1], {KA_DBG}")
    A("v_readfirstlane_b32 s83, v0")
    A("s_nop 3")
    A("s_cmp_lt_u32 s83, 64")
    A(f"s_cbranch_scc0 {name}_p1polled")
    if asmlib.OPT.get('wbl2'):
        A("buffer_wbl2 sc1")
        A("s_waitcnt vmcnt(0)")
    A("s_waitcnt lgkmcnt(0)")
    A(f"s_mov_b32 s{SRD_D2}, s{sDBG}")
    A(f"s_and_b32 s{SRD_D2+1}, s{sDBG+1}, 0xffff")
    A(f"s_mov_b32 s{SRD_D2+2}, 256")
    A(f"s_mov_b32 s{SRD_D2+3}, 0x20000")
    if F6:
        A(f"s_bfe_u32 s{sT3}, s2, 0x20001")
        A(f"s_add_u32 s{sT2}, s{sRB}, 32")
        A(f"s_cmp_eq_u32 s{sTYPE}, 3")
        A(f"s_cselect_b32 s{sT}, s{sT2}, s{sT3}")
        A(f"s_cmp_eq_u32 s{sTYPE}, 4")
        A(f"s_cselect_b32 s{sT}, 40, s{sT}")
        A(f"s_lshl_b32 s{sT}, s{sT}, 2")
        A("s_mov_b64 exec, 1")
        A(f"v_mov_b32 v3, s{sT}")
        A("v_mov_b32 v4, 1")
        if not asmlib.OPT.get("noatomic"): A(f"buffer_atomic_add v4, v3, {sr(SRD_D2,4)}, 0 offen sc1")
        A(f"s_lshl_b32 s{sT3}, s{sT3}, 2")
        A(f"v_mov_b32 v3, s{sT3}")
        A("v_mov_b32 v5, 24")
    else:
        A(f"s_and_b32 s{sT}, s{sCB}, 3")
        A(f"s_add_u32 s{sT2}, s{sRB}, 32")
        A(f"s_cmp_ge_u32 s{sCB}, 12")
        A(f"s_cselect_b32 s{sT}, s{sT2}, s{sT}")
        A(f"s_lshl_b32 s{sT}, s{sT}, 2")
        A("s_mov_b64 exec, 1")
        A(f"v_mov_b32 v3, s{sT}")
        A("v_mov_b32 v4, 1")
        A(f"buffer_atomic_add v4, v3, {sr(SRD_D2,4)}, 0 offen sc1")
        A("s_mov_b64 exec, 0xfff")
        A("v_cmp_gt_u32 vcc, 4, v2")
        A("v_add_u32 v3, 28, v2")
        A("v_mov_b32 v5, 20")
        A("v_mov_b32 v6, 24")
        A("v_cndmask_b32 v3, v3, v2, vcc")
        A("v_cndmask_b32 v5, v5, v6, vcc")
        A("v_lshlrev_b32 v3, 2, v3")
    A(f"s_mov_b32 s{sT2}, 0")
    if asmlib.OPT.get("nopoll"): A(f"s_branch {name}_p1done")
    if F6:
        A(f"s_cmp_eq_u32 s{sTYPE}, 3")
        A(f"s_cbranch_scc1 {name}_p1poll")
        A(f"s_cmp_eq_u32 s{sTYPE}, 4")
        A(f"s_cbranch_scc0 {name}_p1bk")
        A.label(f"{name}_p1idle")
        A(f"buffer_load_dword v4, v3, {sr(SRD_D2,4)}, 0 offen sc1")
        A("s_waitcnt vmcnt(0)")
        A("v_cmp_gt_u32 vcc, 1, v4")
        A(f"s_add_u32 s{sT2}, s{sT2}, 1")
        A("s_nop 1")
        A(f"s_cbranch_vccz {name}_p1bk")
        A("s_sleep 127")
        A(f"s_cmp_lt_u32 s{sT2}, 0x4000")
        A(f"s_cbranch_scc1 {name}_p1idle")
        A.label(f"{name}_p1bk")
        A(f"s_sleep {asmlib.OPT.get('slp0', 40)}")
    A.label(f"{name}_p1poll")
    A(f"buffer_load_dword v4, v3, {sr(SRD_D2,4)}, 0 offen sc1")
    A("s_waitcnt vmcnt(0)")
    A("v_cmp_lt_u32 vcc, v4, v5")
    A(f"s_add_u32 s{sT2}, s{sT2}, 1")
    A("s_nop 1")
    A(f"s_cbranch_vccz {name}_p1done")
    A(f"s_sleep {asmlib.OPT.get('slp', 16)}")
    A(f"s_cmp_lt_u32 s{sT2}, 0x40000")
    A(f"s_cbranch_scc1 {name}_p1poll")
    A.label(f"{name}_p1done")
    A("s_mov_b64 exec, -1")
    A.label(f"{name}_p1polled")
    A("s_waitcnt lgkmcnt(0)")
    A("s_barrier")
    return 256
```

```python
from asmlib import *
import asmlib
from layout import *
from k23 import ws_srd

K2_LDS = 8*CH + 24576

class VmTrack:
    def __init__(self):
        self.seq = []
        self.need = {}
    def issue(self, tag): self.seq.append(tag)
    def wait(self, wid, tags):
        idx = [i for i, t in enumerate(self.seq) if t in tags]
        if not idx: return
        n = len(self.seq) - 1 - max(idx)
        self.need[wid] = min(self.need.get(wid, 63), n)

def gen_k2(A, name, fused=False, env=None):
    if not fused: kernel_header(A, name)
    LD1 = ' sc1' if (fused and asmlib.OPT.get("ldsc1")) else ''
    sWS = 4; SRD = 8; sW = 12; sT, sT2, sT3 = 13, 14, 15
    sHEAD, sQT, sKV, sM0, sCNT, sG, sHF = 16, 17, 18, 19, 20, 21, 22
    sTT, sCBK = 23, 24
    sA0, sB0 = 26, 31
    if not fused:
        A("s_cmp_ge_u32 s2, 256")
        A(f"s_cbranch_scc1 {name}_end")
    TP = asmlib.OPT.get("tailprof")
    if (not TP or TP == 5) and not asmlib.OPT.get('noflush0'): stamp(A, 0)
    A(f"s_load_dwordx2 {sr(sWS,2)}, s[0:1], {KA_WS}")
    A(f"s_load_dwordx2 s[38:39], s[0:1], {KA_DBG}")
    A(f"s_load_dwordx2 s[48:49], s[0:1], {KA_OUT}")
    A("v_lshrrev_b32 v1, 6, v0")
    A("v_and_b32 v2, 63, v0")
    A(f"v_readfirstlane_b32 s{sW}, v1")
    A(f"s_and_b32 s{sT}, s2, 7")
    A(f"s_lshr_b32 s{sT2}, s2, 3")
    A(f"s_and_b32 s{sT3}, s{sT2}, 3")
    A(f"s_lshl_b32 s{sHEAD}, s{sT}, 2")
    A(f"s_add_u32 s{sHEAD}, s{sHEAD}, s{sT3}")
    A(f"s_and_b32 s{sG}, s{sW}, 3")
    A(f"s_lshr_b32 s{sHF}, s{sW}, 2")
    A(f"s_lshr_b32 s{sQT}, s{sT2}, 2")
    A(f"s_lshl_b32 s{sQT}, s{sQT}, 3")
    A(f"s_lshl_b32 s{sT3}, s{sG}, 1")
    A(f"s_add_u32 s{sQT}, s{sQT}, s{sT3}")
    A(f"s_lshl_b32 s{sTT}, s{sT}, 3")
    A(f"s_and_b32 s{sT3}, s{sT2}, 7")
    A(f"s_add_u32 s{sTT}, s{sTT}, s{sT3}")
    A(f"s_lshr_b32 s{sCBK}, s{sT2}, 3")
    A("s_waitcnt lgkmcnt(0)")
    if TP == 5: stamp(A, 1)
    ws_srd(A, SRD, sWS)
    if asmlib.OPT.get("lone"):
        A(f"s_cmp_ge_u32 s{sW}, 4")
        A(f"s_cbranch_scc1 {name}_end")
    SA, SB = 16, 32; P = 48; OA, OB = 56, 72
    Q16A, Q4A, Q16B, Q4B = 88, 92, 94, 98
    K16 = 100; K4 = [104, 106]; V1 = 108; V2 = 112; E = [116, 120]
    FR = 124; ACC = 172
    vL16, vKV, vK4a, vDma, vFo = 4, 5, 6, 7, 8
    vKVy, vK4y = 10, 11
    sDX, sNB, sCHK = 40, 41, 42
    A(f"v_lshlrev_b32 v{vL16}, 4, v2")
    A(f"s_mul_i32 s{sT}, s{sHF}, {4*CH}")
    A(f"v_add_u32 v{vKV}, s{sT}, v{vL16}")
    A("v_and_b32 v3, 31, v2")
    A(f"v_lshlrev_b32 v9, 3, v3")
    A(f"v_add_u32 v9, 1024, v9")
    A(f"v_add_u32 v{vK4a}, s{sT}, v9")
    A(f"v_add_u32 v{vKVy}, {CH}, v{vKV}")
    A(f"v_add_u32 v{vK4y}, {CH}, v{vK4a}")
    A(f"s_mov_b32 s{sDX}, {2*CH}")
    A(f"s_mov_b32 s{sNB}, {3*CH}")
    A(f"s_mov_b32 s{sCHK}, 3")
    A(f"v_mov_b32 v{vDma}, v{vL16}")
    A(f"v_mov_b32 v{vFo}, v{vL16}")
    A(f"s_mul_i32 s{sM0}, s{sG}, 3072")
    A(f"s_add_u32 s{sM0}, s{sM0}, s{sT}")
    A(f"s_mul_i32 s{sKV}, s{sHEAD}, {HS_KV}")
    A(f"s_mul_i32 s{sT2}, s{sHF}, {8*CH}")
    A(f"s_add_u32 s{sKV}, s{sKV}, s{sT2}")
    A(f"s_mul_i32 s{sT2}, s{sG}, 3072")
    A(f"s_add_u32 s{sKV}, s{sKV}, s{sT2}")
    A(f"s_add_u32 s{sKV}, s{sKV}, {KV}")
    A("s_mov_b32 s52, 0x30800000")
    A("s_mov_b32 s53, 0x58800000")
    vm = VmTrack()
    def dma_piece(chunk, i, emit, dyn=False):
        if emit:
            if i == 0:
                if dyn:
                    A(f"s_cmp_ge_u32 s{sCHK}, 8")
                    A(f"s_cselect_b32 s{sT}, 0x7fff0000, 0")
                    A(f"s_add_u32 m0, s{sM0}, s{sNB}")
                    A(f"v_or_b32 v{vDma}, s{sT}, v{vL16}")
                else:
                    A(f"s_add_u32 m0, s{sM0}, {(chunk & 3)*CH}")
                    A("s_nop 0")
            A(f"buffer_load_dwordx4 v{vDma}, {sr(SRD,4)}, s{sKV} offen offset:{i*1024}{LD1} lds")
            if i == 3:
                A(f"s_add_u32 s{sKV}, s{sKV}, {CH}")
                if dyn:
                    A(f"s_add_u32 s{sCHK}, s{sCHK}, 1")
                    A(f"s_add_u32 s{sNB}, s{sNB}, {CH}")
                    A(f"s_cmp_eq_u32 s{sNB}, {4*CH}")
                    A(f"s_cselect_b32 s{sNB}, 0, s{sNB}")
        vm.issue(("dma", chunk))
    def dma(chunk, emit):
        for i in range(4): dma_piece(chunk, i, emit)
    def fslot(s): return FR + (s & 1)*24
    def fload(s, which, imm, emit):
        b = fslot(s)
        if emit and not (asmlib.OPT.get("noffnload") and s >= 2):
            if which < 5:
                A(f"buffer_load_dwordx4 {vr(b+4*which,4)}, v{vFo}, {sr(SRD,4)}, s{sA0+which} offen offset:{imm}{LD1}")
            else:
                A(f"buffer_load_dwordx4 {vr(b+20,4)}, v{vFo}, {sr(SRD,4)}, s{sB0} offen offset:{imm}{LD1}")
        vm.issue(("f", s))
    EARLY = bool(env and env.get("early"))
    if EARLY:
        QS = 8*CH
        LF = env["LF"]
        A(f"s_cmp_lt_u32 s{sW}, 4")
        A(f"s_cbranch_scc1 {name}_gwait")
        env["sync_hook"]()
        A(f"s_mul_i32 s{sT}, s{sHEAD}, {HS_Q}")
        A(f"s_mul_i32 s{sT2}, s{sQT}, 1280")
        A(f"s_add_u32 s{sT}, s{sT}, s{sT2}")
        if QF: A(f"s_add_u32 s{sT}, s{sT}, {QF}")
        A(f"s_mul_i32 s{sT2}, s{sG}, 3072")
        A(f"s_add_u32 m0, s{sT2}, {QS}")
        A("s_nop 0")
        for i in range(3):
            A(f"buffer_load_dwordx4 v{vL16}, {sr(SRD,4)}, s{sT} offen offset:{i*1024}{LD1} lds")
            vm.issue(("q", 0))
        A(f"s_mul_i32 s{sT}, s{sHEAD}, {HS_KV}")
        A(f"s_add_u32 s{sT}, s{sT}, s{sT2}")
        A(f"s_add_u32 s{sT}, s{sT}, {KV}")
        for c in range(3):
            for hf in range(2):
                A(f"s_add_u32 s{sT3}, s{sT}, {(8*hf + c)*CH}")
                A(f"s_add_u32 m0, s{sT2}, {hf*4*CH + c*CH}")
                A("s_nop 0")
                for i in range(4):
                    A(f"buffer_load_dwordx4 v{vL16}, {sr(SRD,4)}, s{sT3} offen offset:{i*1024}{LD1} lds")
                    vm.issue(("dma", c))
        vm.wait("pro", [("dma", 0), ("q", 0)])
        A(f"s_waitcnt vmcnt({vm.need['pro']})")
        A.label(f"{name}_gwait")
        A(f"s_add_u32 s{sKV}, s{sKV}, {3*CH}")
    else:
        A(f"s_mul_i32 s{sT}, s{sHEAD}, {HS_Q}")
        A(f"s_mul_i32 s{sT2}, s{sQT}, 1280")
        A(f"s_add_u32 s{sT}, s{sT}, s{sT2}")
        if QF: A(f"s_add_u32 s{sT}, s{sT}, {QF}")
        A(f"buffer_load_dwordx4 {vr(Q16A,4)}, v{vL16}, {sr(SRD,4)}, s{sT} offen{LD1}")
        A(f"buffer_load_dwordx2 {vr(Q4A,2)}, v9, {sr(SRD,4)}, s{sT} offen{LD1}")
        A(f"buffer_load_dwordx4 {vr(Q16B,4)}, v{vL16}, {sr(SRD,4)}, s{sT} offen offset:1280{LD1}")
        A(f"buffer_load_dwordx2 {vr(Q4B,2)}, v9, {sr(SRD,4)}, s{sT} offen offset:1280{LD1}")
        for i in range(4): vm.issue(("q", 0))
        dma(0, True)
        A("s_barrier")
        dma(1, True)
    A(f"s_mul_i32 s{sT}, s{sW}, {12*1024}")
    A(f"s_mul_i32 s{sT2}, s{sCBK}, {5*96*1024}")
    A(f"s_add_u32 s{sT2}, s{sT2}, s{sT}")
    A(f"s_add_u32 s{sA0}, s{sT2}, {WDF}")
    for mt in range(1, 5): A(f"s_add_u32 s{sA0+mt}, s{sA0+mt-1}, {96*1024}")
    A(f"s_mul_i32 s{sT2}, s{sTT}, {96*1024}")
    A(f"s_add_u32 s{sT2}, s{sT2}, s{sT}")
    A(f"s_add_u32 s{sB0}, s{sT2}, {HF}")
    if not EARLY: dma(2, True)
    vG1, vG2 = 252, 253
    sWo = 32
    A(f"s_mul_i32 s{sT}, s{sW}, {5*1024}")
    A(f"s_mul_i32 s{sT2}, s{sCBK}, {5*40*1024}")
    A(f"s_add_u32 s{sT2}, s{sT2}, s{sT}")
    A(f"s_add_u32 s{sWo}, s{sT2}, {WOF}")
    for mt in range(1, 5): A(f"s_add_u32 s{sWo+mt}, s{sWo+mt-1}, {40*1024}")
    A("v_cmp_lt_u32 vcc, 31, v2")
    for r in list(range(OA, OA+32)) + list(range(P, P+8)) + list(range(V2, V2+4)) + list(range(E[0], E[0]+8)):
        A(f"v_mov_b32 v{r}, 0")
    if EARLY:
        A("s_barrier")
        A(f"s_mul_i32 s{sT}, s{sG}, 3072")
        A(f"s_add_u32 s{sT}, s{sT}, {QS}")
        A(f"v_add_u32 v12, s{sT}, v{vL16}")
        A(f"v_add_u32 v13, s{sT}, v9")
        A(f"ds_read_b128 {vr(Q16A,4)}, v12")
        A(f"ds_read_b64 {vr(Q4A,2)}, v13")
        A(f"ds_read_b128 {vr(Q16B,4)}, v12 offset:1280")
        A(f"ds_read_b64 {vr(Q4B,2)}, v13 offset:1280")
        A("s_waitcnt lgkmcnt(0)")
        for r in (Q4A, Q4A+1, Q4B, Q4B+1):
            A(f"v_cndmask_b32 v{r}, v{r}, v{P}, vcc")
    else:
        vm.wait("pro", [("dma", 0), ("q", 0)])
        A(f"s_waitcnt vmcnt({vm.need['pro']})")
        if TP == 5: stamp(A, 3)
        for r in (Q4A, Q4A+1, Q4B, Q4B+1):
            A(f"v_cndmask_b32 v{r}, v{r}, v{P}, vcc")
        A("s_barrier")
    def reg(t, k4): return ((vK4a if k4 else vKV) if (t & 7) < 4 else (vK4y if k4 else vKVy))
    def koff(t): return (t & 3)*1280
    def voff(t, f): return 5120 + (t & 3)*2048 + f*1024
    rdK16 = lambda t: f"ds_read_b128 {vr(K16,4)}, v{reg(t,0)} offset:{koff(t)}"
    rdK4 = lambda t: f"ds_read_b64 {vr(K4[t & 1],2)}, v{reg(t,1)} offset:{koff(t)}"
    rdV1 = lambda t: f"ds_read_b128 {vr(V1,4)}, v{reg(t,0)} offset:{voff(t,0)}"
    rdV2 = lambda t: f"ds_read_b128 {vr(V2,4)}, v{reg(t,0)} offset:{voff(t,1)}"
    mS1 = lambda d, q: f"v_mfma_f32_32x32x16_bf16 {vr(d,16)}, {vr(K16,4)}, {vr(q,4)}, 0"
    mS2 = lambda d, q, t: f"v_mfma_f32_32x32x8_bf16 {vr(d,16)}, {vr(K4[t & 1],2)}, {vr(q,2)}, {vr(d,16)}"
    mP1 = lambda o: f"v_mfma_f32_32x32x16_bf16 {vr(o,16)}, {vr(V1,4)}, {vr(P,4)}, {vr(o,16)}"
    mP2 = lambda o: f"v_mfma_f32_32x32x16_bf16 {vr(o,16)}, {vr(V2,4)}, {vr(P+4,4)}, {vr(o,16)}"
    A(rdK16(0)); A(rdK4(0)); A(rdV1(0))
    A("s_waitcnt lgkmcnt(0)")
    A(mS1(SA, Q16A))
    for r in range(ACC, ACC+40): A(f"v_mov_b32 v{r}, 0")
    A(mS2(SA, Q4A, 0))
    for r in range(ACC+40, ACC+80): A(f"v_mov_b32 v{r}, 0")
    A(f"s_mov_b32 s{sCNT}, 0")
    if not TP or TP == 7: stamp(A, 1)
    def valu(cur, q):
        e = E[q & 1]; pe = E[(q+1) & 1]; pp = P + 2*((q-1) & 3)
        return [f"v_cvt_pk_bf16_f32 v{pp}, v{pe}, v{pe+1}",
                f"v_exp_f32 v{e}, v{cur+4*q}", f"v_exp_f32 v{e+1}, v{cur+4*q+1}",
                f"v_cvt_pk_bf16_f32 v{pp+1}, v{pe+2}, v{pe+3}",
                f"v_exp_f32 v{e+2}, v{cur+4*q+2}", f"v_exp_f32 v{e+3}, v{cur+4*q+3}"]
    FSLOT = {}
    k = 0
    for u in range(2, 16):
        FSLOT[u] = [(5, k)]; k += 1
        if u in (4, 6, 8, 10, 12, 14): FSLOT[u].append((16, k)); k += 1
    assert k == 20
    def gate_loads(emit):
        if emit:
            A("v_lshlrev_b32 v14, 2, v3")
            A(f"s_add_u32 s{sT}, s{sQT}, s{sHF}")
            A(f"s_lshl_b32 s{sT}, s{sT}, 7")
            A(f"s_add_u32 s{sT}, s{sT}, {GG}")
            A(f"buffer_load_dword v{vG1}, v14, {sr(SRD,4)}, s{sT} offen{LD1}")
            A(f"s_lshl_b32 s{sT}, s{sTT}, 7")
            A(f"s_add_u32 s{sT}, s{sT}, {GG}")
            A(f"buffer_load_dword v{vG2}, v14, {sr(SRD,4)}, s{sT} offen{LD1}")
        vm.issue(("g", 0)); vm.issue(("g", 0))
    def body(kind, it, emit):
        def E_(s):
            if emit: A(s)
        for u in range(16):
            t = u >> 1
            gt = it*8 + t
            ev = (u & 1) == 0
            if ev and (t & 3) == 3:
                c = gt >> 2
                wid = ("bar", kind, u)
                vm.wait(wid, [("dma", c+1)])
                E_(f"s_waitcnt vmcnt(@{wid}@)")
                if kind == 0 and u == 14 and emit and TP == 6: stamp(A, 1)
                if kind == 0 and u == 14 and emit and gate_hook: gate_hook()
                if kind == 0 and u == 6 and emit and env and env.get("pre_b"): env["pre_b"]()
                E_("s_barrier")
                if kind == 0 and u == 6 and emit and env and env.get("post_b"): env["post_b"]()
                if kind == 0 and u == 14 and emit and TP == 6: stamp(A, 2)
            if kind == 0 and u == 11 and emit and env and env.get("gate_issue"): env["gate_issue"]()
            if u == 8:
                E_(f"v_add_u32 v{vKV}, s{sDX}, v{vKV}")
                E_(f"v_add_u32 v{vK4a}, s{sDX}, v{vK4a}")
            if u == 15:
                E_(f"v_add_u32 v{vKVy}, s{sDX}, v{vKVy}")
                E_(f"v_add_u32 v{vK4y}, s{sDX}, v{vK4y}")
            def ffn(k):
                fs, fmt = divmod(k, 5)
                gs = (it-1)*4 + fs
                b = fslot(fs)
                if k == 10:
                    E_(f"s_cmp_eq_u32 s{sCNT}, 2")
                    E_(f"s_cbranch_scc0 {name}_nowo")
                    for mt in range(5): E_(f"s_mov_b32 s{sA0+mt}, s{sWo+mt}")
                    E_(f"s_add_u32 s{sB0}, s{sWo}, 2048")
                    E_(f"v_mov_b32 v{vFo}, v{vL16}")
                    if emit: A.label(f"{name}_nowo")
                if fmt == 0:
                    wid = ("f", k)
                    vm.wait(wid, [("f", gs)])
                    E_(f"s_waitcnt vmcnt(@{wid}@)")
                d = vr(ACC+16*fmt,16)
                E_(f"v_mfma_f32_32x32x16_bf16 {d}, {vr(b+4*fmt,4)}, {vr(b+20,4)}, {d}")
                imm = (fs & 1)*1024
                fload(gs+2, fmt, imm, emit)
                if fmt == 4:
                    fload(gs+2, 5, imm, emit)
                    if fs & 1:
                        E_(f"v_add_u32 v{vFo}, 2048, v{vFo}")
            cur = SA if ev else SB
            vv = valu(cur, 0) + valu(cur, 1) + valu(cur, 2) + valu(cur, 3)
            if ev:
                m = {"S1": [mS1(SB, Q16B), rdK16(t+1), rdK4(t+1)],
                     "P2": [mP2(OB), rdV2(t)],
                     "S2": [mS2(SB, Q4B, t)],
                     "P1": ["s_waitcnt lgkmcnt(3)", mP1(OA)]}
            else:
                m = {"S1": ["s_waitcnt lgkmcnt(0)", mS1(SA, Q16A)],
                     "P2": [mP2(OA)],
                     "S2": [mS2(SA, Q4A, t+1)],
                     "P1": [mP1(OB), rdV1(t+1)]}
            fsl = dict(FSLOT.get(u, [])) if kind == 1 else {}
            if len(fsl) == 2:   pos = {0: "S1", 8: "P2", 12: "S2", 20: "P1"}; fsl = {4: fsl[5], 16: fsl[16]}
            elif len(fsl) == 1: pos = {0: "S1", 10: "P2", 14: "S2", 19: "P1"}
            else:               pos = {0: "S1", 6: "P2", 12: "S2", 18: "P1"}
            dpos = {}
            if (t & 3) == 3: dpos = {3: 0, 17: 1} if ev else {3: 2, 17: 3}
            xl = {}
            if kind == 0 and u == 14: xl = {8: [("g",)], 10: [(0,5)], 12: [(0,0)], 14: [(0,1)], 20: [(0,2)], 22: [(0,3)]}
            if kind == 0 and u == 15: xl = {1: [(0,4)], 5: [(1,5)], 8: [(1,0)], 10: [(1,1)], 14: [(1,2)], 20: [(1,3)], 22: [(1,4)]}
            for i, l in enumerate(vv):
                if i in dpos:
                    dma_piece((gt >> 2) + 3, dpos[i], emit, dyn=True)
                if i in xl:
                    for x in xl[i]:
                        if x[0] == "g": gate_loads(emit)
                        else: fload(x[0], x[1], x[0]*1024, emit)
                if i in fsl: ffn(fsl[i])
                if i in pos:
                    for x in m[pos[i]]: E_(x)
                E_(l)
            if kind == 0 and u == 15: E_(f"v_add_u32 v{vFo}, 2048, v{vFo}")
        E_(f"s_sub_u32 s{sDX}, 0, s{sDX}")
    gate_hook = env.get("gate_hook") if env else None
    pre = list(vm.seq)
    body(0, 0, False)
    for it in (1, 2, 3): body(1, it, False)
    need = dict(vm.need)
    def emit_body(kind, it):
        start = len(A.lines)
        sv = (list(vm.seq), dict(vm.need))
        body(kind, it, True)
        vm.seq, vm.need = sv
        for i in range(start, len(A.lines)):
            l = A.lines[i]
            if "@" in l:
                key = eval(l.split("@")[1])
                A.lines[i] = l.split("@")[0] + str(need[key]) + l.split("@")[2]
    emit_body(0, 0)
    if TP == 7: stamp(A, 2)
    A(f"s_mov_b32 s{sCNT}, 0")
    A(".p2align 6")
    A.label(f"{name}_aloop")
    emit_body(1, 1)
    A(f"s_add_u32 s{sCNT}, s{sCNT}, 1")
    A(f"s_cmp_lt_u32 s{sCNT}, 3")
    A(f"s_cbranch_scc1 {name}_aloop")
    A("s_setprio 0")
    A(f"v_cvt_pk_bf16_f32 v{P+6}, v{E[1]}, v{E[1]+1}")
    A(f"v_cvt_pk_bf16_f32 v{P+7}, v{E[1]+2}, v{E[1]+3}")
    A("s_waitcnt lgkmcnt(0)")
    A("s_nop 1")
    A(mP2(OB))
    if TP == 7: stamp(A, 3)
    if TP not in (4, 5, 6, 7): stamp(A, 0 if TP else 2)
    def wo_reg(st, mt):
        if st == 0: return FR + 4*mt
        if st == 1: return FR + 24 + 4*mt
        if mt == 0 and st == 2: return FR + 20
        if mt == 0 and st == 3: return FR + 44
        rest = [(2,1),(2,2),(2,3),(2,4),(3,1),(3,2),(3,3),(3,4),(4,0),(4,1),(4,2),(4,3),(4,4)]
        i = rest.index((st, mt))
        return 16 + 4*i if i < 10 else 88 + 4*(i-10)
    BFR = 100
    CATT, RA, RB = 8*CH, 0, 65536
    vWr, vRd, vC1, vC2 = 9, 10, 11, 12
    A(f"s_mul_i32 s{sT}, s{sW}, 3072")
    A(f"s_add_u32 s{sT}, s{sT}, {CATT}")
    A(f"v_add_u32 v{vC1}, s{sT}, v{vL16}")
    A(f"s_xor_b32 s{sT2}, s{sW}, 4")
    A(f"s_mul_i32 s{sT2}, s{sT2}, 3072")
    A(f"s_add_u32 s{sT2}, s{sT2}, {CATT}")
    A(f"v_add_u32 v{vC2}, s{sT2}, v{vL16}")
    A("s_nop 7")
    A(f"s_cmp_eq_u32 s{sHF}, 0")
    A(f"s_cbranch_scc0 {name}_cmb1")
    A("s_nop 3")
    for j in range(3): A(f"ds_write_b128 v{vC1}, {vr(OB+4*j,4)} offset:{j*1024}")
    A(f"s_branch {name}_cmb2")
    A.label(f"{name}_cmb1")
    for j in range(3): A(f"ds_write_b128 v{vC1}, {vr(OA+4*j,4)} offset:{j*1024}")
    A("s_nop 1")
    for j in range(12): A(f"v_mov_b32 v{OA+j}, v{OB+j}")
    A.label(f"{name}_cmb2")
    A("s_waitcnt lgkmcnt(0)")
    A("s_barrier")
    for j in range(3): A(f"ds_read_b128 {vr(OB+4*j,4)}, v{vC2} offset:{j*1024}")
    A("s_waitcnt lgkmcnt(0)")
    O = OA
    for j in range(12): A(f"v_add_f32 v{O+j}, v{O+j}, v{OB+j}")
    vLs, vR = OB, OB+1
    def rowsum():
        A(f"v_mov_b32 v{vLs}, v{O+8}")
        A(f"v_mov_b32 v{vR}, v{O+8}")
        A("s_nop 1")
        A(f"v_permlane32_swap_b32 v{vLs}, v{vR}")
        A("s_nop 1")
    rowsum()
    A(f"v_mov_b32 v{OB+2}, 0")
    for r in range(12): A(f"v_fma_f32 v{OB+2}, v{O+r}, 0, v{OB+2}")
    A(f"v_cmp_o_f32 vcc, v{OB+2}, v{OB+2}")
    A(f"v_cmp_le_f32 s[50:51], s52, v{vR}")
    A(f"v_cmp_ge_f32 s[54:55], s53, v{vR}")
    A("s_nop 3")
    A("s_and_b64 vcc, vcc, s[50:51]")
    A("s_and_b64 vcc, vcc, s[54:55]")
    A("s_cmp_eq_u64 vcc, -1")
    A(f"s_cbranch_scc1 {name}_fastok")
    FS, FP, FK16, FK4, FV1, FV2, FM, FA, FT = 16, 48, 100, 104, 108, 112, 116, 117, 118
    FQ16, FQ4 = 32, 36
    A(f"s_cmp_eq_u32 s{sHF}, 0")
    A(f"s_cbranch_scc0 {name}_fb_b")
    for j in range(4): A(f"v_mov_b32 v{FQ16+j}, v{Q16A+j}")
    for j in range(2): A(f"v_mov_b32 v{FQ4+j}, v{Q4A+j}")
    A(f"s_branch {name}_fb_go")
    A.label(f"{name}_fb_b")
    for j in range(4): A(f"v_mov_b32 v{FQ16+j}, v{Q16B+j}")
    for j in range(2): A(f"v_mov_b32 v{FQ4+j}, v{Q4B+j}")
    A.label(f"{name}_fb_go")
    for r in range(16): A(f"v_mov_b32 v{O+r}, 0")
    A(f"v_mov_b32 v{FM}, 0xff7fffff")
    A("v_and_b32 v3, 31, v2")
    A("v_lshlrev_b32 v14, 3, v3")
    A("v_add_u32 v14, 1024, v14")
    A(f"s_mul_i32 s56, s{sHEAD}, {HS_KV}")
    A(f"s_add_u32 s56, s56, {KV}")
    A("s_mov_b32 s57, 0")
    A.label(f"{name}_fb_loop")
    A("s_lshr_b32 s58, s57, 2")
    A(f"s_mul_i32 s58, s58, {CH}")
    A("s_add_u32 s58, s58, s56")
    A("s_and_b32 s59, s57, 3")
    A("s_mul_i32 s60, s59, 1280")
    A("s_add_u32 s60, s60, s58")
    A("s_lshl_b32 s59, s59, 11")
    A("s_add_u32 s59, s59, s58")
    A("s_add_u32 s59, s59, 5120")
    A(f"buffer_load_dwordx4 {vr(FK16,4)}, v{vL16}, {sr(SRD,4)}, s60 offen{LD1}")
    A(f"buffer_load_dwordx2 {vr(FK4,2)}, v14, {sr(SRD,4)}, s60 offen{LD1}")
    A(f"buffer_load_dwordx4 {vr(FV1,4)}, v{vL16}, {sr(SRD,4)}, s59 offen{LD1}")
    A(f"buffer_load_dwordx4 {vr(FV2,4)}, v{vL16}, {sr(SRD,4)}, s59 offen offset:1024{LD1}")
    A("s_waitcnt vmcnt(0)")
    A(f"v_mfma_f32_32x32x16_bf16 {vr(FS,16)}, {vr(FK16,4)}, {vr(FQ16,4)}, 0")
    A("s_nop 15")
    A(f"v_mfma_f32_32x32x8_bf16 {vr(FS,16)}, {vr(FK4,2)}, {vr(FQ4,2)}, {vr(FS,16)}")
    A("s_nop 15")
    A(f"v_max3_f32 v{FT}, v{FS}, v{FS+1}, v{FS+2}")
    for j in range(3, 15, 2): A(f"v_max3_f32 v{FT}, v{FT}, v{FS+j}, v{FS+j+1}")
    A(f"v_max_f32 v{FT}, v{FT}, v{FS+15}")
    A(f"v_mov_b32 v{FT+1}, v{FT}")
    A("s_nop 1")
    A(f"v_permlane32_swap_b32 v{FT}, v{FT+1}")
    A("s_nop 1")
    A(f"v_max3_f32 v{FT}, v{FT}, v{FT+1}, v{FM}")
    A(f"v_sub_f32 v{FA}, v{FM}, v{FT}")
    A(f"v_exp_f32 v{FA}, v{FA}")
    A(f"v_mov_b32 v{FM}, v{FT}")
    for j in range(16): A(f"v_sub_f32 v{FS+j}, v{FS+j}, v{FM}")
    for j in range(16): A(f"v_exp_f32 v{FS+j}, v{FS+j}")
    A("s_nop 0")
    for j in range(8): A(f"v_cvt_pk_bf16_f32 v{FP+j}, v{FS+2*j}, v{FS+2*j+1}")
    for j in range(16): A(f"v_mul_f32 v{O+j}, v{O+j}, v{FA}")
    A("s_nop 1")
    A(f"v_mfma_f32_32x32x16_bf16 {vr(O,16)}, {vr(FV1,4)}, {vr(FP,4)}, {vr(O,16)}")
    A(f"v_mfma_f32_32x32x16_bf16 {vr(O,16)}, {vr(FV2,4)}, {vr(FP+4,4)}, {vr(O,16)}")
    A("s_nop 15")
    A("s_add_u32 s57, s57, 1")
    A("s_cmp_lt_u32 s57, 64")
    A(f"s_cbranch_scc1 {name}_fb_loop")
    rowsum()
    A.label(f"{name}_fastok")
    A(f"v_rcp_f32 v{vR}, v{vR}")
    A("s_nop 0")
    A(f"v_mul_f32 v{vR}, v{vR}, v{vG1}")
    for r in range(12): A(f"v_mul_f32 v{O+r}, v{O+r}, v{vR}")
    OP = OB + 4
    for j in range(6): A(f"v_cvt_pk_bf16_f32 v{OP+j}, v{O+2*j}, v{O+2*j+1}")
    A(f"s_add_u32 s{sT}, s{sQT}, s{sHF}")
    A(f"s_mul_i32 s{sT}, s{sT}, 40960")
    A(f"s_add_u32 s{sT}, s{sT}, {OF}")
    A(f"s_lshl_b32 s{sT2}, s{sHEAD}, 10")
    A(f"s_add_u32 s{sT2}, s{sT2}, s{sT}")
    A(f"buffer_store_dwordx4 {vr(OP,4)}, v{vL16}, {sr(SRD,4)}, s{sT2} offen sc1")
    A(f"s_lshr_b32 s{sT2}, s{sHEAD}, 2")
    A(f"s_add_u32 s{sT2}, s{sT2}, 32")
    A(f"s_lshl_b32 s{sT2}, s{sT2}, 10")
    A(f"s_add_u32 s{sT}, s{sT}, s{sT2}")
    A(f"s_bfe_u32 s{sT2}, s{sHEAD}, 0x10001")
    A(f"s_lshl_b32 s{sT2}, s{sT2}, 9")
    A(f"s_add_u32 s{sT}, s{sT}, s{sT2}")
    A(f"s_and_b32 s{sT2}, s{sHEAD}, 1")
    A(f"s_lshl_b32 s{sT2}, s{sT2}, 3")
    A(f"s_add_u32 s{sT}, s{sT}, s{sT2}")
    A("s_mov_b32 exec_hi, 0")
    A(f"buffer_store_dwordx2 {vr(OP+4,2)}, v{vL16}, {sr(SRD,4)}, s{sT} offen sc1")
    A("s_mov_b64 exec, -1")
    if TP == 1: stamp(A, 1)
    sOF = 37
    A(f"s_mul_i32 s{sOF}, s{sTT}, 40960")
    A(f"s_mul_i32 s{sT2}, s{sW}, {5*1024}")
    A(f"s_add_u32 s{sOF}, s{sOF}, s{sT2}")
    A(f"s_add_u32 s{sOF}, s{sOF}, {OF}")
    A(f"v_add_u32 v15, 4096, v{vL16}")
    def ofloads():
        for st in range(5):
            if st < 4:
                A(f"buffer_load_dwordx4 {vr(BFR+4*st,4)}, v{vL16}, {sr(SRD,4)}, s{sOF} offen offset:{st*1024} sc1")
            else:
                A(f"buffer_load_dwordx4 {vr(BFR+4*st,4)}, v15, {sr(SRD,4)}, s{sOF} offen sc1")
    def ofcheck():
        A(f"v_max3_u32 v14, v{BFR}, v{BFR+1}, v{BFR+2}")
        for j in range(3, 19, 2):
            A(f"v_max3_u32 v14, v14, v{BFR+j}, v{BFR+j+1}")
        A(f"v_max_u32 v14, v14, v{BFR+19}")
        A("v_cmp_eq_u32 vcc, -1, v14")
    A(f"v_sub_f32 v{vG2}, 1.0, v{vG2}")
    k = 0
    for st in range(2, 5):
        for mt in range(5):
            if st < 4 and mt == 0: continue
            if st < 4:
                A(f"buffer_load_dwordx4 {vr(wo_reg(st,mt),4)}, v{vL16}, {sr(SRD,4)}, s{sWo+mt} offen offset:{st*1024}{LD1}")
            else:
                A(f"buffer_load_dwordx4 {vr(wo_reg(st,mt),4)}, v15, {sr(SRD,4)}, s{sWo+mt} offen{LD1}")
            for r in range(ACC+k, min(ACC+k+7, ACC+80)): A(f"v_mul_f32 v{r}, v{r}, v{vG2}")
            k = min(k+7, 80)
    assert k == 80
    A(f"s_mov_b32 s{sT2}, 0")
    A.label(f"{name}_poll")
    ofloads()
    A("s_waitcnt vmcnt(0)")
    ofcheck()
    A(f"s_add_u32 s{sT2}, s{sT2}, 1")
    A("s_nop 1")
    A(f"s_cbranch_vccz {name}_polldone")
    if asmlib.OPT.get("oslp"): A(f"s_sleep {asmlib.OPT.get('oslp')}")
    A(f"s_cmp_lt_u32 s{sT2}, 0x40000")
    A(f"s_cbranch_scc1 {name}_poll")
    A.label(f"{name}_polldone")
    if TP == 1: stamp(A, 2)
    if TP == 4: stamp(A, 0)
    for st in range(5):
        for mt in range(5):
            d = vr(ACC+16*mt,16)
            A(f"v_mfma_f32_32x32x16_bf16 {d}, {vr(wo_reg(st,mt),4)}, {vr(BFR+4*st,4)}, {d}")
    RB2 = 65536
    if TP == 4: stamp(A, 1)
    PK = 16
    A("s_nop 15")
    G4 = 56
    for mt in (0, 1, 2, 3, 4):
        for q in range(4):
            a = ACC + 16*mt + 4*q
            d = PK + 32 + 2*q if mt == 4 else G4 + 4*((mt & 1)*4 + q) + 2*(mt >> 1)
            A(f"v_cvt_pk_bf16_f32 v{d}, v{a}, v{a+1}")
            A(f"v_cvt_pk_bf16_f32 v{d+1}, v{a+2}, v{a+3}")
    A(f"s_lshl_b32 s{sT}, s{sW}, 13")
    A(f"v_add_u32 v{vWr}, s{sT}, v{vL16}")
    A(f"s_lshl_b32 s{sT}, s{sW}, 11")
    A(f"s_add_u32 s{sT}, s{sT}, {RB2}")
    A("v_lshlrev_b32 v13, 3, v2")
    A(f"v_add_u32 v14, s{sT}, v13")
    for d in range(8):
        A(f"ds_write_b128 v{vWr}, {vr(G4+4*d,4)} offset:{d*1024}")
    for q in range(4):
        A(f"ds_write_b64 v14, {vr(PK+32+2*q,2)} offset:{q*512}")
    A(f"s_lshl_b32 s{sT}, s{sW}, 10")
    A(f"v_add_u32 v{vRd}, s{sT}, v{vL16}")
    A(f"s_lshl_b32 s{sT}, s{sG}, 9")
    A(f"s_add_u32 s{sT}, s{sT}, {RB2}")
    A(f"v_add_u32 v14, s{sT}, v13")
    A("v_mov_b32 v12, 0x3f80")
    A("v_mov_b32 v11, 0x3f800000")
    SUMA, SUMB, SUMC = 56, 60, 64
    A("s_waitcnt lgkmcnt(0)")
    A("s_barrier")
    if TP == 4: stamp(A, 2)
    T0 = 16
    for s_ in range(8):
        A(f"ds_read_b128 {vr(T0+4*s_,4)}, v{vRd} offset:{s_*8192}")
    for s_ in range(8):
        A(f"ds_read_b64 {vr(88+2*s_,2)}, v14 offset:{s_*2048}")
    for r in range(SUMA, SUMA+12): A(f"v_mov_b32 v{r}, 0")
    for s_ in range(8):
        A(f"s_waitcnt lgkmcnt({min(15, 7-s_+8)})")
        for j in range(2):
            A(f"v_dot2_f32_bf16 v{SUMA+2*j}, v{T0+4*s_+j}, v12, v{SUMA+2*j}")
            A(f"v_dot2_f32_bf16 v{SUMA+2*j+1}, v{T0+4*s_+j}, v11, v{SUMA+2*j+1}")
            A(f"v_dot2_f32_bf16 v{SUMB+2*j}, v{T0+4*s_+2+j}, v12, v{SUMB+2*j}")
            A(f"v_dot2_f32_bf16 v{SUMB+2*j+1}, v{T0+4*s_+2+j}, v11, v{SUMB+2*j+1}")
    A("s_waitcnt lgkmcnt(0)")
    for s_ in range(8):
        for j in range(2):
            A(f"v_dot2_f32_bf16 v{SUMC+2*j}, v{88+2*s_+j}, v12, v{SUMC+2*j}")
            A(f"v_dot2_f32_bf16 v{SUMC+2*j+1}, v{88+2*s_+j}, v11, v{SUMC+2*j+1}")
    SRD_O = 44; sOUT = 48
    OSC = ' sc1' if asmlib.OPT.get('osc1') else (' nt' if asmlib.OPT.get('ont') else '')
    A("v_and_b32 v3, 31, v2")
    A(f"s_lshl_b32 s{sT}, s{sTT}, 5")
    A(f"v_add_u32 v3, s{sT}, v3")
    A("v_mul_u32_u24 v3, 1280, v3")
    A("v_lshrrev_b32 v14, 5, v2")
    A("v_lshl_add_u32 v3, v14, 3, v3")
    A(f"s_mul_i32 s{sT}, s{sCBK}, 320")
    A(f"s_lshl_b32 s{sT2}, s{sG}, 4")
    A(f"s_add_u32 s{sT}, s{sT}, s{sT2}")
    A(f"s_lshl_b32 s{sT2}, s{sHF}, 6")
    A(f"s_add_u32 s{sT2}, s{sT2}, s{sT}")
    A(f"s_mov_b32 s{SRD_O}, s{sOUT}")
    A(f"s_and_b32 s{SRD_O+1}, s{sOUT+1}, 0xffff")
    A(f"s_mov_b32 s{SRD_O+2}, {2048*1280}")
    A(f"s_mov_b32 s{SRD_O+3}, 0x20000")
    A("s_nop 3")
    for src, d in ((SUMA, 68), (SUMB, 70)):
        A(f"v_cvt_pk_bf16_f32 v{d}, v{src}, v{src+1}")
        A(f"v_cvt_pk_bf16_f32 v{d+1}, v{src+2}, v{src+3}")
    A(f"buffer_store_dwordx2 v[68:69], v3, {sr(SRD_O,4)}, s{sT2} offen{OSC}")
    A(f"buffer_store_dwordx2 v[70:71], v3, {sr(SRD_O,4)}, s{sT2} offen offset:128{OSC}")
    A(f"s_cmp_eq_u32 s{sHF}, 0")
    A(f"s_cbranch_scc0 {name}_fin")
    A(f"v_cvt_pk_bf16_f32 v72, v{SUMC}, v{SUMC+1}")
    A(f"v_cvt_pk_bf16_f32 v73, v{SUMC+2}, v{SUMC+3}")
    A(f"buffer_store_dwordx2 v[72:73], v3, {sr(SRD_O,4)}, s{sT} offen offset:256{OSC}")
    A.label(f"{name}_fin")
    if asmlib.PROFILE:
        A("s_waitcnt vmcnt(0)")
        if TP not in (5, 7): stamp(A, 3)
        stamp_flush(A, 1, SRD, sW, 4)
    A.label(f"{name}_end")
    A("s_endpgm")
    return 256
```

```python
from asmlib import *
import asmlib
from layout import *

STAGE = 53376
WOFF = 32768
UOFF = 10368
K1_LDS = 3*STAGE + 2048

def gen_k1(A, name, fused=False):
    SC1 = ' sc1' if ((fused and not asmlib.OPT.get('wbl2')) or not asmlib.OPT.get('k1plain')) else (' nt' if asmlib.OPT.get('k1nt') else '')
    import math, struct
    c0 = -2.0*math.sqrt(2.0/math.pi)*math.log2(math.e)
    c1 = c0*0.044715
    def f2u(f): return struct.unpack("<I", struct.pack("<f", f))[0]
    kernel_header(A, name)
    sX, sWQ, sWO, sWG, sWU, sWD, sGW, sWS = 4, 6, 8, 12, 14, 16, 18, 48
    sRB, sCB, sW, sT = 20, 21, 22, 23
    sT2, sT3 = 24, 25
    sRS = 26
    sCG, sCU = 27, 28
    sTYPE = 29
    sNU = 30
    sU0 = 31
    SRD_X, SRD_W, SRD_WS = 32, 36, 40
    sBUF = 44; sXO = 45; sWO_ = 46; sCNT = 47
    sHM = 48
    sH = 52
    sSC = 60
    sDP, sDN = 84, 85
    A("s_cmp_ge_u32 s2, 256")
    A(f"s_cbranch_scc1 {name}_end")
    stamp(A, 0)
    A("s_load_dwordx8 s[4:11], s[0:1], 0")
    A("s_load_dwordx8 s[12:19], s[0:1], 32")
    A(f"s_load_dwordx2 {sr(sWS,2)}, s[0:1], {KA_WS}")
    A.c("decode: xcd = id&7, j = id>>3; rb = 4*(xcd&1) + (j&3); cb = 8*(xcd>>1) + (j>>2)")
    A(f"s_and_b32 s{sT}, s2, 1")
    A(f"s_lshl_b32 s{sT}, s{sT}, 2")
    A(f"s_lshr_b32 s{sT2}, s2, 3")
    A(f"s_and_b32 s{sT3}, s{sT2}, 3")
    A(f"s_add_u32 s{sRB}, s{sT}, s{sT3}")
    F6 = asmlib.OPT.get("ffn6")
    if F6:
        A.c("XCD pair p: c = j>>2: 0,1,2 -> Q_p, K_p, V_p; 3..6 -> FFN column block 4p+c-3 (96+96 columns); 7 -> side jobs only")
        A(f"s_bfe_u32 s{sT}, s2, 0x20001")
        A(f"s_lshr_b32 s{sT2}, s{sT2}, 2")
        A(f"s_lshl_b32 s{sT3}, s{sT2}, 2")
        A(f"s_add_u32 s{sCB}, s{sT3}, s{sT}")
        A(f"s_mov_b32 s{sTYPE}, s{sT2}")
        A(f"s_cmp_ge_u32 s{sT2}, 3")
        A(f"s_cbranch_scc0 {name}_dec_done")
        A(f"s_lshl_b32 s{sT3}, s{sT}, 2")
        A(f"s_add_u32 s{sCB}, s{sT3}, s{sT2}")
        A(f"s_sub_u32 s{sCB}, s{sCB}, 3")
        A(f"s_cmp_eq_u32 s{sT2}, 7")
        A(f"s_cselect_b32 s{sTYPE}, 4, 3")
        A.label(f"{name}_dec_done")
    else:
        if not asmlib.OPT.get("map1"):
            A.c("XCD pair p produces Q_p, K_p, V_p (the heads its attention workgroups consume) and five FFN column blocks")
            A(f"s_bfe_u32 s{sT}, s2, 0x20001")
            A(f"s_lshr_b32 s{sT2}, s{sT2}, 2")
            A(f"s_lshl_b32 s{sT3}, s{sT2}, 2")
            A(f"s_add_u32 s{sCB}, s{sT3}, s{sT}")
            A(f"s_mul_i32 s{sT3}, s{sT}, 5")
            A(f"s_add_u32 s{sT3}, s{sT3}, s{sT2}")
            A(f"s_add_u32 s{sT3}, s{sT3}, 9")
            A(f"s_cmp_ge_u32 s{sT2}, 3")
            A(f"s_cselect_b32 s{sCB}, s{sT3}, s{sCB}")
        else:
            A(f"s_and_b32 s{sT}, s2, 6")
            if not asmlib.OPT.get("oldmap"):
                A.c("column-block groups in reverse XCD order: the blocks with the longer epilogue (FFN) go to the workgroups that start first")
                A(f"s_sub_u32 s{sT}, 6, s{sT}")
            A(f"s_lshl_b32 s{sT}, s{sT}, 2")
            A(f"s_lshr_b32 s{sT2}, s{sT2}, 2")
            A(f"s_add_u32 s{sCB}, s{sT}, s{sT2}")
    A("v_lshrrev_b32 v1, 6, v0")
    A("v_and_b32 v2, 63, v0")
    A(f"v_readfirstlane_b32 s{sW}, v1")
    if F6:
        A(f"s_movk_i32 s{sRS}, 3840")
        A(f"s_mul_i32 s{sCG}, s{sCB}, 160")
        A(f"s_add_u32 s{sCU}, s{sCG}, 80")
    else:
        A.c("block params")
        A(f"s_cmp_ge_u32 s{sCB}, 12")
        A(f"s_cbranch_scc1 {name}_ffn_params")
        A(f"s_movk_i32 s{sRS}, 3840")
        A(f"s_mul_i32 s{sCG}, s{sCB}, 160")
        A(f"s_add_u32 s{sCU}, s{sCG}, 80")
        A(f"s_lshr_b32 s{sTYPE}, s{sCB}, 2")
        A(f"s_mov_b32 s{sNU}, 5")
        A(f"s_mov_b32 s{sU0}, 0")
        A(f"s_branch {name}_params_done")
        A.label(f"{name}_ffn_params")
        A(f"s_movk_i32 s{sRS}, 3072")
        A(f"s_sub_u32 s{sT}, s{sCB}, 12")
        A(f"s_mul_i32 s{sU0}, s{sT}, 5")
        A(f"s_mov_b32 s{sNU}, 5")
        A(f"s_cmp_lt_u32 s{sT}, 16")
        A(f"s_cbranch_scc1 {name}_ffn_p2")
        A(f"s_lshl_b32 s{sU0}, s{sT}, 2")
        A(f"s_add_u32 s{sU0}, s{sU0}, 16")
        A(f"s_mov_b32 s{sNU}, 4")
        A.label(f"{name}_ffn_p2")
        A(f"s_lshl_b32 s{sCG}, s{sU0}, 4")
        A(f"s_mov_b32 s{sCU}, s{sCG}")
        A(f"s_mov_b32 s{sTYPE}, 3")
        A.label(f"{name}_params_done")
    SP = asmlib.OPT.get("startprof")
    def srd_ws():
        A(f"s_mov_b32 s{SRD_WS}, s{sWS}")
        A(f"s_and_b32 s{SRD_WS+1}, s{sWS+1}, 0xffff")
        A(f"s_mov_b32 s{SRD_WS+2}, {WS_SIZE}")
        A(f"s_mov_b32 s{SRD_WS+3}, 0x20000")
    def srd_x():
        A(f"s_mov_b32 s{SRD_X}, s{sX}")
        A(f"s_and_b32 s{SRD_X+1}, s{sX+1}, 0xffff")
        A(f"s_mov_b32 s{SRD_X+2}, {2048*1280}")
        A(f"s_mov_b32 s{SRD_X+3}, 0x20000")
    def x_voffsets(vXO):
        A("v_lshrrev_b32 v3, 3, v2")
        A("v_lshrrev_b32 v4, 4, v2")
        A("v_and_b32 v5, 7, v2")
        A("v_xor_b32 v5, v5, v4")
        A("v_xor_b32 v6, 4, v5")
        A(f"s_lshl_b32 s{sT}, s{sW}, 6")
        A(f"v_add_u32 v3, s{sT}, v3")
        A("v_mul_u32_u24 v3, 1280, v3")
        A("v_lshl_add_u32 v5, v5, 4, v3")
        A("v_lshl_add_u32 v6, v6, 4, v3")
        for j in range(8):
            A(f"v_add_u32 v{vXO+j}, {j*10240}, v{5 if j % 2 == 0 else 6}")
    A(f"s_cmp_ge_u32 s{sW}, 4")
    A(f"s_cbranch_scc1 {name}_loader")

    if F6:
        A(f"s_cmp_eq_u32 s{sTYPE}, 4")
        A(f"s_cbranch_scc1 {name}_idlec")
        A(f"s_cmp_eq_u32 s{sTYPE}, 3")
        A(f"s_cbranch_scc1 {name}_f6c")
    ACC = 96
    def acc(tt, mt): return ACC + (tt*5 + mt)*16
    FA = [8, 36]
    FB = [28, 56]
    vXA = 64
    vWA = 68
    vWA2 = 69
    A.c("compute waves fetch the x rows of stages 0 and 1 themselves (the loaders fetch the weights)")
    x_voffsets(70)
    A(f"s_mul_i32 s{sXO}, s{sRB}, {256*1280}")
    A(f"s_lshl_b32 s{sT2}, s{sW}, 13")
    A("s_waitcnt lgkmcnt(0)")
    srd_x()
    srd_ws()
    for st in range(2):
        for j in range(8):
            A(f"s_add_u32 m0, s{sT2}, {st*STAGE + j*1024}")
            A("s_nop 0")
            A(f"buffer_load_dwordx4 v{70+j}, {sr(SRD_X,4)}, s{sXO} offen lds")
        A(f"s_add_u32 s{sXO}, s{sXO}, 128")
    if asmlib.OPT.get("wtouch"):
        A.c("touch the pages this wave will store to at the end (translation warm-up)")
        A(f"s_lshl_b32 s{sT2}, s{sRB}, 3")
        A(f"s_lshl_b32 s{sT3}, s{sW}, 1")
        A(f"s_add_u32 s{sT2}, s{sT2}, s{sT3}")
        A(f"s_cmp_eq_u32 s{sTYPE}, 3")
        A(f"s_cbranch_scc1 {name}_wt_f")
        A(f"s_and_b32 s{sT}, s{sCB}, 3")
        A(f"s_lshl_b32 s{sT}, s{sT}, 3")
        A("v_and_b32 v3, 7, v2")
        A(f"v_add_u32 v3, s{sT}, v3")
        A(f"s_cmp_eq_u32 s{sTYPE}, 0")
        A(f"s_mov_b32 s{sT}, {HS_KV}")
        A(f"s_mov_b32 s{sT3}, {HS_Q}")
        A(f"s_cselect_b32 s{sT}, s{sT3}, s{sT}")
        A(f"v_mul_lo_u32 v3, v3, s{sT}")
        A(f"s_mul_i32 s{sT3}, s{sT2}, 1280")
        A(f"s_lshr_b32 s{sT2}, s{sT2}, 2")
        A(f"s_mul_i32 s{sT2}, s{sT2}, {CH}")
        A(f"s_add_u32 s{sT2}, s{sT2}, {KV}")
        A(f"s_cmp_eq_u32 s{sTYPE}, 0")
        A(f"s_cselect_b32 s{sT2}, s{sT3}, s{sT2}")
        A(f"s_branch {name}_wt_go")
        A.label(f"{name}_wt_f")
        A("v_and_b32 v3, 1, v2")
        A(f"v_mul_u32_u24 v3, {96*1024}, v3")
        A(f"s_mul_i32 s{sT2}, s{sT2}, {96*1024}")
        A(f"s_lshl_b32 s{sT3}, s{sU0}, 10")
        A(f"s_add_u32 s{sT2}, s{sT2}, s{sT3}")
        A(f"s_add_u32 s{sT2}, s{sT2}, {HF}")
        A.label(f"{name}_wt_go")
        A("s_mov_b64 exec, 0xff")
        A(f"buffer_load_dword v80, v3, {sr(SRD_WS,4)}, s{sT2} offen")
        A("s_mov_b64 exec, -1")
    if asmlib.OPT.get("k1prio"): A(f"s_setprio {asmlib.OPT.get('k1prio')}")
    A.c("compute wave: LDS read addresses")
    A("v_and_b32 v3, 31, v2")
    A("v_lshrrev_b32 v4, 5, v2")
    A(f"s_lshl_b32 s{sT}, s{sW}, 6")
    A(f"v_add_u32 v5, s{sT}, v3")
    A("v_lshlrev_b32 v5, 7, v5")
    A("v_bfe_u32 v6, v3, 1, 3")
    for sp in range(4):
        A(f"v_or_b32 v7, {2*sp}, v4")
        A("v_xor_b32 v7, v7, v6")
        A(f"v_lshl_add_u32 v{vXA+sp}, v7, 4, v5")
    RW = 320 if F6 else 160
    UO = 160 if F6 else UOFF
    A("v_bfe_u32 v5, v2, 4, 1")
    A(f"v_mul_u32_u24 v5, {UO}, v5")
    A("v_bfe_u32 v6, v2, 2, 2")
    A("v_lshl_add_u32 v6, v4, 3, v6")
    A(f"v_mul_u32_u24 v6, {RW}, v6")
    A("v_and_b32 v7, 3, v2")
    A("v_lshlrev_b32 v7, 3, v7")
    A("v_add3_u32 v5, v5, v6, v7")
    A(f"v_add_u32 v{vWA}, {WOFF}, v5")
    A.c("Q/K/V blocks: unit 4 gathers d=16..19 of four heads: column byte offset 40c+32 instead of 8c")
    A("v_lshlrev_b32 v7, 2, v7")
    A(f"v_add3_u32 v{vWA2}, v{vWA}, v7, 32")
    for r in range(ACC, ACC+160):
        A(f"v_mov_b32 v{r}, 0")

    def fill_of(R, sIdx=64):
        A.c("fill a share of the O' hand-off area with the not-ready pattern")
        for j in range(4): A(f"v_mov_b32 v{R+j}, -1")
        A("v_lshlrev_b32 v3, 4, v2")
        A(f"s_mul_i32 s{sT}, s{sIdx}, 2560")
        A(f"s_add_u32 s{sT}, s{sT}, {OF}")
        A(f"buffer_store_dwordx4 {vr(R,4)}, v3, {sr(SRD_WS,4)}, s{sT} offen{SC1}")
        A(f"buffer_store_dwordx4 {vr(R,4)}, v3, {sr(SRD_WS,4)}, s{sT} offen offset:1024{SC1}")
        A("s_mov_b32 exec_hi, 0")
        A(f"buffer_store_dwordx4 {vr(R,4)}, v3, {sr(SRD_WS,4)}, s{sT} offen offset:2048{SC1}")
        A("s_mov_b64 exec, -1")
    def vpad(tag, R):
        A.c("rows 20..31 of the V^T fragments: row 20 = ones (row sums), rows 21..31 = zeros")
        A("v_and_b32 v3, 15, v2")
        A("v_add_u32 v3, 16, v3")
        A("v_lshrrev_b32 v4, 4, v2")
        A("v_lshlrev_b32 v4, 9, v4")
        A("v_lshl_add_u32 v4, v3, 4, v4")
        A("v_cmp_gt_u32 vcc, 20, v3")
        A("v_mov_b32 v5, 0x7ff00000")
        A(f"v_mov_b32 v{R+4}, 0x3f803f80")
        A("v_cndmask_b32 v4, v4, v5, vcc")
        A("v_cmp_eq_u32 vcc, 20, v3")
        A("s_nop 1")
        A(f"v_cndmask_b32 v{R+4}, 0, v{R+4}, vcc")
        A("s_nop 0")
        for j in range(1, 4): A(f"v_mov_b32 v{R+4+j}, v{R+4}")
        A(f"s_sub_u32 s{sT}, s{sCB}, 8")
        A(f"s_lshl_b32 s{sT}, s{sT}, 3")
        A(f"s_lshl_b32 s{sT2}, s{sW}, 1")
        A(f"s_add_u32 s{sT}, s{sT}, s{sT2}")
        A(f"s_mul_i32 s{sT}, s{sT}, {HS_KV}")
        A(f"s_lshl_b32 s{sT2}, s{sRB}, 1")
        A(f"s_mul_i32 s{sT2}, s{sT2}, {CH}")
        A(f"s_add_u32 s{sT}, s{sT}, s{sT2}")
        A(f"s_add_u32 s{sT}, s{sT}, {KV+5120}")
        for hh in range(2):
            for ck in range(2):
                for tl in range(4):
                    A(f"s_add_u32 s{sT2}, s{sT}, {hh*HS_KV + ck*CH + tl*2048}")
                    A(f"buffer_store_dwordx4 {vr(R+4,4)}, v4, {sr(SRD_WS,4)}, s{sT2} offen{SC1}")
    def const_stores(tag, R=70):
        A(f"s_lshl_b32 s{sT3}, s2, 2")
        A(f"s_add_u32 s{sT3}, s{sT3}, s{sW}")
        fill_of(R, sT3)
        A(f"s_cmp_eq_u32 s{sTYPE}, 2")
        A(f"s_cbranch_scc0 {name}_novpad_{tag}")
        vpad(tag, R)
        A.label(f"{name}_novpad_{tag}")

    def reads(sp, st, qkv):
        L = []
        for tt in range(2):
            L.append(f"ds_read_b128 {vr(FB[st]+4*tt,4)}, v{vXA+sp} offset:{tt*4096}")
        for mt in range(5):
            for half in range(2):
                if not qkv:
                    L.append(f"ds_read_b64_tr_b16 {vr(FA[st]+4*mt+2*half,2)}, v{vWA} offset:{sp*16*RW+mt*32+half*4*RW}")
                elif mt < 4:
                    L.append(f"ds_read_b64_tr_b16 {vr(FA[st]+4*mt+2*half,2)}, v{vWA} offset:{sp*16*RW+mt*40+half*4*RW}")
                else:
                    L.append(f"ds_read_b64_tr_b16 {vr(FA[st]+4*mt+2*half,2)}, v{vWA2} offset:{sp*16*RW+half*4*RW}")
        return [L[0], L[2], L[3], L[1]] + L[4:]
    def mfmas(st, swapped):
        L = []
        for mt in range(5):
            for tt in range(2):
                a, b = vr(FA[st]+4*mt,4), vr(FB[st]+4*tt,4)
                if swapped: a, b = b, a
                L.append(f"v_mfma_f32_32x32x16_bf16 {vr(acc(tt,mt),16)}, {a}, {b}, {vr(acc(tt,mt),16)}")
        return L
    def mainloop(swapped, tag, qkv):
        A("s_waitcnt vmcnt(8)")
        A("s_barrier")
        stamp(A, 1)
        for l in reads(0, 0, qkv): A(l)
        A(f"s_mov_b32 s{sCNT}, 0")
        A(f"s_mov_b32 s{sBUF}, 0")
        A(f"s_mov_b32 s{sDP}, {STAGE}")
        A(f"s_mov_b32 s{sDN}, {(-2*STAGE) & 0xffffffff}")
        A(".p2align 6")
        A.label(f"{name}_loop_{tag}")
        for sp in range(4):
            cur = sp & 1; nxt = cur ^ 1
            M = mfmas(cur, swapped)
            CW = not asmlib.OPT.get("nocw")
            if not CW: A("s_waitcnt lgkmcnt(0)")
            if sp < 3:
                R = reads(sp+1, nxt, qkv)
                k = 0
                for i, m in enumerate(M):
                    if CW and i % 2 == 0:
                        g = i // 2
                        A(f"s_waitcnt lgkmcnt({(8 - 2*g) + min(4*g, 12)})")
                    A(m)
                    for l in R[k:k+2]: A(l)
                    k += 2
            else:
                if CW: A("s_waitcnt lgkmcnt(8)")
                A(M[0]); A(M[1])
                if CW: A("s_waitcnt lgkmcnt(0)")
                A(f"s_add_u32 s{sBUF}, s{sBUF}, 1")
                A(f"s_cmp_eq_u32 s{sBUF}, 3")
                A(f"s_cselect_b32 s{sT}, s{sDN}, s{sDP}")
                A(f"s_cselect_b32 s{sBUF}, 0, s{sBUF}")
                A(f"s_cmp_eq_u32 s{sCNT}, 0")
                A(f"s_cbranch_scc0 {name}_nw_{tag}")
                A("s_waitcnt vmcnt(0)")
                A.label(f"{name}_nw_{tag}")
                A("s_barrier")
                for j in range(4): A(f"v_add_u32 v{vXA+j}, s{sT}, v{vXA+j}")
                A(f"v_add_u32 v{vWA}, s{sT}, v{vWA}")
                if qkv: A(f"v_add_u32 v{vWA2}, s{sT}, v{vWA2}")
                R = reads(0, nxt, qkv)
                k = 0
                for m in M[2:]:
                    A(m)
                    for l in R[k:k+2]: A(l)
                    k += 2
        if asmlib.OPT.get("earlyconst"):
            A(f"s_cmp_eq_u32 s{sCNT}, 2")
            A(f"s_cbranch_scc0 {name}_nc_{tag}")
            const_stores(tag)
            A.label(f"{name}_nc_{tag}")
        MS = asmlib.OPT.get("midstamp")
        if MS and asmlib.PROFILE:
            A(f"s_cmp_eq_u32 s{sCNT}, {MS-1}")
            A(f"s_cbranch_scc0 {name}_nms_{tag}")
            stamp(A, 2)
            A.label(f"{name}_nms_{tag}")
        A(f"s_add_u32 s{sCNT}, s{sCNT}, 1")
        A(f"s_cmp_lt_u32 s{sCNT}, 10")
        A(f"s_cbranch_scc1 {name}_loop_{tag}")
        A("s_waitcnt lgkmcnt(0)")
        A("s_nop 15")
        if not MS: stamp(A, 2)
    A(f"s_cmp_eq_u32 s{sTYPE}, 2")
    A(f"s_cbranch_scc1 {name}_vblock")
    if not F6:
        A(f"s_cmp_eq_u32 s{sTYPE}, 3")
        A(f"s_cbranch_scc1 {name}_ffnblock")
    mainloop(False, "qk", True)

    A.c("epilogue Q/K: unit mt<4 = d 0..15 of head mt (rows 0..15) and head 4+mt (rows 16..31); unit 4 = d 16..19 of the 8 heads")
    vL16q, vTail = 8, 9
    D0 = 16
    sBASE, sHS = 61, 62
    A(f"v_lshlrev_b32 v{vL16q}, 4, v2")
    A(f"s_and_b32 s{sT}, s{sCB}, 3")
    A(f"s_cmp_eq_u32 s{sTYPE}, 0")
    A(f"s_cbranch_scc0 {name}_kparams")
    A(f"s_mov_b32 s{sHS}, {HS_Q}")
    A(f"s_mul_i32 s{sBASE}, s{sT}, {8*HS_Q}")
    A(f"s_lshl_b32 s{sT2}, s{sRB}, 3")
    A(f"s_lshl_b32 s{sT3}, s{sW}, 1")
    A(f"s_add_u32 s{sT2}, s{sT2}, s{sT3}")
    A(f"s_mul_i32 s{sT2}, s{sT2}, 1280")
    A(f"s_add_u32 s{sBASE}, s{sBASE}, s{sT2}")
    if QF: A(f"s_add_u32 s{sBASE}, s{sBASE}, {QF}")
    A(f"s_mov_b32 s{sSC}, 0x3ea52b5c")
    A(f"s_branch {name}_qk_go")
    A.label(f"{name}_kparams")
    A(f"s_mov_b32 s{sHS}, {HS_KV}")
    A(f"s_mul_i32 s{sBASE}, s{sT}, {8*HS_KV}")
    A(f"s_lshl_b32 s{sT2}, s{sRB}, 1")
    A(f"s_lshr_b32 s{sT3}, s{sW}, 1")
    A(f"s_add_u32 s{sT2}, s{sT2}, s{sT3}")
    A(f"s_mul_i32 s{sT2}, s{sT2}, {CH}")
    A(f"s_add_u32 s{sBASE}, s{sBASE}, s{sT2}")
    A(f"s_and_b32 s{sT3}, s{sW}, 1")
    A(f"s_mul_i32 s{sT3}, s{sT3}, 2560")
    A(f"s_add_u32 s{sBASE}, s{sBASE}, s{sT3}")
    A(f"s_add_u32 s{sBASE}, s{sBASE}, {KV}")
    A(f"s_mov_b32 s{sSC}, 1.0")
    A.label(f"{name}_qk_go")
    A(f"s_mov_b32 s{sH}, s{sBASE}")
    for i in range(1, 8):
        A(f"s_add_u32 s{sH+i}, s{sH+i-1}, s{sHS}")
    A("v_and_b32 v3, 31, v2")
    A("v_lshrrev_b32 v4, 5, v2")
    A(f"v_mul_lo_u32 v4, v4, s{sHS}")
    A("v_lshl_add_u32 v4, v3, 3, v4")
    A(f"v_add_u32 v{vTail}, 1024, v4")
    A(f"v_mov_b32 v10, s{sSC}")
    A(f"v_mov_b32 v11, s{sSC}")
    n = 0
    for mt in range(4):
        for tt in range(2):
            for part in range(2):
                a = acc(tt, mt) + 8*part
                d = D0 + 4*(n % 8); n += 1
                for j in range(4):
                    A(f"v_pk_mul_f32 {vr(a+2*j,2)}, {vr(a+2*j,2)}, v[10:11]")
                for j in range(4):
                    A(f"v_cvt_pk_bf16_f32 v{d+j}, v{a+2*j}, v{a+2*j+1}")
                A("s_nop 1")
                A(f"v_permlane32_swap_b32 v{d}, v{d+2}")
                A(f"v_permlane32_swap_b32 v{d+1}, v{d+3}")
                A(f"buffer_store_dwordx4 {vr(d,4)}, v{vL16q}, {sr(SRD_WS,4)}, s{sH+4*part+mt} offen offset:{tt*1280}{SC1}")
    for tt in range(2):
        for i in range(4):
            a = acc(tt, 4) + 4*i
            d = D0 + 4*(n % 8); n += 1
            for j in range(2):
                A(f"v_pk_mul_f32 {vr(a+2*j,2)}, {vr(a+2*j,2)}, v[10:11]")
            A(f"v_cvt_pk_bf16_f32 v{d}, v{a}, v{a+1}")
            A(f"v_cvt_pk_bf16_f32 v{d+1}, v{a+2}, v{a+3}")
            A(f"buffer_store_dwordx2 {vr(d,2)}, v{vTail}, {sr(SRD_WS,4)}, s{sH+2*i} offen offset:{tt*1280}{SC1}")
    A(f"s_branch {name}_fin")

    if not F6:
        A.label(f"{name}_ffnblock")
        mainloop(False, "f", False)
        A.c("epilogue FFN: h = gelu_tanh(g) * u")
        vC0, vC1, vONE = 8, 10, 12
        vTt, vP, vE, vGU = 14, 16, 18, 20
        vOUT = 24
        for j in range(2):
            A(f"v_mov_b32 v{vC0+j}, {hex(f2u(c0))}")
            A(f"v_mov_b32 v{vC1+j}, {hex(f2u(c1))}")
            A(f"v_mov_b32 v{vONE+j}, 1.0")
        A(f"v_lshlrev_b32 v3, 4, v2")
        A(f"s_lshl_b32 s{sT2}, s{sRB}, 3")
        A(f"s_lshl_b32 s{sT3}, s{sW}, 1")
        A(f"s_add_u32 s{sT2}, s{sT2}, s{sT3}")
        A(f"s_mul_i32 s{sT2}, s{sT2}, {96*1024}")
        A(f"s_lshl_b32 s{sT3}, s{sU0}, 10")
        A(f"s_add_u32 s{sT2}, s{sT2}, s{sT3}")
        A(f"s_add_u32 s{sT2}, s{sT2}, {HF}")
        A(f"s_add_u32 s{sT3}, s{sT2}, {96*1024}")
        n = 0
        for mt in range(5):
            if mt == 4:
                A(f"s_cmp_eq_u32 s{sNU}, 4")
                A(f"s_cbranch_scc1 {name}_fin")
            for tt in range(2):
                a = acc(tt, mt)
                o = vOUT + 4*(n & 1); n += 1
                for pr in range(4):
                    g = a + 2*pr; u = a + 8 + 2*pr
                    A(f"v_pk_mul_f32 {vr(vTt,2)}, {vr(g,2)}, {vr(g,2)}")
                    A(f"v_pk_mul_f32 {vr(vGU,2)}, {vr(g,2)}, {vr(u,2)}")
                    A(f"v_pk_fma_f32 {vr(vP,2)}, {vr(vTt,2)}, {vr(vC1,2)}, {vr(vC0,2)}")
                    A(f"v_pk_mul_f32 {vr(vP,2)}, {vr(vP,2)}, {vr(g,2)}")
                    A(f"v_exp_f32 v{vE}, v{vP}")
                    A(f"v_exp_f32 v{vE+1}, v{vP+1}")
                    A("s_nop 0")
                    A(f"v_pk_add_f32 {vr(vE,2)}, {vr(vE,2)}, {vr(vONE,2)}")
                    A(f"v_rcp_f32 v{vE}, v{vE}")
                    A(f"v_rcp_f32 v{vE+1}, v{vE+1}")
                    A("s_nop 0")
                    A(f"v_pk_mul_f32 {vr(vGU,2)}, {vr(vGU,2)}, {vr(vE,2)}")
                    A(f"v_cvt_pk_bf16_f32 v{o+pr}, v{vGU}, v{vGU+1}")
                A(f"buffer_store_dwordx4 {vr(o,4)}, v3, {sr(SRD_WS,4)}, s{sT2 if tt == 0 else sT3} offen offset:{mt*1024 if mt*1024 < 4096 else 0}{SC1}" if mt < 4 else
                  f"s_add_u32 s{sT}, s{sT2 if tt == 0 else sT3}, 4096\n" + f"buffer_store_dwordx4 {vr(o,4)}, v3, {sr(SRD_WS,4)}, s{sT} offen{SC1}")
        A(f"s_branch {name}_fin")

    A.label(f"{name}_vblock")
    mainloop(True, "v", True)
    A.c("epilogue V: lane = weight column n; unit mt<4: head mt (n<16) / 4+mt (n>=16), d = n&15; unit 4: head (n>>2)&3 (+4), d = 16+(n&3)")
    sBASE, sHS = 61, 62
    vA1, vA2 = 8, 9
    D1 = 16
    A(f"s_mov_b32 s{sHS}, {HS_KV}")
    A("v_bfe_u32 v5, v2, 4, 1")
    A("v_lshlrev_b32 v5, 2, v5")
    A("v_lshrrev_b32 v4, 5, v2")
    A("v_lshlrev_b32 v4, 9, v4")
    A(f"v_mul_lo_u32 v6, v5, s{sHS}")
    A("v_and_b32 v3, 15, v2")
    A("v_lshl_add_u32 v6, v3, 4, v6")
    A(f"v_add_u32 v{vA1}, v6, v4")
    A("v_bfe_u32 v6, v2, 2, 2")
    A("v_add_u32 v6, v6, v5")
    A(f"v_mul_lo_u32 v6, v6, s{sHS}")
    A("v_and_b32 v3, 3, v2")
    A("v_lshl_add_u32 v6, v3, 4, v6")
    A(f"v_add3_u32 v{vA2}, v6, v4, 0")
    A(f"v_add_u32 v{vA2}, 256, v{vA2}")
    A(f"s_sub_u32 s{sT}, s{sCB}, 8")
    A(f"s_mul_i32 s{sBASE}, s{sT}, {8*HS_KV}")
    A(f"s_lshl_b32 s{sT2}, s{sRB}, 1")
    A(f"s_lshr_b32 s{sT3}, s{sW}, 1")
    A(f"s_add_u32 s{sT2}, s{sT2}, s{sT3}")
    A(f"s_mul_i32 s{sT2}, s{sT2}, {CH}")
    A(f"s_add_u32 s{sBASE}, s{sBASE}, s{sT2}")
    A(f"s_and_b32 s{sT3}, s{sW}, 1")
    A(f"s_lshl_b32 s{sT3}, s{sT3}, 12")
    A(f"s_add_u32 s{sBASE}, s{sBASE}, s{sT3}")
    A(f"s_add_u32 s{sBASE}, s{sBASE}, {KV+5120}")
    n = 0
    for mt in range(5):
        if 0 < mt < 4: A(f"s_add_u32 s{sBASE}, s{sBASE}, s{sHS}")
        if mt == 4: A(f"s_sub_u32 s{sBASE}, s{sBASE}, {3*HS_KV}")
        for tt in range(2):
            for f in range(2):
                a = acc(tt, mt) + 8*f
                d = D1 + 4*(n % 8); n += 1
                for j in range(4):
                    A(f"v_cvt_pk_bf16_f32 v{d+j}, v{a+2*j}, v{a+2*j+1}")
                A(f"buffer_store_dwordx4 {vr(d,4)}, v{vA1 if mt < 4 else vA2}, {sr(SRD_WS,4)}, s{sBASE} offen offset:{tt*2048+f*1024}{SC1}")
    A(f"s_branch {name}_fin")

    if F6:
        XR, WB6, WST, UO6 = 32768, 98304, 12320, 6176
        A.label(f"{name}_f6c")
        ACC6 = 64; FA6 = 8; FB6 = [32, 40]; vXA6 = 48; vW6 = 52
        def acc6(tt, mt): return ACC6 + (tt*6 + mt)*16
        x_voffsets(54)
        A(f"s_mul_i32 s{sXO}, s{sRB}, {256*1280}")
        A(f"s_lshl_b32 s{sT2}, s{sW}, 13")
        A("s_waitcnt lgkmcnt(0)")
        srd_x()
        srd_ws()
        for st in range(2):
            for j in range(8):
                A(f"s_add_u32 m0, s{sT2}, {st*XR + j*1024}")
                A("s_nop 0")
                A(f"buffer_load_dwordx4 v{54+j}, {sr(SRD_X,4)}, s{sXO} offen lds")
            A(f"s_add_u32 s{sXO}, s{sXO}, 128")
        A("v_and_b32 v3, 31, v2")
        A("v_lshrrev_b32 v4, 5, v2")
        A(f"s_lshl_b32 s{sT}, s{sW}, 6")
        A(f"v_add_u32 v5, s{sT}, v3")
        A("v_lshlrev_b32 v5, 7, v5")
        A("v_bfe_u32 v6, v3, 1, 3")
        for sp in range(4):
            A(f"v_or_b32 v7, {2*sp}, v4")
            A("v_xor_b32 v7, v7, v6")
            A(f"v_lshl_add_u32 v{vXA6+sp}, v7, 4, v5")
        A("v_bfe_u32 v5, v2, 4, 1")
        A(f"v_mul_u32_u24 v5, {UO6}, v5")
        A("v_bfe_u32 v6, v2, 2, 2")
        A("v_lshl_add_u32 v6, v4, 3, v6")
        A("v_mul_u32_u24 v6, 192, v6")
        A("v_and_b32 v7, 3, v2")
        A("v_lshlrev_b32 v7, 3, v7")
        A("v_add3_u32 v5, v5, v6, v7")
        A(f"v_add_u32 v{vW6}, {WB6}, v5")
        for r in range(ACC6, ACC6+192): A(f"v_mov_b32 v{r}, 0")
        def bread(sp, st): return [f"ds_read_b128 {vr(FB6[st]+4*tt,4)}, v{vXA6+sp} offset:{tt*4096}" for tt in range(2)]
        def aread(mt, second): return [f"ds_read_b64_tr_b16 {vr(FA6+4*mt+2*half,2)}, v{vW6} offset:{second*3072+mt*32+half*768}" for half in range(2)]
        A("s_waitcnt vmcnt(8)")
        A("s_barrier")
        stamp(A, 1)
        for l in bread(0, 0): A(l)
        for mt in range(6):
            for l in aread(mt, 0): A(l)
        sWI, sXI = 44, 45
        sWP, sWN, sXP, sXN = 84, 85, 82, 83
        A(f"s_mov_b32 s{sCNT}, 0")
        A(f"s_mov_b32 s{sWI}, 0")
        A(f"s_mov_b32 s{sXI}, 0")
        A(f"s_mov_b32 s{sWP}, {WST}")
        A(f"s_mov_b32 s{sWN}, {(-4*WST) & 0xffffffff}")
        A(f"s_mov_b32 s{sXP}, {XR}")
        A(f"s_mov_b32 s{sXN}, {(-2*XR) & 0xffffffff}")
        A("s_waitcnt lgkmcnt(0)")
        A(".p2align 6")
        A.label(f"{name}_loop_f6")
        for sp in range(4):
            cur = sp & 1; nxt = cur ^ 1
            def grp(mt, wait):
                A(f"s_waitcnt lgkmcnt({wait})")
                for tt in range(2):
                    d = vr(acc6(tt, mt), 16)
                    A(f"v_mfma_f32_32x32x16_bf16 {d}, {vr(FA6+4*mt,4)}, {vr(FB6[cur]+4*tt,4)}, {d}")
            if sp & 1:
                grp(0, 10)
                A(f"s_add_u32 s{sWI}, s{sWI}, 1")
                A(f"s_cmp_eq_u32 s{sWI}, 5")
                A(f"s_cselect_b32 s{sT}, s{sWN}, s{sWP}")
                A(f"s_cselect_b32 s{sWI}, 0, s{sWI}")
                if sp == 3:
                    A(f"s_add_u32 s{sXI}, s{sXI}, 1")
                    A(f"s_cmp_eq_u32 s{sXI}, 3")
                    A(f"s_cselect_b32 s{sT2}, s{sXN}, s{sXP}")
                    A(f"s_cselect_b32 s{sXI}, 0, s{sXI}")
                    A(f"s_cmp_eq_u32 s{sCNT}, 0")
                    A(f"s_cbranch_scc0 {name}_nw_f6")
                    A("s_waitcnt vmcnt(0)")
                    A.label(f"{name}_nw_f6")
                A("s_barrier")
                A(f"v_add_u32 v{vW6}, s{sT}, v{vW6}")
                if sp == 3:
                    for j in range(4): A(f"v_add_u32 v{vXA6+j}, s{sT2}, v{vXA6+j}")
                for l in bread((sp+1) & 3, nxt): A(l)
                for l in aread(0, 0): A(l)
                for mt in range(1, 6):
                    grp(mt, 12)
                    for l in aread(mt, 0): A(l)
            else:
                for l in bread(sp+1, nxt): A(l)
                for mt in range(6):
                    grp(mt, 12)
                    for l in aread(mt, 1): A(l)
        A(f"s_add_u32 s{sCNT}, s{sCNT}, 1")
        A(f"s_cmp_lt_u32 s{sCNT}, 10")
        A(f"s_cbranch_scc1 {name}_loop_f6")
        A("s_waitcnt lgkmcnt(0)")
        if fused and asmlib.OPT.get("early"): A("s_barrier")
        A("s_nop 15")
        stamp(A, 2)
        A.c("epilogue FFN: h = gelu_tanh(g) * u")
        vC0, vC1, vONE = 8, 10, 12
        vTt, vP, vE, vGU = 14, 16, 18, 20
        vOUT = 24
        for j in range(2):
            A(f"v_mov_b32 v{vC0+j}, {hex(f2u(c0))}")
            A(f"v_mov_b32 v{vC1+j}, {hex(f2u(c1))}")
            A(f"v_mov_b32 v{vONE+j}, 1.0")
        A(f"v_lshlrev_b32 v3, 4, v2")
        A(f"v_add_u32 v4, 4096, v3")
        A(f"s_lshl_b32 s{sT2}, s{sRB}, 3")
        A(f"s_lshl_b32 s{sT3}, s{sW}, 1")
        A(f"s_add_u32 s{sT2}, s{sT2}, s{sT3}")
        A(f"s_mul_i32 s{sT2}, s{sT2}, {96*1024}")
        A(f"s_mul_i32 s{sT3}, s{sCB}, {6*1024}")
        A(f"s_add_u32 s{sT2}, s{sT2}, s{sT3}")
        A(f"s_add_u32 s{sT2}, s{sT2}, {HF}")
        A(f"s_add_u32 s{sT3}, s{sT2}, {96*1024}")
        n = 0
        for mt in range(6):
            for tt in range(2):
                a = acc6(tt, mt)
                o = vOUT + 4*(n & 1); n += 1
                for pr in range(4):
                    g = a + 2*pr; u = a + 8 + 2*pr
                    A(f"v_pk_mul_f32 {vr(vTt,2)}, {vr(g,2)}, {vr(g,2)}")
                    A(f"v_pk_mul_f32 {vr(vGU,2)}, {vr(g,2)}, {vr(u,2)}")
                    A(f"v_pk_fma_f32 {vr(vP,2)}, {vr(vTt,2)}, {vr(vC1,2)}, {vr(vC0,2)}")
                    A(f"v_pk_mul_f32 {vr(vP,2)}, {vr(vP,2)}, {vr(g,2)}")
                    A(f"v_exp_f32 v{vE}, v{vP}")
                    A(f"v_exp_f32 v{vE+1}, v{vP+1}")
                    A("s_nop 0")
                    A(f"v_pk_add_f32 {vr(vE,2)}, {vr(vE,2)}, {vr(vONE,2)}")
                    A(f"v_rcp_f32 v{vE}, v{vE}")
                    A(f"v_rcp_f32 v{vE+1}, v{vE+1}")
                    A("s_nop 0")
                    A(f"v_pk_mul_f32 {vr(vGU,2)}, {vr(vGU,2)}, {vr(vE,2)}")
                    A(f"v_cvt_pk_bf16_f32 v{o+pr}, v{vGU}, v{vGU+1}")
                A(f"buffer_store_dwordx4 {vr(o,4)}, v{3 if mt < 4 else 4}, {sr(SRD_WS,4)}, s{sT2 if tt == 0 else sT3} offen offset:{(mt % 4)*1024}{SC1}")
        if fused and asmlib.OPT.get("early"):
            A(f"s_branch {name}_f6fin")
        else:
            A(f"s_branch {name}_fin")

    A.label(f"{name}_loader")
    vXO = 8
    vWO = 16
    A(f"s_sub_u32 s{sW}, s{sW}, 4")
    if fused and asmlib.OPT.get("early"):
        A(f"v_mov_b32 v3, {K1_LDS}")
        A("v_mov_b32 v4, 0")
        A("ds_write_b32 v3, v4")
    def dbg_srd(r):
        A(f"s_load_dwordx2 s[{r+4}:{r+5}], s[0:1], {KA_DBG}")
        A("s_waitcnt lgkmcnt(0)")
        A(f"s_mov_b32 s{r}, s{r+4}")
        A(f"s_and_b32 s{r+1}, s{r+5}, 0xffff")
        A(f"s_mov_b32 s{r+2}, 256")
        A(f"s_mov_b32 s{r+3}, 0x20000")
    def tag_load():
        dbg_srd(88 if not asmlib.PROFILE else 52)
        r = 88 if not asmlib.PROFILE else 52
        A("v_mov_b32 v131, 240")
        A(f"buffer_load_dword v130, v131, {sr(r,4)}, 0 offen sc1")
    sL = 64
    A(f"s_lshl_b32 s{sL}, s2, 2")
    A(f"s_add_u32 s{sL}, s{sL}, s{sW}")
    A(f"s_mul_i32 s{sXO}, s{sRB}, {256*1280}")
    A(f"s_add_u32 s{sXO}, s{sXO}, 256")
    if F6:
        A(f"s_cmp_eq_u32 s{sTYPE}, 3")
        A(f"s_cbranch_scc1 {name}_f6l")
        A(f"s_cmp_eq_u32 s{sTYPE}, 4")
        A(f"s_cbranch_scc1 {name}_idlel")
    sLX, sLW, sWSTEP = 61, 62, 63
    if F6:
        A(f"s_mul_i32 s{sT}, s{sW}, 320")
        for i in range(5):
            A(f"v_add_u32 v3, s{sT}, v2")
            A(f"v_add_u32 v3, {64*i}, v3")
            A("v_mul_u32_u24 v4, 3277, v3")
            A("v_lshrrev_b32 v4, 16, v4")
            A("v_mul_u32_u24 v5, 20, v4")
            A("v_sub_u32 v5, v3, v5")
            A("v_mul_u32_u24 v4, 3840, v4")
            A(f"v_lshl_add_u32 v{vWO+i}, v5, 4, v4")
        A(f"s_lshl_b32 s{sLX}, s{sW}, 13")
        A(f"s_mul_i32 s{sLW}, s{sW}, 5120")
        A(f"s_add_u32 s{sLW}, s{sLW}, {WOFF}")
        A(f"s_lshl_b32 s{sWSTEP}, s{sRS}, 6")
    else:
        A(f"s_and_b32 s{sT}, s{sW}, 1")
        A(f"s_mul_i32 s{sT}, s{sT}, 320")
        for i in range(5):
            A(f"v_add_u32 v3, s{sT}, v2")
            A(f"v_add_u32 v3, {64*i}, v3")
            A("v_mul_u32_u24 v4, 6554, v3")
            A("v_lshrrev_b32 v4, 16, v4")
            A("v_mul_u32_u24 v5, 10, v4")
            A("v_sub_u32 v5, v3, v5")
            A(f"v_mul_lo_u32 v4, v4, s{sRS}")
            A(f"v_lshl_add_u32 v{vWO+i}, v5, 4, v4")
        A(f"s_lshl_b32 s{sLX}, s{sW}, 13")
        A(f"s_lshr_b32 s{sT}, s{sW}, 1")
        A(f"s_mul_i32 s{sLW}, s{sT}, {UOFF}")
        A(f"s_and_b32 s{sT}, s{sW}, 1")
        A(f"s_mul_i32 s{sT}, s{sT}, 5120")
        A(f"s_add_u32 s{sLW}, s{sLW}, s{sT}")
        A(f"s_add_u32 s{sLW}, s{sLW}, {WOFF}")
        A(f"s_lshl_b32 s{sWSTEP}, s{sRS}, 6")
    def issue_w():
        A(f"s_add_u32 s{sT}, s{sBUF}, s{sLW}")
        for i in range(5):
            A(f"s_add_u32 m0, s{sT}, {i*1024}")
            A("s_nop 0")
            A(f"buffer_load_dwordx4 v{vWO+i}, {sr(SRD_W,4)}, s{sWO_} offen lds")
        A(f"s_add_u32 s{sWO_}, s{sWO_}, s{sWSTEP}")
    def next_buf():
        A(f"s_add_u32 s{sBUF}, s{sBUF}, {STAGE}")
        A(f"s_cmp_eq_u32 s{sBUF}, {3*STAGE}")
        A(f"s_cselect_b32 s{sBUF}, 0, s{sBUF}")
    def issue_stage():
        if asmlib.OPT.get("k1nodma"): return
        issue_w()
        A(f"s_add_u32 s{sT}, s{sBUF}, s{sLX}")
        for j in range(8):
            A(f"s_add_u32 m0, s{sT}, {j*1024}")
            A("s_nop 0")
            A(f"buffer_load_dwordx4 v{vXO+j}, {sr(SRD_X,4)}, s{sXO} offen lds")
        A(f"s_add_u32 s{sXO}, s{sXO}, 128")
        next_buf()
    A("s_waitcnt lgkmcnt(0)")
    if F6:
        A(f"s_mov_b32 s{SRD_W}, s{sWQ}")
        A(f"s_mov_b32 s{SRD_W+1}, s{sWQ+1}")
        A(f"s_lshl_b32 s{sWO_}, s{sCG}, 1")
    else:
        A.c("SRD w (QKV blocks: wqkv; FFN blocks: w_gate for loaders 0,1 and w_up for 2,3)")
        A(f"s_cmp_ge_u32 s{sW}, 2")
        A(f"s_cselect_b32 s{SRD_W}, s{sWU}, s{sWG}")
        A(f"s_cselect_b32 s{SRD_W+1}, s{sWU+1}, s{sWG+1}")
        A(f"s_cselect_b32 s{sT}, s{sCU}, s{sCG}")
        A(f"s_lshl_b32 s{sWO_}, s{sT}, 1")
        A(f"s_cmp_eq_u32 s{sTYPE}, 3")
        A(f"s_cselect_b32 s{SRD_W}, s{SRD_W}, s{sWQ}")
        A(f"s_cselect_b32 s{SRD_W+1}, s{SRD_W+1}, s{sWQ+1}")
    A(f"s_and_b32 s{SRD_W+1}, s{SRD_W+1}, 0xffff")
    A(f"s_mul_i32 s{SRD_W+2}, s{sRS}, 640")
    A(f"s_mov_b32 s{SRD_W+3}, 0x20000")
    A(f"s_mov_b32 s{sBUF}, 0")
    if SP: stamp(A, 1)
    issue_w(); next_buf()
    if SP: stamp(A, 2)
    issue_w(); next_buf()
    srd_x()
    srd_ws()
    x_voffsets(vXO)
    SRD_D, SRD_O, SRD_G, SRD_P = 68, 76, 80, 68
    vPW = 64
    vGX, vGW = 76, 88
    vS1, vS2, vTK = 100, 101, 102
    sN = 84
    sN = 56
    def prefetch_setup():
        A("v_lshlrev_b32 v21, 4, v2")
        mats = ((sX, 2048*1280, 3, 68), (sWQ, 640*3840, 3, 72), (sWG, 640*3072, 2, 76), (sWU, 640*3072, 2, 80))
        for (ptr, nb, pieces, r) in mats:
            A(f"s_mov_b32 s{r}, s{ptr}")
            A(f"s_and_b32 s{r+1}, s{ptr+1}, 0xffff")
            A(f"s_mov_b32 s{r+2}, {nb}")
            A(f"s_mov_b32 s{r+3}, 0x20000")
        if asmlib.OPT.get("pfq"):
            A(f"s_lshl_b32 s{sT2}, s{sL}, 10")
            A(f"v_add_u32 v21, s{sT2}, v21")
            A(f"v_add_u32 v22, {1 << 20}, v21")
            A(f"v_add_u32 v23, {2 << 20}, v21")
            order = [(1,0),(2,0),(3,0),(0,0),(0,1),(0,2),(1,1),(2,1),(3,1),(1,2)]
            return [f"buffer_load_dwordx4 v[60:63], v{21+j}, {sr(mats[mi][3],4)}, 0 offen" for (mi, j) in order]
        A(f"s_sub_u32 s{sT2}, s2, 96")
        A(f"s_lshl_b32 s{sT2}, s{sT2}, 2")
        A(f"s_add_u32 s{sT2}, s{sT2}, s{sW}")
        A(f"s_lshl_b32 s{sT2}, s{sT2}, 10")
        A(f"v_add_u32 v21, s{sT2}, v21")
        for j in range(1, 4): A(f"v_add_u32 v{21+j}, {j*640*1024}, v21")
        order = [(1,0),(2,0),(3,0),(0,0),(0,1),(1,1),(2,1),(3,1),(0,2),(0,3),(1,2),(2,2),(3,2),(1,3)]
        return [f"buffer_load_dwordx4 v[60:63], v{21+j}, {sr(mats[mi][3],4)}, 0 offen" for (mi, j) in order]
    def prefetch_inputs():
        n = 0
        if not asmlib.OPT.get("pf2"):
            A.c("warm-up: stream a 1/1024 share of every GEMM input linearly, so that the strided tile loads of the later stages hit the memory-side cache")
            A("v_lshlrev_b32 v3, 4, v2")
            mats = ((sX, 2048*1280, 3, 68), (sWQ, 640*3840, 3, 72), (sWG, 640*3072, 2, 76), (sWU, 640*3072, 2, 80))
            if asmlib.OPT.get("pfo", 1):
                for (ptr, nb, pieces, r) in mats:
                    A(f"s_mov_b32 s{r}, s{ptr}")
                    A(f"s_and_b32 s{r+1}, s{ptr+1}, 0xffff")
                    A(f"s_mov_b32 s{r+2}, {nb}")
                    A(f"s_mov_b32 s{r+3}, 0x20000")
                A(f"s_lshl_b32 s{sT2}, s{sL}, 10")
                A(f"v_add_u32 v3, s{sT2}, v3")
                A(f"v_add_u32 v4, {1 << 20}, v3")
                A(f"v_add_u32 v5, {2 << 20}, v3")
                order = [(1,0),(2,0),(3,0),(0,0),(0,1),(0,2),(1,1),(2,1),(3,1),(1,2)]
                cur = 0
                for (mi, j) in order:
                    A(f"buffer_load_dwordx4 v[60:63], v{3+j}, {sr(mats[mi][3],4)}, 0 offen")
                    n += 1
            else:
                for (ptr, nb, pieces, r) in mats:
                    A(f"s_mov_b32 s{SRD_P}, s{ptr}")
                    A(f"s_and_b32 s{SRD_P+1}, s{ptr+1}, 0xffff")
                    A(f"s_mov_b32 s{SRD_P+2}, {nb}")
                    A(f"s_mov_b32 s{SRD_P+3}, 0x20000")
                    A(f"s_mul_i32 s{sT2}, s{sL}, {pieces*1024}")
                    for i in range(pieces):
                        A(f"buffer_load_dwordx4 v[60:63], v3, {sr(SRD_P,4)}, s{sT2} offen offset:{i*1024}")
                        n += 1
            return n
        A.c("L2 warm-up (speed only): the workgroups that share operand lines split the job of pulling them in early.")
        A.c("x: this workgroup streams 32 of the 256 rows of its row block (all K); w: it fetches two later stages of its column block")
        A("v_lshlrev_b32 v3, 4, v2")
        A(f"s_lshr_b32 s{sT}, s2, 5")
        A(f"s_lshl_b32 s{sT}, s{sT}, 2")
        A(f"s_add_u32 s{sT}, s{sT}, s{sW}")
        A(f"s_mul_i32 s{sT}, s{sT}, {8*1280}")
        A(f"s_mul_i32 s{sT2}, s{sRB}, {256*1280}")
        A(f"s_add_u32 s{sT}, s{sT}, s{sT2}")
        NX = asmlib.OPT.get("pfx", 10)
        for i in range(NX):
            if i % 4 == 0 and i: A(f"s_add_u32 s{sT}, s{sT}, 4096")
            A(f"buffer_load_dwordx4 v[60:63], v3, {sr(SRD_X,4)}, s{sT} offen offset:{(i % 4)*1024}")
            n += 1
        for st in range(2):
            A(f"s_bfe_u32 s{sT}, s2, 0x20003")
            A(f"s_lshl_b32 s{sT}, s{sT}, 1")
            A(f"s_add_u32 s{sT}, s{sT}, {st}")
            A(f"s_min_u32 s{sT}, s{sT}, 6")
            A(f"s_mul_i32 s{sT}, s{sT}, s{sWSTEP}")
            A(f"s_add_u32 s{sT}, s{sT}, s{sWO_}")
            for i in range(5):
                A(f"buffer_load_dwordx4 v[60:63], v{vWO+i}, {sr(SRD_W,4)}, s{sT} offen")
                n += 1
        return n
    def side_loads(tag=''):
        for srd, p, nb in ((SRD_D, sWD, 1536*1280), (SRD_O, sWO, 640*1280), (SRD_G, sGW, 1280)):
            A(f"s_mov_b32 s{srd}, s{p}")
            A(f"s_and_b32 s{srd+1}, s{p+1}, 0xffff")
            A(f"s_mov_b32 s{srd+2}, {nb}")
            A(f"s_mov_b32 s{srd+3}, 0x20000")
        A("v_lshrrev_b32 v3, 2, v2")
        A("v_mul_u32_u24 v3, 1280, v3")
        A("v_and_b32 v4, 3, v2")
        A(f"v_lshl_add_u32 v{vS1}, v4, 4, v3")
        A("v_bfe_u32 v5, v2, 4, 1")
        A("v_lshrrev_b32 v6, 5, v2")
        A("v_lshl_add_u32 v5, v5, 1, v6")
        A("v_mul_u32_u24 v5, 20, v5")
        A("v_bfe_u32 v6, v2, 2, 2")
        A("v_add3_u32 v5, v5, v6, 16")
        A("v_mul_u32_u24 v5, 1280, v5")
        A(f"v_lshl_add_u32 v{vS2}, v4, 4, v5")
        for m in range(3):
            A(f"s_add_u32 s{sN+m}, s{sL}, {1024*m}")
            A(f"s_cmp_ge_u32 s{sN+m}, 1920")
            A(f"s_cbranch_scc1 {name}_pl_o{m}{tag}")
            A(f"s_mul_i32 s{sT}, s{sN+m}, 683")
            A(f"s_lshr_b32 s{sT}, s{sT}, 16")
            A(f"s_mul_i32 s{sT2}, s{sT}, 96")
            A(f"s_sub_u32 s{sT2}, s{sN+m}, s{sT2}")
            A(f"s_mul_i32 s{sT2}, s{sT2}, {16*1280}")
            A(f"s_lshl_b32 s{sT}, s{sT}, 6")
            A(f"s_add_u32 s{sT}, s{sT}, s{sT2}")
            A(f"buffer_load_dwordx4 {vr(vPW+4*m,4)}, v{vS1}, {sr(SRD_D,4)}, s{sT} offen")
            A(f"s_branch {name}_pl_n{m}{tag}")
            A.label(f"{name}_pl_o{m}{tag}")
            A(f"s_sub_u32 s{sT3}, s{sN+m}, 1920")
            A(f"s_mul_i32 s{sT}, s{sT3}, 1639")
            A(f"s_lshr_b32 s{sT}, s{sT}, 16")
            A(f"s_mul_i32 s{sT2}, s{sT}, 40")
            A(f"s_sub_u32 s{sT2}, s{sT3}, s{sT2}")
            A(f"s_lshl_b32 s{sT}, s{sT}, 6")
            A(f"s_cmp_ge_u32 s{sT2}, 32")
            A(f"s_cbranch_scc1 {name}_pl_t{m}{tag}")
            A.c("main step (one head): rows 20*head .. +15")
            A(f"s_mul_i32 s{sT2}, s{sT2}, {20*1280}")
            A(f"s_add_u32 s{sT}, s{sT}, s{sT2}")
            A(f"buffer_load_dwordx4 {vr(vPW+4*m,4)}, v{vS1}, {sr(SRD_O,4)}, s{sT} offen")
            A(f"s_branch {name}_pl_n{m}{tag}")
            A.label(f"{name}_pl_t{m}{tag}")
            A.c("tail step: d=16..19 of four heads (blocks past 2720 read zeros or junk, never stored)")
            A(f"s_sub_u32 s{sT2}, s{sT2}, 32")
            A(f"s_mul_i32 s{sT2}, s{sT2}, {80*1280}")
            A(f"s_add_u32 s{sT}, s{sT}, s{sT2}")
            A(f"buffer_load_dwordx4 {vr(vPW+4*m,4)}, v{vS2}, {sr(SRD_O,4)}, s{sT} offen")
            A.label(f"{name}_pl_n{m}{tag}")
        A("v_and_b32 v3, 31, v2")
        A("v_lshlrev_b32 v3, 4, v3")
        A(f"v_lshrrev_b32 v{vTK}, 5, v2")
        A(f"s_lshl_b32 s{sT}, s{sL}, 1")
        A(f"v_add_u32 v{vTK}, s{sT}, v{vTK}")
        A(f"v_mul_u32_u24 v5, 1280, v{vTK}")
        A("v_add_u32 v5, v5, v3")
        A("v_and_b32 v6, 16, v2")
        A("v_cmp_ne_u32 vcc, 0, v6")
        A(f"v_mov_b32 v7, 0x7ff00000")
        A("v_add_u32 v6, 1024, v5")
        A("v_add_u32 v4, 1024, v3")
        A("v_cndmask_b32 v6, v6, v7, vcc")
        A("v_cndmask_b32 v4, v4, v7, vcc")
        A(f"buffer_load_dwordx4 {vr(vGX,4)}, v5, {sr(SRD_X,4)}, 0 offen")
        A(f"buffer_load_dwordx4 {vr(vGX+4,4)}, v5, {sr(SRD_X,4)}, 0 offen offset:512")
        A(f"buffer_load_dwordx4 {vr(vGX+8,4)}, v6, {sr(SRD_X,4)}, 0 offen")
        A(f"buffer_load_dwordx4 {vr(vGW,4)}, v3, {sr(SRD_G,4)}, 0 offen")
        A(f"buffer_load_dwordx4 {vr(vGW+4,4)}, v3, {sr(SRD_G,4)}, 0 offen offset:512")
        A(f"buffer_load_dwordx4 {vr(vGW+8,4)}, v4, {sr(SRD_G,4)}, 0 offen")
        return 9
    def side_process(tag='', scr_shift=9, scr_base=None):
        A.c("side job: gate g = sigmoid(x . gate_w)")
        A("v_mov_b32 v3, 0")
        for j in range(12):
            A(f"v_dot2c_f32_bf16 v3, v{vGX+j}, v{vGW+j}")
        A("s_nop 3")
        for sh in (1, 2, 4, 8):
            A(f"v_add_f32_dpp v3, v3, v3 row_shr:{sh} row_mask:0xf bank_mask:0xf bound_ctrl:0")
            A("s_nop 1")
        A("v_add_f32_dpp v3, v3, v3 row_bcast:15 row_mask:0xa bank_mask:0xf")
        A("s_nop 1")
        A("v_mul_f32 v3, 0xbfb8aa3b, v3")
        A("v_exp_f32 v3, v3")
        A("s_nop 0")
        A("v_add_f32 v3, 1.0, v3")
        A("v_rcp_f32 v3, v3")
        A(f"v_lshlrev_b32 v{vTK}, 2, v{vTK}")
        A("v_and_b32 v6, 31, v2")
        A("v_cmp_eq_u32 vcc, 31, v6")
        A(f"s_mov_b32 s{sT}, {GG}")
        A("s_and_saveexec_b64 s[50:51], vcc")
        A(f"s_cbranch_execz {name}_gate_done{tag}")
        A(f"buffer_store_dword v3, v{vTK}, {sr(SRD_WS,4)}, s{sT} offen{SC1}")
        A.label(f"{name}_gate_done{tag}")
        A("s_mov_b64 exec, s[50:51]")
        A.c("side job: transpose Wd / Wo blocks into MFMA A-fragment order through a 512-byte LDS scratch per wave")
        A(f"s_lshl_b32 s{sT}, s{sW}, 9")
        A(f"s_add_u32 s{sT}, s{sT}, {K1_LDS - 2048 if scr_base is None else scr_base}")
        A("v_and_b32 v4, 31, v2")
        A("v_lshlrev_b32 v4, 4, v4")
        A(f"v_add_u32 v4, s{sT}, v4")
        A("v_lshrrev_b32 v7, 5, v2")
        A("v_bfe_u32 v5, v2, 2, 2")
        A("v_lshl_add_u32 v5, v7, 2, v5")
        A("v_lshlrev_b32 v5, 6, v5")
        A("v_bfe_u32 v6, v2, 4, 1")
        A("v_lshl_add_u32 v5, v6, 5, v5")
        A("v_and_b32 v6, 3, v2")
        A("v_lshl_add_u32 v5, v6, 3, v5")
        A(f"v_add_u32 v5, s{sT}, v5")
        A("v_lshlrev_b32 v7, 4, v2")
        OUT = 104
        for m in range(3):
            if m == 2:
                A(f"s_cmp_ge_u32 s{sN+m}, 2720")
                A(f"s_cbranch_scc1 {name}_prep_done{tag}")
            for half in range(2):
                A("s_mov_b32 exec_hi, 0" if half == 0 else "s_mov_b32 exec_lo, 0")
                A(f"ds_write_b128 v4, {vr(vPW+4*m,4)}")
                A("s_mov_b64 exec, -1")
                A("s_waitcnt lgkmcnt(0)")
                A(f"ds_read_b64_tr_b16 {vr(OUT+4*m+2*half,2)}, v5")
                A("s_waitcnt lgkmcnt(0)")
            A(f"s_lshl_b32 s{sT}, s{sN+m}, 10")
            A(f"s_add_u32 s{sT}, s{sT}, {WDF}")
            A(f"buffer_store_dwordx4 {vr(OUT+4*m,4)}, v7, {sr(SRD_WS,4)}, s{sT} offen{SC1}")
        A.label(f"{name}_prep_done{tag}")
    if F6:
        from p1two import Seq
        q = Seq()
        q.add(("st", 0), 5); q.add(("st", 1), 5)
        PFL = prefetch_setup() if (not asmlib.OPT.get("nopf") and asmlib.OPT.get("pfq")) else []
        NPS = asmlib.OPT.get("nps", 10)
        if asmlib.OPT.get("early2"):
            issue_stage(); q.add(("st", 2), 13)
        for S in range(10):
            A(f"s_waitcnt vmcnt({q.n_after(('st', S))})")
            A("s_barrier")
            if S == 8 and not SP: stamp(A, 1)
            if S + 2 <= 9 and (S > 0 or not asmlib.OPT.get("early2")):
                issue_stage(); q.add(("st", S+2), 13)
            for l in PFL[:NPS]:
                A(l); q.add("pf")
            PFL = PFL[NPS:]
            if S == 7 and fused and asmlib.OPT.get("early"):
                tag_load(); q.add("tag")
        A(f"s_cmp_eq_u32 s{sTYPE}, 2")
        A(f"s_cbranch_scc0 {name}_novp")
        vpad("q", 120)
        A.label(f"{name}_novp")
        A("s_barrier")
        if not SP: stamp(A, 2)
    else:
        if not asmlib.OPT.get("early2"):
            A("s_waitcnt vmcnt(5)")
            A("s_barrier")
            issue_stage()
            NPF = prefetch_inputs() if not (asmlib.OPT.get("nopf") or (F6 and not asmlib.OPT.get("pfall"))) else 0
            A(f"s_waitcnt vmcnt({13+NPF})")
            A("s_barrier")
            issue_stage()
            A(f"s_waitcnt vmcnt({13+NPF})")
            A("s_barrier")
            issue_stage()
        else:
            issue_stage()
            A("s_waitcnt vmcnt(18)")
            A("s_barrier")
            NPF = prefetch_inputs() if not (asmlib.OPT.get("nopf") or (F6 and not asmlib.OPT.get("pfall"))) else 0
            A(f"s_waitcnt vmcnt({13+NPF})")
            A("s_barrier")
            issue_stage()
            A(f"s_waitcnt vmcnt({NPF+13})")
            A("s_barrier")
            issue_stage()
    if F6:
        pass
    elif not asmlib.OPT.get("earlyside"):
        for S in range(3, 8):
            A("s_waitcnt vmcnt(13)")
            A("s_barrier")
            issue_stage()
        NS = side_loads()
        A(f"s_waitcnt vmcnt({13+NS})")
        A("s_barrier")
        if not SP: stamp(A, 1)
        A(f"s_waitcnt vmcnt({NS})")
        A("s_barrier")
        if not asmlib.OPT.get("earlyconst"): const_stores("l", 120)
        A("s_barrier")
        if not SP: stamp(A, 2)
        A("s_waitcnt vmcnt(3)" if not asmlib.OPT.get("earlyconst") else "s_waitcnt vmcnt(0)")
        side_process()
    else:
        A("s_waitcnt vmcnt(13)")
        A("s_barrier")
        issue_stage()
        A("s_waitcnt vmcnt(13)")
        A("s_barrier")
        NS = side_loads()
        issue_stage()
        A(f"s_waitcnt vmcnt({13+NS})")
        A("s_barrier")
        issue_stage()
        A("s_waitcnt vmcnt(13)")
        A("s_barrier")
        issue_stage()
        side_process()
        A("s_waitcnt vmcnt(16)")
        A("s_barrier")
        issue_stage()
        A("s_waitcnt vmcnt(16)")
        A("s_barrier")
        if not SP: stamp(A, 1)
        A("s_waitcnt vmcnt(0)")
        A("s_barrier")
        A("s_barrier")
        if not SP: stamp(A, 2)
    if F6:
        from p1two import Seq
        A(f"s_branch {name}_fin")
        XR, WB6, WST, UO6 = 32768, 98304, 12320, 6176
        A.label(f"{name}_f6l")
        vW6O = 16
        A(f"s_and_b32 s{sT}, s{sW}, 1")
        A(f"s_mul_i32 s{sT}, s{sT}, 192")
        for i in range(3):
            A(f"v_add_u32 v3, s{sT}, v2")
            A(f"v_add_u32 v3, {64*i}, v3")
            A("v_mul_u32_u24 v4, 5462, v3")
            A("v_lshrrev_b32 v4, 16, v4")
            A("v_mul_u32_u24 v5, 12, v4")
            A("v_sub_u32 v5, v3, v5")
            A("v_mul_u32_u24 v4, 3072, v4")
            A(f"v_lshl_add_u32 v{vW6O+i}, v5, 4, v4")
        sLX, sLW = 61, 62
        A(f"s_lshl_b32 s{sLX}, s{sW}, 13")
        A(f"s_lshr_b32 s{sT}, s{sW}, 1")
        A(f"s_mul_i32 s{sLW}, s{sT}, {UO6}")
        A(f"s_and_b32 s{sT}, s{sW}, 1")
        A(f"s_mul_i32 s{sT}, s{sT}, 3072")
        A(f"s_add_u32 s{sLW}, s{sLW}, s{sT}")
        A(f"s_add_u32 s{sLW}, s{sLW}, {WB6}")
        A(f"s_mul_i32 s{sWO_}, s{sCB}, 192")
        A("s_waitcnt lgkmcnt(0)")
        A(f"s_cmp_ge_u32 s{sW}, 2")
        A(f"s_cselect_b32 s{SRD_W}, s{sWU}, s{sWG}")
        A(f"s_cselect_b32 s{SRD_W+1}, s{sWU+1}, s{sWG+1}")
        A(f"s_and_b32 s{SRD_W+1}, s{SRD_W+1}, 0xffff")
        A(f"s_mov_b32 s{SRD_W+2}, {640*3072}")
        A(f"s_mov_b32 s{SRD_W+3}, 0x20000")
        q = Seq()
        def w6(j):
            for i in range(3):
                A(f"s_add_u32 m0, s{sLW}, {(j % 5)*WST + i*1024}")
                A("s_nop 0")
                A(f"buffer_load_dwordx4 v{vW6O+i}, {sr(SRD_W,4)}, s{sWO_} offen lds")
            A(f"s_add_u32 s{sWO_}, s{sWO_}, {32*3072}")
            q.add(("w", j), 3)
        def x6(i):
            for j in range(8):
                A(f"s_add_u32 m0, s{sLX}, {(i % 3)*XR + j*1024}")
                A("s_nop 0")
                A(f"buffer_load_dwordx4 v{vXO+j}, {sr(SRD_X,4)}, s{sXO} offen lds")
            A(f"s_add_u32 s{sXO}, s{sXO}, 128")
            q.add(("x", i), 8)
        w6(0); w6(1)
        srd_x(); srd_ws(); x_voffsets(vXO)
        if not asmlib.OPT.get("f6late"):
            w6(2); w6(3); x6(2)
        if asmlib.OPT.get("early2"): w6(4)
        A(f"s_waitcnt vmcnt({q.n_after(('w', 0))})")
        A("s_barrier")
        if asmlib.OPT.get("f6late"):
            w6(2); x6(2); w6(3)
        PFL = prefetch_setup() if not asmlib.OPT.get("nopf") else []
        NPS = asmlib.OPT.get("nps6", 14)
        for j in range(20):
            need = []
            if j + 1 <= 19: need.append(("w", j+1))
            if j & 1 and 2 <= (j+1)//2 <= 9: need.append(("x", (j+1)//2))
            if need: A(f"s_waitcnt vmcnt({min(63, min(q.n_after(t) for t in need))})")
            A("s_barrier")
            if j + 4 <= 19 and (j > 0 or not asmlib.OPT.get("early2")): w6(j+4)
            if j & 1:
                i = (j+1)//2
                if i + 2 <= 9: x6(i+2)
            for l in PFL[:NPS]:
                A(l); q.add("pf")
            PFL = PFL[NPS:]
            if j == 15 and fused and asmlib.OPT.get("early"):
                tag_load(); q.add("tag")
        A(f"s_branch {name}_f6ldone")
        A.label(f"{name}_idlel")
        A("s_waitcnt lgkmcnt(0)")
        if fused and asmlib.OPT.get("early"):
            A("s_cmp_eq_u32 s2, 224")
            A(f"s_cbranch_scc0 {name}_notag")
            A(f"s_cmp_eq_u32 s{sW}, 0")
            A(f"s_cbranch_scc0 {name}_notag")
            dbg_srd(68)
            A("s_memrealtime s[74:75]")
            A("s_waitcnt lgkmcnt(0)")
            A("s_or_b32 s74, s74, 1")
            A("s_mov_b64 exec, 1")
            A("v_mov_b32 v4, s74")
            A("v_mov_b32 v3, 240")
            A("buffer_store_dword v4, v3, s[68:71], 0 offen sc1")
            A("s_mov_b64 exec, -1")
            A.label(f"{name}_notag")
        if not asmlib.OPT.get("nopf"):
            for l in prefetch_setup(): A(l)
        A(f"s_add_u32 s{sW}, s{sW}, 4")
        A.label(f"{name}_idlec")
        A("s_waitcnt lgkmcnt(0)")
        srd_x(); srd_ws()
        sIW, sIT = 65, 66
        A(f"s_lshr_b32 s{sT}, s2, 3")
        A(f"s_sub_u32 s{sT}, s{sT}, 28")
        A(f"s_lshl_b32 s{sT}, s{sT}, 3")
        A(f"s_and_b32 s{sT2}, s2, 7")
        A(f"s_add_u32 s{sT}, s{sT}, s{sT2}")
        A(f"s_lshl_b32 s{sT}, s{sT}, 3")
        A(f"s_add_u32 s{sIW}, s{sT}, s{sW}")
        if asmlib.OPT.get("pf0"):
            A.c("first thing: these otherwise idle waves stream x and the first weight rows linearly (cold start: the tile loads of the first stages then hit the memory-side cache)")
            A("v_lshlrev_b32 v3, 4, v2")
            for (ptr, nb, r) in ((sX, 2048*1280, 68), (sWQ, 192*3840, 72), (sWG, 192*3072, 76), (sWU, 192*3072, 80)):
                A(f"s_mov_b32 s{r}, s{ptr}")
                A(f"s_and_b32 s{r+1}, s{ptr+1}, 0xffff")
                A(f"s_mov_b32 s{r+2}, {nb}")
                A(f"s_mov_b32 s{r+3}, 0x20000")
            A(f"s_lshl_b32 s{sT}, s{sIW}, 10")
            A(f"v_add_u32 v3, s{sT}, v3")
            for j in range(10):
                for (r, n) in ((72, 3), (76, 3), (80, 3), (68, 10)):
                    if j < n:
                        A(f"buffer_load_dwordx4 v[60:63], v3, {sr(r,4)}, 0 offen")
                A(f"v_add_u32 v3, {256*1024}, v3")
        A(f"s_mov_b32 s{sIT}, 0")
        A.label(f"{name}_idleloop")
        A(f"s_lshl_b32 s{sL}, s{sIW}, 2")
        A(f"s_add_u32 s{sL}, s{sL}, s{sIT}")
        side_loads("_id")
        A("s_waitcnt vmcnt(0)")
        side_process("_id", scr_shift=8, scr_base=0)
        fill_of(120)
        A(f"s_add_u32 s{sIT}, s{sIT}, 1")
        A(f"s_cmp_lt_u32 s{sIT}, 4")
        A(f"s_cbranch_scc1 {name}_idleloop")
        if fused and asmlib.OPT.get("early"): tag_load()
        A(f"s_branch {name}_fin")
        A.label(f"{name}_f6ldone")
        if fused and asmlib.OPT.get("early"):
            A("s_barrier")
            A(f"s_branch {name}_f6fin")
    A.label(f"{name}_fin")
    if asmlib.PROFILE and not asmlib.OPT.get("noflush0"):
        A("s_waitcnt vmcnt(0)")
        if SP:
            A("v_readfirstlane_b32 s83, v0")
            A("s_nop 3")
            A("s_cmp_ge_u32 s83, 256")
            A(f"s_cbranch_scc1 {name}_fin_sp")
        stamp(A, 3)
        if SP:
            A(f"s_branch {name}_fin_sp2")
            A.label(f"{name}_fin_sp")
            A("s_mov_b32 s92, s66")
            A.label(f"{name}_fin_sp2")
        A("v_readfirstlane_b32 s83, v0")
        A("s_nop 3")
        A("s_lshr_b32 s83, s83, 6")
        stamp_flush(A, 0, SRD_WS, 83, 4)
    if not fused:
        A.label(f"{name}_end")
        A("s_endpgm")
        return 256
    if F6 and asmlib.OPT.get("early"):
        A("s_mov_b64 exec, -1")
        A("s_waitcnt vmcnt(0) lgkmcnt(0)")
        A("s_barrier")
        A(f"s_lshl_b32 s70, s{sTYPE}, 3")
        A(f"s_add_u32 s70, s70, s{sRB}")
        A(f"s_lshr_b32 s{sT}, s2, 3")
        A(f"s_sub_u32 s{sT}, s{sT}, 28")
        A(f"s_lshl_b32 s{sT}, s{sT}, 3")
        A(f"s_and_b32 s{sT2}, s2, 7")
        A(f"s_add_u32 s{sT}, s{sT}, s{sT2}")
        A(f"s_add_u32 s{sT}, s{sT}, 64")
        A(f"s_cmp_eq_u32 s{sTYPE}, 4")
        A(f"s_cselect_b32 s70, s{sT}, s70")
        A("s_mov_b32 s71, -1")
        A("v_readfirstlane_b32 s83, v0")
        A("v_readfirstlane_b32 s61, v130")
        A("s_nop 3")
        A("s_lshr_b32 s83, s83, 6")
        A("s_cmp_eq_u32 s83, 4")
        A(f"s_cbranch_scc0 {name}_p2_entry")
        A("s_cmp_eq_u32 s61, 0")
        A(f"s_cbranch_scc1 {name}_p2_entry")
        A("v_mov_b32 v14, s61")
        A("s_cmp_ge_u32 s70, 64")
        A(f"s_cbranch_scc1 {name}_mk_side")
        A("s_and_b32 s60, s2, 6")
        A("v_lshrrev_b32 v13, 1, v2")
        A("v_lshlrev_b32 v13, 3, v13")
        A("v_and_b32 v15, 1, v2")
        A("v_add3_u32 v13, v13, v15, s60")
        A("v_lshlrev_b32 v13, 9, v13")
        A("s_lshl_b32 s60, s70, 2")
        A(f"s_add_u32 s60, s60, {MK}")
        A(f"buffer_store_dword v14, v13, {sr(SRD_WS,4)}, s60 offen sc1")
        A("s_mov_b32 s70, -1")
        A(f"s_branch {name}_p2_entry")
        A.label(f"{name}_mk_side")
        A("s_lshl_b32 s60, s70, 2")
        A(f"s_add_u32 s60, s60, {MK}")
        A("v_lshlrev_b32 v13, 9, v2")
        for m in range(4):
            A(f"buffer_store_dword v14, v13, {sr(SRD_WS,4)}, s60 offen sc1")
            if m < 3: A("s_add_u32 s60, s60, 32768")
        A("s_mov_b32 s70, -1")
        A(f"s_branch {name}_p2_entry")
        A.label(f"{name}_f6fin")
        A("s_mov_b64 exec, -1")
        A("s_mov_b32 s70, -1")
        A(f"s_lshl_b32 s71, s{sRB}, 8")
        A(f"s_add_u32 s71, s71, s{sCB}")
        A.label(f"{name}_p2_entry")
        return 256
    A.c("every wave drains its write-through stores, then one lane signals for the workgroup")
    A("s_mov_b64 exec, -1")
    A("s_waitcnt vmcnt(0) lgkmcnt(0)")
    A("s_barrier")
    sDBG, SRD_D2 = 4, 8
    A(f"s_load_dwordx2 {sr(sDBG,2)}, s[0:1], {KA_DBG}")
    A("v_readfirstlane_b32 s83, v0")
    A("s_nop 3")
    A("s_cmp_lt_u32 s83, 64")
    A(f"s_cbranch_scc0 {name}_p1polled")
    if asmlib.OPT.get('wbl2'):
        A("buffer_wbl2 sc1")
        A("s_waitcnt vmcnt(0)")
    A("s_waitcnt lgkmcnt(0)")
    A(f"s_mov_b32 s{SRD_D2}, s{sDBG}")
    A(f"s_and_b32 s{SRD_D2+1}, s{sDBG+1}, 0xffff")
    A(f"s_mov_b32 s{SRD_D2+2}, 256")
    A(f"s_mov_b32 s{SRD_D2+3}, 0x20000")
    if F6:
        A(f"s_bfe_u32 s{sT3}, s2, 0x20001")
        A(f"s_add_u32 s{sT2}, s{sRB}, 32")
        A(f"s_cmp_eq_u32 s{sTYPE}, 3")
        A(f"s_cselect_b32 s{sT}, s{sT2}, s{sT3}")
        A(f"s_cmp_eq_u32 s{sTYPE}, 4")
        A(f"s_cselect_b32 s{sT}, 40, s{sT}")
        A(f"s_lshl_b32 s{sT}, s{sT}, 2")
        A("s_mov_b64 exec, 1")
        A(f"v_mov_b32 v3, s{sT}")
        A("v_mov_b32 v4, 1")
        if not asmlib.OPT.get("noatomic"): A(f"buffer_atomic_add v4, v3, {sr(SRD_D2,4)}, 0 offen sc1")
        A(f"s_lshl_b32 s{sT3}, s{sT3}, 2")
        A(f"v_mov_b32 v3, s{sT3}")
        A("v_mov_b32 v5, 24")
    else:
        A(f"s_and_b32 s{sT}, s{sCB}, 3")
        A(f"s_add_u32 s{sT2}, s{sRB}, 32")
        A(f"s_cmp_ge_u32 s{sCB}, 12")
        A(f"s_cselect_b32 s{sT}, s{sT2}, s{sT}")
        A(f"s_lshl_b32 s{sT}, s{sT}, 2")
        A("s_mov_b64 exec, 1")
        A(f"v_mov_b32 v3, s{sT}")
        A("v_mov_b32 v4, 1")
        A(f"buffer_atomic_add v4, v3, {sr(SRD_D2,4)}, 0 offen sc1")
        A("s_mov_b64 exec, 0xfff")
        A("v_cmp_gt_u32 vcc, 4, v2")
        A("v_add_u32 v3, 28, v2")
        A("v_mov_b32 v5, 20")
        A("v_mov_b32 v6, 24")
        A("v_cndmask_b32 v3, v3, v2, vcc")
        A("v_cndmask_b32 v5, v5, v6, vcc")
        A("v_lshlrev_b32 v3, 2, v3")
    A(f"s_mov_b32 s{sT2}, 0")
    if asmlib.OPT.get("nopoll"): A(f"s_branch {name}_p1done")
    if F6:
        A(f"s_cmp_eq_u32 s{sTYPE}, 3")
        A(f"s_cbranch_scc1 {name}_p1poll")
        A(f"s_cmp_eq_u32 s{sTYPE}, 4")
        A(f"s_cbranch_scc0 {name}_p1bk")
        A.label(f"{name}_p1idle")
        A(f"buffer_load_dword v4, v3, {sr(SRD_D2,4)}, 0 offen sc1")
        A("s_waitcnt vmcnt(0)")
        A("v_cmp_gt_u32 vcc, 1, v4")
        A(f"s_add_u32 s{sT2}, s{sT2}, 1")
        A("s_nop 1")
        A(f"s_cbranch_vccz {name}_p1bk")
        A("s_sleep 127")
        A(f"s_cmp_lt_u32 s{sT2}, 0x4000")
        A(f"s_cbranch_scc1 {name}_p1idle")
        A.label(f"{name}_p1bk")
        A(f"s_sleep {asmlib.OPT.get('slp0', 40)}")
    A.label(f"{name}_p1poll")
    A(f"buffer_load_dword v4, v3, {sr(SRD_D2,4)}, 0 offen sc1")
    A("s_waitcnt vmcnt(0)")
    A("v_cmp_lt_u32 vcc, v4, v5")
    A(f"s_add_u32 s{sT2}, s{sT2}, 1")
    A("s_nop 1")
    A(f"s_cbranch_vccz {name}_p1done")
    A(f"s_sleep {asmlib.OPT.get('slp', 16)}")
    A(f"s_cmp_lt_u32 s{sT2}, 0x40000")
    A(f"s_cbranch_scc1 {name}_p1poll")
    A.label(f"{name}_p1done")
    A("s_mov_b64 exec, -1")
    A.label(f"{name}_p1polled")
    A("s_waitcnt lgkmcnt(0)")
    A("s_barrier")
    return 256
```

```python
from asmlib import *
import asmlib
from layout import *
from k23 import ws_srd

K2_LDS = 8*CH + 24576

class VmTrack:
    def __init__(self):
        self.seq = []
        self.need = {}
    def issue(self, tag): self.seq.append(tag)
    def wait(self, wid, tags):
        idx = [i for i, t in enumerate(self.seq) if t in tags]
        if not idx: return
        n = len(self.seq) - 1 - max(idx)
        self.need[wid] = min(self.need.get(wid, 63), n)

def gen_k2(A, name, fused=False, env=None):
    if not fused: kernel_header(A, name)
    LD1 = ' sc1' if (fused and asmlib.OPT.get("ldsc1")) else ''
    sWS = 4; SRD = 8; sW = 12; sT, sT2, sT3 = 13, 14, 15
    sHEAD, sQT, sKV, sM0, sCNT, sG, sHF = 16, 17, 18, 19, 20, 21, 22
    sTT, sCBK = 23, 24
    sA0, sB0 = 26, 31
    if not fused:
        A("s_cmp_ge_u32 s2, 256")
        A(f"s_cbranch_scc1 {name}_end")
    TP = asmlib.OPT.get("tailprof")
    if (not TP or TP == 5) and not asmlib.OPT.get('noflush0'): stamp(A, 0)
    A(f"s_load_dwordx2 {sr(sWS,2)}, s[0:1], {KA_WS}")
    A(f"s_load_dwordx2 s[38:39], s[0:1], {KA_DBG}")
    A(f"s_load_dwordx2 s[48:49], s[0:1], {KA_OUT}")
    A("v_lshrrev_b32 v1, 6, v0")
    A("v_and_b32 v2, 63, v0")
    A(f"v_readfirstlane_b32 s{sW}, v1")
    A(f"s_and_b32 s{sT}, s2, 7")
    A(f"s_lshr_b32 s{sT2}, s2, 3")
    A(f"s_and_b32 s{sT3}, s{sT2}, 3")
    A(f"s_lshl_b32 s{sHEAD}, s{sT}, 2")
    A(f"s_add_u32 s{sHEAD}, s{sHEAD}, s{sT3}")
    A(f"s_and_b32 s{sG}, s{sW}, 3")
    A(f"s_lshr_b32 s{sHF}, s{sW}, 2")
    A(f"s_lshr_b32 s{sQT}, s{sT2}, 2")
    A(f"s_lshl_b32 s{sQT}, s{sQT}, 3")
    A(f"s_lshl_b32 s{sT3}, s{sG}, 1")
    A(f"s_add_u32 s{sQT}, s{sQT}, s{sT3}")
    A(f"s_lshl_b32 s{sTT}, s{sT}, 3")
    A(f"s_and_b32 s{sT3}, s{sT2}, 7")
    A(f"s_add_u32 s{sTT}, s{sTT}, s{sT3}")
    A(f"s_lshr_b32 s{sCBK}, s{sT2}, 3")
    A("s_waitcnt lgkmcnt(0)")
    if TP == 5: stamp(A, 1)
    ws_srd(A, SRD, sWS)
    if asmlib.OPT.get("lone"):
        A(f"s_cmp_ge_u32 s{sW}, 4")
        A(f"s_cbranch_scc1 {name}_end")
    SA, SB = 16, 32; P = 48; OA, OB = 56, 72
    Q16A, Q4A, Q16B, Q4B = 88, 92, 94, 98
    K16 = 100; K4 = [104, 106]; V1 = 108; V2 = 112; E = [116, 120]
    FR = 124; ACC = 172
    vL16, vKV, vK4a, vDma, vFo = 4, 5, 6, 7, 8
    vKVy, vK4y = 10, 11
    sDX, sNB, sCHK = 40, 41, 42
    A(f"v_lshlrev_b32 v{vL16}, 4, v2")
    A(f"s_mul_i32 s{sT}, s{sHF}, {4*CH}")
    A(f"v_add_u32 v{vKV}, s{sT}, v{vL16}")
    A("v_and_b32 v3, 31, v2")
    A(f"v_lshlrev_b32 v9, 3, v3")
    A(f"v_add_u32 v9, 1024, v9")
    A(f"v_add_u32 v{vK4a}, s{sT}, v9")
    A(f"v_add_u32 v{vKVy}, {CH}, v{vKV}")
    A(f"v_add_u32 v{vK4y}, {CH}, v{vK4a}")
    A(f"s_mov_b32 s{sDX}, {2*CH}")
    A(f"s_mov_b32 s{sNB}, {3*CH}")
    A(f"s_mov_b32 s{sCHK}, 3")
    A(f"v_mov_b32 v{vDma}, v{vL16}")
    A(f"v_mov_b32 v{vFo}, v{vL16}")
    A(f"s_mul_i32 s{sM0}, s{sG}, 3072")
    A(f"s_add_u32 s{sM0}, s{sM0}, s{sT}")
    A(f"s_mul_i32 s{sKV}, s{sHEAD}, {HS_KV}")
    A(f"s_mul_i32 s{sT2}, s{sHF}, {8*CH}")
    A(f"s_add_u32 s{sKV}, s{sKV}, s{sT2}")
    A(f"s_mul_i32 s{sT2}, s{sG}, 3072")
    A(f"s_add_u32 s{sKV}, s{sKV}, s{sT2}")
    A(f"s_add_u32 s{sKV}, s{sKV}, {KV}")
    A("s_mov_b32 s52, 0x30800000")
    A("s_mov_b32 s53, 0x58800000")
    vm = VmTrack()
    def dma_piece(chunk, i, emit, dyn=False):
        if emit:
            if i == 0:
                if dyn:
                    A(f"s_cmp_ge_u32 s{sCHK}, 8")
                    A(f"s_cselect_b32 s{sT}, 0x7fff0000, 0")
                    A(f"s_add_u32 m0, s{sM0}, s{sNB}")
                    A(f"v_or_b32 v{vDma}, s{sT}, v{vL16}")
                else:
                    A(f"s_add_u32 m0, s{sM0}, {(chunk & 3)*CH}")
                    A("s_nop 0")
            A(f"buffer_load_dwordx4 v{vDma}, {sr(SRD,4)}, s{sKV} offen offset:{i*1024}{LD1} lds")
            if i == 3:
                A(f"s_add_u32 s{sKV}, s{sKV}, {CH}")
                if dyn:
                    A(f"s_add_u32 s{sCHK}, s{sCHK}, 1")
                    A(f"s_add_u32 s{sNB}, s{sNB}, {CH}")
                    A(f"s_cmp_eq_u32 s{sNB}, {4*CH}")
                    A(f"s_cselect_b32 s{sNB}, 0, s{sNB}")
        vm.issue(("dma", chunk))
    def dma(chunk, emit):
        for i in range(4): dma_piece(chunk, i, emit)
    def fslot(s): return FR + (s & 1)*24
    def fload(s, which, imm, emit):
        b = fslot(s)
        if emit and not (asmlib.OPT.get("noffnload") and s >= 2):
            if which < 5:
                A(f"buffer_load_dwordx4 {vr(b+4*which,4)}, v{vFo}, {sr(SRD,4)}, s{sA0+which} offen offset:{imm}{LD1}")
            else:
                A(f"buffer_load_dwordx4 {vr(b+20,4)}, v{vFo}, {sr(SRD,4)}, s{sB0} offen offset:{imm}{LD1}")
        vm.issue(("f", s))
    EARLY = bool(env and env.get("early"))
    if EARLY:
        QS = 8*CH
        LF = env["LF"]
        A(f"s_cmp_lt_u32 s{sW}, 4")
        A(f"s_cbranch_scc1 {name}_gwait")
        env["sync_hook"]()
        A(f"s_mul_i32 s{sT}, s{sHEAD}, {HS_Q}")
        A(f"s_mul_i32 s{sT2}, s{sQT}, 1280")
        A(f"s_add_u32 s{sT}, s{sT}, s{sT2}")
        if QF: A(f"s_add_u32 s{sT}, s{sT}, {QF}")
        A(f"s_mul_i32 s{sT2}, s{sG}, 3072")
        A(f"s_add_u32 m0, s{sT2}, {QS}")
        A("s_nop 0")
        for i in range(3):
            A(f"buffer_load_dwordx4 v{vL16}, {sr(SRD,4)}, s{sT} offen offset:{i*1024}{LD1} lds")
            vm.issue(("q", 0))
        A(f"s_mul_i32 s{sT}, s{sHEAD}, {HS_KV}")
        A(f"s_add_u32 s{sT}, s{sT}, s{sT2}")
        A(f"s_add_u32 s{sT}, s{sT}, {KV}")
        for c in range(3):
            for hf in range(2):
                A(f"s_add_u32 s{sT3}, s{sT}, {(8*hf + c)*CH}")
                A(f"s_add_u32 m0, s{sT2}, {hf*4*CH + c*CH}")
                A("s_nop 0")
                for i in range(4):
                    A(f"buffer_load_dwordx4 v{vL16}, {sr(SRD,4)}, s{sT3} offen offset:{i*1024}{LD1} lds")
                    vm.issue(("dma", c))
        vm.wait("pro", [("dma", 0), ("q", 0)])
        A(f"s_waitcnt vmcnt({vm.need['pro']})")
        A.label(f"{name}_gwait")
        A(f"s_add_u32 s{sKV}, s{sKV}, {3*CH}")
    else:
        A(f"s_mul_i32 s{sT}, s{sHEAD}, {HS_Q}")
        A(f"s_mul_i32 s{sT2}, s{sQT}, 1280")
        A(f"s_add_u32 s{sT}, s{sT}, s{sT2}")
        if QF: A(f"s_add_u32 s{sT}, s{sT}, {QF}")
        A(f"buffer_load_dwordx4 {vr(Q16A,4)}, v{vL16}, {sr(SRD,4)}, s{sT} offen{LD1}")
        A(f"buffer_load_dwordx2 {vr(Q4A,2)}, v9, {sr(SRD,4)}, s{sT} offen{LD1}")
        A(f"buffer_load_dwordx4 {vr(Q16B,4)}, v{vL16}, {sr(SRD,4)}, s{sT} offen offset:1280{LD1}")
        A(f"buffer_load_dwordx2 {vr(Q4B,2)}, v9, {sr(SRD,4)}, s{sT} offen offset:1280{LD1}")
        for i in range(4): vm.issue(("q", 0))
        dma(0, True)
        A("s_barrier")
        dma(1, True)
    A(f"s_mul_i32 s{sT}, s{sW}, {12*1024}")
    A(f"s_mul_i32 s{sT2}, s{sCBK}, {5*96*1024}")
    A(f"s_add_u32 s{sT2}, s{sT2}, s{sT}")
    A(f"s_add_u32 s{sA0}, s{sT2}, {WDF}")
    for mt in range(1, 5): A(f"s_add_u32 s{sA0+mt}, s{sA0+mt-1}, {96*1024}")
    A(f"s_mul_i32 s{sT2}, s{sTT}, {96*1024}")
    A(f"s_add_u32 s{sT2}, s{sT2}, s{sT}")
    A(f"s_add_u32 s{sB0}, s{sT2}, {HF}")
    if not EARLY: dma(2, True)
    vG1, vG2 = 252, 253
    sWo = 32
    A(f"s_mul_i32 s{sT}, s{sW}, {5*1024}")
    A(f"s_mul_i32 s{sT2}, s{sCBK}, {5*40*1024}")
    A(f"s_add_u32 s{sT2}, s{sT2}, s{sT}")
    A(f"s_add_u32 s{sWo}, s{sT2}, {WOF}")
    for mt in range(1, 5): A(f"s_add_u32 s{sWo+mt}, s{sWo+mt-1}, {40*1024}")
    A("v_cmp_lt_u32 vcc, 31, v2")
    for r in list(range(OA, OA+32)) + list(range(P, P+8)) + list(range(V2, V2+4)) + list(range(E[0], E[0]+8)):
        A(f"v_mov_b32 v{r}, 0")
    if EARLY:
        A("s_barrier")
        A(f"s_mul_i32 s{sT}, s{sG}, 3072")
        A(f"s_add_u32 s{sT}, s{sT}, {QS}")
        A(f"v_add_u32 v12, s{sT}, v{vL16}")
        A(f"v_add_u32 v13, s{sT}, v9")
        A(f"ds_read_b128 {vr(Q16A,4)}, v12")
        A(f"ds_read_b64 {vr(Q4A,2)}, v13")
        A(f"ds_read_b128 {vr(Q16B,4)}, v12 offset:1280")
        A(f"ds_read_b64 {vr(Q4B,2)}, v13 offset:1280")
        A("s_waitcnt lgkmcnt(0)")
        for r in (Q4A, Q4A+1, Q4B, Q4B+1):
            A(f"v_cndmask_b32 v{r}, v{r}, v{P}, vcc")
    else:
        vm.wait("pro", [("dma", 0), ("q", 0)])
        A(f"s_waitcnt vmcnt({vm.need['pro']})")
        if TP == 5: stamp(A, 3)
        for r in (Q4A, Q4A+1, Q4B, Q4B+1):
            A(f"v_cndmask_b32 v{r}, v{r}, v{P}, vcc")
        A("s_barrier")
    def reg(t, k4): return ((vK4a if k4 else vKV) if (t & 7) < 4 else (vK4y if k4 else vKVy))
    def koff(t): return (t & 3)*1280
    def voff(t, f): return 5120 + (t & 3)*2048 + f*1024
    rdK16 = lambda t: f"ds_read_b128 {vr(K16,4)}, v{reg(t,0)} offset:{koff(t)}"
    rdK4 = lambda t: f"ds_read_b64 {vr(K4[t & 1],2)}, v{reg(t,1)} offset:{koff(t)}"
    rdV1 = lambda t: f"ds_read_b128 {vr(V1,4)}, v{reg(t,0)} offset:{voff(t,0)}"
    rdV2 = lambda t: f"ds_read_b128 {vr(V2,4)}, v{reg(t,0)} offset:{voff(t,1)}"
    mS1 = lambda d, q: f"v_mfma_f32_32x32x16_bf16 {vr(d,16)}, {vr(K16,4)}, {vr(q,4)}, 0"
    mS2 = lambda d, q, t: f"v_mfma_f32_32x32x8_bf16 {vr(d,16)}, {vr(K4[t & 1],2)}, {vr(q,2)}, {vr(d,16)}"
    mP1 = lambda o: f"v_mfma_f32_32x32x16_bf16 {vr(o,16)}, {vr(V1,4)}, {vr(P,4)}, {vr(o,16)}"
    mP2 = lambda o: f"v_mfma_f32_32x32x16_bf16 {vr(o,16)}, {vr(V2,4)}, {vr(P+4,4)}, {vr(o,16)}"
    A(rdK16(0)); A(rdK4(0)); A(rdV1(0))
    A("s_waitcnt lgkmcnt(0)")
    A(mS1(SA, Q16A))
    for r in range(ACC, ACC+40): A(f"v_mov_b32 v{r}, 0")
    A(mS2(SA, Q4A, 0))
    for r in range(ACC+40, ACC+80): A(f"v_mov_b32 v{r}, 0")
    A(f"s_mov_b32 s{sCNT}, 0")
    if not TP or TP == 7: stamp(A, 1)
    def valu(cur, q):
        e = E[q & 1]; pe = E[(q+1) & 1]; pp = P + 2*((q-1) & 3)
        return [f"v_cvt_pk_bf16_f32 v{pp}, v{pe}, v{pe+1}",
                f"v_exp_f32 v{e}, v{cur+4*q}", f"v_exp_f32 v{e+1}, v{cur+4*q+1}",
                f"v_cvt_pk_bf16_f32 v{pp+1}, v{pe+2}, v{pe+3}",
                f"v_exp_f32 v{e+2}, v{cur+4*q+2}", f"v_exp_f32 v{e+3}, v{cur+4*q+3}"]
    FSLOT = {}
    k = 0
    for u in range(2, 16):
        FSLOT[u] = [(5, k)]; k += 1
        if u in ((3, 5, 7, 9, 11, 13) if asmlib.OPT.get("dodd") else (4, 6, 8, 10, 12, 14)): FSLOT[u].append((16, k)); k += 1
    assert k == 20
    def gate_loads(emit):
        if emit:
            A("v_lshlrev_b32 v14, 2, v3")
            A(f"s_add_u32 s{sT}, s{sQT}, s{sHF}")
            A(f"s_lshl_b32 s{sT}, s{sT}, 7")
            A(f"s_add_u32 s{sT}, s{sT}, {GG}")
            A(f"buffer_load_dword v{vG1}, v14, {sr(SRD,4)}, s{sT} offen{LD1}")
            A(f"s_lshl_b32 s{sT}, s{sTT}, 7")
            A(f"s_add_u32 s{sT}, s{sT}, {GG}")
            A(f"buffer_load_dword v{vG2}, v14, {sr(SRD,4)}, s{sT} offen{LD1}")
        vm.issue(("g", 0)); vm.issue(("g", 0))
    def body(kind, it, emit):
        def E_(s):
            if emit: A(s)
        for u in range(16):
            t = u >> 1
            gt = it*8 + t
            ev = (u & 1) == 0
            if ev and (t & 3) == 3:
                c = gt >> 2
                wid = ("bar", kind, u)
                vm.wait(wid, [("dma", c+1)])
                E_(f"s_waitcnt vmcnt(@{wid}@)")
                if kind == 0 and u == 14 and emit and TP == 6: stamp(A, 1)
                if kind == 0 and u == 14 and emit and gate_hook: gate_hook()
                if kind == 0 and u == 6 and emit and env and env.get("pre_b"): env["pre_b"]()
                E_("s_barrier")
                if kind == 0 and u == 6 and emit and env and env.get("post_b"): env["post_b"]()
                if kind == 0 and u == 14 and emit and TP == 6: stamp(A, 2)
            if kind == 0 and u == 11 and emit and env and env.get("gate_issue"): env["gate_issue"]()
            if u == 8:
                E_(f"v_add_u32 v{vKV}, s{sDX}, v{vKV}")
                E_(f"v_add_u32 v{vK4a}, s{sDX}, v{vK4a}")
            if u == 15:
                E_(f"v_add_u32 v{vKVy}, s{sDX}, v{vKVy}")
                E_(f"v_add_u32 v{vK4y}, s{sDX}, v{vK4y}")
            def ffn(k):
                fs, fmt = divmod(k, 5)
                gs = (it-1)*4 + fs
                b = fslot(fs)
                if k == 10:
                    E_(f"s_cmp_eq_u32 s{sCNT}, 2")
                    E_(f"s_cbranch_scc0 {name}_nowo")
                    for mt in range(5): E_(f"s_mov_b32 s{sA0+mt}, s{sWo+mt}")
                    E_(f"s_add_u32 s{sB0}, s{sWo}, 2048")
                    E_(f"v_mov_b32 v{vFo}, v{vL16}")
                    if emit: A.label(f"{name}_nowo")
                if fmt == 0:
                    wid = ("f", k)
                    vm.wait(wid, [("f", gs)])
                    E_(f"s_waitcnt vmcnt(@{wid}@)")
                d = vr(ACC+16*fmt,16)
                E_(f"v_mfma_f32_32x32x16_bf16 {d}, {vr(b+4*fmt,4)}, {vr(b+20,4)}, {d}")
                imm = (fs & 1)*1024
                def later():
                    fload(gs+2, fmt, imm, emit)
                    if fmt == 4:
                        fload(gs+2, 5, imm, emit)
                        if fs & 1:
                            E_(f"v_add_u32 v{vFo}, 2048, v{vFo}")
                return later
            cur = SA if ev else SB
            vv = valu(cur, 0) + valu(cur, 1) + valu(cur, 2) + valu(cur, 3)
            if ev:
                m = {"S1": [mS1(SB, Q16B), rdK16(t+1), rdK4(t+1)],
                     "P2": [mP2(OB), rdV2(t)],
                     "S2": [mS2(SB, Q4B, t)],
                     "P1": ["s_waitcnt lgkmcnt(3)", mP1(OA)]}
            else:
                m = {"S1": ["s_waitcnt lgkmcnt(0)", mS1(SA, Q16A)],
                     "P2": [mP2(OA)],
                     "S2": [mS2(SA, Q4A, t+1)],
                     "P1": [mP1(OB), rdV1(t+1)]}
            fsl = dict(FSLOT.get(u, [])) if kind == 1 else {}
            if len(fsl) == 2:   pos = {0: "S1", 8: "P2", 12: "S2", 20: "P1"}; fsl = {4: fsl[5], 16: fsl[16]}
            elif len(fsl) == 1: pos = {0: "S1", 10: "P2", 14: "S2", 19: "P1"}
            else:               pos = {0: "S1", 6: "P2", 12: "S2", 18: "P1"}
            dpos = {}
            if (t & 3) == 3: dpos = {3: 0, 17: 1} if ev else {3: 2, 17: 3}
            xl = {}
            if kind == 0 and u == 14: xl = {8: [("g",)], 10: [(0,5)], 12: [(0,0)], 14: [(0,1)], 20: [(0,2)], 22: [(0,3)]}
            if kind == 0 and u == 15: xl = {1: [(0,4)], 5: [(1,5)], 8: [(1,0)], 10: [(1,1)], 14: [(1,2)], 20: [(1,3)], 22: [(1,4)]}
            pend = {}
            for i, l in enumerate(vv):
                if i in dpos:
                    dma_piece((gt >> 2) + 3, dpos[i], emit, dyn=True)
                if i in xl:
                    for x in xl[i]:
                        if x[0] == "g": gate_loads(emit)
                        else: fload(x[0], x[1], x[0]*1024, emit)
                if i in fsl:
                    th = ffn(fsl[i])
                    DL = asmlib.OPT.get("dload", 0)
                    if DL: pend.setdefault(min(23, i + DL), []).append(th)
                    else: th()
                for th in pend.pop(i, []): th()
                if i in pos:
                    for x in m[pos[i]]: E_(x)
                E_(l)
            if kind == 0 and u == 15: E_(f"v_add_u32 v{vFo}, 2048, v{vFo}")
        E_(f"s_sub_u32 s{sDX}, 0, s{sDX}")
    gate_hook = env.get("gate_hook") if env else None
    pre = list(vm.seq)
    body(0, 0, False)
    for it in (1, 2, 3): body(1, it, False)
    need = dict(vm.need)
    def emit_body(kind, it):
        start = len(A.lines)
        sv = (list(vm.seq), dict(vm.need))
        body(kind, it, True)
        vm.seq, vm.need = sv
        for i in range(start, len(A.lines)):
            l = A.lines[i]
            if "@" in l:
                key = eval(l.split("@")[1])
                A.lines[i] = l.split("@")[0] + str(need[key]) + l.split("@")[2]
    emit_body(0, 0)
    if TP == 7: stamp(A, 2)
    A(f"s_mov_b32 s{sCNT}, 0")
    A(".p2align 6")
    A.label(f"{name}_aloop")
    emit_body(1, 1)
    A(f"s_add_u32 s{sCNT}, s{sCNT}, 1")
    A(f"s_cmp_lt_u32 s{sCNT}, 3")
    A(f"s_cbranch_scc1 {name}_aloop")
    A("s_setprio 0")
    A(f"v_cvt_pk_bf16_f32 v{P+6}, v{E[1]}, v{E[1]+1}")
    A(f"v_cvt_pk_bf16_f32 v{P+7}, v{E[1]+2}, v{E[1]+3}")
    A("s_waitcnt lgkmcnt(0)")
    A("s_nop 1")
    A(mP2(OB))
    if TP == 7: stamp(A, 3)
    if TP not in (4, 5, 6, 7): stamp(A, 0 if TP else 2)
    def wo_reg(st, mt):
        if st == 0: return FR + 4*mt
        if st == 1: return FR + 24 + 4*mt
        if mt == 0 and st == 2: return FR + 20
        if mt == 0 and st == 3: return FR + 44
        rest = [(2,1),(2,2),(2,3),(2,4),(3,1),(3,2),(3,3),(3,4),(4,0),(4,1),(4,2),(4,3),(4,4)]
        i = rest.index((st, mt))
        return 16 + 4*i if i < 10 else 88 + 4*(i-10)
    BFR = 100
    CATT, RA, RB = 8*CH, 0, 65536
    vWr, vRd, vC1, vC2 = 9, 10, 11, 12
    A(f"s_mul_i32 s{sT}, s{sW}, 3072")
    A(f"s_add_u32 s{sT}, s{sT}, {CATT}")
    A(f"v_add_u32 v{vC1}, s{sT}, v{vL16}")
    A(f"s_xor_b32 s{sT2}, s{sW}, 4")
    A(f"s_mul_i32 s{sT2}, s{sT2}, 3072")
    A(f"s_add_u32 s{sT2}, s{sT2}, {CATT}")
    A(f"v_add_u32 v{vC2}, s{sT2}, v{vL16}")
    A("s_nop 7")
    A(f"s_cmp_eq_u32 s{sHF}, 0")
    A(f"s_cbranch_scc0 {name}_cmb1")
    A("s_nop 3")
    for j in range(3): A(f"ds_write_b128 v{vC1}, {vr(OB+4*j,4)} offset:{j*1024}")
    A(f"s_branch {name}_cmb2")
    A.label(f"{name}_cmb1")
    for j in range(3): A(f"ds_write_b128 v{vC1}, {vr(OA+4*j,4)} offset:{j*1024}")
    A("s_nop 1")
    for j in range(12): A(f"v_mov_b32 v{OA+j}, v{OB+j}")
    A.label(f"{name}_cmb2")
    A("s_waitcnt lgkmcnt(0)")
    A("s_barrier")
    for j in range(3): A(f"ds_read_b128 {vr(OB+4*j,4)}, v{vC2} offset:{j*1024}")
    A("s_waitcnt lgkmcnt(0)")
    O = OA
    for j in range(12): A(f"v_add_f32 v{O+j}, v{O+j}, v{OB+j}")
    vLs, vR = OB, OB+1
    def rowsum():
        A(f"v_mov_b32 v{vLs}, v{O+8}")
        A(f"v_mov_b32 v{vR}, v{O+8}")
        A("s_nop 1")
        A(f"v_permlane32_swap_b32 v{vLs}, v{vR}")
        A("s_nop 1")
    rowsum()
    A(f"v_mov_b32 v{OB+2}, 0")
    for r in range(12): A(f"v_fma_f32 v{OB+2}, v{O+r}, 0, v{OB+2}")
    A(f"v_cmp_o_f32 vcc, v{OB+2}, v{OB+2}")
    A(f"v_cmp_le_f32 s[50:51], s52, v{vR}")
    A(f"v_cmp_ge_f32 s[54:55], s53, v{vR}")
    A("s_nop 3")
    A("s_and_b64 vcc, vcc, s[50:51]")
    A("s_and_b64 vcc, vcc, s[54:55]")
    A("s_cmp_eq_u64 vcc, -1")
    A(f"s_cbranch_scc1 {name}_fastok")
    FS, FP, FK16, FK4, FV1, FV2, FM, FA, FT = 16, 48, 100, 104, 108, 112, 116, 117, 118
    FQ16, FQ4 = 32, 36
    A(f"s_cmp_eq_u32 s{sHF}, 0")
    A(f"s_cbranch_scc0 {name}_fb_b")
    for j in range(4): A(f"v_mov_b32 v{FQ16+j}, v{Q16A+j}")
    for j in range(2): A(f"v_mov_b32 v{FQ4+j}, v{Q4A+j}")
    A(f"s_branch {name}_fb_go")
    A.label(f"{name}_fb_b")
    for j in range(4): A(f"v_mov_b32 v{FQ16+j}, v{Q16B+j}")
    for j in range(2): A(f"v_mov_b32 v{FQ4+j}, v{Q4B+j}")
    A.label(f"{name}_fb_go")
    for r in range(16): A(f"v_mov_b32 v{O+r}, 0")
    A(f"v_mov_b32 v{FM}, 0xff7fffff")
    A("v_and_b32 v3, 31, v2")
    A("v_lshlrev_b32 v14, 3, v3")
    A("v_add_u32 v14, 1024, v14")
    A(f"s_mul_i32 s56, s{sHEAD}, {HS_KV}")
    A(f"s_add_u32 s56, s56, {KV}")
    A("s_mov_b32 s57, 0")
    A.label(f"{name}_fb_loop")
    A("s_lshr_b32 s58, s57, 2")
    A(f"s_mul_i32 s58, s58, {CH}")
    A("s_add_u32 s58, s58, s56")
    A("s_and_b32 s59, s57, 3")
    A("s_mul_i32 s60, s59, 1280")
    A("s_add_u32 s60, s60, s58")
    A("s_lshl_b32 s59, s59, 11")
    A("s_add_u32 s59, s59, s58")
    A("s_add_u32 s59, s59, 5120")
    A(f"buffer_load_dwordx4 {vr(FK16,4)}, v{vL16}, {sr(SRD,4)}, s60 offen{LD1}")
    A(f"buffer_load_dwordx2 {vr(FK4,2)}, v14, {sr(SRD,4)}, s60 offen{LD1}")
    A(f"buffer_load_dwordx4 {vr(FV1,4)}, v{vL16}, {sr(SRD,4)}, s59 offen{LD1}")
    A(f"buffer_load_dwordx4 {vr(FV2,4)}, v{vL16}, {sr(SRD,4)}, s59 offen offset:1024{LD1}")
    A("s_waitcnt vmcnt(0)")
    A(f"v_mfma_f32_32x32x16_bf16 {vr(FS,16)}, {vr(FK16,4)}, {vr(FQ16,4)}, 0")
    A("s_nop 15")
    A(f"v_mfma_f32_32x32x8_bf16 {vr(FS,16)}, {vr(FK4,2)}, {vr(FQ4,2)}, {vr(FS,16)}")
    A("s_nop 15")
    A(f"v_max3_f32 v{FT}, v{FS}, v{FS+1}, v{FS+2}")
    for j in range(3, 15, 2): A(f"v_max3_f32 v{FT}, v{FT}, v{FS+j}, v{FS+j+1}")
    A(f"v_max_f32 v{FT}, v{FT}, v{FS+15}")
    A(f"v_mov_b32 v{FT+1}, v{FT}")
    A("s_nop 1")
    A(f"v_permlane32_swap_b32 v{FT}, v{FT+1}")
    A("s_nop 1")
    A(f"v_max3_f32 v{FT}, v{FT}, v{FT+1}, v{FM}")
    A(f"v_sub_f32 v{FA}, v{FM}, v{FT}")
    A(f"v_exp_f32 v{FA}, v{FA}")
    A(f"v_mov_b32 v{FM}, v{FT}")
    for j in range(16): A(f"v_sub_f32 v{FS+j}, v{FS+j}, v{FM}")
    for j in range(16): A(f"v_exp_f32 v{FS+j}, v{FS+j}")
    A("s_nop 0")
    for j in range(8): A(f"v_cvt_pk_bf16_f32 v{FP+j}, v{FS+2*j}, v{FS+2*j+1}")
    for j in range(16): A(f"v_mul_f32 v{O+j}, v{O+j}, v{FA}")
    A("s_nop 1")
    A(f"v_mfma_f32_32x32x16_bf16 {vr(O,16)}, {vr(FV1,4)}, {vr(FP,4)}, {vr(O,16)}")
    A(f"v_mfma_f32_32x32x16_bf16 {vr(O,16)}, {vr(FV2,4)}, {vr(FP+4,4)}, {vr(O,16)}")
    A("s_nop 15")
    A("s_add_u32 s57, s57, 1")
    A("s_cmp_lt_u32 s57, 64")
    A(f"s_cbranch_scc1 {name}_fb_loop")
    rowsum()
    A.label(f"{name}_fastok")
    A(f"v_rcp_f32 v{vR}, v{vR}")
    A("s_nop 0")
    A(f"v_mul_f32 v{vR}, v{vR}, v{vG1}")
    for r in range(12): A(f"v_mul_f32 v{O+r}, v{O+r}, v{vR}")
    OP = OB + 4
    for j in range(6): A(f"v_cvt_pk_bf16_f32 v{OP+j}, v{O+2*j}, v{O+2*j+1}")
    A(f"s_add_u32 s{sT}, s{sQT}, s{sHF}")
    A(f"s_mul_i32 s{sT}, s{sT}, 40960")
    A(f"s_add_u32 s{sT}, s{sT}, {OF}")
    A(f"s_lshl_b32 s{sT2}, s{sHEAD}, 10")
    A(f"s_add_u32 s{sT2}, s{sT2}, s{sT}")
    A(f"buffer_store_dwordx4 {vr(OP,4)}, v{vL16}, {sr(SRD,4)}, s{sT2} offen sc1")
    A(f"s_lshr_b32 s{sT2}, s{sHEAD}, 2")
    A(f"s_add_u32 s{sT2}, s{sT2}, 32")
    A(f"s_lshl_b32 s{sT2}, s{sT2}, 10")
    A(f"s_add_u32 s{sT}, s{sT}, s{sT2}")
    A(f"s_bfe_u32 s{sT2}, s{sHEAD}, 0x10001")
    A(f"s_lshl_b32 s{sT2}, s{sT2}, 9")
    A(f"s_add_u32 s{sT}, s{sT}, s{sT2}")
    A(f"s_and_b32 s{sT2}, s{sHEAD}, 1")
    A(f"s_lshl_b32 s{sT2}, s{sT2}, 3")
    A(f"s_add_u32 s{sT}, s{sT}, s{sT2}")
    A("s_mov_b32 exec_hi, 0")
    A(f"buffer_store_dwordx2 {vr(OP+4,2)}, v{vL16}, {sr(SRD,4)}, s{sT} offen sc1")
    A("s_mov_b64 exec, -1")
    if TP == 1: stamp(A, 1)
    sOF = 37
    A(f"s_mul_i32 s{sOF}, s{sTT}, 40960")
    A(f"s_mul_i32 s{sT2}, s{sW}, {5*1024}")
    A(f"s_add_u32 s{sOF}, s{sOF}, s{sT2}")
    A(f"s_add_u32 s{sOF}, s{sOF}, {OF}")
    A(f"v_add_u32 v15, 4096, v{vL16}")
    def ofloads():
        for st in range(5):
            if st < 4:
                A(f"buffer_load_dwordx4 {vr(BFR+4*st,4)}, v{vL16}, {sr(SRD,4)}, s{sOF} offen offset:{st*1024} sc1")
            else:
                A(f"buffer_load_dwordx4 {vr(BFR+4*st,4)}, v15, {sr(SRD,4)}, s{sOF} offen sc1")
    def ofcheck():
        A(f"v_max3_u32 v14, v{BFR}, v{BFR+1}, v{BFR+2}")
        for j in range(3, 19, 2):
            A(f"v_max3_u32 v14, v14, v{BFR+j}, v{BFR+j+1}")
        A(f"v_max_u32 v14, v14, v{BFR+19}")
        A("v_cmp_eq_u32 vcc, -1, v14")
    A(f"v_sub_f32 v{vG2}, 1.0, v{vG2}")
    k = 0
    for st in range(2, 5):
        for mt in range(5):
            if st < 4 and mt == 0: continue
            if st < 4:
                A(f"buffer_load_dwordx4 {vr(wo_reg(st,mt),4)}, v{vL16}, {sr(SRD,4)}, s{sWo+mt} offen offset:{st*1024}{LD1}")
            else:
                A(f"buffer_load_dwordx4 {vr(wo_reg(st,mt),4)}, v15, {sr(SRD,4)}, s{sWo+mt} offen{LD1}")
            for r in range(ACC+k, min(ACC+k+7, ACC+80)): A(f"v_mul_f32 v{r}, v{r}, v{vG2}")
            k = min(k+7, 80)
    assert k == 80
    A(f"s_mov_b32 s{sT2}, 0")
    A.label(f"{name}_poll")
    ofloads()
    A("s_waitcnt vmcnt(0)")
    ofcheck()
    A(f"s_add_u32 s{sT2}, s{sT2}, 1")
    A("s_nop 1")
    A(f"s_cbranch_vccz {name}_polldone")
    if asmlib.OPT.get("oslp"): A(f"s_sleep {asmlib.OPT.get('oslp')}")
    A(f"s_cmp_lt_u32 s{sT2}, 0x40000")
    A(f"s_cbranch_scc1 {name}_poll")
    A.label(f"{name}_polldone")
    if TP == 1: stamp(A, 2)
    if TP == 4: stamp(A, 0)
    for st in range(5):
        for mt in range(5):
            d = vr(ACC+16*mt,16)
            A(f"v_mfma_f32_32x32x16_bf16 {d}, {vr(wo_reg(st,mt),4)}, {vr(BFR+4*st,4)}, {d}")
    RB2 = 65536
    if TP == 4: stamp(A, 1)
    PK = 16
    A("s_nop 15")
    G4 = 56
    for mt in (0, 1, 2, 3, 4):
        for q in range(4):
            a = ACC + 16*mt + 4*q
            d = PK + 32 + 2*q if mt == 4 else G4 + 4*((mt & 1)*4 + q) + 2*(mt >> 1)
            A(f"v_cvt_pk_bf16_f32 v{d}, v{a}, v{a+1}")
            A(f"v_cvt_pk_bf16_f32 v{d+1}, v{a+2}, v{a+3}")
    A(f"s_lshl_b32 s{sT}, s{sW}, 13")
    A(f"v_add_u32 v{vWr}, s{sT}, v{vL16}")
    A(f"s_lshl_b32 s{sT}, s{sW}, 11")
    A(f"s_add_u32 s{sT}, s{sT}, {RB2}")
    A("v_lshlrev_b32 v13, 3, v2")
    A(f"v_add_u32 v14, s{sT}, v13")
    for d in range(8):
        A(f"ds_write_b128 v{vWr}, {vr(G4+4*d,4)} offset:{d*1024}")
    for q in range(4):
        A(f"ds_write_b64 v14, {vr(PK+32+2*q,2)} offset:{q*512}")
    A(f"s_lshl_b32 s{sT}, s{sW}, 10")
    A(f"v_add_u32 v{vRd}, s{sT}, v{vL16}")
    A(f"s_lshl_b32 s{sT}, s{sG}, 9")
    A(f"s_add_u32 s{sT}, s{sT}, {RB2}")
    A(f"v_add_u32 v14, s{sT}, v13")
    A("v_mov_b32 v12, 0x3f80")
    A("v_mov_b32 v11, 0x3f800000")
    SUMA, SUMB, SUMC = 56, 60, 64
    A("s_waitcnt lgkmcnt(0)")
    A("s_barrier")
    if TP == 4: stamp(A, 2)
    T0 = 16
    for s_ in range(8):
        A(f"ds_read_b128 {vr(T0+4*s_,4)}, v{vRd} offset:{s_*8192}")
    for s_ in range(8):
        A(f"ds_read_b64 {vr(88+2*s_,2)}, v14 offset:{s_*2048}")
    for r in range(SUMA, SUMA+12): A(f"v_mov_b32 v{r}, 0")
    for s_ in range(8):
        A(f"s_waitcnt lgkmcnt({min(15, 7-s_+8)})")
        for j in range(2):
            A(f"v_dot2_f32_bf16 v{SUMA+2*j}, v{T0+4*s_+j}, v12, v{SUMA+2*j}")
            A(f"v_dot2_f32_bf16 v{SUMA+2*j+1}, v{T0+4*s_+j}, v11, v{SUMA+2*j+1}")
            A(f"v_dot2_f32_bf16 v{SUMB+2*j}, v{T0+4*s_+2+j}, v12, v{SUMB+2*j}")
            A(f"v_dot2_f32_bf16 v{SUMB+2*j+1}, v{T0+4*s_+2+j}, v11, v{SUMB+2*j+1}")
    A("s_waitcnt lgkmcnt(0)")
    for s_ in range(8):
        for j in range(2):
            A(f"v_dot2_f32_bf16 v{SUMC+2*j}, v{88+2*s_+j}, v12, v{SUMC+2*j}")
            A(f"v_dot2_f32_bf16 v{SUMC+2*j+1}, v{88+2*s_+j}, v11, v{SUMC+2*j+1}")
    SRD_O = 44; sOUT = 48
    OSC = ' sc1' if asmlib.OPT.get('osc1') else (' nt' if asmlib.OPT.get('ont') else '')
    A("v_and_b32 v3, 31, v2")
    A(f"s_lshl_b32 s{sT}, s{sTT}, 5")
    A(f"v_add_u32 v3, s{sT}, v3")
    A("v_mul_u32_u24 v3, 1280, v3")
    A("v_lshrrev_b32 v14, 5, v2")
    A("v_lshl_add_u32 v3, v14, 3, v3")
    A(f"s_mul_i32 s{sT}, s{sCBK}, 320")
    A(f"s_lshl_b32 s{sT2}, s{sG}, 4")
    A(f"s_add_u32 s{sT}, s{sT}, s{sT2}")
    A(f"s_lshl_b32 s{sT2}, s{sHF}, 6")
    A(f"s_add_u32 s{sT2}, s{sT2}, s{sT}")
    A(f"s_mov_b32 s{SRD_O}, s{sOUT}")
    A(f"s_and_b32 s{SRD_O+1}, s{sOUT+1}, 0xffff")
    A(f"s_mov_b32 s{SRD_O+2}, {2048*1280}")
    A(f"s_mov_b32 s{SRD_O+3}, 0x20000")
    A("s_nop 3")
    for src, d in ((SUMA, 68), (SUMB, 70)):
        A(f"v_cvt_pk_bf16_f32 v{d}, v{src}, v{src+1}")
        A(f"v_cvt_pk_bf16_f32 v{d+1}, v{src+2}, v{src+3}")
    A(f"buffer_store_dwordx2 v[68:69], v3, {sr(SRD_O,4)}, s{sT2} offen{OSC}")
    A(f"buffer_store_dwordx2 v[70:71], v3, {sr(SRD_O,4)}, s{sT2} offen offset:128{OSC}")
    A(f"s_cmp_eq_u32 s{sHF}, 0")
    A(f"s_cbranch_scc0 {name}_fin")
    A(f"v_cvt_pk_bf16_f32 v72, v{SUMC}, v{SUMC+1}")
    A(f"v_cvt_pk_bf16_f32 v73, v{SUMC+2}, v{SUMC+3}")
    A(f"buffer_store_dwordx2 v[72:73], v3, {sr(SRD_O,4)}, s{sT} offen offset:256{OSC}")
    A.label(f"{name}_fin")
    if asmlib.PROFILE:
        A("s_waitcnt vmcnt(0)")
        if TP not in (5, 7): stamp(A, 3)
        stamp_flush(A, 1, SRD, sW, 4)
    A.label(f"{name}_end")
    A("s_endpgm")
    return 256
```

```python
from asmlib import *
import asmlib
from layout import *
from k23 import ws_srd

K2_LDS = 8*CH + 24576

class VmTrack:
    def __init__(self):
        self.seq = []
        self.need = {}
    def issue(self, tag): self.seq.append(tag)
    def wait(self, wid, tags):
        idx = [i for i, t in enumerate(self.seq) if t in tags]
        if not idx: return
        n = len(self.seq) - 1 - max(idx)
        self.need[wid] = min(self.need.get(wid, 63), n)

def gen_k2(A, name, fused=False, env=None):
    if not fused: kernel_header(A, name)
    LD1 = ' sc1' if (fused and asmlib.OPT.get("ldsc1")) else ''
    sWS = 4; SRD = 8; sW = 12; sT, sT2, sT3 = 13, 14, 15
    sHEAD, sQT, sKV, sM0, sCNT, sG, sHF = 16, 17, 18, 19, 20, 21, 22
    sTT, sCBK = 23, 24
    sA0, sB0 = 26, 31
    if not fused:
        A("s_cmp_ge_u32 s2, 256")
        A(f"s_cbranch_scc1 {name}_end")
    TP = asmlib.OPT.get("tailprof")
    if (not TP or TP == 5) and not asmlib.OPT.get('noflush0'): stamp(A, 0)
    A(f"s_load_dwordx2 {sr(sWS,2)}, s[0:1], {KA_WS}")
    A(f"s_load_dwordx2 s[38:39], s[0:1], {KA_DBG}")
    A(f"s_load_dwordx2 s[48:49], s[0:1], {KA_OUT}")
    A("v_lshrrev_b32 v1, 6, v0")
    A("v_and_b32 v2, 63, v0")
    A(f"v_readfirstlane_b32 s{sW}, v1")
    A(f"s_and_b32 s{sT}, s2, 7")
    A(f"s_lshr_b32 s{sT2}, s2, 3")
    A(f"s_and_b32 s{sT3}, s{sT2}, 3")
    A(f"s_lshl_b32 s{sHEAD}, s{sT}, 2")
    A(f"s_add_u32 s{sHEAD}, s{sHEAD}, s{sT3}")
    A(f"s_and_b32 s{sG}, s{sW}, 3")
    A(f"s_lshr_b32 s{sHF}, s{sW}, 2")
    A(f"s_lshr_b32 s{sQT}, s{sT2}, 2")
    A(f"s_lshl_b32 s{sQT}, s{sQT}, 3")
    A(f"s_lshl_b32 s{sT3}, s{sG}, 1")
    A(f"s_add_u32 s{sQT}, s{sQT}, s{sT3}")
    A(f"s_lshl_b32 s{sTT}, s{sT}, 3")
    A(f"s_and_b32 s{sT3}, s{sT2}, 7")
    A(f"s_add_u32 s{sTT}, s{sTT}, s{sT3}")
    A(f"s_lshr_b32 s{sCBK}, s{sT2}, 3")
    A("s_waitcnt lgkmcnt(0)")
    if TP == 5: stamp(A, 1)
    ws_srd(A, SRD, sWS)
    if asmlib.OPT.get("lone"):
        A(f"s_cmp_ge_u32 s{sW}, 4")
        A(f"s_cbranch_scc1 {name}_end")
    SA, SB = 16, 32; P = 48; OA, OB = 56, 72
    Q16A, Q4A, Q16B, Q4B = 88, 92, 94, 98
    K16 = 100; K4 = [104, 106]; V1 = 108; V2 = 112; E = [116, 120]
    FR = 124; ACC = 172
    vL16, vKV, vK4a, vDma, vFo = 4, 5, 6, 7, 8
    vKVy, vK4y = 10, 11
    sDX, sNB, sCHK = 40, 41, 42
    A(f"v_lshlrev_b32 v{vL16}, 4, v2")
    A(f"s_mul_i32 s{sT}, s{sHF}, {4*CH}")
    A(f"v_add_u32 v{vKV}, s{sT}, v{vL16}")
    A("v_and_b32 v3, 31, v2")
    A(f"v_lshlrev_b32 v9, 3, v3")
    A(f"v_add_u32 v9, 1024, v9")
    A(f"v_add_u32 v{vK4a}, s{sT}, v9")
    A(f"v_add_u32 v{vKVy}, {CH}, v{vKV}")
    A(f"v_add_u32 v{vK4y}, {CH}, v{vK4a}")
    A(f"s_mov_b32 s{sDX}, {2*CH}")
    A(f"s_mov_b32 s{sNB}, {3*CH}")
    A(f"s_mov_b32 s{sCHK}, 3")
    A(f"v_mov_b32 v{vDma}, v{vL16}")
    A(f"v_mov_b32 v{vFo}, v{vL16}")
    A(f"s_mul_i32 s{sM0}, s{sG}, 3072")
    A(f"s_add_u32 s{sM0}, s{sM0}, s{sT}")
    A(f"s_mul_i32 s{sKV}, s{sHEAD}, {HS_KV}")
    A(f"s_mul_i32 s{sT2}, s{sHF}, {8*CH}")
    A(f"s_add_u32 s{sKV}, s{sKV}, s{sT2}")
    A(f"s_mul_i32 s{sT2}, s{sG}, 3072")
    A(f"s_add_u32 s{sKV}, s{sKV}, s{sT2}")
    A(f"s_add_u32 s{sKV}, s{sKV}, {KV}")
    A("s_mov_b32 s52, 0x30800000")
    A("s_mov_b32 s53, 0x58800000")
    vm = VmTrack()
    def dma_piece(chunk, i, emit, dyn=False):
        if emit:
            if i == 0:
                if dyn:
                    A(f"s_cmp_ge_u32 s{sCHK}, 8")
                    A(f"s_cselect_b32 s{sT}, 0x7fff0000, 0")
                    A(f"s_add_u32 m0, s{sM0}, s{sNB}")
                    A(f"v_or_b32 v{vDma}, s{sT}, v{vL16}")
                else:
                    A(f"s_add_u32 m0, s{sM0}, {(chunk & 3)*CH}")
                    A("s_nop 0")
            A(f"buffer_load_dwordx4 v{vDma}, {sr(SRD,4)}, s{sKV} offen offset:{i*1024}{LD1} lds")
            if i == 3:
                A(f"s_add_u32 s{sKV}, s{sKV}, {CH}")
                if dyn:
                    A(f"s_add_u32 s{sCHK}, s{sCHK}, 1")
                    A(f"s_add_u32 s{sNB}, s{sNB}, {CH}")
                    A(f"s_cmp_eq_u32 s{sNB}, {4*CH}")
                    A(f"s_cselect_b32 s{sNB}, 0, s{sNB}")
        vm.issue(("dma", chunk))
    def dma(chunk, emit):
        for i in range(4): dma_piece(chunk, i, emit)
    def fslot(s): return FR + (s & 1)*24
    def fload(s, which, imm, emit):
        b = fslot(s)
        if emit and not (asmlib.OPT.get("noffnload") and s >= 2):
            if which < 5:
                A(f"buffer_load_dwordx4 {vr(b+4*which,4)}, v{vFo}, {sr(SRD,4)}, s{sA0+which} offen offset:{imm}{LD1}")
            else:
                A(f"buffer_load_dwordx4 {vr(b+20,4)}, v{vFo}, {sr(SRD,4)}, s{sB0} offen offset:{imm}{LD1}")
        vm.issue(("f", s))
    EARLY = bool(env and env.get("early"))
    if EARLY:
        QS = 8*CH
        LF = env["LF"]
        A(f"s_cmp_lt_u32 s{sW}, 4")
        A(f"s_cbranch_scc1 {name}_gwait")
        env["sync_hook"]()
        A(f"s_mul_i32 s{sT}, s{sHEAD}, {HS_Q}")
        A(f"s_mul_i32 s{sT2}, s{sQT}, 1280")
        A(f"s_add_u32 s{sT}, s{sT}, s{sT2}")
        if QF: A(f"s_add_u32 s{sT}, s{sT}, {QF}")
        A(f"s_mul_i32 s{sT2}, s{sG}, 3072")
        A(f"s_add_u32 m0, s{sT2}, {QS}")
        A("s_nop 0")
        for i in range(3):
            A(f"buffer_load_dwordx4 v{vL16}, {sr(SRD,4)}, s{sT} offen offset:{i*1024}{LD1} lds")
            vm.issue(("q", 0))
        A(f"s_mul_i32 s{sT}, s{sHEAD}, {HS_KV}")
        A(f"s_add_u32 s{sT}, s{sT}, s{sT2}")
        A(f"s_add_u32 s{sT}, s{sT}, {KV}")
        for c in range(3):
            for hf in range(2):
                A(f"s_add_u32 s{sT3}, s{sT}, {(8*hf + c)*CH}")
                A(f"s_add_u32 m0, s{sT2}, {hf*4*CH + c*CH}")
                A("s_nop 0")
                for i in range(4):
                    A(f"buffer_load_dwordx4 v{vL16}, {sr(SRD,4)}, s{sT3} offen offset:{i*1024}{LD1} lds")
                    vm.issue(("dma", c))
        vm.wait("pro", [("dma", 0), ("q", 0)])
        A(f"s_waitcnt vmcnt({vm.need['pro']})")
        A.label(f"{name}_gwait")
        A(f"s_add_u32 s{sKV}, s{sKV}, {3*CH}")
    else:
        A(f"s_mul_i32 s{sT}, s{sHEAD}, {HS_Q}")
        A(f"s_mul_i32 s{sT2}, s{sQT}, 1280")
        A(f"s_add_u32 s{sT}, s{sT}, s{sT2}")
        if QF: A(f"s_add_u32 s{sT}, s{sT}, {QF}")
        A(f"buffer_load_dwordx4 {vr(Q16A,4)}, v{vL16}, {sr(SRD,4)}, s{sT} offen{LD1}")
        A(f"buffer_load_dwordx2 {vr(Q4A,2)}, v9, {sr(SRD,4)}, s{sT} offen{LD1}")
        A(f"buffer_load_dwordx4 {vr(Q16B,4)}, v{vL16}, {sr(SRD,4)}, s{sT} offen offset:1280{LD1}")
        A(f"buffer_load_dwordx2 {vr(Q4B,2)}, v9, {sr(SRD,4)}, s{sT} offen offset:1280{LD1}")
        for i in range(4): vm.issue(("q", 0))
        dma(0, True)
        A("s_barrier")
        dma(1, True)
    A(f"s_mul_i32 s{sT}, s{sW}, {12*1024}")
    A(f"s_mul_i32 s{sT2}, s{sCBK}, {5*96*1024}")
    A(f"s_add_u32 s{sT2}, s{sT2}, s{sT}")
    A(f"s_add_u32 s{sA0}, s{sT2}, {WDF}")
    for mt in range(1, 5): A(f"s_add_u32 s{sA0+mt}, s{sA0+mt-1}, {96*1024}")
    A(f"s_mul_i32 s{sT2}, s{sTT}, {96*1024}")
    A(f"s_add_u32 s{sT2}, s{sT2}, s{sT}")
    A(f"s_add_u32 s{sB0}, s{sT2}, {HF}")
    if not EARLY: dma(2, True)
    vG1, vG2 = 252, 253
    sWo = 32
    A(f"s_mul_i32 s{sT}, s{sW}, {5*1024}")
    A(f"s_mul_i32 s{sT2}, s{sCBK}, {5*40*1024}")
    A(f"s_add_u32 s{sT2}, s{sT2}, s{sT}")
    A(f"s_add_u32 s{sWo}, s{sT2}, {WOF}")
    for mt in range(1, 5): A(f"s_add_u32 s{sWo+mt}, s{sWo+mt-1}, {40*1024}")
    A("v_cmp_lt_u32 vcc, 31, v2")
    for r in list(range(OA, OA+32)) + list(range(P, P+8)) + list(range(V2, V2+4)) + list(range(E[0], E[0]+8)):
        A(f"v_mov_b32 v{r}, 0")
    if EARLY:
        A("s_barrier")
        A(f"s_mul_i32 s{sT}, s{sG}, 3072")
        A(f"s_add_u32 s{sT}, s{sT}, {QS}")
        A(f"v_add_u32 v12, s{sT}, v{vL16}")
        A(f"v_add_u32 v13, s{sT}, v9")
        A(f"ds_read_b128 {vr(Q16A,4)}, v12")
        A(f"ds_read_b64 {vr(Q4A,2)}, v13")
        A(f"ds_read_b128 {vr(Q16B,4)}, v12 offset:1280")
        A(f"ds_read_b64 {vr(Q4B,2)}, v13 offset:1280")
        A("s_waitcnt lgkmcnt(0)")
        for r in (Q4A, Q4A+1, Q4B, Q4B+1):
            A(f"v_cndmask_b32 v{r}, v{r}, v{P}, vcc")
    else:
        vm.wait("pro", [("dma", 0), ("q", 0)])
        A(f"s_waitcnt vmcnt({vm.need['pro']})")
        if TP == 5: stamp(A, 3)
        for r in (Q4A, Q4A+1, Q4B, Q4B+1):
            A(f"v_cndmask_b32 v{r}, v{r}, v{P}, vcc")
        A("s_barrier")
    def reg(t, k4): return ((vK4a if k4 else vKV) if (t & 7) < 4 else (vK4y if k4 else vKVy))
    def koff(t): return (t & 3)*1280
    def voff(t, f): return 5120 + (t & 3)*2048 + f*1024
    rdK16 = lambda t: f"ds_read_b128 {vr(K16,4)}, v{reg(t,0)} offset:{koff(t)}"
    rdK4 = lambda t: f"ds_read_b64 {vr(K4[t & 1],2)}, v{reg(t,1)} offset:{koff(t)}"
    rdV1 = lambda t: f"ds_read_b128 {vr(V1,4)}, v{reg(t,0)} offset:{voff(t,0)}"
    rdV2 = lambda t: f"ds_read_b128 {vr(V2,4)}, v{reg(t,0)} offset:{voff(t,1)}"
    mS1 = lambda d, q: f"v_mfma_f32_32x32x16_bf16 {vr(d,16)}, {vr(K16,4)}, {vr(q,4)}, 0"
    mS2 = lambda d, q, t: f"v_mfma_f32_32x32x8_bf16 {vr(d,16)}, {vr(K4[t & 1],2)}, {vr(q,2)}, {vr(d,16)}"
    mP1 = lambda o: f"v_mfma_f32_32x32x16_bf16 {vr(o,16)}, {vr(V1,4)}, {vr(P,4)}, {vr(o,16)}"
    mP2 = lambda o: f"v_mfma_f32_32x32x16_bf16 {vr(o,16)}, {vr(V2,4)}, {vr(P+4,4)}, {vr(o,16)}"
    A(rdK16(0)); A(rdK4(0)); A(rdV1(0))
    A("s_waitcnt lgkmcnt(0)")
    A(mS1(SA, Q16A))
    for r in range(ACC, ACC+40): A(f"v_mov_b32 v{r}, 0")
    A(mS2(SA, Q4A, 0))
    for r in range(ACC+40, ACC+80): A(f"v_mov_b32 v{r}, 0")
    A(f"s_mov_b32 s{sCNT}, 0")
    if not TP or TP == 7: stamp(A, 1)
    def valu(cur, q):
        e = E[q & 1]; pe = E[(q+1) & 1]; pp = P + 2*((q-1) & 3)
        return [f"v_cvt_pk_bf16_f32 v{pp}, v{pe}, v{pe+1}",
                f"v_exp_f32 v{e}, v{cur+4*q}", f"v_exp_f32 v{e+1}, v{cur+4*q+1}",
                f"v_cvt_pk_bf16_f32 v{pp+1}, v{pe+2}, v{pe+3}",
                f"v_exp_f32 v{e+2}, v{cur+4*q+2}", f"v_exp_f32 v{e+3}, v{cur+4*q+3}"]
    FSLOT = {}
    k = 0
    for u in range(2, 16):
        FSLOT[u] = [(5, k)]; k += 1
        if u in ((3, 5, 7, 9, 11, 13) if asmlib.OPT.get("dodd") else (4, 6, 8, 10, 12, 14)): FSLOT[u].append((16, k)); k += 1
    assert k == 20
    def gate_loads(emit):
        if emit:
            A("v_lshlrev_b32 v14, 2, v3")
            A(f"s_add_u32 s{sT}, s{sQT}, s{sHF}")
            A(f"s_lshl_b32 s{sT}, s{sT}, 7")
            A(f"s_add_u32 s{sT}, s{sT}, {GG}")
            A(f"buffer_load_dword v{vG1}, v14, {sr(SRD,4)}, s{sT} offen{LD1}")
            A(f"s_lshl_b32 s{sT}, s{sTT}, 7")
            A(f"s_add_u32 s{sT}, s{sT}, {GG}")
            A(f"buffer_load_dword v{vG2}, v14, {sr(SRD,4)}, s{sT} offen{LD1}")
        vm.issue(("g", 0)); vm.issue(("g", 0))
    def body(kind, it, emit):
        def E_(s):
            if emit: A(s)
        for u in range(16):
            t = u >> 1
            gt = it*8 + t
            ev = (u & 1) == 0
            if ev and (t & 3) == 3:
                c = gt >> 2
                wid = ("bar", kind, u)
                vm.wait(wid, [("dma", c+1)])
                E_(f"s_waitcnt vmcnt(@{wid}@)")
                if kind == 0 and u == 14 and emit and TP == 6: stamp(A, 1)
                if kind == 0 and u == 14 and emit and gate_hook: gate_hook()
                if kind == 0 and u == 6 and emit and env and env.get("pre_b"): env["pre_b"]()
                E_("s_barrier")
                if kind == 0 and u == 6 and emit and env and env.get("post_b"): env["post_b"]()
                if kind == 0 and u == 14 and emit and TP == 6: stamp(A, 2)
            if kind == 0 and u == 11 and emit and env and env.get("gate_issue"): env["gate_issue"]()
            if u == 8:
                E_(f"v_add_u32 v{vKV}, s{sDX}, v{vKV}")
                E_(f"v_add_u32 v{vK4a}, s{sDX}, v{vK4a}")
            if u == 15:
                E_(f"v_add_u32 v{vKVy}, s{sDX}, v{vKVy}")
                E_(f"v_add_u32 v{vK4y}, s{sDX}, v{vK4y}")
            def ffn(k):
                fs, fmt = divmod(k, 5)
                gs = (it-1)*4 + fs
                b = fslot(fs)
                if k == 10:
                    E_(f"s_cmp_eq_u32 s{sCNT}, 2")
                    E_(f"s_cbranch_scc0 {name}_nowo")
                    for mt in range(5): E_(f"s_mov_b32 s{sA0+mt}, s{sWo+mt}")
                    E_(f"s_add_u32 s{sB0}, s{sWo}, 2048")
                    E_(f"v_mov_b32 v{vFo}, v{vL16}")
                    if emit: A.label(f"{name}_nowo")
                if fmt == 0:
                    wid = ("f", k)
                    vm.wait(wid, [("f", gs)])
                    E_(f"s_waitcnt vmcnt(@{wid}@)")
                d = vr(ACC+16*fmt,16)
                E_(f"v_mfma_f32_32x32x16_bf16 {d}, {vr(b+4*fmt,4)}, {vr(b+20,4)}, {d}")
                imm = (fs & 1)*1024
                def later():
                    fload(gs+2, fmt, imm, emit)
                    if fmt == 4:
                        fload(gs+2, 5, imm, emit)
                        if fs & 1:
                            E_(f"v_add_u32 v{vFo}, 2048, v{vFo}")
                return later
            cur = SA if ev else SB
            vv = valu(cur, 0) + valu(cur, 1) + valu(cur, 2) + valu(cur, 3)
            if ev:
                m = {"S1": [mS1(SB, Q16B), rdK16(t+1), rdK4(t+1)],
                     "P2": [mP2(OB), rdV2(t)],
                     "S2": [mS2(SB, Q4B, t)],
                     "P1": ["s_waitcnt lgkmcnt(3)", mP1(OA)]}
            else:
                m = {"S1": ["s_waitcnt lgkmcnt(0)", mS1(SA, Q16A)],
                     "P2": [mP2(OA)],
                     "S2": [mS2(SA, Q4A, t+1)],
                     "P1": [mP1(OB), rdV1(t+1)]}
            fsl = dict(FSLOT.get(u, [])) if kind == 1 else {}
            if len(fsl) == 2:   pos = {0: "S1", 8: "P2", 12: "S2", 20: "P1"}; fsl = {4: fsl[5], 16: fsl[16]}
            elif len(fsl) == 1: pos = {0: "S1", 10: "P2", 14: "S2", 19: "P1"}
            else:               pos = {0: "S1", 6: "P2", 12: "S2", 18: "P1"}
            dpos = {}
            if (t & 3) == 3: dpos = {3: 0, 17: 1} if ev else {3: 2, 17: 3}
            xl = {}
            if kind == 0 and u == 14: xl = {8: [("g",)], 10: [(0,5)], 12: [(0,0)], 14: [(0,1)], 20: [(0,2)], 22: [(0,3)]}
            if kind == 0 and u == 15: xl = {1: [(0,4)], 5: [(1,5)], 8: [(1,0)], 10: [(1,1)], 14: [(1,2)], 20: [(1,3)], 22: [(1,4)]}
            pend = {}
            for i, l in enumerate(vv):
                if i in dpos:
                    dma_piece((gt >> 2) + 3, dpos[i], emit, dyn=True)
                if i in xl:
                    for x in xl[i]:
                        if x[0] == "g": gate_loads(emit)
                        else: fload(x[0], x[1], x[0]*1024, emit)
                if i in fsl:
                    th = ffn(fsl[i])
                    DL = asmlib.OPT.get("dload", 0)
                    if DL: pend.setdefault(min(23, i + DL), []).append(th)
                    else: th()
                for th in pend.pop(i, []): th()
                if i in pos:
                    for x in m[pos[i]]: E_(x)
                E_(l)
            if kind == 0 and u == 15: E_(f"v_add_u32 v{vFo}, 2048, v{vFo}")
        E_(f"s_sub_u32 s{sDX}, 0, s{sDX}")
    gate_hook = env.get("gate_hook") if env else None
    pre = list(vm.seq)
    body(0, 0, False)
    for it in (1, 2, 3): body(1, it, False)
    need = dict(vm.need)
    def emit_body(kind, it):
        start = len(A.lines)
        sv = (list(vm.seq), dict(vm.need))
        body(kind, it, True)
        vm.seq, vm.need = sv
        for i in range(start, len(A.lines)):
            l = A.lines[i]
            if "@" in l:
                key = eval(l.split("@")[1])
                A.lines[i] = l.split("@")[0] + str(need[key]) + l.split("@")[2]
    emit_body(0, 0)
    if TP == 7: stamp(A, 2)
    A(f"s_mov_b32 s{sCNT}, 0")
    A(".p2align 6")
    A.label(f"{name}_aloop")
    emit_body(1, 1)
    A(f"s_add_u32 s{sCNT}, s{sCNT}, 1")
    A(f"s_cmp_lt_u32 s{sCNT}, 3")
    A(f"s_cbranch_scc1 {name}_aloop")
    A("s_setprio 0")
    A(f"v_cvt_pk_bf16_f32 v{P+6}, v{E[1]}, v{E[1]+1}")
    A(f"v_cvt_pk_bf16_f32 v{P+7}, v{E[1]+2}, v{E[1]+3}")
    A("s_waitcnt lgkmcnt(0)")
    A("s_nop 1")
    A(mP2(OB))
    if TP == 7: stamp(A, 3)
    if TP not in (4, 5, 6, 7): stamp(A, 0 if TP else 2)
    def wo_reg(st, mt):
        if st == 0: return FR + 4*mt
        if st == 1: return FR + 24 + 4*mt
        if mt == 0 and st == 2: return FR + 20
        if mt == 0 and st == 3: return FR + 44
        rest = [(2,1),(2,2),(2,3),(2,4),(3,1),(3,2),(3,3),(3,4),(4,0),(4,1),(4,2),(4,3),(4,4)]
        i = rest.index((st, mt))
        return 16 + 4*i if i < 10 else 88 + 4*(i-10)
    BFR = 100
    CATT, RA, RB = 8*CH, 0, 65536
    vWr, vRd, vC1, vC2 = 9, 10, 11, 12
    A(f"s_mul_i32 s{sT}, s{sW}, 3072")
    A(f"s_add_u32 s{sT}, s{sT}, {CATT}")
    A(f"v_add_u32 v{vC1}, s{sT}, v{vL16}")
    A(f"s_xor_b32 s{sT2}, s{sW}, 4")
    A(f"s_mul_i32 s{sT2}, s{sT2}, 3072")
    A(f"s_add_u32 s{sT2}, s{sT2}, {CATT}")
    A(f"v_add_u32 v{vC2}, s{sT2}, v{vL16}")
    A("s_nop 7")
    A(f"s_cmp_eq_u32 s{sHF}, 0")
    A(f"s_cbranch_scc0 {name}_cmb1")
    A("s_nop 3")
    for j in range(3): A(f"ds_write_b128 v{vC1}, {vr(OB+4*j,4)} offset:{j*1024}")
    A(f"s_branch {name}_cmb2")
    A.label(f"{name}_cmb1")
    for j in range(3): A(f"ds_write_b128 v{vC1}, {vr(OA+4*j,4)} offset:{j*1024}")
    A("s_nop 1")
    for j in range(12): A(f"v_mov_b32 v{OA+j}, v{OB+j}")
    A.label(f"{name}_cmb2")
    A("s_waitcnt lgkmcnt(0)")
    A("s_barrier")
    for j in range(3): A(f"ds_read_b128 {vr(OB+4*j,4)}, v{vC2} offset:{j*1024}")
    A("s_waitcnt lgkmcnt(0)")
    O = OA
    for j in range(12): A(f"v_add_f32 v{O+j}, v{O+j}, v{OB+j}")
    vLs, vR = OB, OB+1
    def rowsum():
        A(f"v_mov_b32 v{vLs}, v{O+8}")
        A(f"v_mov_b32 v{vR}, v{O+8}")
        A("s_nop 1")
        A(f"v_permlane32_swap_b32 v{vLs}, v{vR}")
        A("s_nop 1")
    rowsum()
    A(f"v_mov_b32 v{OB+2}, 0")
    for r in range(12): A(f"v_fma_f32 v{OB+2}, v{O+r}, 0, v{OB+2}")
    A(f"v_cmp_o_f32 vcc, v{OB+2}, v{OB+2}")
    A(f"v_cmp_le_f32 s[50:51], s52, v{vR}")
    A(f"v_cmp_ge_f32 s[54:55], s53, v{vR}")
    A("s_nop 3")
    A("s_and_b64 vcc, vcc, s[50:51]")
    A("s_and_b64 vcc, vcc, s[54:55]")
    A("s_cmp_eq_u64 vcc, -1")
    A(f"s_cbranch_scc1 {name}_fastok")
    FS, FP, FK16, FK4, FV1, FV2, FM, FA, FT = 16, 48, 100, 104, 108, 112, 116, 117, 118
    FQ16, FQ4 = 32, 36
    A(f"s_cmp_eq_u32 s{sHF}, 0")
    A(f"s_cbranch_scc0 {name}_fb_b")
    for j in range(4): A(f"v_mov_b32 v{FQ16+j}, v{Q16A+j}")
    for j in range(2): A(f"v_mov_b32 v{FQ4+j}, v{Q4A+j}")
    A(f"s_branch {name}_fb_go")
    A.label(f"{name}_fb_b")
    for j in range(4): A(f"v_mov_b32 v{FQ16+j}, v{Q16B+j}")
    for j in range(2): A(f"v_mov_b32 v{FQ4+j}, v{Q4B+j}")
    A.label(f"{name}_fb_go")
    for r in range(16): A(f"v_mov_b32 v{O+r}, 0")
    A(f"v_mov_b32 v{FM}, 0xff7fffff")
    A("v_and_b32 v3, 31, v2")
    A("v_lshlrev_b32 v14, 3, v3")
    A("v_add_u32 v14, 1024, v14")
    A(f"s_mul_i32 s56, s{sHEAD}, {HS_KV}")
    A(f"s_add_u32 s56, s56, {KV}")
    A("s_mov_b32 s57, 0")
    A.label(f"{name}_fb_loop")
    A("s_lshr_b32 s58, s57, 2")
    A(f"s_mul_i32 s58, s58, {CH}")
    A("s_add_u32 s58, s58, s56")
    A("s_and_b32 s59, s57, 3")
    A("s_mul_i32 s60, s59, 1280")
    A("s_add_u32 s60, s60, s58")
    A("s_lshl_b32 s59, s59, 11")
    A("s_add_u32 s59, s59, s58")
    A("s_add_u32 s59, s59, 5120")
    A(f"buffer_load_dwordx4 {vr(FK16,4)}, v{vL16}, {sr(SRD,4)}, s60 offen{LD1}")
    A(f"buffer_load_dwordx2 {vr(FK4,2)}, v14, {sr(SRD,4)}, s60 offen{LD1}")
    A(f"buffer_load_dwordx4 {vr(FV1,4)}, v{vL16}, {sr(SRD,4)}, s59 offen{LD1}")
    A(f"buffer_load_dwordx4 {vr(FV2,4)}, v{vL16}, {sr(SRD,4)}, s59 offen offset:1024{LD1}")
    A("s_waitcnt vmcnt(0)")
    A(f"v_mfma_f32_32x32x16_bf16 {vr(FS,16)}, {vr(FK16,4)}, {vr(FQ16,4)}, 0")
    A("s_nop 15")
    A(f"v_mfma_f32_32x32x8_bf16 {vr(FS,16)}, {vr(FK4,2)}, {vr(FQ4,2)}, {vr(FS,16)}")
    A("s_nop 15")
    A(f"v_max3_f32 v{FT}, v{FS}, v{FS+1}, v{FS+2}")
    for j in range(3, 15, 2): A(f"v_max3_f32 v{FT}, v{FT}, v{FS+j}, v{FS+j+1}")
    A(f"v_max_f32 v{FT}, v{FT}, v{FS+15}")
    A(f"v_mov_b32 v{FT+1}, v{FT}")
    A("s_nop 1")
    A(f"v_permlane32_swap_b32 v{FT}, v{FT+1}")
    A("s_nop 1")
    A(f"v_max3_f32 v{FT}, v{FT}, v{FT+1}, v{FM}")
    A(f"v_sub_f32 v{FA}, v{FM}, v{FT}")
    A(f"v_exp_f32 v{FA}, v{FA}")
    A(f"v_mov_b32 v{FM}, v{FT}")
    for j in range(16): A(f"v_sub_f32 v{FS+j}, v{FS+j}, v{FM}")
    for j in range(16): A(f"v_exp_f32 v{FS+j}, v{FS+j}")
    A("s_nop 0")
    for j in range(8): A(f"v_cvt_pk_bf16_f32 v{FP+j}, v{FS+2*j}, v{FS+2*j+1}")
    for j in range(16): A(f"v_mul_f32 v{O+j}, v{O+j}, v{FA}")
    A("s_nop 1")
    A(f"v_mfma_f32_32x32x16_bf16 {vr(O,16)}, {vr(FV1,4)}, {vr(FP,4)}, {vr(O,16)}")
    A(f"v_mfma_f32_32x32x16_bf16 {vr(O,16)}, {vr(FV2,4)}, {vr(FP+4,4)}, {vr(O,16)}")
    A("s_nop 15")
    A("s_add_u32 s57, s57, 1")
    A("s_cmp_lt_u32 s57, 64")
    A(f"s_cbranch_scc1 {name}_fb_loop")
    rowsum()
    A.label(f"{name}_fastok")
    A(f"v_rcp_f32 v{vR}, v{vR}")
    A("s_nop 0")
    A(f"v_mul_f32 v{vR}, v{vR}, v{vG1}")
    for r in range(12): A(f"v_mul_f32 v{O+r}, v{O+r}, v{vR}")
    OP = OB + 4
    for j in range(6): A(f"v_cvt_pk_bf16_f32 v{OP+j}, v{O+2*j}, v{O+2*j+1}")
    A(f"s_add_u32 s{sT}, s{sQT}, s{sHF}")
    A(f"s_mul_i32 s{sT}, s{sT}, 40960")
    A(f"s_add_u32 s{sT}, s{sT}, {OF}")
    A(f"s_lshl_b32 s{sT2}, s{sHEAD}, 10")
    A(f"s_add_u32 s{sT2}, s{sT2}, s{sT}")
    A(f"buffer_store_dwordx4 {vr(OP,4)}, v{vL16}, {sr(SRD,4)}, s{sT2} offen sc1")
    A(f"s_lshr_b32 s{sT2}, s{sHEAD}, 2")
    A(f"s_add_u32 s{sT2}, s{sT2}, 32")
    A(f"s_lshl_b32 s{sT2}, s{sT2}, 10")
    A(f"s_add_u32 s{sT}, s{sT}, s{sT2}")
    A(f"s_bfe_u32 s{sT2}, s{sHEAD}, 0x10001")
    A(f"s_lshl_b32 s{sT2}, s{sT2}, 9")
    A(f"s_add_u32 s{sT}, s{sT}, s{sT2}")
    A(f"s_and_b32 s{sT2}, s{sHEAD}, 1")
    A(f"s_lshl_b32 s{sT2}, s{sT2}, 3")
    A(f"s_add_u32 s{sT}, s{sT}, s{sT2}")
    A("s_mov_b32 exec_hi, 0")
    A(f"buffer_store_dwordx2 {vr(OP+4,2)}, v{vL16}, {sr(SRD,4)}, s{sT} offen sc1")
    A("s_mov_b64 exec, -1")
    if TP == 1: stamp(A, 1)
    sOF = 37
    A(f"s_mul_i32 s{sOF}, s{sTT}, 40960")
    A(f"s_mul_i32 s{sT2}, s{sW}, {5*1024}")
    A(f"s_add_u32 s{sOF}, s{sOF}, s{sT2}")
    A(f"s_add_u32 s{sOF}, s{sOF}, {OF}")
    A(f"v_add_u32 v15, 4096, v{vL16}")
    def ofloads():
        for st in range(5):
            if st < 4:
                A(f"buffer_load_dwordx4 {vr(BFR+4*st,4)}, v{vL16}, {sr(SRD,4)}, s{sOF} offen offset:{st*1024} sc1")
            else:
                A(f"buffer_load_dwordx4 {vr(BFR+4*st,4)}, v15, {sr(SRD,4)}, s{sOF} offen sc1")
    def ofcheck():
        A(f"v_max3_u32 v14, v{BFR}, v{BFR+1}, v{BFR+2}")
        for j in range(3, 19, 2):
            A(f"v_max3_u32 v14, v14, v{BFR+j}, v{BFR+j+1}")
        A(f"v_max_u32 v14, v14, v{BFR+19}")
        A("v_cmp_eq_u32 vcc, -1, v14")
    A(f"v_sub_f32 v{vG2}, 1.0, v{vG2}")
    k = 0
    for st in range(2, 5):
        for mt in range(5):
            if st < 4 and mt == 0: continue
            if st < 4:
                A(f"buffer_load_dwordx4 {vr(wo_reg(st,mt),4)}, v{vL16}, {sr(SRD,4)}, s{sWo+mt} offen offset:{st*1024}{LD1}")
            else:
                A(f"buffer_load_dwordx4 {vr(wo_reg(st,mt),4)}, v15, {sr(SRD,4)}, s{sWo+mt} offen{LD1}")
            for r in range(ACC+k, min(ACC+k+7, ACC+80)): A(f"v_mul_f32 v{r}, v{r}, v{vG2}")
            k = min(k+7, 80)
    assert k == 80
    A(f"s_mov_b32 s{sT2}, 0")
    A.label(f"{name}_poll")
    ofloads()
    A("s_waitcnt vmcnt(0)")
    ofcheck()
    A(f"s_add_u32 s{sT2}, s{sT2}, 1")
    A("s_nop 1")
    A(f"s_cbranch_vccz {name}_polldone")
    if asmlib.OPT.get("oslp"): A(f"s_sleep {asmlib.OPT.get('oslp')}")
    A(f"s_cmp_lt_u32 s{sT2}, 0x40000")
    A(f"s_cbranch_scc1 {name}_poll")
    A.label(f"{name}_polldone")
    if TP == 1: stamp(A, 2)
    if TP == 4: stamp(A, 0)
    for st in range(5):
        for mt in range(5):
            d = vr(ACC+16*mt,16)
            A(f"v_mfma_f32_32x32x16_bf16 {d}, {vr(wo_reg(st,mt),4)}, {vr(BFR+4*st,4)}, {d}")
    RB2 = 65536
    if TP == 4: stamp(A, 1)
    PK = 16
    A("s_nop 15")
    G4 = 56
    for mt in (0, 1, 2, 3, 4):
        for q in range(4):
            a = ACC + 16*mt + 4*q
            d = PK + 32 + 2*q if mt == 4 else G4 + 4*((mt & 1)*4 + q) + 2*(mt >> 1)
            A(f"v_cvt_pk_bf16_f32 v{d}, v{a}, v{a+1}")
            A(f"v_cvt_pk_bf16_f32 v{d+1}, v{a+2}, v{a+3}")
    A(f"s_lshl_b32 s{sT}, s{sW}, 13")
    A(f"v_add_u32 v{vWr}, s{sT}, v{vL16}")
    A(f"s_lshl_b32 s{sT}, s{sW}, 11")
    A(f"s_add_u32 s{sT}, s{sT}, {RB2}")
    A("v_lshlrev_b32 v13, 3, v2")
    A(f"v_add_u32 v14, s{sT}, v13")
    for d in range(8):
        A(f"ds_write_b128 v{vWr}, {vr(G4+4*d,4)} offset:{d*1024}")
    for q in range(4):
        A(f"ds_write_b64 v14, {vr(PK+32+2*q,2)} offset:{q*512}")
    A(f"s_lshl_b32 s{sT}, s{sW}, 10")
    A(f"v_add_u32 v{vRd}, s{sT}, v{vL16}")
    A(f"s_lshl_b32 s{sT}, s{sG}, 9")
    A(f"s_add_u32 s{sT}, s{sT}, {RB2}")
    A(f"v_add_u32 v14, s{sT}, v13")
    A("v_mov_b32 v12, 0x3f80")
    A("v_mov_b32 v11, 0x3f800000")
    SUMA, SUMB, SUMC = 56, 60, 64
    A("s_waitcnt lgkmcnt(0)")
    A("s_barrier")
    if TP == 4: stamp(A, 2)
    T0 = 16
    for s_ in range(8):
        A(f"ds_read_b128 {vr(T0+4*s_,4)}, v{vRd} offset:{s_*8192}")
    for s_ in range(8):
        A(f"ds_read_b64 {vr(88+2*s_,2)}, v14 offset:{s_*2048}")
    for r in range(SUMA, SUMA+12): A(f"v_mov_b32 v{r}, 0")
    for s_ in range(8):
        A(f"s_waitcnt lgkmcnt({min(15, 7-s_+8)})")
        for j in range(2):
            A(f"v_dot2_f32_bf16 v{SUMA+2*j}, v{T0+4*s_+j}, v12, v{SUMA+2*j}")
            A(f"v_dot2_f32_bf16 v{SUMA+2*j+1}, v{T0+4*s_+j}, v11, v{SUMA+2*j+1}")
            A(f"v_dot2_f32_bf16 v{SUMB+2*j}, v{T0+4*s_+2+j}, v12, v{SUMB+2*j}")
            A(f"v_dot2_f32_bf16 v{SUMB+2*j+1}, v{T0+4*s_+2+j}, v11, v{SUMB+2*j+1}")
    A("s_waitcnt lgkmcnt(0)")
    for s_ in range(8):
        for j in range(2):
            A(f"v_dot2_f32_bf16 v{SUMC+2*j}, v{88+2*s_+j}, v12, v{SUMC+2*j}")
            A(f"v_dot2_f32_bf16 v{SUMC+2*j+1}, v{88+2*s_+j}, v11, v{SUMC+2*j+1}")
    if asmlib.OPT.get('oldout'):
        SRD_O = 44; sOUT = 48
        OSC = ' sc1' if asmlib.OPT.get('osc1') else (' nt' if asmlib.OPT.get('ont') else '')
        A("v_and_b32 v3, 31, v2")
        A(f"s_lshl_b32 s{sT}, s{sTT}, 5")
        A(f"v_add_u32 v3, s{sT}, v3")
        A("v_mul_u32_u24 v3, 1280, v3")
        A("v_lshrrev_b32 v14, 5, v2")
        A("v_lshl_add_u32 v3, v14, 3, v3")
        A(f"s_mul_i32 s{sT}, s{sCBK}, 320")
        A(f"s_lshl_b32 s{sT2}, s{sG}, 4")
        A(f"s_add_u32 s{sT}, s{sT}, s{sT2}")
        A(f"s_lshl_b32 s{sT2}, s{sHF}, 6")
        A(f"s_add_u32 s{sT2}, s{sT2}, s{sT}")
        A(f"s_mov_b32 s{SRD_O}, s{sOUT}")
        A(f"s_and_b32 s{SRD_O+1}, s{sOUT+1}, 0xffff")
        A(f"s_mov_b32 s{SRD_O+2}, {2048*1280}")
        A(f"s_mov_b32 s{SRD_O+3}, 0x20000")
        A("s_nop 3")
        for src, d in ((SUMA, 68), (SUMB, 70)):
            A(f"v_cvt_pk_bf16_f32 v{d}, v{src}, v{src+1}")
            A(f"v_cvt_pk_bf16_f32 v{d+1}, v{src+2}, v{src+3}")
        A(f"buffer_store_dwordx2 v[68:69], v3, {sr(SRD_O,4)}, s{sT2} offen{OSC}")
        A(f"buffer_store_dwordx2 v[70:71], v3, {sr(SRD_O,4)}, s{sT2} offen offset:128{OSC}")
        A(f"s_cmp_eq_u32 s{sHF}, 0")
        A(f"s_cbranch_scc0 {name}_fin")
        A(f"v_cvt_pk_bf16_f32 v72, v{SUMC}, v{SUMC+1}")
        A(f"v_cvt_pk_bf16_f32 v73, v{SUMC+2}, v{SUMC+3}")
        A(f"buffer_store_dwordx2 v[72:73], v3, {sr(SRD_O,4)}, s{sT} offen offset:256{OSC}")
    else:
        SRD_O = 44; sOUT = 48
        OUTS, ORS = 98304, 336
        A("v_and_b32 v3, 31, v2")
        A(f"v_mul_u32_u24 v3, {ORS}, v3")
        A("v_lshrrev_b32 v14, 5, v2")
        A("v_lshl_add_u32 v3, v14, 3, v3")
        A(f"s_lshl_b32 s{sT}, s{sG}, 4")
        A(f"s_lshl_b32 s{sT2}, s{sHF}, 6")
        A(f"s_add_u32 s{sT}, s{sT}, {OUTS}")
        A(f"s_add_u32 s{sT2}, s{sT2}, s{sT}")
        A(f"v_add_u32 v13, s{sT2}, v3")
        A(f"v_add_u32 v14, s{sT}, v3")
        A(f"s_mov_b32 s{SRD_O}, s{sOUT}")
        A(f"s_and_b32 s{SRD_O+1}, s{sOUT+1}, 0xffff")
        A(f"s_mov_b32 s{SRD_O+2}, {2048*1280}")
        A(f"s_mov_b32 s{SRD_O+3}, 0x20000")
        A("s_nop 3")
        for src, d in ((SUMA, 68), (SUMB, 70), (SUMC, 72)):
            A(f"v_cvt_pk_bf16_f32 v{d}, v{src}, v{src+1}")
            A(f"v_cvt_pk_bf16_f32 v{d+1}, v{src+2}, v{src+3}")
        A("ds_write_b64 v13, v[68:69]")
        A("ds_write_b64 v13, v[70:71] offset:128")
        A(f"s_cmp_eq_u32 s{sHF}, 0")
        A(f"s_cbranch_scc0 {name}_no4")
        A("ds_write_b64 v14, v[72:73] offset:256")
        A.label(f"{name}_no4")
        A(f"s_lshl_b32 s{sT}, s{sW}, 6")
        A(f"v_add_u32 v3, s{sT}, v2")
        def piece(vq, vl, vg):
            A(f"v_mul_u32_u24 v14, 3277, v{vq}")
            A("v_lshrrev_b32 v14, 16, v14")
            A("v_mul_u32_u24 v15, 20, v14")
            A(f"v_sub_u32 v15, v{vq}, v15")
            A(f"v_mul_u32_u24 v{vl}, {ORS}, v14")
            A(f"v_lshl_add_u32 v{vl}, v15, 4, v{vl}")
            A(f"v_add_u32 v{vl}, {OUTS}, v{vl}")
            A(f"v_mul_u32_u24 v{vg}, 1280, v14")
            A(f"v_lshl_add_u32 v{vg}, v15, 4, v{vg}")
        piece(3, 16, 17)
        A("v_add_u32 v3, 512, v3")
        piece(3, 18, 19)
        A(f"s_mul_i32 s{sT}, s{sTT}, {32*1280}")
        A(f"s_mul_i32 s{sT2}, s{sCBK}, 320")
        A(f"s_add_u32 s{sT}, s{sT}, s{sT2}")
        A("s_waitcnt lgkmcnt(0)")
        A("s_barrier")
        A("ds_read_b128 v[20:23], v16")
        A(f"s_cmp_lt_u32 s{sW}, 2")
        A(f"s_cbranch_scc0 {name}_one")
        A("ds_read_b128 v[24:27], v18")
        A("s_waitcnt lgkmcnt(0)")
        A(f"buffer_store_dwordx4 v[24:27], v19, {sr(SRD_O,4)}, s{sT} offen")
        A.label(f"{name}_one")
        A("s_waitcnt lgkmcnt(0)")
        A(f"buffer_store_dwordx4 v[20:23], v17, {sr(SRD_O,4)}, s{sT} offen")
    A.label(f"{name}_fin")
    if asmlib.PROFILE:
        A("s_waitcnt vmcnt(0)")
        if TP not in (5, 7): stamp(A, 3)
        stamp_flush(A, 1, SRD, sW, 4)
    A.label(f"{name}_end")
    A("s_endpgm")
    return 256
```

```python
import sys, os
sys.path.insert(0, os.path.dirname(os.path.abspath(__file__)))
import numpy as np

UNROLL=8
ITERS=50
def gen(name, bodies, iters=ITERS, vgpr=128):
    s = []
    s.append(f".text\n.globl {name}\n.p2align 8\n.type {name},@function\n{name}:")
    s.append("s_load_dwordx2 s[4:5], s[0:1], 0")
    s.append("v_lshrrev_b32 v1, 6, v0")
    s.append("s_nop 1")
    s.append("v_readfirstlane_b32 s20, v1")
    for i in range(2, vgpr):
        s.append(f"v_mov_b32 v{i}, 0x3c003c00" if i % 2 else f"v_mov_b32 v{i}, 0x3e000000")
    s.append("s_waitcnt lgkmcnt(0)")
    s.append("s_lshr_b32 s21, s20, 2")
    nb = len(bodies)
    if nb > 1:
        s.append(f"s_and_b32 s21, s21, {nb-1}")
    s.append("s_barrier")
    s.append("s_memtime s[10:11]")
    s.append("s_waitcnt lgkmcnt(0)")
    for b in range(nb):
        s.append(f"s_cmp_eq_u32 s21, {b}")
        s.append(f"s_cbranch_scc1 L_{name}_{b}")
    for b, body in enumerate(bodies):
        s.append(f"L_{name}_{b}:")
        s.append(f"s_mov_b32 s22, {iters}")
        s.append(".p2align 6")
        s.append(f"LL_{name}_{b}:")
        s += body*UNROLL
        s.append("s_sub_u32 s22, s22, 1")
        s.append("s_cmp_lg_u32 s22, 0")
        s.append(f"s_cbranch_scc1 LL_{name}_{b}")
        s.append(f"s_branch L_{name}_end")
    s.append(f"L_{name}_end:")
    s.append("s_memtime s[12:13]")
    s.append("s_waitcnt lgkmcnt(0)")
    s.append("s_sub_u32 s12, s12, s10")
    s.append("v_mov_b32 v2, s12")
    s.append("s_lshl_b32 s3, s2, 4")
    s.append("s_add_u32 s3, s3, s20")
    s.append("s_lshl_b32 s3, s3, 2")
    s.append("v_mov_b32 v3, s3")
    s.append("v_and_b32 v4, 63, v0")
    s.append("v_cmp_eq_u32 vcc, 0, v4")
    s.append("s_and_saveexec_b64 s[14:15], vcc")
    s.append("s_cbranch_execz L_%s_skip" % name)
    s.append("global_store_dword v3, v2, s[4:5]")
    s.append("L_%s_skip:" % name)
    s.append("s_endpgm")
    s.append(f""".section .rodata,"a"
.p2align 6
.amdhsa_kernel {name}
  .amdhsa_next_free_vgpr {vgpr}
  .amdhsa_next_free_sgpr 102
  .amdhsa_accum_offset {vgpr}
  .amdhsa_group_segment_fixed_size 0
  .amdhsa_kernarg_size 88
  .amdhsa_user_sgpr_count 2
  .amdhsa_user_sgpr_kernarg_segment_ptr 1
  .amdhsa_system_sgpr_workgroup_id_x 1
  .amdhsa_float_denorm_mode_32 3
.end_amdhsa_kernel
.text""")
    return "\n".join(s) + "\n"

def exps(n, base=16): return [f"v_exp_f32 v{base+i}, v{base+32+i}" for i in range(n)]
def adds(n, base=16): return [f"v_add_f32 v{base+i}, v{base+32+i}, v{base+32+i}" for i in range(n)]
def cvts(n, base=80): return [f"v_cvt_pk_bf16_f32 v{base+i}, v{16+2*i}, v{17+2*i}" for i in range(n)]
def mf(n, shape="32x32x16_bf16", areg=4):
    out = []
    for i in range(n):
        d = 64 + 0
    return out
M32 = lambda d,a,b: f"v_mfma_f32_32x32x16_bf16 v[{d}:{d+15}], v[{a}:{a+3}], v[{b}:{b+3}], v[{d}:{d+15}]"
M32z = lambda d,a,b: f"v_mfma_f32_32x32x16_bf16 v[{d}:{d+15}], v[{a}:{a+3}], v[{b}:{b+3}], 0"
M8 = lambda d,a,b: f"v_mfma_f32_32x32x8_bf16 v[{d}:{d+15}], v[{a}:{a+1}], v[{b}:{b+1}], v[{d}:{d+15}]"
M16 = lambda d,a,b: f"v_mfma_f32_16x16x32_bf16 v[{d}:{d+3}], v[{a}:{a+3}], v[{b}:{b+3}], v[{d}:{d+3}]"

def interleave(mfmas, valus):
    out = []
    n = len(mfmas)
    per = (len(valus) + n - 1)//n
    for i, m in enumerate(mfmas):
        out.append(m)
        out += valus[i*per:(i+1)*per]
    return out

tests = {}
tests["exp16"] = [exps(16)]
tests["add16"] = [adds(16)]
tests["pkadd16"] = [[f"v_pk_add_f32 v[{16+2*i}:{17+2*i}], v[{48+2*i}:{49+2*i}], v[{48+2*i}:{49+2*i}]" for i in range(16)]]
tests["pkfma16"] = [[f"v_pk_fma_f32 v[{16+2*i}:{17+2*i}], v[{48+2*i}:{49+2*i}], v[{48+2*i}:{49+2*i}], v[{48+2*i}:{49+2*i}]" for i in range(16)]]
tests["exph16"] = [[f"v_exp_f16 v{16+i}, v{48+i}" for i in range(16)]]
tests["cvt16"] = [[f"v_cvt_pk_bf16_f32 v{16+i}, v{48+2*i}, v{49+2*i}" for i in range(16)]]
tests["exp16cvt8"] = [exps(16) + cvts(8)]
ee = []
for i in range(8):
    ee += [f"v_exp_f32 v{16+2*i}, v{48+2*i}", f"v_exp_f32 v{17+2*i}, v{49+2*i}"]
    if i > 0: ee += [f"v_cvt_pk_bf16_f32 v{80+i-1}, v{16+2*i-2}, v{17+2*i-2}"]
ee += [f"v_cvt_pk_bf16_f32 v87, v30, v31"]
tests["eec"] = [ee]
tests["mfma4"] = [[M32(96,4,8), M32(112,4,8), M32(96,4,8), M32(112,4,8)]]
tests["mfma8_4"] = [[M8(96,4,8), M8(112,4,8), M8(96,4,8), M8(112,4,8)]]
tests["mfma16_8"] = [[M16(96+4*i,4,8) for i in range(8)]]
tests["attn"] = [interleave([M32(96,4,8), M32(112,4,8), M32(96,4,8), M32(112,4,8)], ee)]
tests["attn8"] = [interleave([M32(96,4,8), M8(96,4,8), M32(112,4,8), M32(112,4,8)], ee)]
tests["het_exp_add"] = [exps(16), adds(32)[:32] if False else [f"v_add_f32 v{16+i}, v{48+i}, v{48+i}" for i in range(32)]]
tests["het_exp_mfma"] = [exps(16), [M32(96,4,8), M32(112,4,8), M32(96,4,8), M32(112,4,8)]]
tests["het_add_mfma"] = [[f"v_add_f32 v{16+i}, v{48+i}, v{48+i}" for i in range(32)], [M32(96,4,8), M32(112,4,8), M32(96,4,8), M32(112,4,8)]]
tests["exp_add_mix"] = [sum([[f"v_exp_f32 v{16+i}, v{48+i}", f"v_add_f32 v{80+i}, v{48+i}, v{48+i}"] for i in range(16)], [])]
tests["exp_add2_mix"] = [sum([[f"v_exp_f32 v{16+i}, v{48+i}", f"v_add_f32 v{80+i}, v{48+i}, v{48+i}", f"v_add_f32 v{96+i}, v{48+i}, v{48+i}"] for i in range(16)], [])]

if __name__ == "__main__":
    import hiprt
    if len(sys.argv) > 1 and sys.argv[1] == "build":
        src = '.amdgcn_target "amdgcn-amd-amdhsa--gfx950"\n'
        for k, b in tests.items():
            src += gen("k_" + k, b)
        hiprt.assemble(src, "mb1.co", [("k_" + k, 128) for k in tests])
        print("built")
    else:
        m = hiprt.Module("mb1.co")
        out = hiprt.Buf(256*16*4*2)
        for k in tests:
            f = m.fn("k_" + k)
            res = []
            for wps in (1, 2, 4):
                out.zero()
                for rep in range(2):
                    hiprt.launch(f, (256,1,1), (256*wps,1,1), [out.ptr]+[0]*10, lds=100*1024)
                hiprt.sync()
                r = out.download(np.uint32, 256*16).reshape(256,16)[:, :4*wps]
                D = ITERS*UNROLL
                if len(tests[k]) > 1 and wps > 1:
                    a = np.median(r[:, 0:4]); b = np.median(r[:, 4:8])
                    res.append(f"wps{wps}: {a/D:.1f}/{b/D:.1f} max {np.median(r.max(axis=1))/D:.1f}")
                else:
                    res.append(f"wps{wps}: min {np.median(r.min(axis=1))/D:.1f} max {np.median(r.max(axis=1))/D:.1f}")
            print(f"{k:16s} ninstr={[len(b) for b in tests[k]]} cycles/iter: " + "  ".join(res))
```

```python
import sys, os
sys.path.insert(0, os.path.dirname(os.path.abspath(__file__)))
import numpy as np
import mb1
from mb1 import interleave, ITERS, UNROLL
def gen(name, bodies, vgpr=128, agpr=96):
    t = mb1.gen(name, bodies, vgpr=vgpr)
    t = t.replace(f".amdhsa_next_free_vgpr {vgpr}", f".amdhsa_next_free_vgpr {vgpr+agpr}")
    init = "\n".join(f"v_accvgpr_write_b32 a{i}, v{2+i%8}" for i in range(agpr))
    t = t.replace("s_waitcnt lgkmcnt(0)\ns_lshr_b32 s21", init + "\ns_waitcnt lgkmcnt(0)\ns_lshr_b32 s21")
    return t
ee = []
for i in range(8):
    ee += [f"v_exp_f32 v{16+2*i}, v{48+2*i}", f"v_exp_f32 v{17+2*i}, v{49+2*i}"]
    if i > 0: ee += [f"v_cvt_pk_bf16_f32 v{80+i-1}, v{16+2*i-2}, v{17+2*i-2}"]
ee += [f"v_cvt_pk_bf16_f32 v87, v30, v31"]
def M(d, a, b, c=None): return f"v_mfma_f32_32x32x16_bf16 {d}, {a}, {b}, {c or d}"
tests = {
 "vvv": [interleave([M("v[96:111]","v[4:7]","v[8:11]"), M("v[112:127]","v[4:7]","v[8:11]"), M("v[96:111]","v[4:7]","v[8:11]"), M("v[112:127]","v[4:7]","v[8:11]")], ee)],
 "aA_vB_vD": [interleave([M("v[96:111]","a[0:3]","v[8:11]"), M("v[112:127]","a[0:3]","v[8:11]"), M("v[96:111]","a[0:3]","v[8:11]"), M("v[112:127]","a[0:3]","v[8:11]")], ee)],
 "aA_aB_vD": [interleave([M("v[96:111]","a[0:3]","a[4:7]"), M("v[112:127]","a[0:3]","a[4:7]"), M("v[96:111]","a[0:3]","a[4:7]"), M("v[112:127]","a[0:3]","a[4:7]")], ee)],
 "vA_vB_aD": [interleave([M("a[16:31]","v[4:7]","v[8:11]"), M("a[32:47]","v[4:7]","v[8:11]"), M("a[16:31]","v[4:7]","v[8:11]"), M("a[32:47]","v[4:7]","v[8:11]")], ee)],
 "aaa": [interleave([M("a[16:31]","a[0:3]","a[4:7]"), M("a[32:47]","a[0:3]","a[4:7]"), M("a[16:31]","a[0:3]","a[4:7]"), M("a[32:47]","a[0:3]","a[4:7]")], ee)],
}
if __name__ == "__main__":
    import hiprt
    if len(sys.argv) > 1 and sys.argv[1] == "build":
        src = '.amdgcn_target "amdgcn-amd-amdhsa--gfx950"\n'
        for k, b in tests.items(): src += gen("k_" + k, b)
        hiprt.assemble(src, "mb8.co", [("k_" + k, 224) for k in tests])
        print("built")
    else:
        m = hiprt.Module("mb8.co")
        out = hiprt.Buf(256*16*4*2)
        for k in tests:
            f = m.fn("k_" + k); res = []
            for wps in (1, 2):
                out.zero()
                for rep in range(2): hiprt.launch(f, (256,1,1), (256*wps,1,1), [out.ptr]+[0]*10, lds=100*1024)
                hiprt.sync()
                r = out.download(np.uint32, 256*16).reshape(256,16)[:, :4*wps]
                D = ITERS*UNROLL
                res.append(f"wps{wps}: max {np.median(r.max(axis=1))/D:.1f}")
            print(f"{k:12s} " + "  ".join(res))
```

```python
from asmlib import *
import asmlib
from layout import *

STAGE = 53376
WOFF = 32768
UOFF = 10368
K1_LDS = 3*STAGE + 2048

def gen_k1(A, name, fused=False):
    SC1 = ' sc1' if ((fused and not asmlib.OPT.get('wbl2')) or not asmlib.OPT.get('k1plain')) else (' nt' if asmlib.OPT.get('k1nt') else '')
    import math, struct
    c0 = -2.0*math.sqrt(2.0/math.pi)*math.log2(math.e)
    c1 = c0*0.044715
    def f2u(f): return struct.unpack("<I", struct.pack("<f", f))[0]
    kernel_header(A, name)
    sX, sWQ, sWO, sWG, sWU, sWD, sGW, sWS = 4, 6, 8, 12, 14, 16, 18, 48
    sRB, sCB, sW, sT = 20, 21, 22, 23
    sT2, sT3 = 24, 25
    sRS = 26
    sCG, sCU = 27, 28
    sTYPE = 29
    sNU = 30
    sU0 = 31
    SRD_X, SRD_W, SRD_WS = 32, 36, 40
    sBUF = 44; sXO = 45; sWO_ = 46; sCNT = 47
    sHM = 48
    sH = 52
    sSC = 60
    sDP, sDN = 84, 85
    A("s_cmp_ge_u32 s2, 256")
    A(f"s_cbranch_scc1 {name}_end")
    stamp(A, 0)
    A("s_load_dwordx8 s[4:11], s[0:1], 0")
    A("s_load_dwordx8 s[12:19], s[0:1], 32")
    A(f"s_load_dwordx2 {sr(sWS,2)}, s[0:1], {KA_WS}")
    A.c("decode: xcd = id&7, j = id>>3; rb = 4*(xcd&1) + (j&3); cb = 8*(xcd>>1) + (j>>2)")
    A(f"s_and_b32 s{sT}, s2, 1")
    A(f"s_lshl_b32 s{sT}, s{sT}, 2")
    A(f"s_lshr_b32 s{sT2}, s2, 3")
    A(f"s_and_b32 s{sT3}, s{sT2}, 3")
    A(f"s_add_u32 s{sRB}, s{sT}, s{sT3}")
    F6 = asmlib.OPT.get("ffn6")
    if F6:
        A.c("XCD pair p: c = j>>2: 0,1,2 -> Q_p, K_p, V_p; 3..6 -> FFN column block 4p+c-3 (96+96 columns); 7 -> side jobs only")
        A(f"s_bfe_u32 s{sT}, s2, 0x20001")
        A(f"s_lshr_b32 s{sT2}, s{sT2}, 2")
        A(f"s_lshl_b32 s{sT3}, s{sT2}, 2")
        A(f"s_add_u32 s{sCB}, s{sT3}, s{sT}")
        A(f"s_mov_b32 s{sTYPE}, s{sT2}")
        A(f"s_cmp_ge_u32 s{sT2}, 3")
        A(f"s_cbranch_scc0 {name}_dec_done")
        A(f"s_lshl_b32 s{sT3}, s{sT}, 2")
        A(f"s_add_u32 s{sCB}, s{sT3}, s{sT2}")
        A(f"s_sub_u32 s{sCB}, s{sCB}, 3")
        A(f"s_cmp_eq_u32 s{sT2}, 7")
        A(f"s_cselect_b32 s{sTYPE}, 4, 3")
        A.label(f"{name}_dec_done")
    else:
        if not asmlib.OPT.get("map1"):
            A.c("XCD pair p produces Q_p, K_p, V_p (the heads its attention workgroups consume) and five FFN column blocks")
            A(f"s_bfe_u32 s{sT}, s2, 0x20001")
            A(f"s_lshr_b32 s{sT2}, s{sT2}, 2")
            A(f"s_lshl_b32 s{sT3}, s{sT2}, 2")
            A(f"s_add_u32 s{sCB}, s{sT3}, s{sT}")
            A(f"s_mul_i32 s{sT3}, s{sT}, 5")
            A(f"s_add_u32 s{sT3}, s{sT3}, s{sT2}")
            A(f"s_add_u32 s{sT3}, s{sT3}, 9")
            A(f"s_cmp_ge_u32 s{sT2}, 3")
            A(f"s_cselect_b32 s{sCB}, s{sT3}, s{sCB}")
        else:
            A(f"s_and_b32 s{sT}, s2, 6")
            if not asmlib.OPT.get("oldmap"):
                A.c("column-block groups in reverse XCD order: the blocks with the longer epilogue (FFN) go to the workgroups that start first")
                A(f"s_sub_u32 s{sT}, 6, s{sT}")
            A(f"s_lshl_b32 s{sT}, s{sT}, 2")
            A(f"s_lshr_b32 s{sT2}, s{sT2}, 2")
            A(f"s_add_u32 s{sCB}, s{sT}, s{sT2}")
    A("v_lshrrev_b32 v1, 6, v0")
    A("v_and_b32 v2, 63, v0")
    A(f"v_readfirstlane_b32 s{sW}, v1")
    if F6:
        A(f"s_movk_i32 s{sRS}, 3840")
        A(f"s_mul_i32 s{sCG}, s{sCB}, 160")
        A(f"s_add_u32 s{sCU}, s{sCG}, 80")
    else:
        A.c("block params")
        A(f"s_cmp_ge_u32 s{sCB}, 12")
        A(f"s_cbranch_scc1 {name}_ffn_params")
        A(f"s_movk_i32 s{sRS}, 3840")
        A(f"s_mul_i32 s{sCG}, s{sCB}, 160")
        A(f"s_add_u32 s{sCU}, s{sCG}, 80")
        A(f"s_lshr_b32 s{sTYPE}, s{sCB}, 2")
        A(f"s_mov_b32 s{sNU}, 5")
        A(f"s_mov_b32 s{sU0}, 0")
        A(f"s_branch {name}_params_done")
        A.label(f"{name}_ffn_params")
        A(f"s_movk_i32 s{sRS}, 3072")
        A(f"s_sub_u32 s{sT}, s{sCB}, 12")
        A(f"s_mul_i32 s{sU0}, s{sT}, 5")
        A(f"s_mov_b32 s{sNU}, 5")
        A(f"s_cmp_lt_u32 s{sT}, 16")
        A(f"s_cbranch_scc1 {name}_ffn_p2")
        A(f"s_lshl_b32 s{sU0}, s{sT}, 2")
        A(f"s_add_u32 s{sU0}, s{sU0}, 16")
        A(f"s_mov_b32 s{sNU}, 4")
        A.label(f"{name}_ffn_p2")
        A(f"s_lshl_b32 s{sCG}, s{sU0}, 4")
        A(f"s_mov_b32 s{sCU}, s{sCG}")
        A(f"s_mov_b32 s{sTYPE}, 3")
        A.label(f"{name}_params_done")
    SP = asmlib.OPT.get("startprof")
    def srd_ws():
        A(f"s_mov_b32 s{SRD_WS}, s{sWS}")
        A(f"s_and_b32 s{SRD_WS+1}, s{sWS+1}, 0xffff")
        A(f"s_mov_b32 s{SRD_WS+2}, {WS_SIZE}")
        A(f"s_mov_b32 s{SRD_WS+3}, 0x20000")
    def srd_x():
        A(f"s_mov_b32 s{SRD_X}, s{sX}")
        A(f"s_and_b32 s{SRD_X+1}, s{sX+1}, 0xffff")
        A(f"s_mov_b32 s{SRD_X+2}, {2048*1280}")
        A(f"s_mov_b32 s{SRD_X+3}, 0x20000")
    def x_voffsets(vXO):
        A("v_lshrrev_b32 v3, 3, v2")
        A("v_lshrrev_b32 v4, 4, v2")
        A("v_and_b32 v5, 7, v2")
        A("v_xor_b32 v5, v5, v4")
        A("v_xor_b32 v6, 4, v5")
        A(f"s_lshl_b32 s{sT}, s{sW}, 6")
        A(f"v_add_u32 v3, s{sT}, v3")
        A("v_mul_u32_u24 v3, 1280, v3")
        A("v_lshl_add_u32 v5, v5, 4, v3")
        A("v_lshl_add_u32 v6, v6, 4, v3")
        for j in range(8):
            A(f"v_add_u32 v{vXO+j}, {j*10240}, v{5 if j % 2 == 0 else 6}")
    A(f"s_cmp_ge_u32 s{sW}, 4")
    A(f"s_cbranch_scc1 {name}_loader")

    if F6:
        A(f"s_cmp_eq_u32 s{sTYPE}, 4")
        A(f"s_cbranch_scc1 {name}_idlec")
        A(f"s_cmp_eq_u32 s{sTYPE}, 3")
        A(f"s_cbranch_scc1 {name}_f6c")
    ACC = 96
    def acc(tt, mt): return ACC + (tt*5 + mt)*16
    FA = [8, 36]
    FB = [28, 56]
    vXA = 64
    vWA = 68
    vWA2 = 69
    A.c("compute waves fetch the x rows of stages 0 and 1 themselves (the loaders fetch the weights)")
    x_voffsets(70)
    A(f"s_mul_i32 s{sXO}, s{sRB}, {256*1280}")
    A(f"s_lshl_b32 s{sT2}, s{sW}, 13")
    A("s_waitcnt lgkmcnt(0)")
    srd_x()
    srd_ws()
    for st in range(2):
        for j in range(8):
            A(f"s_add_u32 m0, s{sT2}, {st*STAGE + j*1024}")
            A("s_nop 0")
            A(f"buffer_load_dwordx4 v{70+j}, {sr(SRD_X,4)}, s{sXO} offen lds")
        A(f"s_add_u32 s{sXO}, s{sXO}, 128")
    if asmlib.OPT.get("wtouch"):
        A.c("touch the pages this wave will store to at the end (translation warm-up)")
        A(f"s_lshl_b32 s{sT2}, s{sRB}, 3")
        A(f"s_lshl_b32 s{sT3}, s{sW}, 1")
        A(f"s_add_u32 s{sT2}, s{sT2}, s{sT3}")
        A(f"s_cmp_eq_u32 s{sTYPE}, 3")
        A(f"s_cbranch_scc1 {name}_wt_f")
        A(f"s_and_b32 s{sT}, s{sCB}, 3")
        A(f"s_lshl_b32 s{sT}, s{sT}, 3")
        A("v_and_b32 v3, 7, v2")
        A(f"v_add_u32 v3, s{sT}, v3")
        A(f"s_cmp_eq_u32 s{sTYPE}, 0")
        A(f"s_mov_b32 s{sT}, {HS_KV}")
        A(f"s_mov_b32 s{sT3}, {HS_Q}")
        A(f"s_cselect_b32 s{sT}, s{sT3}, s{sT}")
        A(f"v_mul_lo_u32 v3, v3, s{sT}")
        A(f"s_mul_i32 s{sT3}, s{sT2}, 1280")
        A(f"s_lshr_b32 s{sT2}, s{sT2}, 2")
        A(f"s_mul_i32 s{sT2}, s{sT2}, {CH}")
        A(f"s_add_u32 s{sT2}, s{sT2}, {KV}")
        A(f"s_cmp_eq_u32 s{sTYPE}, 0")
        A(f"s_cselect_b32 s{sT2}, s{sT3}, s{sT2}")
        A(f"s_branch {name}_wt_go")
        A.label(f"{name}_wt_f")
        A("v_and_b32 v3, 1, v2")
        A(f"v_mul_u32_u24 v3, {96*1024}, v3")
        A(f"s_mul_i32 s{sT2}, s{sT2}, {96*1024}")
        A(f"s_lshl_b32 s{sT3}, s{sU0}, 10")
        A(f"s_add_u32 s{sT2}, s{sT2}, s{sT3}")
        A(f"s_add_u32 s{sT2}, s{sT2}, {HF}")
        A.label(f"{name}_wt_go")
        A("s_mov_b64 exec, 0xff")
        A(f"buffer_load_dword v80, v3, {sr(SRD_WS,4)}, s{sT2} offen")
        A("s_mov_b64 exec, -1")
    if asmlib.OPT.get("k1prio"): A(f"s_setprio {asmlib.OPT.get('k1prio')}")
    A.c("compute wave: LDS read addresses")
    A("v_and_b32 v3, 31, v2")
    A("v_lshrrev_b32 v4, 5, v2")
    A(f"s_lshl_b32 s{sT}, s{sW}, 6")
    A(f"v_add_u32 v5, s{sT}, v3")
    A("v_lshlrev_b32 v5, 7, v5")
    A("v_bfe_u32 v6, v3, 1, 3")
    for sp in range(4):
        A(f"v_or_b32 v7, {2*sp}, v4")
        A("v_xor_b32 v7, v7, v6")
        A(f"v_lshl_add_u32 v{vXA+sp}, v7, 4, v5")
    RW = 320 if F6 else 160
    UO = 160 if F6 else UOFF
    A("v_bfe_u32 v5, v2, 4, 1")
    A(f"v_mul_u32_u24 v5, {UO}, v5")
    A("v_bfe_u32 v6, v2, 2, 2")
    A("v_lshl_add_u32 v6, v4, 3, v6")
    A(f"v_mul_u32_u24 v6, {RW}, v6")
    A("v_and_b32 v7, 3, v2")
    A("v_lshlrev_b32 v7, 3, v7")
    A("v_add3_u32 v5, v5, v6, v7")
    A(f"v_add_u32 v{vWA}, {WOFF}, v5")
    A.c("Q/K/V blocks: unit 4 gathers d=16..19 of four heads: column byte offset 40c+32 instead of 8c")
    A("v_lshlrev_b32 v7, 2, v7")
    A(f"v_add3_u32 v{vWA2}, v{vWA}, v7, 32")
    for r in range(ACC, ACC+160):
        A(f"v_mov_b32 v{r}, 0")

    def fill_of(R, sIdx=64):
        A.c("fill a share of the O' hand-off area with the not-ready pattern")
        for j in range(4): A(f"v_mov_b32 v{R+j}, -1")
        A("v_lshlrev_b32 v3, 4, v2")
        A(f"s_mul_i32 s{sT}, s{sIdx}, 2560")
        A(f"s_add_u32 s{sT}, s{sT}, {OF}")
        A(f"buffer_store_dwordx4 {vr(R,4)}, v3, {sr(SRD_WS,4)}, s{sT} offen{SC1}")
        A(f"buffer_store_dwordx4 {vr(R,4)}, v3, {sr(SRD_WS,4)}, s{sT} offen offset:1024{SC1}")
        A("s_mov_b32 exec_hi, 0")
        A(f"buffer_store_dwordx4 {vr(R,4)}, v3, {sr(SRD_WS,4)}, s{sT} offen offset:2048{SC1}")
        A("s_mov_b64 exec, -1")
    def vpad(tag, R):
        A.c("rows 20..31 of the V^T fragments: row 20 = ones (row sums), rows 21..31 = zeros")
        A("v_and_b32 v3, 15, v2")
        A("v_add_u32 v3, 16, v3")
        A("v_lshrrev_b32 v4, 4, v2")
        A("v_lshlrev_b32 v4, 9, v4")
        A("v_lshl_add_u32 v4, v3, 4, v4")
        A("v_cmp_gt_u32 vcc, 20, v3")
        A("v_mov_b32 v5, 0x7ff00000")
        A(f"v_mov_b32 v{R+4}, 0x3f803f80")
        A("v_cndmask_b32 v4, v4, v5, vcc")
        A("v_cmp_eq_u32 vcc, 20, v3")
        A("s_nop 1")
        A(f"v_cndmask_b32 v{R+4}, 0, v{R+4}, vcc")
        A("s_nop 0")
        for j in range(1, 4): A(f"v_mov_b32 v{R+4+j}, v{R+4}")
        A(f"s_sub_u32 s{sT}, s{sCB}, 8")
        A(f"s_lshl_b32 s{sT}, s{sT}, 3")
        A(f"s_lshl_b32 s{sT2}, s{sW}, 1")
        A(f"s_add_u32 s{sT}, s{sT}, s{sT2}")
        A(f"s_mul_i32 s{sT}, s{sT}, {HS_KV}")
        A(f"s_lshl_b32 s{sT2}, s{sRB}, 1")
        A(f"s_mul_i32 s{sT2}, s{sT2}, {CH}")
        A(f"s_add_u32 s{sT}, s{sT}, s{sT2}")
        A(f"s_add_u32 s{sT}, s{sT}, {KV+5120}")
        for hh in range(2):
            for ck in range(2):
                for tl in range(4):
                    A(f"s_add_u32 s{sT2}, s{sT}, {hh*HS_KV + ck*CH + tl*2048}")
                    A(f"buffer_store_dwordx4 {vr(R+4,4)}, v4, {sr(SRD_WS,4)}, s{sT2} offen{SC1}")
    def const_stores(tag, R=70):
        A(f"s_lshl_b32 s{sT3}, s2, 2")
        A(f"s_add_u32 s{sT3}, s{sT3}, s{sW}")
        fill_of(R, sT3)
        A(f"s_cmp_eq_u32 s{sTYPE}, 2")
        A(f"s_cbranch_scc0 {name}_novpad_{tag}")
        vpad(tag, R)
        A.label(f"{name}_novpad_{tag}")

    def reads(sp, st, qkv):
        L = []
        for tt in range(2):
            L.append(f"ds_read_b128 {vr(FB[st]+4*tt,4)}, v{vXA+sp} offset:{tt*4096}")
        for mt in range(5):
            for half in range(2):
                if not qkv:
                    L.append(f"ds_read_b64_tr_b16 {vr(FA[st]+4*mt+2*half,2)}, v{vWA} offset:{sp*16*RW+mt*32+half*4*RW}")
                elif mt < 4:
                    L.append(f"ds_read_b64_tr_b16 {vr(FA[st]+4*mt+2*half,2)}, v{vWA} offset:{sp*16*RW+mt*40+half*4*RW}")
                else:
                    L.append(f"ds_read_b64_tr_b16 {vr(FA[st]+4*mt+2*half,2)}, v{vWA2} offset:{sp*16*RW+half*4*RW}")
        R_ = [L[0], L[2], L[3], L[1]] + L[4:]
        if asmlib.OPT.get("halfreads"): R_ = R_[:6]
        return R_
    def mfmas(st, swapped):
        L = []
        for mt in range(5):
            for tt in range(2):
                a, b = vr(FA[st]+4*mt,4), vr(FB[st]+4*tt,4)
                if swapped: a, b = b, a
                L.append(f"v_mfma_f32_32x32x16_bf16 {vr(acc(tt,mt),16)}, {a}, {b}, {vr(acc(tt,mt),16)}")
        return L
    def mainloop(swapped, tag, qkv):
        A("s_waitcnt vmcnt(8)")
        A("s_barrier")
        stamp(A, 1)
        for l in reads(0, 0, qkv): A(l)
        A(f"s_mov_b32 s{sCNT}, 0")
        A(f"s_mov_b32 s{sBUF}, 0")
        A(f"s_mov_b32 s{sDP}, {STAGE}")
        A(f"s_mov_b32 s{sDN}, {(-2*STAGE) & 0xffffffff}")
        A(".p2align 6")
        A.label(f"{name}_loop_{tag}")
        for sp in range(4):
            cur = sp & 1; nxt = cur ^ 1
            M = mfmas(cur, swapped)
            CW = not asmlib.OPT.get("nocw")
            if not CW: A("s_waitcnt lgkmcnt(0)")
            if sp < 3:
                R = reads(sp+1, nxt, qkv)
                k = 0
                for i, m in enumerate(M):
                    if CW and i % 2 == 0:
                        g = i // 2
                        A(f"s_waitcnt lgkmcnt({(8 - 2*g) + min(4*g, 12)})")
                    A(m)
                    for l in R[k:k+2]: A(l)
                    k += 2
            else:
                if CW: A("s_waitcnt lgkmcnt(8)")
                A(M[0]); A(M[1])
                if CW: A("s_waitcnt lgkmcnt(0)")
                A(f"s_add_u32 s{sBUF}, s{sBUF}, 1")
                A(f"s_cmp_eq_u32 s{sBUF}, 3")
                A(f"s_cselect_b32 s{sT}, s{sDN}, s{sDP}")
                A(f"s_cselect_b32 s{sBUF}, 0, s{sBUF}")
                A(f"s_cmp_eq_u32 s{sCNT}, 0")
                A(f"s_cbranch_scc0 {name}_nw_{tag}")
                A("s_waitcnt vmcnt(0)")
                A.label(f"{name}_nw_{tag}")
                A("s_barrier")
                for j in range(4): A(f"v_add_u32 v{vXA+j}, s{sT}, v{vXA+j}")
                A(f"v_add_u32 v{vWA}, s{sT}, v{vWA}")
                if qkv: A(f"v_add_u32 v{vWA2}, s{sT}, v{vWA2}")
                R = reads(0, nxt, qkv)
                k = 0
                for m in M[2:]:
                    A(m)
                    for l in R[k:k+2]: A(l)
                    k += 2
        if asmlib.OPT.get("earlyconst"):
            A(f"s_cmp_eq_u32 s{sCNT}, 2")
            A(f"s_cbranch_scc0 {name}_nc_{tag}")
            const_stores(tag)
            A.label(f"{name}_nc_{tag}")
        MS = asmlib.OPT.get("midstamp")
        if MS and asmlib.PROFILE:
            A(f"s_cmp_eq_u32 s{sCNT}, {MS-1}")
            A(f"s_cbranch_scc0 {name}_nms_{tag}")
            stamp(A, 2)
            A.label(f"{name}_nms_{tag}")
        A(f"s_add_u32 s{sCNT}, s{sCNT}, 1")
        A(f"s_cmp_lt_u32 s{sCNT}, 10")
        A(f"s_cbranch_scc1 {name}_loop_{tag}")
        A("s_waitcnt lgkmcnt(0)")
        A("s_nop 15")
        if not MS: stamp(A, 2)
    A(f"s_cmp_eq_u32 s{sTYPE}, 2")
    A(f"s_cbranch_scc1 {name}_vblock")
    if not F6:
        A(f"s_cmp_eq_u32 s{sTYPE}, 3")
        A(f"s_cbranch_scc1 {name}_ffnblock")
    mainloop(False, "qk", True)

    A.c("epilogue Q/K: unit mt<4 = d 0..15 of head mt (rows 0..15) and head 4+mt (rows 16..31); unit 4 = d 16..19 of the 8 heads")
    vL16q, vTail = 8, 9
    D0 = 16
    sBASE, sHS = 61, 62
    A(f"v_lshlrev_b32 v{vL16q}, 4, v2")
    A(f"s_and_b32 s{sT}, s{sCB}, 3")
    A(f"s_cmp_eq_u32 s{sTYPE}, 0")
    A(f"s_cbranch_scc0 {name}_kparams")
    A(f"s_mov_b32 s{sHS}, {HS_Q}")
    A(f"s_mul_i32 s{sBASE}, s{sT}, {8*HS_Q}")
    A(f"s_lshl_b32 s{sT2}, s{sRB}, 3")
    A(f"s_lshl_b32 s{sT3}, s{sW}, 1")
    A(f"s_add_u32 s{sT2}, s{sT2}, s{sT3}")
    A(f"s_mul_i32 s{sT2}, s{sT2}, 1280")
    A(f"s_add_u32 s{sBASE}, s{sBASE}, s{sT2}")
    if QF: A(f"s_add_u32 s{sBASE}, s{sBASE}, {QF}")
    A(f"s_mov_b32 s{sSC}, 0x3ea52b5c")
    A(f"s_branch {name}_qk_go")
    A.label(f"{name}_kparams")
    A(f"s_mov_b32 s{sHS}, {HS_KV}")
    A(f"s_mul_i32 s{sBASE}, s{sT}, {8*HS_KV}")
    A(f"s_lshl_b32 s{sT2}, s{sRB}, 1")
    A(f"s_lshr_b32 s{sT3}, s{sW}, 1")
    A(f"s_add_u32 s{sT2}, s{sT2}, s{sT3}")
    A(f"s_mul_i32 s{sT2}, s{sT2}, {CH}")
    A(f"s_add_u32 s{sBASE}, s{sBASE}, s{sT2}")
    A(f"s_and_b32 s{sT3}, s{sW}, 1")
    A(f"s_mul_i32 s{sT3}, s{sT3}, 2560")
    A(f"s_add_u32 s{sBASE}, s{sBASE}, s{sT3}")
    A(f"s_add_u32 s{sBASE}, s{sBASE}, {KV}")
    A(f"s_mov_b32 s{sSC}, 1.0")
    A.label(f"{name}_qk_go")
    A(f"s_mov_b32 s{sH}, s{sBASE}")
    for i in range(1, 8):
        A(f"s_add_u32 s{sH+i}, s{sH+i-1}, s{sHS}")
    A("v_and_b32 v3, 31, v2")
    A("v_lshrrev_b32 v4, 5, v2")
    A(f"v_mul_lo_u32 v4, v4, s{sHS}")
    A("v_lshl_add_u32 v4, v3, 3, v4")
    A(f"v_add_u32 v{vTail}, 1024, v4")
    A(f"v_mov_b32 v10, s{sSC}")
    A(f"v_mov_b32 v11, s{sSC}")
    n = 0
    for mt in range(4):
        for tt in range(2):
            for part in range(2):
                a = acc(tt, mt) + 8*part
                d = D0 + 4*(n % 8); n += 1
                for j in range(4):
                    A(f"v_pk_mul_f32 {vr(a+2*j,2)}, {vr(a+2*j,2)}, v[10:11]")
                for j in range(4):
                    A(f"v_cvt_pk_bf16_f32 v{d+j}, v{a+2*j}, v{a+2*j+1}")
                A("s_nop 1")
                A(f"v_permlane32_swap_b32 v{d}, v{d+2}")
                A(f"v_permlane32_swap_b32 v{d+1}, v{d+3}")
                A(f"buffer_store_dwordx4 {vr(d,4)}, v{vL16q}, {sr(SRD_WS,4)}, s{sH+4*part+mt} offen offset:{tt*1280}{SC1}")
    for tt in range(2):
        for i in range(4):
            a = acc(tt, 4) + 4*i
            d = D0 + 4*(n % 8); n += 1
            for j in range(2):
                A(f"v_pk_mul_f32 {vr(a+2*j,2)}, {vr(a+2*j,2)}, v[10:11]")
            A(f"v_cvt_pk_bf16_f32 v{d}, v{a}, v{a+1}")
            A(f"v_cvt_pk_bf16_f32 v{d+1}, v{a+2}, v{a+3}")
            A(f"buffer_store_dwordx2 {vr(d,2)}, v{vTail}, {sr(SRD_WS,4)}, s{sH+2*i} offen offset:{tt*1280}{SC1}")
    A(f"s_branch {name}_fin")

    if not F6:
        A.label(f"{name}_ffnblock")
        mainloop(False, "f", False)
        A.c("epilogue FFN: h = gelu_tanh(g) * u")
        vC0, vC1, vONE = 8, 10, 12
        vTt, vP, vE, vGU = 14, 16, 18, 20
        vOUT = 24
        for j in range(2):
            A(f"v_mov_b32 v{vC0+j}, {hex(f2u(c0))}")
            A(f"v_mov_b32 v{vC1+j}, {hex(f2u(c1))}")
            A(f"v_mov_b32 v{vONE+j}, 1.0")
        A(f"v_lshlrev_b32 v3, 4, v2")
        A(f"s_lshl_b32 s{sT2}, s{sRB}, 3")
        A(f"s_lshl_b32 s{sT3}, s{sW}, 1")
        A(f"s_add_u32 s{sT2}, s{sT2}, s{sT3}")
        A(f"s_mul_i32 s{sT2}, s{sT2}, {96*1024}")
        A(f"s_lshl_b32 s{sT3}, s{sU0}, 10")
        A(f"s_add_u32 s{sT2}, s{sT2}, s{sT3}")
        A(f"s_add_u32 s{sT2}, s{sT2}, {HF}")
        A(f"s_add_u32 s{sT3}, s{sT2}, {96*1024}")
        n = 0
        for mt in range(5):
            if mt == 4:
                A(f"s_cmp_eq_u32 s{sNU}, 4")
                A(f"s_cbranch_scc1 {name}_fin")
            for tt in range(2):
                a = acc(tt, mt)
                o = vOUT + 4*(n & 1); n += 1
                for pr in range(4):
                    g = a + 2*pr; u = a + 8 + 2*pr
                    A(f"v_pk_mul_f32 {vr(vTt,2)}, {vr(g,2)}, {vr(g,2)}")
                    A(f"v_pk_mul_f32 {vr(vGU,2)}, {vr(g,2)}, {vr(u,2)}")
                    A(f"v_pk_fma_f32 {vr(vP,2)}, {vr(vTt,2)}, {vr(vC1,2)}, {vr(vC0,2)}")
                    A(f"v_pk_mul_f32 {vr(vP,2)}, {vr(vP,2)}, {vr(g,2)}")
                    A(f"v_exp_f32 v{vE}, v{vP}")
                    A(f"v_exp_f32 v{vE+1}, v{vP+1}")
                    A("s_nop 0")
                    A(f"v_pk_add_f32 {vr(vE,2)}, {vr(vE,2)}, {vr(vONE,2)}")
                    A(f"v_rcp_f32 v{vE}, v{vE}")
                    A(f"v_rcp_f32 v{vE+1}, v{vE+1}")
                    A("s_nop 0")
                    A(f"v_pk_mul_f32 {vr(vGU,2)}, {vr(vGU,2)}, {vr(vE,2)}")
                    A(f"v_cvt_pk_bf16_f32 v{o+pr}, v{vGU}, v{vGU+1}")
                A(f"buffer_store_dwordx4 {vr(o,4)}, v3, {sr(SRD_WS,4)}, s{sT2 if tt == 0 else sT3} offen offset:{mt*1024 if mt*1024 < 4096 else 0}{SC1}" if mt < 4 else
                  f"s_add_u32 s{sT}, s{sT2 if tt == 0 else sT3}, 4096\n" + f"buffer_store_dwordx4 {vr(o,4)}, v3, {sr(SRD_WS,4)}, s{sT} offen{SC1}")
        A(f"s_branch {name}_fin")

    A.label(f"{name}_vblock")
    mainloop(True, "v", True)
    A.c("epilogue V: lane = weight column n; unit mt<4: head mt (n<16) / 4+mt (n>=16), d = n&15; unit 4: head (n>>2)&3 (+4), d = 16+(n&3)")
    sBASE, sHS = 61, 62
    vA1, vA2 = 8, 9
    D1 = 16
    A(f"s_mov_b32 s{sHS}, {HS_KV}")
    A("v_bfe_u32 v5, v2, 4, 1")
    A("v_lshlrev_b32 v5, 2, v5")
    A("v_lshrrev_b32 v4, 5, v2")
    A("v_lshlrev_b32 v4, 9, v4")
    A(f"v_mul_lo_u32 v6, v5, s{sHS}")
    A("v_and_b32 v3, 15, v2")
    A("v_lshl_add_u32 v6, v3, 4, v6")
    A(f"v_add_u32 v{vA1}, v6, v4")
    A("v_bfe_u32 v6, v2, 2, 2")
    A("v_add_u32 v6, v6, v5")
    A(f"v_mul_lo_u32 v6, v6, s{sHS}")
    A("v_and_b32 v3, 3, v2")
    A("v_lshl_add_u32 v6, v3, 4, v6")
    A(f"v_add3_u32 v{vA2}, v6, v4, 0")
    A(f"v_add_u32 v{vA2}, 256, v{vA2}")
    A(f"s_sub_u32 s{sT}, s{sCB}, 8")
    A(f"s_mul_i32 s{sBASE}, s{sT}, {8*HS_KV}")
    A(f"s_lshl_b32 s{sT2}, s{sRB}, 1")
    A(f"s_lshr_b32 s{sT3}, s{sW}, 1")
    A(f"s_add_u32 s{sT2}, s{sT2}, s{sT3}")
    A(f"s_mul_i32 s{sT2}, s{sT2}, {CH}")
    A(f"s_add_u32 s{sBASE}, s{sBASE}, s{sT2}")
    A(f"s_and_b32 s{sT3}, s{sW}, 1")
    A(f"s_lshl_b32 s{sT3}, s{sT3}, 12")
    A(f"s_add_u32 s{sBASE}, s{sBASE}, s{sT3}")
    A(f"s_add_u32 s{sBASE}, s{sBASE}, {KV+5120}")
    n = 0
    for mt in range(5):
        if 0 < mt < 4: A(f"s_add_u32 s{sBASE}, s{sBASE}, s{sHS}")
        if mt == 4: A(f"s_sub_u32 s{sBASE}, s{sBASE}, {3*HS_KV}")
        for tt in range(2):
            for f in range(2):
                a = acc(tt, mt) + 8*f
                d = D1 + 4*(n % 8); n += 1
                for j in range(4):
                    A(f"v_cvt_pk_bf16_f32 v{d+j}, v{a+2*j}, v{a+2*j+1}")
                A(f"buffer_store_dwordx4 {vr(d,4)}, v{vA1 if mt < 4 else vA2}, {sr(SRD_WS,4)}, s{sBASE} offen offset:{tt*2048+f*1024}{SC1}")
    A(f"s_branch {name}_fin")

    if F6:
        XR, WB6, WST, UO6 = 32768, 98304, 12320, 6176
        A.label(f"{name}_f6c")
        ACC6 = 64; FA6 = 8; FB6 = [32, 40]; vXA6 = 48; vW6 = 52
        def acc6(tt, mt): return ACC6 + (tt*6 + mt)*16
        x_voffsets(54)
        A(f"s_mul_i32 s{sXO}, s{sRB}, {256*1280}")
        A(f"s_lshl_b32 s{sT2}, s{sW}, 13")
        A("s_waitcnt lgkmcnt(0)")
        srd_x()
        srd_ws()
        for st in range(2):
            for j in range(8):
                A(f"s_add_u32 m0, s{sT2}, {st*XR + j*1024}")
                A("s_nop 0")
                A(f"buffer_load_dwordx4 v{54+j}, {sr(SRD_X,4)}, s{sXO} offen lds")
            A(f"s_add_u32 s{sXO}, s{sXO}, 128")
        A("v_and_b32 v3, 31, v2")
        A("v_lshrrev_b32 v4, 5, v2")
        A(f"s_lshl_b32 s{sT}, s{sW}, 6")
        A(f"v_add_u32 v5, s{sT}, v3")
        A("v_lshlrev_b32 v5, 7, v5")
        A("v_bfe_u32 v6, v3, 1, 3")
        for sp in range(4):
            A(f"v_or_b32 v7, {2*sp}, v4")
            A("v_xor_b32 v7, v7, v6")
            A(f"v_lshl_add_u32 v{vXA6+sp}, v7, 4, v5")
        A("v_bfe_u32 v5, v2, 4, 1")
        A(f"v_mul_u32_u24 v5, {UO6}, v5")
        A("v_bfe_u32 v6, v2, 2, 2")
        A("v_lshl_add_u32 v6, v4, 3, v6")
        A("v_mul_u32_u24 v6, 192, v6")
        A("v_and_b32 v7, 3, v2")
        A("v_lshlrev_b32 v7, 3, v7")
        A("v_add3_u32 v5, v5, v6, v7")
        A(f"v_add_u32 v{vW6}, {WB6}, v5")
        for r in range(ACC6, ACC6+192): A(f"v_mov_b32 v{r}, 0")
        def bread(sp, st): return [f"ds_read_b128 {vr(FB6[st]+4*tt,4)}, v{vXA6+sp} offset:{tt*4096}" for tt in range(2)]
        def aread(mt, second): return [f"ds_read_b64_tr_b16 {vr(FA6+4*mt+2*half,2)}, v{vW6} offset:{second*3072+mt*32+half*768}" for half in range(2)]
        A("s_waitcnt vmcnt(8)")
        A("s_barrier")
        stamp(A, 1)
        for l in bread(0, 0): A(l)
        for mt in range(6):
            for l in aread(mt, 0): A(l)
        sWI, sXI = 44, 45
        sWP, sWN, sXP, sXN = 84, 85, 82, 83
        A(f"s_mov_b32 s{sCNT}, 0")
        A(f"s_mov_b32 s{sWI}, 0")
        A(f"s_mov_b32 s{sXI}, 0")
        A(f"s_mov_b32 s{sWP}, {WST}")
        A(f"s_mov_b32 s{sWN}, {(-4*WST) & 0xffffffff}")
        A(f"s_mov_b32 s{sXP}, {XR}")
        A(f"s_mov_b32 s{sXN}, {(-2*XR) & 0xffffffff}")
        A("s_waitcnt lgkmcnt(0)")
        A(".p2align 6")
        A.label(f"{name}_loop_f6")
        for sp in range(4):
            cur = sp & 1; nxt = cur ^ 1
            def grp(mt, wait):
                A(f"s_waitcnt lgkmcnt({wait})")
                for tt in range(2):
                    d = vr(acc6(tt, mt), 16)
                    A(f"v_mfma_f32_32x32x16_bf16 {d}, {vr(FA6+4*mt,4)}, {vr(FB6[cur]+4*tt,4)}, {d}")
            if sp & 1:
                grp(0, 10)
                A(f"s_add_u32 s{sWI}, s{sWI}, 1")
                A(f"s_cmp_eq_u32 s{sWI}, 5")
                A(f"s_cselect_b32 s{sT}, s{sWN}, s{sWP}")
                A(f"s_cselect_b32 s{sWI}, 0, s{sWI}")
                if sp == 3:
                    A(f"s_add_u32 s{sXI}, s{sXI}, 1")
                    A(f"s_cmp_eq_u32 s{sXI}, 3")
                    A(f"s_cselect_b32 s{sT2}, s{sXN}, s{sXP}")
                    A(f"s_cselect_b32 s{sXI}, 0, s{sXI}")
                    A(f"s_cmp_eq_u32 s{sCNT}, 0")
                    A(f"s_cbranch_scc0 {name}_nw_f6")
                    A("s_waitcnt vmcnt(0)")
                    A.label(f"{name}_nw_f6")
                A("s_barrier")
                A(f"v_add_u32 v{vW6}, s{sT}, v{vW6}")
                if sp == 3:
                    for j in range(4): A(f"v_add_u32 v{vXA6+j}, s{sT2}, v{vXA6+j}")
                for l in bread((sp+1) & 3, nxt): A(l)
                for l in aread(0, 0): A(l)
                for mt in range(1, 6):
                    grp(mt, 12)
                    for l in aread(mt, 0): A(l)
            else:
                for l in bread(sp+1, nxt): A(l)
                for mt in range(6):
                    grp(mt, 12)
                    for l in aread(mt, 1): A(l)
        A(f"s_add_u32 s{sCNT}, s{sCNT}, 1")
        A(f"s_cmp_lt_u32 s{sCNT}, 10")
        A(f"s_cbranch_scc1 {name}_loop_f6")
        A("s_waitcnt lgkmcnt(0)")
        if fused and asmlib.OPT.get("early"): A("s_barrier")
        A("s_nop 15")
        stamp(A, 2)
        A.c("epilogue FFN: h = gelu_tanh(g) * u")
        vC0, vC1, vONE = 8, 10, 12
        vTt, vP, vE, vGU = 14, 16, 18, 20
        vOUT = 24
        for j in range(2):
            A(f"v_mov_b32 v{vC0+j}, {hex(f2u(c0))}")
            A(f"v_mov_b32 v{vC1+j}, {hex(f2u(c1))}")
            A(f"v_mov_b32 v{vONE+j}, 1.0")
        A(f"v_lshlrev_b32 v3, 4, v2")
        A(f"v_add_u32 v4, 4096, v3")
        A(f"s_lshl_b32 s{sT2}, s{sRB}, 3")
        A(f"s_lshl_b32 s{sT3}, s{sW}, 1")
        A(f"s_add_u32 s{sT2}, s{sT2}, s{sT3}")
        A(f"s_mul_i32 s{sT2}, s{sT2}, {96*1024}")
        A(f"s_mul_i32 s{sT3}, s{sCB}, {6*1024}")
        A(f"s_add_u32 s{sT2}, s{sT2}, s{sT3}")
        A(f"s_add_u32 s{sT2}, s{sT2}, {HF}")
        A(f"s_add_u32 s{sT3}, s{sT2}, {96*1024}")
        n = 0
        for mt in range(6):
            for tt in range(2):
                a = acc6(tt, mt)
                o = vOUT + 4*(n & 1); n += 1
                for pr in range(4):
                    g = a + 2*pr; u = a + 8 + 2*pr
                    A(f"v_pk_mul_f32 {vr(vTt,2)}, {vr(g,2)}, {vr(g,2)}")
                    A(f"v_pk_mul_f32 {vr(vGU,2)}, {vr(g,2)}, {vr(u,2)}")
                    A(f"v_pk_fma_f32 {vr(vP,2)}, {vr(vTt,2)}, {vr(vC1,2)}, {vr(vC0,2)}")
                    A(f"v_pk_mul_f32 {vr(vP,2)}, {vr(vP,2)}, {vr(g,2)}")
                    A(f"v_exp_f32 v{vE}, v{vP}")
                    A(f"v_exp_f32 v{vE+1}, v{vP+1}")
                    A("s_nop 0")
                    A(f"v_pk_add_f32 {vr(vE,2)}, {vr(vE,2)}, {vr(vONE,2)}")
                    A(f"v_rcp_f32 v{vE}, v{vE}")
                    A(f"v_rcp_f32 v{vE+1}, v{vE+1}")
                    A("s_nop 0")
                    A(f"v_pk_mul_f32 {vr(vGU,2)}, {vr(vGU,2)}, {vr(vE,2)}")
                    A(f"v_cvt_pk_bf16_f32 v{o+pr}, v{vGU}, v{vGU+1}")
                A(f"buffer_store_dwordx4 {vr(o,4)}, v{3 if mt < 4 else 4}, {sr(SRD_WS,4)}, s{sT2 if tt == 0 else sT3} offen offset:{(mt % 4)*1024}{SC1}")
        if fused and asmlib.OPT.get("early"):
            A(f"s_branch {name}_f6fin")
        else:
            A(f"s_branch {name}_fin")

    A.label(f"{name}_loader")
    vXO = 8
    vWO = 16
    A(f"s_sub_u32 s{sW}, s{sW}, 4")
    if fused and asmlib.OPT.get("early"):
        A(f"v_mov_b32 v3, {K1_LDS}")
        A("v_mov_b32 v4, 0")
        A("ds_write_b32 v3, v4")
    def dbg_srd(r):
        A(f"s_load_dwordx2 s[{r+4}:{r+5}], s[0:1], {KA_DBG}")
        A("s_waitcnt lgkmcnt(0)")
        A(f"s_mov_b32 s{r}, s{r+4}")
        A(f"s_and_b32 s{r+1}, s{r+5}, 0xffff")
        A(f"s_mov_b32 s{r+2}, 256")
        A(f"s_mov_b32 s{r+3}, 0x20000")
    def tag_load():
        dbg_srd(88 if not asmlib.PROFILE else 52)
        r = 88 if not asmlib.PROFILE else 52
        A("v_mov_b32 v131, 240")
        A(f"buffer_load_dword v130, v131, {sr(r,4)}, 0 offen sc1")
    sL = 64
    A(f"s_lshl_b32 s{sL}, s2, 2")
    A(f"s_add_u32 s{sL}, s{sL}, s{sW}")
    A(f"s_mul_i32 s{sXO}, s{sRB}, {256*1280}")
    A(f"s_add_u32 s{sXO}, s{sXO}, 256")
    if F6:
        A(f"s_cmp_eq_u32 s{sTYPE}, 3")
        A(f"s_cbranch_scc1 {name}_f6l")
        A(f"s_cmp_eq_u32 s{sTYPE}, 4")
        A(f"s_cbranch_scc1 {name}_idlel")
    sLX, sLW, sWSTEP = 61, 62, 63
    if F6:
        A(f"s_mul_i32 s{sT}, s{sW}, 320")
        for i in range(5):
            A(f"v_add_u32 v3, s{sT}, v2")
            A(f"v_add_u32 v3, {64*i}, v3")
            A("v_mul_u32_u24 v4, 3277, v3")
            A("v_lshrrev_b32 v4, 16, v4")
            A("v_mul_u32_u24 v5, 20, v4")
            A("v_sub_u32 v5, v3, v5")
            A("v_mul_u32_u24 v4, 3840, v4")
            A(f"v_lshl_add_u32 v{vWO+i}, v5, 4, v4")
        A(f"s_lshl_b32 s{sLX}, s{sW}, 13")
        A(f"s_mul_i32 s{sLW}, s{sW}, 5120")
        A(f"s_add_u32 s{sLW}, s{sLW}, {WOFF}")
        A(f"s_lshl_b32 s{sWSTEP}, s{sRS}, 6")
    else:
        A(f"s_and_b32 s{sT}, s{sW}, 1")
        A(f"s_mul_i32 s{sT}, s{sT}, 320")
        for i in range(5):
            A(f"v_add_u32 v3, s{sT}, v2")
            A(f"v_add_u32 v3, {64*i}, v3")
            A("v_mul_u32_u24 v4, 6554, v3")
            A("v_lshrrev_b32 v4, 16, v4")
            A("v_mul_u32_u24 v5, 10, v4")
            A("v_sub_u32 v5, v3, v5")
            A(f"v_mul_lo_u32 v4, v4, s{sRS}")
            A(f"v_lshl_add_u32 v{vWO+i}, v5, 4, v4")
        A(f"s_lshl_b32 s{sLX}, s{sW}, 13")
        A(f"s_lshr_b32 s{sT}, s{sW}, 1")
        A(f"s_mul_i32 s{sLW}, s{sT}, {UOFF}")
        A(f"s_and_b32 s{sT}, s{sW}, 1")
        A(f"s_mul_i32 s{sT}, s{sT}, 5120")
        A(f"s_add_u32 s{sLW}, s{sLW}, s{sT}")
        A(f"s_add_u32 s{sLW}, s{sLW}, {WOFF}")
        A(f"s_lshl_b32 s{sWSTEP}, s{sRS}, 6")
    def issue_w():
        A(f"s_add_u32 s{sT}, s{sBUF}, s{sLW}")
        for i in range(5):
            A(f"s_add_u32 m0, s{sT}, {i*1024}")
            A("s_nop 0")
            A(f"buffer_load_dwordx4 v{vWO+i}, {sr(SRD_W,4)}, s{sWO_} offen lds")
        A(f"s_add_u32 s{sWO_}, s{sWO_}, s{sWSTEP}")
    def next_buf():
        A(f"s_add_u32 s{sBUF}, s{sBUF}, {STAGE}")
        A(f"s_cmp_eq_u32 s{sBUF}, {3*STAGE}")
        A(f"s_cselect_b32 s{sBUF}, 0, s{sBUF}")
    def issue_stage():
        if asmlib.OPT.get("k1nodma"): return
        if asmlib.OPT.get("nox"):
            issue_w(); A(f"s_add_u32 s{sXO}, s{sXO}, 128"); next_buf(); return
        issue_w()
        A(f"s_add_u32 s{sT}, s{sBUF}, s{sLX}")
        for j in range(8):
            A(f"s_add_u32 m0, s{sT}, {j*1024}")
            A("s_nop 0")
            A(f"buffer_load_dwordx4 v{vXO+j}, {sr(SRD_X,4)}, s{sXO} offen lds")
        A(f"s_add_u32 s{sXO}, s{sXO}, 128")
        next_buf()
    A("s_waitcnt lgkmcnt(0)")
    if F6:
        A(f"s_mov_b32 s{SRD_W}, s{sWQ}")
        A(f"s_mov_b32 s{SRD_W+1}, s{sWQ+1}")
        A(f"s_lshl_b32 s{sWO_}, s{sCG}, 1")
    else:
        A.c("SRD w (QKV blocks: wqkv; FFN blocks: w_gate for loaders 0,1 and w_up for 2,3)")
        A(f"s_cmp_ge_u32 s{sW}, 2")
        A(f"s_cselect_b32 s{SRD_W}, s{sWU}, s{sWG}")
        A(f"s_cselect_b32 s{SRD_W+1}, s{sWU+1}, s{sWG+1}")
        A(f"s_cselect_b32 s{sT}, s{sCU}, s{sCG}")
        A(f"s_lshl_b32 s{sWO_}, s{sT}, 1")
        A(f"s_cmp_eq_u32 s{sTYPE}, 3")
        A(f"s_cselect_b32 s{SRD_W}, s{SRD_W}, s{sWQ}")
        A(f"s_cselect_b32 s{SRD_W+1}, s{SRD_W+1}, s{sWQ+1}")
    A(f"s_and_b32 s{SRD_W+1}, s{SRD_W+1}, 0xffff")
    A(f"s_mul_i32 s{SRD_W+2}, s{sRS}, 640")
    A(f"s_mov_b32 s{SRD_W+3}, 0x20000")
    A(f"s_mov_b32 s{sBUF}, 0")
    if SP: stamp(A, 1)
    issue_w(); next_buf()
    if SP: stamp(A, 2)
    issue_w(); next_buf()
    srd_x()
    srd_ws()
    x_voffsets(vXO)
    SRD_D, SRD_O, SRD_G, SRD_P = 68, 76, 80, 68
    vPW = 64
    vGX, vGW = 76, 88
    vS1, vS2, vTK = 100, 101, 102
    sN = 84
    sN = 56
    def prefetch_setup():
        A("v_lshlrev_b32 v21, 4, v2")
        mats = ((sX, 2048*1280, 3, 68), (sWQ, 640*3840, 3, 72), (sWG, 640*3072, 2, 76), (sWU, 640*3072, 2, 80))
        for (ptr, nb, pieces, r) in mats:
            A(f"s_mov_b32 s{r}, s{ptr}")
            A(f"s_and_b32 s{r+1}, s{ptr+1}, 0xffff")
            A(f"s_mov_b32 s{r+2}, {nb}")
            A(f"s_mov_b32 s{r+3}, 0x20000")
        if asmlib.OPT.get("pfq"):
            A(f"s_lshl_b32 s{sT2}, s{sL}, 10")
            A(f"v_add_u32 v21, s{sT2}, v21")
            A(f"v_add_u32 v22, {1 << 20}, v21")
            A(f"v_add_u32 v23, {2 << 20}, v21")
            order = [(1,0),(2,0),(3,0),(0,0),(0,1),(0,2),(1,1),(2,1),(3,1),(1,2)]
            return [f"buffer_load_dwordx4 v[60:63], v{21+j}, {sr(mats[mi][3],4)}, 0 offen" for (mi, j) in order]
        A(f"s_sub_u32 s{sT2}, s2, 96")
        A(f"s_lshl_b32 s{sT2}, s{sT2}, 2")
        A(f"s_add_u32 s{sT2}, s{sT2}, s{sW}")
        A(f"s_lshl_b32 s{sT2}, s{sT2}, 10")
        A(f"v_add_u32 v21, s{sT2}, v21")
        for j in range(1, 4): A(f"v_add_u32 v{21+j}, {j*640*1024}, v21")
        order = [(1,0),(2,0),(3,0),(0,0),(0,1),(1,1),(2,1),(3,1),(0,2),(0,3),(1,2),(2,2),(3,2),(1,3)]
        return [f"buffer_load_dwordx4 v[60:63], v{21+j}, {sr(mats[mi][3],4)}, 0 offen" for (mi, j) in order]
    def prefetch_inputs():
        n = 0
        if not asmlib.OPT.get("pf2"):
            A.c("warm-up: stream a 1/1024 share of every GEMM input linearly, so that the strided tile loads of the later stages hit the memory-side cache")
            A("v_lshlrev_b32 v3, 4, v2")
            mats = ((sX, 2048*1280, 3, 68), (sWQ, 640*3840, 3, 72), (sWG, 640*3072, 2, 76), (sWU, 640*3072, 2, 80))
            if asmlib.OPT.get("pfo", 1):
                for (ptr, nb, pieces, r) in mats:
                    A(f"s_mov_b32 s{r}, s{ptr}")
                    A(f"s_and_b32 s{r+1}, s{ptr+1}, 0xffff")
                    A(f"s_mov_b32 s{r+2}, {nb}")
                    A(f"s_mov_b32 s{r+3}, 0x20000")
                A(f"s_lshl_b32 s{sT2}, s{sL}, 10")
                A(f"v_add_u32 v3, s{sT2}, v3")
                A(f"v_add_u32 v4, {1 << 20}, v3")
                A(f"v_add_u32 v5, {2 << 20}, v3")
                order = [(1,0),(2,0),(3,0),(0,0),(0,1),(0,2),(1,1),(2,1),(3,1),(1,2)]
                cur = 0
                for (mi, j) in order:
                    A(f"buffer_load_dwordx4 v[60:63], v{3+j}, {sr(mats[mi][3],4)}, 0 offen")
                    n += 1
            else:
                for (ptr, nb, pieces, r) in mats:
                    A(f"s_mov_b32 s{SRD_P}, s{ptr}")
                    A(f"s_and_b32 s{SRD_P+1}, s{ptr+1}, 0xffff")
                    A(f"s_mov_b32 s{SRD_P+2}, {nb}")
                    A(f"s_mov_b32 s{SRD_P+3}, 0x20000")
                    A(f"s_mul_i32 s{sT2}, s{sL}, {pieces*1024}")
                    for i in range(pieces):
                        A(f"buffer_load_dwordx4 v[60:63], v3, {sr(SRD_P,4)}, s{sT2} offen offset:{i*1024}")
                        n += 1
            return n
        A.c("L2 warm-up (speed only): the workgroups that share operand lines split the job of pulling them in early.")
        A.c("x: this workgroup streams 32 of the 256 rows of its row block (all K); w: it fetches two later stages of its column block")
        A("v_lshlrev_b32 v3, 4, v2")
        A(f"s_lshr_b32 s{sT}, s2, 5")
        A(f"s_lshl_b32 s{sT}, s{sT}, 2")
        A(f"s_add_u32 s{sT}, s{sT}, s{sW}")
        A(f"s_mul_i32 s{sT}, s{sT}, {8*1280}")
        A(f"s_mul_i32 s{sT2}, s{sRB}, {256*1280}")
        A(f"s_add_u32 s{sT}, s{sT}, s{sT2}")
        NX = asmlib.OPT.get("pfx", 10)
        for i in range(NX):
            if i % 4 == 0 and i: A(f"s_add_u32 s{sT}, s{sT}, 4096")
            A(f"buffer_load_dwordx4 v[60:63], v3, {sr(SRD_X,4)}, s{sT} offen offset:{(i % 4)*1024}")
            n += 1
        for st in range(2):
            A(f"s_bfe_u32 s{sT}, s2, 0x20003")
            A(f"s_lshl_b32 s{sT}, s{sT}, 1")
            A(f"s_add_u32 s{sT}, s{sT}, {st}")
            A(f"s_min_u32 s{sT}, s{sT}, 6")
            A(f"s_mul_i32 s{sT}, s{sT}, s{sWSTEP}")
            A(f"s_add_u32 s{sT}, s{sT}, s{sWO_}")
            for i in range(5):
                A(f"buffer_load_dwordx4 v[60:63], v{vWO+i}, {sr(SRD_W,4)}, s{sT} offen")
                n += 1
        return n
    def side_loads(tag=''):
        for srd, p, nb in ((SRD_D, sWD, 1536*1280), (SRD_O, sWO, 640*1280), (SRD_G, sGW, 1280)):
            A(f"s_mov_b32 s{srd}, s{p}")
            A(f"s_and_b32 s{srd+1}, s{p+1}, 0xffff")
            A(f"s_mov_b32 s{srd+2}, {nb}")
            A(f"s_mov_b32 s{srd+3}, 0x20000")
        A("v_lshrrev_b32 v3, 2, v2")
        A("v_mul_u32_u24 v3, 1280, v3")
        A("v_and_b32 v4, 3, v2")
        A(f"v_lshl_add_u32 v{vS1}, v4, 4, v3")
        A("v_bfe_u32 v5, v2, 4, 1")
        A("v_lshrrev_b32 v6, 5, v2")
        A("v_lshl_add_u32 v5, v5, 1, v6")
        A("v_mul_u32_u24 v5, 20, v5")
        A("v_bfe_u32 v6, v2, 2, 2")
        A("v_add3_u32 v5, v5, v6, 16")
        A("v_mul_u32_u24 v5, 1280, v5")
        A(f"v_lshl_add_u32 v{vS2}, v4, 4, v5")
        for m in range(3):
            A(f"s_add_u32 s{sN+m}, s{sL}, {1024*m}")
            A(f"s_cmp_ge_u32 s{sN+m}, 1920")
            A(f"s_cbranch_scc1 {name}_pl_o{m}{tag}")
            A(f"s_mul_i32 s{sT}, s{sN+m}, 683")
            A(f"s_lshr_b32 s{sT}, s{sT}, 16")
            A(f"s_mul_i32 s{sT2}, s{sT}, 96")
            A(f"s_sub_u32 s{sT2}, s{sN+m}, s{sT2}")
            A(f"s_mul_i32 s{sT2}, s{sT2}, {16*1280}")
            A(f"s_lshl_b32 s{sT}, s{sT}, 6")
            A(f"s_add_u32 s{sT}, s{sT}, s{sT2}")
            A(f"buffer_load_dwordx4 {vr(vPW+4*m,4)}, v{vS1}, {sr(SRD_D,4)}, s{sT} offen")
            A(f"s_branch {name}_pl_n{m}{tag}")
            A.label(f"{name}_pl_o{m}{tag}")
            A(f"s_sub_u32 s{sT3}, s{sN+m}, 1920")
            A(f"s_mul_i32 s{sT}, s{sT3}, 1639")
            A(f"s_lshr_b32 s{sT}, s{sT}, 16")
            A(f"s_mul_i32 s{sT2}, s{sT}, 40")
            A(f"s_sub_u32 s{sT2}, s{sT3}, s{sT2}")
            A(f"s_lshl_b32 s{sT}, s{sT}, 6")
            A(f"s_cmp_ge_u32 s{sT2}, 32")
            A(f"s_cbranch_scc1 {name}_pl_t{m}{tag}")
            A.c("main step (one head): rows 20*head .. +15")
            A(f"s_mul_i32 s{sT2}, s{sT2}, {20*1280}")
            A(f"s_add_u32 s{sT}, s{sT}, s{sT2}")
            A(f"buffer_load_dwordx4 {vr(vPW+4*m,4)}, v{vS1}, {sr(SRD_O,4)}, s{sT} offen")
            A(f"s_branch {name}_pl_n{m}{tag}")
            A.label(f"{name}_pl_t{m}{tag}")
            A.c("tail step: d=16..19 of four heads (blocks past 2720 read zeros or junk, never stored)")
            A(f"s_sub_u32 s{sT2}, s{sT2}, 32")
            A(f"s_mul_i32 s{sT2}, s{sT2}, {80*1280}")
            A(f"s_add_u32 s{sT}, s{sT}, s{sT2}")
            A(f"buffer_load_dwordx4 {vr(vPW+4*m,4)}, v{vS2}, {sr(SRD_O,4)}, s{sT} offen")
            A.label(f"{name}_pl_n{m}{tag}")
        A("v_and_b32 v3, 31, v2")
        A("v_lshlrev_b32 v3, 4, v3")
        A(f"v_lshrrev_b32 v{vTK}, 5, v2")
        A(f"s_lshl_b32 s{sT}, s{sL}, 1")
        A(f"v_add_u32 v{vTK}, s{sT}, v{vTK}")
        A(f"v_mul_u32_u24 v5, 1280, v{vTK}")
        A("v_add_u32 v5, v5, v3")
        A("v_and_b32 v6, 16, v2")
        A("v_cmp_ne_u32 vcc, 0, v6")
        A(f"v_mov_b32 v7, 0x7ff00000")
        A("v_add_u32 v6, 1024, v5")
        A("v_add_u32 v4, 1024, v3")
        A("v_cndmask_b32 v6, v6, v7, vcc")
        A("v_cndmask_b32 v4, v4, v7, vcc")
        A(f"buffer_load_dwordx4 {vr(vGX,4)}, v5, {sr(SRD_X,4)}, 0 offen")
        A(f"buffer_load_dwordx4 {vr(vGX+4,4)}, v5, {sr(SRD_X,4)}, 0 offen offset:512")
        A(f"buffer_load_dwordx4 {vr(vGX+8,4)}, v6, {sr(SRD_X,4)}, 0 offen")
        A(f"buffer_load_dwordx4 {vr(vGW,4)}, v3, {sr(SRD_G,4)}, 0 offen")
        A(f"buffer_load_dwordx4 {vr(vGW+4,4)}, v3, {sr(SRD_G,4)}, 0 offen offset:512")
        A(f"buffer_load_dwordx4 {vr(vGW+8,4)}, v4, {sr(SRD_G,4)}, 0 offen")
        return 9
    def side_process(tag='', scr_shift=9, scr_base=None):
        A.c("side job: gate g = sigmoid(x . gate_w)")
        A("v_mov_b32 v3, 0")
        for j in range(12):
            A(f"v_dot2c_f32_bf16 v3, v{vGX+j}, v{vGW+j}")
        A("s_nop 3")
        for sh in (1, 2, 4, 8):
            A(f"v_add_f32_dpp v3, v3, v3 row_shr:{sh} row_mask:0xf bank_mask:0xf bound_ctrl:0")
            A("s_nop 1")
        A("v_add_f32_dpp v3, v3, v3 row_bcast:15 row_mask:0xa bank_mask:0xf")
        A("s_nop 1")
        A("v_mul_f32 v3, 0xbfb8aa3b, v3")
        A("v_exp_f32 v3, v3")
        A("s_nop 0")
        A("v_add_f32 v3, 1.0, v3")
        A("v_rcp_f32 v3, v3")
        A(f"v_lshlrev_b32 v{vTK}, 2, v{vTK}")
        A("v_and_b32 v6, 31, v2")
        A("v_cmp_eq_u32 vcc, 31, v6")
        A(f"s_mov_b32 s{sT}, {GG}")
        A("s_and_saveexec_b64 s[50:51], vcc")
        A(f"s_cbranch_execz {name}_gate_done{tag}")
        A(f"buffer_store_dword v3, v{vTK}, {sr(SRD_WS,4)}, s{sT} offen{SC1}")
        A.label(f"{name}_gate_done{tag}")
        A("s_mov_b64 exec, s[50:51]")
        A.c("side job: transpose Wd / Wo blocks into MFMA A-fragment order through a 512-byte LDS scratch per wave")
        A(f"s_lshl_b32 s{sT}, s{sW}, 9")
        A(f"s_add_u32 s{sT}, s{sT}, {K1_LDS - 2048 if scr_base is None else scr_base}")
        A("v_and_b32 v4, 31, v2")
        A("v_lshlrev_b32 v4, 4, v4")
        A(f"v_add_u32 v4, s{sT}, v4")
        A("v_lshrrev_b32 v7, 5, v2")
        A("v_bfe_u32 v5, v2, 2, 2")
        A("v_lshl_add_u32 v5, v7, 2, v5")
        A("v_lshlrev_b32 v5, 6, v5")
        A("v_bfe_u32 v6, v2, 4, 1")
        A("v_lshl_add_u32 v5, v6, 5, v5")
        A("v_and_b32 v6, 3, v2")
        A("v_lshl_add_u32 v5, v6, 3, v5")
        A(f"v_add_u32 v5, s{sT}, v5")
        A("v_lshlrev_b32 v7, 4, v2")
        OUT = 104
        for m in range(3):
            if m == 2:
                A(f"s_cmp_ge_u32 s{sN+m}, 2720")
                A(f"s_cbranch_scc1 {name}_prep_done{tag}")
            for half in range(2):
                A("s_mov_b32 exec_hi, 0" if half == 0 else "s_mov_b32 exec_lo, 0")
                A(f"ds_write_b128 v4, {vr(vPW+4*m,4)}")
                A("s_mov_b64 exec, -1")
                A("s_waitcnt lgkmcnt(0)")
                A(f"ds_read_b64_tr_b16 {vr(OUT+4*m+2*half,2)}, v5")
                A("s_waitcnt lgkmcnt(0)")
            A(f"s_lshl_b32 s{sT}, s{sN+m}, 10")
            A(f"s_add_u32 s{sT}, s{sT}, {WDF}")
            A(f"buffer_store_dwordx4 {vr(OUT+4*m,4)}, v7, {sr(SRD_WS,4)}, s{sT} offen{SC1}")
        A.label(f"{name}_prep_done{tag}")
    if F6:
        from p1two import Seq
        q = Seq()
        q.add(("st", 0), 5); q.add(("st", 1), 5)
        PFL = prefetch_setup() if (not asmlib.OPT.get("nopf") and asmlib.OPT.get("pfq")) else []
        NPS = asmlib.OPT.get("nps", 10)
        if asmlib.OPT.get("early2"):
            issue_stage(); q.add(("st", 2), 13)
        for S in range(10):
            A(f"s_waitcnt vmcnt({q.n_after(('st', S))})")
            A("s_barrier")
            if S == 8 and not SP: stamp(A, 1)
            if S + 2 <= 9 and (S > 0 or not asmlib.OPT.get("early2")):
                issue_stage(); q.add(("st", S+2), 13)
            for l in PFL[:NPS]:
                A(l); q.add("pf")
            PFL = PFL[NPS:]
            if S == 7 and fused and asmlib.OPT.get("early"):
                tag_load(); q.add("tag")
        A(f"s_cmp_eq_u32 s{sTYPE}, 2")
        A(f"s_cbranch_scc0 {name}_novp")
        vpad("q", 120)
        A.label(f"{name}_novp")
        A("s_barrier")
        if not SP: stamp(A, 2)
    else:
        if not asmlib.OPT.get("early2"):
            A("s_waitcnt vmcnt(5)")
            A("s_barrier")
            issue_stage()
            NPF = prefetch_inputs() if not (asmlib.OPT.get("nopf") or (F6 and not asmlib.OPT.get("pfall"))) else 0
            A(f"s_waitcnt vmcnt({13+NPF})")
            A("s_barrier")
            issue_stage()
            A(f"s_waitcnt vmcnt({13+NPF})")
            A("s_barrier")
            issue_stage()
        else:
            issue_stage()
            A("s_waitcnt vmcnt(18)")
            A("s_barrier")
            NPF = prefetch_inputs() if not (asmlib.OPT.get("nopf") or (F6 and not asmlib.OPT.get("pfall"))) else 0
            A(f"s_waitcnt vmcnt({13+NPF})")
            A("s_barrier")
            issue_stage()
            A(f"s_waitcnt vmcnt({NPF+13})")
            A("s_barrier")
            issue_stage()
    if F6:
        pass
    elif not asmlib.OPT.get("earlyside"):
        for S in range(3, 8):
            A("s_waitcnt vmcnt(13)")
            A("s_barrier")
            issue_stage()
        NS = side_loads()
        A(f"s_waitcnt vmcnt({13+NS})")
        A("s_barrier")
        if not SP: stamp(A, 1)
        A(f"s_waitcnt vmcnt({NS})")
        A("s_barrier")
        if not asmlib.OPT.get("earlyconst"): const_stores("l", 120)
        A("s_barrier")
        if not SP: stamp(A, 2)
        A("s_waitcnt vmcnt(3)" if not asmlib.OPT.get("earlyconst") else "s_waitcnt vmcnt(0)")
        side_process()
    else:
        A("s_waitcnt vmcnt(13)")
        A("s_barrier")
        issue_stage()
        A("s_waitcnt vmcnt(13)")
        A("s_barrier")
        NS = side_loads()
        issue_stage()
        A(f"s_waitcnt vmcnt({13+NS})")
        A("s_barrier")
        issue_stage()
        A("s_waitcnt vmcnt(13)")
        A("s_barrier")
        issue_stage()
        side_process()
        A("s_waitcnt vmcnt(16)")
        A("s_barrier")
        issue_stage()
        A("s_waitcnt vmcnt(16)")
        A("s_barrier")
        if not SP: stamp(A, 1)
        A("s_waitcnt vmcnt(0)")
        A("s_barrier")
        A("s_barrier")
        if not SP: stamp(A, 2)
    if F6:
        from p1two import Seq
        A(f"s_branch {name}_fin")
        XR, WB6, WST, UO6 = 32768, 98304, 12320, 6176
        A.label(f"{name}_f6l")
        vW6O = 16
        A(f"s_and_b32 s{sT}, s{sW}, 1")
        A(f"s_mul_i32 s{sT}, s{sT}, 192")
        for i in range(3):
            A(f"v_add_u32 v3, s{sT}, v2")
            A(f"v_add_u32 v3, {64*i}, v3")
            A("v_mul_u32_u24 v4, 5462, v3")
            A("v_lshrrev_b32 v4, 16, v4")
            A("v_mul_u32_u24 v5, 12, v4")
            A("v_sub_u32 v5, v3, v5")
            A("v_mul_u32_u24 v4, 3072, v4")
            A(f"v_lshl_add_u32 v{vW6O+i}, v5, 4, v4")
        sLX, sLW = 61, 62
        A(f"s_lshl_b32 s{sLX}, s{sW}, 13")
        A(f"s_lshr_b32 s{sT}, s{sW}, 1")
        A(f"s_mul_i32 s{sLW}, s{sT}, {UO6}")
        A(f"s_and_b32 s{sT}, s{sW}, 1")
        A(f"s_mul_i32 s{sT}, s{sT}, 3072")
        A(f"s_add_u32 s{sLW}, s{sLW}, s{sT}")
        A(f"s_add_u32 s{sLW}, s{sLW}, {WB6}")
        A(f"s_mul_i32 s{sWO_}, s{sCB}, 192")
        A("s_waitcnt lgkmcnt(0)")
        A(f"s_cmp_ge_u32 s{sW}, 2")
        A(f"s_cselect_b32 s{SRD_W}, s{sWU}, s{sWG}")
        A(f"s_cselect_b32 s{SRD_W+1}, s{sWU+1}, s{sWG+1}")
        A(f"s_and_b32 s{SRD_W+1}, s{SRD_W+1}, 0xffff")
        A(f"s_mov_b32 s{SRD_W+2}, {640*3072}")
        A(f"s_mov_b32 s{SRD_W+3}, 0x20000")
        q = Seq()
        def w6(j):
            if asmlib.OPT.get("f6nodma") and j > 4: q.add(("w", j), 0); q.s.append(("w", j)); return
            for i in range(3):
                A(f"s_add_u32 m0, s{sLW}, {(j % 5)*WST + i*1024}")
                A("s_nop 0")
                A(f"buffer_load_dwordx4 v{vW6O+i}, {sr(SRD_W,4)}, s{sWO_} offen lds")
            A(f"s_add_u32 s{sWO_}, s{sWO_}, {32*3072}")
            q.add(("w", j), 3)
        def x6(i):
            if asmlib.OPT.get("f6nodma") and i > 2: q.s.append(("x", i)); return
            for j in range(8):
                A(f"s_add_u32 m0, s{sLX}, {(i % 3)*XR + j*1024}")
                A("s_nop 0")
                A(f"buffer_load_dwordx4 v{vXO+j}, {sr(SRD_X,4)}, s{sXO} offen lds")
            A(f"s_add_u32 s{sXO}, s{sXO}, 128")
            q.add(("x", i), 8)
        w6(0); w6(1)
        srd_x(); srd_ws(); x_voffsets(vXO)
        if not asmlib.OPT.get("f6late"):
            w6(2); w6(3); x6(2)
        if asmlib.OPT.get("early2"): w6(4)
        A(f"s_waitcnt vmcnt({q.n_after(('w', 0))})")
        A("s_barrier")
        if asmlib.OPT.get("f6late"):
            w6(2); x6(2); w6(3)
        PFL = prefetch_setup() if not asmlib.OPT.get("nopf") else []
        NPS = asmlib.OPT.get("nps6", 14)
        for j in range(20):
            need = []
            if j + 1 <= 19: need.append(("w", j+1))
            if j & 1 and 2 <= (j+1)//2 <= 9: need.append(("x", (j+1)//2))
            if need: A(f"s_waitcnt vmcnt({min(63, min(q.n_after(t) for t in need))})")
            A("s_barrier")
            if j + 4 <= 19 and (j > 0 or not asmlib.OPT.get("early2")): w6(j+4)
            if j & 1:
                i = (j+1)//2
                if i + 2 <= 9: x6(i+2)
            for l in PFL[:NPS]:
                A(l); q.add("pf")
            PFL = PFL[NPS:]
            if j == 15 and fused and asmlib.OPT.get("early"):
                tag_load(); q.add("tag")
        A(f"s_branch {name}_f6ldone")
        A.label(f"{name}_idlel")
        A("s_waitcnt lgkmcnt(0)")
        if fused and asmlib.OPT.get("early"):
            A("s_cmp_eq_u32 s2, 224")
            A(f"s_cbranch_scc0 {name}_notag")
            A(f"s_cmp_eq_u32 s{sW}, 0")
            A(f"s_cbranch_scc0 {name}_notag")
            dbg_srd(68)
            A("s_memrealtime s[74:75]")
            A("s_waitcnt lgkmcnt(0)")
            A("s_or_b32 s74, s74, 1")
            A("s_mov_b64 exec, 1")
            A("v_mov_b32 v4, s74")
            A("v_mov_b32 v3, 240")
            A("buffer_store_dword v4, v3, s[68:71], 0 offen sc1")
            A("s_mov_b64 exec, -1")
            A.label(f"{name}_notag")
        if not asmlib.OPT.get("nopf"):
            for l in prefetch_setup(): A(l)
        A(f"s_add_u32 s{sW}, s{sW}, 4")
        A.label(f"{name}_idlec")
        A("s_waitcnt lgkmcnt(0)")
        srd_x(); srd_ws()
        sIW, sIT = 65, 66
        A(f"s_lshr_b32 s{sT}, s2, 3")
        A(f"s_sub_u32 s{sT}, s{sT}, 28")
        A(f"s_lshl_b32 s{sT}, s{sT}, 3")
        A(f"s_and_b32 s{sT2}, s2, 7")
        A(f"s_add_u32 s{sT}, s{sT}, s{sT2}")
        A(f"s_lshl_b32 s{sT}, s{sT}, 3")
        A(f"s_add_u32 s{sIW}, s{sT}, s{sW}")
        if asmlib.OPT.get("pfl2"):
            A.c("L2 warm-up (speed only, assumes id&7 = XCD): the 32 idle waves of an XCD pull the operands of k-stages 3..9 of that XCD's tiles into its L2,")
            A.c("in stage order, ahead of the tile loads.  v = (j-28)*8 + wave = 0..31")
            sV, sP, sS = 67, 68, 69
            A(f"s_lshr_b32 s{sV}, s2, 3")
            A(f"s_sub_u32 s{sV}, s{sV}, 28")
            A(f"s_lshl_b32 s{sV}, s{sV}, 3")
            A(f"s_add_u32 s{sV}, s{sV}, s{sW}")
            A(f"s_bfe_u32 s{sP}, s2, 0x20001")
            for (ptr, nb, r) in ((sWQ, 640*3840, 72), (sWG, 640*3072, 76), (sWU, 640*3072, 80)):
                A(f"s_mov_b32 s{r}, s{ptr}")
                A(f"s_and_b32 s{r+1}, s{ptr+1}, 0xffff")
                A(f"s_mov_b32 s{r+2}, {nb}")
                A(f"s_mov_b32 s{r+3}, 0x20000")
            A("v_lshrrev_b32 v3, 3, v2")
            A("v_and_b32 v4, 7, v2")
            A(f"s_and_b32 s{sT}, s2, 1")
            A(f"s_lshl_b32 s{sT}, s{sT}, 10")
            A(f"s_lshl_b32 s{sT2}, s{sV}, 5")
            A(f"s_add_u32 s{sT}, s{sT}, s{sT2}")
            A(f"v_add_u32 v3, s{sT}, v3")
            A("v_mul_u32_u24 v3, 1280, v3")
            A("v_lshl_add_u32 v8, v4, 4, v3")
            for i in range(1, 4): A(f"v_add_u32 v{8+i}, {i*8*1280}, v8")
            A("v_mul_u32_u24 v4, 3277, v2")
            A("v_lshrrev_b32 v4, 16, v4")
            A("v_mul_u32_u24 v5, 20, v4")
            A("v_sub_u32 v5, v2, v5")
            A("v_mul_u32_u24 v4, 1280, v4")
            A("v_lshl_add_u32 v4, v5, 4, v4")
            A(f"s_mul_i32 s{sT}, s{sP}, 320")
            A(f"s_mul_i32 s{sT2}, s{sV}, {2*3840}")
            A(f"s_add_u32 s{sT}, s{sT}, s{sT2}")
            A(f"v_add_u32 v12, s{sT}, v4")
            A("v_cmp_gt_u32 vcc, 60, v2")
            A("v_mov_b32 v5, 0x7ff00000")
            A("s_nop 0")
            A("v_cndmask_b32 v12, v5, v12, vcc")
            A("v_add_u32 v13, 3840, v12")
            A(f"s_mul_i32 s{sT}, s{sP}, 768")
            A(f"s_mul_i32 s{sT2}, s{sV}, {2*3072}")
            A(f"s_add_u32 s{sT}, s{sT}, s{sT2}")
            A("v_lshlrev_b32 v4, 4, v2")
            A(f"v_add_u32 v14, s{sT}, v4")
            A("v_cmp_gt_u32 vcc, 48, v2")
            A("s_nop 1")
            A("v_cndmask_b32 v14, v5, v14, vcc")
            A("v_add_u32 v15, 3072, v14")
            S0 = asmlib.OPT.get("pfl2s", 3)
            A(f"s_mov_b32 s{sS}, {S0}")
            A.label(f"{name}_pfl2")
            A(f"s_lshl_b32 s{sT}, s{sS}, 7")
            A(f"s_mul_i32 s{sT2}, s{sS}, {64*3840}")
            A(f"s_mul_i32 s{sT3}, s{sS}, {64*3072}")
            for i in range(2):
                A(f"buffer_load_dwordx4 v[60:63], v{12+i}, s[72:75], s{sT2} offen")
                A(f"buffer_load_dwordx4 v[60:63], v{14+i}, s[76:79], s{sT3} offen")
                A(f"buffer_load_dwordx4 v[60:63], v{14+i}, s[80:83], s{sT3} offen")
            for i in range(4):
                A(f"buffer_load_dwordx4 v[60:63], v{8+i}, {sr(SRD_X,4)}, s{sT} offen")
            A(f"s_add_u32 s{sS}, s{sS}, 1")
            A(f"s_cmp_lt_u32 s{sS}, 10")
            A(f"s_cbranch_scc1 {name}_pfl2")
        if asmlib.OPT.get("pf0"):
            A.c("first thing: these otherwise idle waves stream x and the first weight rows linearly (cold start: the tile loads of the first stages then hit the memory-side cache)")
            A("v_lshlrev_b32 v3, 4, v2")
            for (ptr, nb, r) in ((sX, 2048*1280, 68), (sWQ, 192*3840, 72), (sWG, 192*3072, 76), (sWU, 192*3072, 80)):
                A(f"s_mov_b32 s{r}, s{ptr}")
                A(f"s_and_b32 s{r+1}, s{ptr+1}, 0xffff")
                A(f"s_mov_b32 s{r+2}, {nb}")
                A(f"s_mov_b32 s{r+3}, 0x20000")
            A(f"s_lshl_b32 s{sT}, s{sIW}, 10")
            A(f"v_add_u32 v3, s{sT}, v3")
            for j in range(10):
                for (r, n) in ((72, 3), (76, 3), (80, 3), (68, 10)):
                    if j < n:
                        A(f"buffer_load_dwordx4 v[60:63], v3, {sr(r,4)}, 0 offen")
                A(f"v_add_u32 v3, {256*1024}, v3")
        A(f"s_mov_b32 s{sIT}, 0")
        A.label(f"{name}_idleloop")
        A(f"s_lshl_b32 s{sL}, s{sIW}, 2")
        A(f"s_add_u32 s{sL}, s{sL}, s{sIT}")
        side_loads("_id")
        A("s_waitcnt vmcnt(0)")
        side_process("_id", scr_shift=8, scr_base=0)
        fill_of(120)
        A(f"s_add_u32 s{sIT}, s{sIT}, 1")
        A(f"s_cmp_lt_u32 s{sIT}, 4")
        A(f"s_cbranch_scc1 {name}_idleloop")
        if fused and asmlib.OPT.get("early"): tag_load()
        A(f"s_branch {name}_fin")
        A.label(f"{name}_f6ldone")
        if fused and asmlib.OPT.get("early"):
            A("s_barrier")
            A(f"s_branch {name}_f6fin")
    A.label(f"{name}_fin")
    if asmlib.PROFILE and not asmlib.OPT.get("noflush0"):
        A("s_waitcnt vmcnt(0)")
        if SP:
            A("v_readfirstlane_b32 s83, v0")
            A("s_nop 3")
            A("s_cmp_ge_u32 s83, 256")
            A(f"s_cbranch_scc1 {name}_fin_sp")
        stamp(A, 3)
        if SP:
            A(f"s_branch {name}_fin_sp2")
            A.label(f"{name}_fin_sp")
            A("s_mov_b32 s92, s66")
            A.label(f"{name}_fin_sp2")
        A("v_readfirstlane_b32 s83, v0")
        A("s_nop 3")
        A("s_lshr_b32 s83, s83, 6")
        stamp_flush(A, 0, SRD_WS, 83, 4)
    if not fused:
        A.label(f"{name}_end")
        A("s_endpgm")
        return 256
    if F6 and asmlib.OPT.get("early"):
        A("s_mov_b64 exec, -1")
        A("s_waitcnt vmcnt(0) lgkmcnt(0)")
        A("s_barrier")
        A(f"s_lshl_b32 s70, s{sTYPE}, 3")
        A(f"s_add_u32 s70, s70, s{sRB}")
        A(f"s_lshr_b32 s{sT}, s2, 3")
        A(f"s_sub_u32 s{sT}, s{sT}, 28")
        A(f"s_lshl_b32 s{sT}, s{sT}, 3")
        A(f"s_and_b32 s{sT2}, s2, 7")
        A(f"s_add_u32 s{sT}, s{sT}, s{sT2}")
        A(f"s_add_u32 s{sT}, s{sT}, 64")
        A(f"s_cmp_eq_u32 s{sTYPE}, 4")
        A(f"s_cselect_b32 s70, s{sT}, s70")
        A("s_mov_b32 s71, -1")
        A("v_readfirstlane_b32 s83, v0")
        A("v_readfirstlane_b32 s61, v130")
        A("s_nop 3")
        A("s_lshr_b32 s83, s83, 6")
        A("s_cmp_eq_u32 s83, 4")
        A(f"s_cbranch_scc0 {name}_p2_entry")
        A("s_cmp_eq_u32 s61, 0")
        A(f"s_cbranch_scc1 {name}_p2_entry")
        A("v_mov_b32 v14, s61")
        A("s_cmp_ge_u32 s70, 64")
        A(f"s_cbranch_scc1 {name}_mk_side")
        A("s_and_b32 s60, s2, 6")
        A("v_lshrrev_b32 v13, 1, v2")
        A("v_lshlrev_b32 v13, 3, v13")
        A("v_and_b32 v15, 1, v2")
        A("v_add3_u32 v13, v13, v15, s60")
        A("v_lshlrev_b32 v13, 9, v13")
        A("s_lshl_b32 s60, s70, 2")
        A(f"s_add_u32 s60, s60, {MK}")
        A(f"buffer_store_dword v14, v13, {sr(SRD_WS,4)}, s60 offen sc1")
        A("s_mov_b32 s70, -1")
        A(f"s_branch {name}_p2_entry")
        A.label(f"{name}_mk_side")
        A("s_lshl_b32 s60, s70, 2")
        A(f"s_add_u32 s60, s60, {MK}")
        A("v_lshlrev_b32 v13, 9, v2")
        for m in range(4):
            A(f"buffer_store_dword v14, v13, {sr(SRD_WS,4)}, s60 offen sc1")
            if m < 3: A("s_add_u32 s60, s60, 32768")
        A("s_mov_b32 s70, -1")
        A(f"s_branch {name}_p2_entry")
        A.label(f"{name}_f6fin")
        A("s_mov_b64 exec, -1")
        A("s_mov_b32 s70, -1")
        A(f"s_lshl_b32 s71, s{sRB}, 8")
        A(f"s_add_u32 s71, s71, s{sCB}")
        A.label(f"{name}_p2_entry")
        return 256
    A.c("every wave drains its write-through stores, then one lane signals for the workgroup")
    A("s_mov_b64 exec, -1")
    A("s_waitcnt vmcnt(0) lgkmcnt(0)")
    A("s_barrier")
    sDBG, SRD_D2 = 4, 8
    A(f"s_load_dwordx2 {sr(sDBG,2)}, s[0:1], {KA_DBG}")
    A("v_readfirstlane_b32 s83, v0")
    A("s_nop 3")
    A("s_cmp_lt_u32 s83, 64")
    A(f"s_cbranch_scc0 {name}_p1polled")
    if asmlib.OPT.get('wbl2'):
        A("buffer_wbl2 sc1")
        A("s_waitcnt vmcnt(0)")
    A("s_waitcnt lgkmcnt(0)")
    A(f"s_mov_b32 s{SRD_D2}, s{sDBG}")
    A(f"s_and_b32 s{SRD_D2+1}, s{sDBG+1}, 0xffff")
    A(f"s_mov_b32 s{SRD_D2+2}, 256")
    A(f"s_mov_b32 s{SRD_D2+3}, 0x20000")
    if F6:
        A(f"s_bfe_u32 s{sT3}, s2, 0x20001")
        A(f"s_add_u32 s{sT2}, s{sRB}, 32")
        A(f"s_cmp_eq_u32 s{sTYPE}, 3")
        A(f"s_cselect_b32 s{sT}, s{sT2}, s{sT3}")
        A(f"s_cmp_eq_u32 s{sTYPE}, 4")
        A(f"s_cselect_b32 s{sT}, 40, s{sT}")
        A(f"s_lshl_b32 s{sT}, s{sT}, 2")
        A("s_mov_b64 exec, 1")
        A(f"v_mov_b32 v3, s{sT}")
        A("v_mov_b32 v4, 1")
        if not asmlib.OPT.get("noatomic"): A(f"buffer_atomic_add v4, v3, {sr(SRD_D2,4)}, 0 offen sc1")
        A(f"s_lshl_b32 s{sT3}, s{sT3}, 2")
        A(f"v_mov_b32 v3, s{sT3}")
        A("v_mov_b32 v5, 24")
    else:
        A(f"s_and_b32 s{sT}, s{sCB}, 3")
        A(f"s_add_u32 s{sT2}, s{sRB}, 32")
        A(f"s_cmp_ge_u32 s{sCB}, 12")
        A(f"s_cselect_b32 s{sT}, s{sT2}, s{sT}")
        A(f"s_lshl_b32 s{sT}, s{sT}, 2")
        A("s_mov_b64 exec, 1")
        A(f"v_mov_b32 v3, s{sT}")
        A("v_mov_b32 v4, 1")
        A(f"buffer_atomic_add v4, v3, {sr(SRD_D2,4)}, 0 offen sc1")
        A("s_mov_b64 exec, 0xfff")
        A("v_cmp_gt_u32 vcc, 4, v2")
        A("v_add_u32 v3, 28, v2")
        A("v_mov_b32 v5, 20")
        A("v_mov_b32 v6, 24")
        A("v_cndmask_b32 v3, v3, v2, vcc")
        A("v_cndmask_b32 v5, v5, v6, vcc")
        A("v_lshlrev_b32 v3, 2, v3")
    A(f"s_mov_b32 s{sT2}, 0")
    if asmlib.OPT.get("nopoll"): A(f"s_branch {name}_p1done")
    if F6:
        A(f"s_cmp_eq_u32 s{sTYPE}, 3")
        A(f"s_cbranch_scc1 {name}_p1poll")
        A(f"s_cmp_eq_u32 s{sTYPE}, 4")
        A(f"s_cbranch_scc0 {name}_p1bk")
        A.label(f"{name}_p1idle")
        A(f"buffer_load_dword v4, v3, {sr(SRD_D2,4)}, 0 offen sc1")
        A("s_waitcnt vmcnt(0)")
        A("v_cmp_gt_u32 vcc, 1, v4")
        A(f"s_add_u32 s{sT2}, s{sT2}, 1")
        A("s_nop 1")
        A(f"s_cbranch_vccz {name}_p1bk")
        A("s_sleep 127")
        A(f"s_cmp_lt_u32 s{sT2}, 0x4000")
        A(f"s_cbranch_scc1 {name}_p1idle")
        A.label(f"{name}_p1bk")
        A(f"s_sleep {asmlib.OPT.get('slp0', 40)}")
    A.label(f"{name}_p1poll")
    A(f"buffer_load_dword v4, v3, {sr(SRD_D2,4)}, 0 offen sc1")
    A("s_waitcnt vmcnt(0)")
    A("v_cmp_lt_u32 vcc, v4, v5")
    A(f"s_add_u32 s{sT2}, s{sT2}, 1")
    A("s_nop 1")
    A(f"s_cbranch_vccz {name}_p1done")
    A(f"s_sleep {asmlib.OPT.get('slp', 16)}")
    A(f"s_cmp_lt_u32 s{sT2}, 0x40000")
    A(f"s_cbranch_scc1 {name}_p1poll")
    A.label(f"{name}_p1done")
    A("s_mov_b64 exec, -1")
    A.label(f"{name}_p1polled")
    A("s_waitcnt lgkmcnt(0)")
    A("s_barrier")
    return 256
```

```python
from asmlib import *
import asmlib
from layout import *
from k23 import ws_srd

K2_LDS = 8*CH + 24576

class VmTrack:
    def __init__(self):
        self.seq = []
        self.need = {}
    def issue(self, tag): self.seq.append(tag)
    def wait(self, wid, tags):
        idx = [i for i, t in enumerate(self.seq) if t in tags]
        if not idx: return
        n = len(self.seq) - 1 - max(idx)
        self.need[wid] = min(self.need.get(wid, 63), n)

def gen_k2(A, name, fused=False, env=None):
    if not fused: kernel_header(A, name)
    LD1 = ' sc1' if (fused and asmlib.OPT.get("ldsc1")) else ''
    sWS = 4; SRD = 8; sW = 12; sT, sT2, sT3 = 13, 14, 15
    sHEAD, sQT, sKV, sM0, sCNT, sG, sHF = 16, 17, 18, 19, 20, 21, 22
    sTT, sCBK = 23, 24
    sA0, sB0 = 26, 31
    if not fused:
        A("s_cmp_ge_u32 s2, 256")
        A(f"s_cbranch_scc1 {name}_end")
    TP = asmlib.OPT.get("tailprof")
    if (not TP or TP == 5) and not asmlib.OPT.get('noflush0'): stamp(A, 0)
    A(f"s_load_dwordx2 {sr(sWS,2)}, s[0:1], {KA_WS}")
    A(f"s_load_dwordx2 s[38:39], s[0:1], {KA_DBG}")
    A(f"s_load_dwordx2 s[48:49], s[0:1], {KA_OUT}")
    A("v_lshrrev_b32 v1, 6, v0")
    A("v_and_b32 v2, 63, v0")
    A(f"v_readfirstlane_b32 s{sW}, v1")
    A(f"s_and_b32 s{sT}, s2, 7")
    A(f"s_lshr_b32 s{sT2}, s2, 3")
    A(f"s_and_b32 s{sT3}, s{sT2}, 3")
    A(f"s_lshl_b32 s{sHEAD}, s{sT}, 2")
    A(f"s_add_u32 s{sHEAD}, s{sHEAD}, s{sT3}")
    A(f"s_and_b32 s{sG}, s{sW}, 3")
    A(f"s_lshr_b32 s{sHF}, s{sW}, 2")
    A(f"s_lshr_b32 s{sQT}, s{sT2}, 2")
    A(f"s_lshl_b32 s{sQT}, s{sQT}, 3")
    A(f"s_lshl_b32 s{sT3}, s{sG}, 1")
    A(f"s_add_u32 s{sQT}, s{sQT}, s{sT3}")
    A(f"s_lshl_b32 s{sTT}, s{sT}, 3")
    A(f"s_and_b32 s{sT3}, s{sT2}, 7")
    A(f"s_add_u32 s{sTT}, s{sTT}, s{sT3}")
    A(f"s_lshr_b32 s{sCBK}, s{sT2}, 3")
    A("s_waitcnt lgkmcnt(0)")
    if TP == 5: stamp(A, 1)
    ws_srd(A, SRD, sWS)
    if asmlib.OPT.get("lone"):
        A(f"s_cmp_ge_u32 s{sW}, 4")
        A(f"s_cbranch_scc1 {name}_end")
    SA, SB = 16, 32; P = 48; OA, OB = 56, 72
    Q16A, Q4A, Q16B, Q4B = 88, 92, 94, 98
    K16 = 100; K4 = [104, 106]; V1 = 108; V2 = 112; E = [116, 120]
    FR = 124; ACC = 172
    vL16, vKV, vK4a, vDma, vFo = 4, 5, 6, 7, 8
    vKVy, vK4y = 10, 11
    sDX, sNB, sCHK = 40, 41, 42
    A(f"v_lshlrev_b32 v{vL16}, 4, v2")
    A(f"s_mul_i32 s{sT}, s{sHF}, {4*CH}")
    A(f"v_add_u32 v{vKV}, s{sT}, v{vL16}")
    A("v_and_b32 v3, 31, v2")
    A(f"v_lshlrev_b32 v9, 3, v3")
    A(f"v_add_u32 v9, 1024, v9")
    A(f"v_add_u32 v{vK4a}, s{sT}, v9")
    A(f"v_add_u32 v{vKVy}, {CH}, v{vKV}")
    A(f"v_add_u32 v{vK4y}, {CH}, v{vK4a}")
    A(f"s_mov_b32 s{sDX}, {2*CH}")
    A(f"s_mov_b32 s{sNB}, {3*CH}")
    A(f"s_mov_b32 s{sCHK}, 3")
    A(f"v_mov_b32 v{vDma}, v{vL16}")
    A(f"v_mov_b32 v{vFo}, v{vL16}")
    A(f"s_mul_i32 s{sM0}, s{sG}, 3072")
    A(f"s_add_u32 s{sM0}, s{sM0}, s{sT}")
    A(f"s_mul_i32 s{sKV}, s{sHEAD}, {HS_KV}")
    A(f"s_mul_i32 s{sT2}, s{sHF}, {8*CH}")
    A(f"s_add_u32 s{sKV}, s{sKV}, s{sT2}")
    A(f"s_mul_i32 s{sT2}, s{sG}, 3072")
    A(f"s_add_u32 s{sKV}, s{sKV}, s{sT2}")
    A(f"s_add_u32 s{sKV}, s{sKV}, {KV}")
    A("s_mov_b32 s52, 0x30800000")
    A("s_mov_b32 s53, 0x58800000")
    vm = VmTrack()
    def dma_piece(chunk, i, emit, dyn=False):
        if emit:
            if i == 0:
                if dyn:
                    A(f"s_cmp_ge_u32 s{sCHK}, 8")
                    A(f"s_cselect_b32 s{sT}, 0x7fff0000, 0")
                    A(f"s_add_u32 m0, s{sM0}, s{sNB}")
                    A(f"v_or_b32 v{vDma}, s{sT}, v{vL16}")
                else:
                    A(f"s_add_u32 m0, s{sM0}, {(chunk & 3)*CH}")
                    A("s_nop 0")
            ND = asmlib.OPT.get("nodup") and i == 3
            if ND:
                lab = A.new(f"{name}_nd")
                A(f"s_cmp_eq_u32 s{sG}, 3")
                A(f"s_cbranch_scc0 {lab}")
            A(f"buffer_load_dwordx4 v{vDma}, {sr(SRD,4)}, s{sKV} offen offset:{i*1024}{LD1} lds")
            if ND: A.label(lab)
            if i == 3:
                A(f"s_add_u32 s{sKV}, s{sKV}, {CH}")
                if dyn:
                    A(f"s_add_u32 s{sCHK}, s{sCHK}, 1")
                    A(f"s_add_u32 s{sNB}, s{sNB}, {CH}")
                    A(f"s_cmp_eq_u32 s{sNB}, {4*CH}")
                    A(f"s_cselect_b32 s{sNB}, 0, s{sNB}")
        if not (asmlib.OPT.get("nodup") and i == 3): vm.issue(("dma", chunk))
    def dma(chunk, emit):
        for i in range(4): dma_piece(chunk, i, emit)
    def fslot(s): return FR + (s & 1)*24
    def fload(s, which, imm, emit):
        b = fslot(s)
        if emit and not (asmlib.OPT.get("noffnload") and s >= 2):
            if which < 5:
                A(f"buffer_load_dwordx4 {vr(b+4*which,4)}, v{vFo}, {sr(SRD,4)}, s{sA0+which} offen offset:{imm}{LD1}")
            else:
                A(f"buffer_load_dwordx4 {vr(b+20,4)}, v{vFo}, {sr(SRD,4)}, s{sB0} offen offset:{imm}{LD1}")
        vm.issue(("f", s))
    EARLY = bool(env and env.get("early"))
    def common_setup():
        A(f"s_mul_i32 s{sT}, s{sW}, {12*1024}")
        A(f"s_mul_i32 s{sT2}, s{sCBK}, {5*96*1024}")
        A(f"s_add_u32 s{sT2}, s{sT2}, s{sT}")
        A(f"s_add_u32 s{sA0}, s{sT2}, {WDF}")
        for mt in range(1, 5): A(f"s_add_u32 s{sA0+mt}, s{sA0+mt-1}, {96*1024}")
        A(f"s_mul_i32 s{sT2}, s{sTT}, {96*1024}")
        A(f"s_add_u32 s{sT2}, s{sT2}, s{sT}")
        A(f"s_add_u32 s{sB0}, s{sT2}, {HF}")
        if not EARLY: dma(2, True)
        vG1, vG2 = 252, 253
        sWo = 32
        A(f"s_mul_i32 s{sT}, s{sW}, {5*1024}")
        A(f"s_mul_i32 s{sT2}, s{sCBK}, {5*40*1024}")
        A(f"s_add_u32 s{sT2}, s{sT2}, s{sT}")
        A(f"s_add_u32 s{sWo}, s{sT2}, {WOF}")
        for mt in range(1, 5): A(f"s_add_u32 s{sWo+mt}, s{sWo+mt-1}, {40*1024}")
        A("v_cmp_lt_u32 vcc, 31, v2")
        for r in list(range(OA, OA+32)) + list(range(P, P+8)) + list(range(V2, V2+4)) + list(range(E[0], E[0]+8)):
            A(f"v_mov_b32 v{r}, 0")
        if EARLY:
            for r in range(ACC, ACC+80): A(f"v_mov_b32 v{r}, 0")
    PRE = EARLY and asmlib.OPT.get('preinit')
    if PRE: common_setup()
    if EARLY:
        QS = 8*CH
        LF = env["LF"]
        A(f"s_cmp_lt_u32 s{sW}, 4")
        A(f"s_cbranch_scc1 {name}_gwait")
        env["sync_hook"]()
        A(f"s_mul_i32 s{sT}, s{sHEAD}, {HS_Q}")
        A(f"s_mul_i32 s{sT2}, s{sQT}, 1280")
        A(f"s_add_u32 s{sT}, s{sT}, s{sT2}")
        if QF: A(f"s_add_u32 s{sT}, s{sT}, {QF}")
        A(f"s_mul_i32 s{sT2}, s{sG}, 3072")
        A(f"s_add_u32 m0, s{sT2}, {QS}")
        A("s_nop 0")
        for i in range(3):
            A(f"buffer_load_dwordx4 v{vL16}, {sr(SRD,4)}, s{sT} offen offset:{i*1024}{LD1} lds")
            vm.issue(("q", 0))
        A(f"s_mul_i32 s{sT}, s{sHEAD}, {HS_KV}")
        A(f"s_add_u32 s{sT}, s{sT}, s{sT2}")
        A(f"s_add_u32 s{sT}, s{sT}, {KV}")
        for c in range(3):
            for hf in range(2):
                A(f"s_add_u32 s{sT3}, s{sT}, {(8*hf + c)*CH}")
                A(f"s_add_u32 m0, s{sT2}, {hf*4*CH + c*CH}")
                A("s_nop 0")
                for i in range(4):
                    ND = asmlib.OPT.get("nodup") and i == 3
                    if ND:
                        lab = A.new(f"{name}_ndp")
                        A(f"s_cmp_eq_u32 s{sG}, 3")
                        A(f"s_cbranch_scc0 {lab}")
                    A(f"buffer_load_dwordx4 v{vL16}, {sr(SRD,4)}, s{sT3} offen offset:{i*1024}{LD1} lds")
                    if ND: A.label(lab)
                    else: vm.issue(("dma", c))
        vm.wait("pro", [("dma", 0), ("q", 0)])
        A(f"s_waitcnt vmcnt({vm.need['pro']})")
        A.label(f"{name}_gwait")
        A(f"s_add_u32 s{sKV}, s{sKV}, {3*CH}")
    else:
        A(f"s_mul_i32 s{sT}, s{sHEAD}, {HS_Q}")
        A(f"s_mul_i32 s{sT2}, s{sQT}, 1280")
        A(f"s_add_u32 s{sT}, s{sT}, s{sT2}")
        if QF: A(f"s_add_u32 s{sT}, s{sT}, {QF}")
        A(f"buffer_load_dwordx4 {vr(Q16A,4)}, v{vL16}, {sr(SRD,4)}, s{sT} offen{LD1}")
        A(f"buffer_load_dwordx2 {vr(Q4A,2)}, v9, {sr(SRD,4)}, s{sT} offen{LD1}")
        A(f"buffer_load_dwordx4 {vr(Q16B,4)}, v{vL16}, {sr(SRD,4)}, s{sT} offen offset:1280{LD1}")
        A(f"buffer_load_dwordx2 {vr(Q4B,2)}, v9, {sr(SRD,4)}, s{sT} offen offset:1280{LD1}")
        for i in range(4): vm.issue(("q", 0))
        dma(0, True)
        A("s_barrier")
        dma(1, True)
    if not PRE: common_setup()
    vG1, vG2 = 252, 253
    sWo = 32
    if EARLY:
        A("s_barrier")
        A("v_cmp_lt_u32 vcc, 31, v2")
        A(f"s_mul_i32 s{sT}, s{sG}, 3072")
        A(f"s_add_u32 s{sT}, s{sT}, {QS}")
        A(f"v_add_u32 v12, s{sT}, v{vL16}")
        A(f"v_add_u32 v13, s{sT}, v9")
        A(f"ds_read_b128 {vr(Q16A,4)}, v12")
        A(f"ds_read_b64 {vr(Q4A,2)}, v13")
        A(f"ds_read_b128 {vr(Q16B,4)}, v12 offset:1280")
        A(f"ds_read_b64 {vr(Q4B,2)}, v13 offset:1280")
        A(f"ds_read_b128 {vr(K16,4)}, v{vKV}")
        A(f"ds_read_b64 {vr(K4[0],2)}, v{vK4a}")
        A(f"ds_read_b128 {vr(V1,4)}, v{vKV} offset:5120")
        A("s_waitcnt lgkmcnt(0)")
        for r in (Q4A, Q4A+1, Q4B, Q4B+1):
            A(f"v_cndmask_b32 v{r}, v{r}, v{P}, vcc")
    else:
        vm.wait("pro", [("dma", 0), ("q", 0)])
        A(f"s_waitcnt vmcnt({vm.need['pro']})")
        if TP == 5: stamp(A, 3)
        for r in (Q4A, Q4A+1, Q4B, Q4B+1):
            A(f"v_cndmask_b32 v{r}, v{r}, v{P}, vcc")
        A("s_barrier")
    def reg(t, k4): return ((vK4a if k4 else vKV) if (t & 7) < 4 else (vK4y if k4 else vKVy))
    def koff(t): return (t & 3)*1280
    def voff(t, f): return 5120 + (t & 3)*2048 + f*1024
    rdK16 = lambda t: f"ds_read_b128 {vr(K16,4)}, v{reg(t,0)} offset:{koff(t)}"
    rdK4 = lambda t: f"ds_read_b64 {vr(K4[t & 1],2)}, v{reg(t,1)} offset:{koff(t)}"
    rdV1 = lambda t: f"ds_read_b128 {vr(V1,4)}, v{reg(t,0)} offset:{voff(t,0)}"
    rdV2 = lambda t: f"ds_read_b128 {vr(V2,4)}, v{reg(t,0)} offset:{voff(t,1)}"
    mS1 = lambda d, q: f"v_mfma_f32_32x32x16_bf16 {vr(d,16)}, {vr(K16,4)}, {vr(q,4)}, 0"
    mS2 = lambda d, q, t: f"v_mfma_f32_32x32x8_bf16 {vr(d,16)}, {vr(K4[t & 1],2)}, {vr(q,2)}, {vr(d,16)}"
    mP1 = lambda o: f"v_mfma_f32_32x32x16_bf16 {vr(o,16)}, {vr(V1,4)}, {vr(P,4)}, {vr(o,16)}"
    mP2 = lambda o: f"v_mfma_f32_32x32x16_bf16 {vr(o,16)}, {vr(V2,4)}, {vr(P+4,4)}, {vr(o,16)}"
    if not EARLY:
        A(rdK16(0)); A(rdK4(0)); A(rdV1(0))
        A("s_waitcnt lgkmcnt(0)")
    else:
        A("s_nop 1")
    A(mS1(SA, Q16A))
    if EARLY:
        A("s_nop 7"); A("s_nop 3")
        A(mS2(SA, Q4A, 0))
        A("s_nop 7"); A("s_nop 3")
    else:
        for r in range(ACC, ACC+40): A(f"v_mov_b32 v{r}, 0")
        A(mS2(SA, Q4A, 0))
        for r in range(ACC+40, ACC+80): A(f"v_mov_b32 v{r}, 0")
    A(f"s_mov_b32 s{sCNT}, 0")
    if not TP or TP == 7: stamp(A, 1)
    def valu(cur, q):
        e = E[q & 1]; pe = E[(q+1) & 1]; pp = P + 2*((q-1) & 3)
        return [f"v_cvt_pk_bf16_f32 v{pp}, v{pe}, v{pe+1}",
                f"v_exp_f32 v{e}, v{cur+4*q}", f"v_exp_f32 v{e+1}, v{cur+4*q+1}",
                f"v_cvt_pk_bf16_f32 v{pp+1}, v{pe+2}, v{pe+3}",
                f"v_exp_f32 v{e+2}, v{cur+4*q+2}", f"v_exp_f32 v{e+3}, v{cur+4*q+3}"]
    FSLOT = {}
    k = 0
    for u in range(2, 16):
        FSLOT[u] = [(5, k)]; k += 1
        if u in ((3, 5, 7, 9, 11, 13) if asmlib.OPT.get("dodd") else (4, 6, 8, 10, 12, 14)): FSLOT[u].append((16, k)); k += 1
    assert k == 20
    def gate_loads(emit):
        if emit:
            A("v_lshlrev_b32 v14, 2, v3")
            A(f"s_add_u32 s{sT}, s{sQT}, s{sHF}")
            A(f"s_lshl_b32 s{sT}, s{sT}, 7")
            A(f"s_add_u32 s{sT}, s{sT}, {GG}")
            A(f"buffer_load_dword v{vG1}, v14, {sr(SRD,4)}, s{sT} offen{LD1}")
            A(f"s_lshl_b32 s{sT}, s{sTT}, 7")
            A(f"s_add_u32 s{sT}, s{sT}, {GG}")
            A(f"buffer_load_dword v{vG2}, v14, {sr(SRD,4)}, s{sT} offen{LD1}")
        vm.issue(("g", 0)); vm.issue(("g", 0))
    def body(kind, it, emit):
        def E_(s):
            if emit: A(s)
        for u in range(16):
            t = u >> 1
            gt = it*8 + t
            ev = (u & 1) == 0
            if ev and (t & 3) == 3:
                c = gt >> 2
                wid = ("bar", kind, u)
                vm.wait(wid, [("dma", c+1)])
                E_(f"s_waitcnt vmcnt(@{wid}@)")
                if kind == 0 and u == 14 and emit and TP == 6: stamp(A, 1)
                if kind == 0 and u == 14 and emit and gate_hook: gate_hook()
                if kind == 0 and u == 6 and emit and env and env.get("pre_b"): env["pre_b"]()
                E_("s_barrier")
                if kind == 0 and u == 6 and emit and env and env.get("post_b"): env["post_b"]()
                if kind == 0 and u == 14 and emit and TP == 6: stamp(A, 2)
            if kind == 0 and u == 11 and emit and env and env.get("gate_issue"): env["gate_issue"]()
            if u == 8:
                E_(f"v_add_u32 v{vKV}, s{sDX}, v{vKV}")
                E_(f"v_add_u32 v{vK4a}, s{sDX}, v{vK4a}")
            if u == 15:
                E_(f"v_add_u32 v{vKVy}, s{sDX}, v{vKVy}")
                E_(f"v_add_u32 v{vK4y}, s{sDX}, v{vK4y}")
            def ffn(k):
                fs, fmt = divmod(k, 5)
                gs = (it-1)*4 + fs
                b = fslot(fs)
                if k == 10:
                    E_(f"s_cmp_eq_u32 s{sCNT}, 2")
                    E_(f"s_cbranch_scc0 {name}_nowo")
                    for mt in range(5): E_(f"s_mov_b32 s{sA0+mt}, s{sWo+mt}")
                    E_(f"s_add_u32 s{sB0}, s{sWo}, 2048")
                    E_(f"v_mov_b32 v{vFo}, v{vL16}")
                    if emit: A.label(f"{name}_nowo")
                if fmt == 0:
                    wid = ("f", k)
                    vm.wait(wid, [("f", gs)])
                    E_(f"s_waitcnt vmcnt(@{wid}@)")
                d = vr(ACC+16*fmt,16)
                E_(f"v_mfma_f32_32x32x16_bf16 {d}, {vr(b+4*fmt,4)}, {vr(b+20,4)}, {d}")
                imm = (fs & 1)*1024
                def later():
                    fload(gs+2, fmt, imm, emit)
                    if fmt == 4:
                        fload(gs+2, 5, imm, emit)
                        if fs & 1:
                            E_(f"v_add_u32 v{vFo}, 2048, v{vFo}")
                return later
            cur = SA if ev else SB
            vv = valu(cur, 0) + valu(cur, 1) + valu(cur, 2) + valu(cur, 3)
            if ev:
                m = {"S1": [mS1(SB, Q16B), rdK16(t+1), rdK4(t+1)],
                     "P2": [mP2(OB), rdV2(t)],
                     "S2": [mS2(SB, Q4B, t)],
                     "P1": ["s_waitcnt lgkmcnt(3)", mP1(OA)]}
            else:
                m = {"S1": ["s_waitcnt lgkmcnt(0)", mS1(SA, Q16A)],
                     "P2": [mP2(OA)],
                     "S2": [mS2(SA, Q4A, t+1)],
                     "P1": [mP1(OB), rdV1(t+1)]}
            fsl = dict(FSLOT.get(u, [])) if kind == 1 else {}
            if len(fsl) == 2:   pos = {0: "S1", 8: "P2", 12: "S2", 20: "P1"}; fsl = {4: fsl[5], 16: fsl[16]}
            elif len(fsl) == 1: pos = {0: "S1", 10: "P2", 14: "S2", 19: "P1"}
            else:               pos = {0: "S1", 6: "P2", 12: "S2", 18: "P1"}
            dpos = {}
            if (t & 3) == 3: dpos = {3: 0, 17: 1} if ev else {3: 2, 17: 3}
            xl = {}
            if kind == 0 and u == 14: xl = {8: [("g",)], 10: [(0,5)], 12: [(0,0)], 14: [(0,1)], 20: [(0,2)], 22: [(0,3)]}
            if kind == 0 and u == 15: xl = {1: [(0,4)], 5: [(1,5)], 8: [(1,0)], 10: [(1,1)], 14: [(1,2)], 20: [(1,3)], 22: [(1,4)]}
            pend = {}
            for i, l in enumerate(vv):
                if i in dpos:
                    dma_piece((gt >> 2) + 3, dpos[i], emit, dyn=True)
                if i in xl:
                    for x in xl[i]:
                        if x[0] == "g": gate_loads(emit)
                        else: fload(x[0], x[1], x[0]*1024, emit)
                if i in fsl:
                    th = ffn(fsl[i])
                    DL = asmlib.OPT.get("dload", 0)
                    if DL: pend.setdefault(min(23, i + DL), []).append(th)
                    else: th()
                for th in pend.pop(i, []): th()
                if i in pos:
                    for x in m[pos[i]]: E_(x)
                E_(l)
            if kind == 0 and u == 15: E_(f"v_add_u32 v{vFo}, 2048, v{vFo}")
        E_(f"s_sub_u32 s{sDX}, 0, s{sDX}")
    gate_hook = env.get("gate_hook") if env else None
    pre = list(vm.seq)
    body(0, 0, False)
    for it in (1, 2, 3): body(1, it, False)
    need = dict(vm.need)
    def emit_body(kind, it):
        start = len(A.lines)
        sv = (list(vm.seq), dict(vm.need))
        body(kind, it, True)
        vm.seq, vm.need = sv
        for i in range(start, len(A.lines)):
            l = A.lines[i]
            if "@" in l:
                key = eval(l.split("@")[1])
                A.lines[i] = l.split("@")[0] + str(need[key]) + l.split("@")[2]
    if not asmlib.OPT.get("noalb0"): A(".p2align 6")
    emit_body(0, 0)
    if TP == 7: stamp(A, 2)
    A(f"s_mov_b32 s{sCNT}, 0")
    A(".p2align 6")
    A.label(f"{name}_aloop")
    emit_body(1, 1)
    A(f"s_add_u32 s{sCNT}, s{sCNT}, 1")
    A(f"s_cmp_lt_u32 s{sCNT}, 3")
    A(f"s_cbranch_scc1 {name}_aloop")
    A("s_setprio 0")
    A(f"v_cvt_pk_bf16_f32 v{P+6}, v{E[1]}, v{E[1]+1}")
    A(f"v_cvt_pk_bf16_f32 v{P+7}, v{E[1]+2}, v{E[1]+3}")
    A("s_waitcnt lgkmcnt(0)")
    A("s_nop 1")
    A(mP2(OB))
    if TP == 7: stamp(A, 3)
    if TP not in (4, 5, 6, 7): stamp(A, 0 if TP else 2)
    def wo_reg(st, mt):
        if st == 0: return FR + 4*mt
        if st == 1: return FR + 24 + 4*mt
        if mt == 0 and st == 2: return FR + 20
        if mt == 0 and st == 3: return FR + 44
        rest = [(2,1),(2,2),(2,3),(2,4),(3,1),(3,2),(3,3),(3,4),(4,0),(4,1),(4,2),(4,3),(4,4)]
        i = rest.index((st, mt))
        return 16 + 4*i if i < 10 else 88 + 4*(i-10)
    BFR = 100
    CATT, RA, RB = 8*CH, 0, 65536
    vWr, vRd, vC1, vC2 = 9, 10, 11, 12
    A(f"s_mul_i32 s{sT}, s{sW}, 3072")
    A(f"s_add_u32 s{sT}, s{sT}, {CATT}")
    A(f"v_add_u32 v{vC1}, s{sT}, v{vL16}")
    A(f"s_xor_b32 s{sT2}, s{sW}, 4")
    A(f"s_mul_i32 s{sT2}, s{sT2}, 3072")
    A(f"s_add_u32 s{sT2}, s{sT2}, {CATT}")
    A(f"v_add_u32 v{vC2}, s{sT2}, v{vL16}")
    A("s_nop 7")
    A(f"s_cmp_eq_u32 s{sHF}, 0")
    A(f"s_cbranch_scc0 {name}_cmb1")
    A("s_nop 3")
    for j in range(3): A(f"ds_write_b128 v{vC1}, {vr(OB+4*j,4)} offset:{j*1024}")
    A(f"s_branch {name}_cmb2")
    A.label(f"{name}_cmb1")
    for j in range(3): A(f"ds_write_b128 v{vC1}, {vr(OA+4*j,4)} offset:{j*1024}")
    A("s_nop 1")
    for j in range(12): A(f"v_mov_b32 v{OA+j}, v{OB+j}")
    A.label(f"{name}_cmb2")
    A("s_waitcnt lgkmcnt(0)")
    A("s_barrier")
    for j in range(3): A(f"ds_read_b128 {vr(OB+4*j,4)}, v{vC2} offset:{j*1024}")
    A("s_waitcnt lgkmcnt(0)")
    O = OA
    for j in range(12): A(f"v_add_f32 v{O+j}, v{O+j}, v{OB+j}")
    vLs, vR = OB, OB+1
    def rowsum():
        A(f"v_mov_b32 v{vLs}, v{O+8}")
        A(f"v_mov_b32 v{vR}, v{O+8}")
        A("s_nop 1")
        A(f"v_permlane32_swap_b32 v{vLs}, v{vR}")
        A("s_nop 1")
    rowsum()
    A(f"v_mov_b32 v{OB+2}, 0")
    for r in range(12): A(f"v_fma_f32 v{OB+2}, v{O+r}, 0, v{OB+2}")
    A(f"v_cmp_o_f32 vcc, v{OB+2}, v{OB+2}")
    A(f"v_cmp_le_f32 s[50:51], s52, v{vR}")
    A(f"v_cmp_ge_f32 s[54:55], s53, v{vR}")
    A("s_nop 3")
    A("s_and_b64 vcc, vcc, s[50:51]")
    A("s_and_b64 vcc, vcc, s[54:55]")
    A("s_cmp_eq_u64 vcc, -1")
    A(f"s_cbranch_scc1 {name}_fastok")
    FS, FP, FK16, FK4, FV1, FV2, FM, FA, FT = 16, 48, 100, 104, 108, 112, 116, 117, 118
    FQ16, FQ4 = 32, 36
    A(f"s_cmp_eq_u32 s{sHF}, 0")
    A(f"s_cbranch_scc0 {name}_fb_b")
    for j in range(4): A(f"v_mov_b32 v{FQ16+j}, v{Q16A+j}")
    for j in range(2): A(f"v_mov_b32 v{FQ4+j}, v{Q4A+j}")
    A(f"s_branch {name}_fb_go")
    A.label(f"{name}_fb_b")
    for j in range(4): A(f"v_mov_b32 v{FQ16+j}, v{Q16B+j}")
    for j in range(2): A(f"v_mov_b32 v{FQ4+j}, v{Q4B+j}")
    A.label(f"{name}_fb_go")
    for r in range(16): A(f"v_mov_b32 v{O+r}, 0")
    A(f"v_mov_b32 v{FM}, 0xff7fffff")
    A("v_and_b32 v3, 31, v2")
    A("v_lshlrev_b32 v14, 3, v3")
    A("v_add_u32 v14, 1024, v14")
    A(f"s_mul_i32 s56, s{sHEAD}, {HS_KV}")
    A(f"s_add_u32 s56, s56, {KV}")
    A("s_mov_b32 s57, 0")
    A.label(f"{name}_fb_loop")
    A("s_lshr_b32 s58, s57, 2")
    A(f"s_mul_i32 s58, s58, {CH}")
    A("s_add_u32 s58, s58, s56")
    A("s_and_b32 s59, s57, 3")
    A("s_mul_i32 s60, s59, 1280")
    A("s_add_u32 s60, s60, s58")
    A("s_lshl_b32 s59, s59, 11")
    A("s_add_u32 s59, s59, s58")
    A("s_add_u32 s59, s59, 5120")
    A(f"buffer_load_dwordx4 {vr(FK16,4)}, v{vL16}, {sr(SRD,4)}, s60 offen{LD1}")
    A(f"buffer_load_dwordx2 {vr(FK4,2)}, v14, {sr(SRD,4)}, s60 offen{LD1}")
    A(f"buffer_load_dwordx4 {vr(FV1,4)}, v{vL16}, {sr(SRD,4)}, s59 offen{LD1}")
    A(f"buffer_load_dwordx4 {vr(FV2,4)}, v{vL16}, {sr(SRD,4)}, s59 offen offset:1024{LD1}")
    A("s_waitcnt vmcnt(0)")
    A(f"v_mfma_f32_32x32x16_bf16 {vr(FS,16)}, {vr(FK16,4)}, {vr(FQ16,4)}, 0")
    A("s_nop 15")
    A(f"v_mfma_f32_32x32x8_bf16 {vr(FS,16)}, {vr(FK4,2)}, {vr(FQ4,2)}, {vr(FS,16)}")
    A("s_nop 15")
    A(f"v_max3_f32 v{FT}, v{FS}, v{FS+1}, v{FS+2}")
    for j in range(3, 15, 2): A(f"v_max3_f32 v{FT}, v{FT}, v{FS+j}, v{FS+j+1}")
    A(f"v_max_f32 v{FT}, v{FT}, v{FS+15}")
    A(f"v_mov_b32 v{FT+1}, v{FT}")
    A("s_nop 1")
    A(f"v_permlane32_swap_b32 v{FT}, v{FT+1}")
    A("s_nop 1")
    A(f"v_max3_f32 v{FT}, v{FT}, v{FT+1}, v{FM}")
    A(f"v_sub_f32 v{FA}, v{FM}, v{FT}")
    A(f"v_exp_f32 v{FA}, v{FA}")
    A(f"v_mov_b32 v{FM}, v{FT}")
    for j in range(16): A(f"v_sub_f32 v{FS+j}, v{FS+j}, v{FM}")
    for j in range(16): A(f"v_exp_f32 v{FS+j}, v{FS+j}")
    A("s_nop 0")
    for j in range(8): A(f"v_cvt_pk_bf16_f32 v{FP+j}, v{FS+2*j}, v{FS+2*j+1}")
    for j in range(16): A(f"v_mul_f32 v{O+j}, v{O+j}, v{FA}")
    A("s_nop 1")
    A(f"v_mfma_f32_32x32x16_bf16 {vr(O,16)}, {vr(FV1,4)}, {vr(FP,4)}, {vr(O,16)}")
    A(f"v_mfma_f32_32x32x16_bf16 {vr(O,16)}, {vr(FV2,4)}, {vr(FP+4,4)}, {vr(O,16)}")
    A("s_nop 15")
    A("s_add_u32 s57, s57, 1")
    A("s_cmp_lt_u32 s57, 64")
    A(f"s_cbranch_scc1 {name}_fb_loop")
    rowsum()
    A.label(f"{name}_fastok")
    A(f"v_rcp_f32 v{vR}, v{vR}")
    A("s_nop 0")
    A(f"v_mul_f32 v{vR}, v{vR}, v{vG1}")
    for r in range(12): A(f"v_mul_f32 v{O+r}, v{O+r}, v{vR}")
    OP = OB + 4
    for j in range(6): A(f"v_cvt_pk_bf16_f32 v{OP+j}, v{O+2*j}, v{O+2*j+1}")
    A(f"s_add_u32 s{sT}, s{sQT}, s{sHF}")
    A(f"s_mul_i32 s{sT}, s{sT}, 40960")
    A(f"s_add_u32 s{sT}, s{sT}, {OF}")
    A(f"s_lshl_b32 s{sT2}, s{sHEAD}, 10")
    A(f"s_add_u32 s{sT2}, s{sT2}, s{sT}")
    A(f"buffer_store_dwordx4 {vr(OP,4)}, v{vL16}, {sr(SRD,4)}, s{sT2} offen sc1")
    A(f"s_lshr_b32 s{sT2}, s{sHEAD}, 2")
    A(f"s_add_u32 s{sT2}, s{sT2}, 32")
    A(f"s_lshl_b32 s{sT2}, s{sT2}, 10")
    A(f"s_add_u32 s{sT}, s{sT}, s{sT2}")
    A(f"s_bfe_u32 s{sT2}, s{sHEAD}, 0x10001")
    A(f"s_lshl_b32 s{sT2}, s{sT2}, 9")
    A(f"s_add_u32 s{sT}, s{sT}, s{sT2}")
    A(f"s_and_b32 s{sT2}, s{sHEAD}, 1")
    A(f"s_lshl_b32 s{sT2}, s{sT2}, 3")
    A(f"s_add_u32 s{sT}, s{sT}, s{sT2}")
    A("s_mov_b32 exec_hi, 0")
    A(f"buffer_store_dwordx2 {vr(OP+4,2)}, v{vL16}, {sr(SRD,4)}, s{sT} offen sc1")
    A("s_mov_b64 exec, -1")
    if TP == 1: stamp(A, 1)
    sOF = 37
    A(f"s_mul_i32 s{sOF}, s{sTT}, 40960")
    A(f"s_mul_i32 s{sT2}, s{sW}, {5*1024}")
    A(f"s_add_u32 s{sOF}, s{sOF}, s{sT2}")
    A(f"s_add_u32 s{sOF}, s{sOF}, {OF}")
    A(f"v_add_u32 v15, 4096, v{vL16}")
    def ofloads():
        for st in range(5):
            if st < 4:
                A(f"buffer_load_dwordx4 {vr(BFR+4*st,4)}, v{vL16}, {sr(SRD,4)}, s{sOF} offen offset:{st*1024} sc1")
            else:
                A(f"buffer_load_dwordx4 {vr(BFR+4*st,4)}, v15, {sr(SRD,4)}, s{sOF} offen sc1")
    def ofcheck():
        A(f"v_max3_u32 v14, v{BFR}, v{BFR+1}, v{BFR+2}")
        for j in range(3, 19, 2):
            A(f"v_max3_u32 v14, v14, v{BFR+j}, v{BFR+j+1}")
        A(f"v_max_u32 v14, v14, v{BFR+19}")
        A("v_cmp_eq_u32 vcc, -1, v14")
    A(f"v_sub_f32 v{vG2}, 1.0, v{vG2}")
    k = 0
    for st in range(2, 5):
        for mt in range(5):
            if st < 4 and mt == 0: continue
            if st < 4:
                A(f"buffer_load_dwordx4 {vr(wo_reg(st,mt),4)}, v{vL16}, {sr(SRD,4)}, s{sWo+mt} offen offset:{st*1024}{LD1}")
            else:
                A(f"buffer_load_dwordx4 {vr(wo_reg(st,mt),4)}, v15, {sr(SRD,4)}, s{sWo+mt} offen{LD1}")
            for r in range(ACC+k, min(ACC+k+7, ACC+80)): A(f"v_mul_f32 v{r}, v{r}, v{vG2}")
            k = min(k+7, 80)
    assert k == 80
    A(f"s_mov_b32 s{sT2}, 0")
    A.label(f"{name}_poll")
    ofloads()
    A("s_waitcnt vmcnt(0)")
    ofcheck()
    A(f"s_add_u32 s{sT2}, s{sT2}, 1")
    A("s_nop 1")
    A(f"s_cbranch_vccz {name}_polldone")
    if asmlib.OPT.get("oslp"): A(f"s_sleep {asmlib.OPT.get('oslp')}")
    A(f"s_cmp_lt_u32 s{sT2}, 0x40000")
    A(f"s_cbranch_scc1 {name}_poll")
    A.label(f"{name}_polldone")
    if TP == 1: stamp(A, 2)
    if TP == 4: stamp(A, 0)
    for st in range(5):
        for mt in range(5):
            d = vr(ACC+16*mt,16)
            A(f"v_mfma_f32_32x32x16_bf16 {d}, {vr(wo_reg(st,mt),4)}, {vr(BFR+4*st,4)}, {d}")
    RB2 = 65536
    if TP == 4: stamp(A, 1)
    PK = 16
    A("s_nop 15")
    G4 = 56
    for mt in (0, 1, 2, 3, 4):
        for q in range(4):
            a = ACC + 16*mt + 4*q
            d = PK + 32 + 2*q if mt == 4 else G4 + 4*((mt & 1)*4 + q) + 2*(mt >> 1)
            A(f"v_cvt_pk_bf16_f32 v{d}, v{a}, v{a+1}")
            A(f"v_cvt_pk_bf16_f32 v{d+1}, v{a+2}, v{a+3}")
    A(f"s_lshl_b32 s{sT}, s{sW}, 13")
    A(f"v_add_u32 v{vWr}, s{sT}, v{vL16}")
    A(f"s_lshl_b32 s{sT}, s{sW}, 11")
    A(f"s_add_u32 s{sT}, s{sT}, {RB2}")
    A("v_lshlrev_b32 v13, 3, v2")
    A(f"v_add_u32 v14, s{sT}, v13")
    for d in range(8):
        A(f"ds_write_b128 v{vWr}, {vr(G4+4*d,4)} offset:{d*1024}")
    for q in range(4):
        A(f"ds_write_b64 v14, {vr(PK+32+2*q,2)} offset:{q*512}")
    A(f"s_lshl_b32 s{sT}, s{sW}, 10")
    A(f"v_add_u32 v{vRd}, s{sT}, v{vL16}")
    A(f"s_lshl_b32 s{sT}, s{sG}, 9")
    A(f"s_add_u32 s{sT}, s{sT}, {RB2}")
    A(f"v_add_u32 v14, s{sT}, v13")
    A("v_mov_b32 v12, 0x3f80")
    A("v_mov_b32 v11, 0x3f800000")
    SUMA, SUMB, SUMC = 56, 60, 64
    A("s_waitcnt lgkmcnt(0)")
    A("s_barrier")
    if TP == 4: stamp(A, 2)
    T0 = 16
    for s_ in range(8):
        A(f"ds_read_b128 {vr(T0+4*s_,4)}, v{vRd} offset:{s_*8192}")
    for s_ in range(8):
        A(f"ds_read_b64 {vr(88+2*s_,2)}, v14 offset:{s_*2048}")
    for r in range(SUMA, SUMA+12): A(f"v_mov_b32 v{r}, 0")
    for s_ in range(8):
        A(f"s_waitcnt lgkmcnt({min(15, 7-s_+8)})")
        for j in range(2):
            A(f"v_dot2_f32_bf16 v{SUMA+2*j}, v{T0+4*s_+j}, v12, v{SUMA+2*j}")
            A(f"v_dot2_f32_bf16 v{SUMA+2*j+1}, v{T0+4*s_+j}, v11, v{SUMA+2*j+1}")
            A(f"v_dot2_f32_bf16 v{SUMB+2*j}, v{T0+4*s_+2+j}, v12, v{SUMB+2*j}")
            A(f"v_dot2_f32_bf16 v{SUMB+2*j+1}, v{T0+4*s_+2+j}, v11, v{SUMB+2*j+1}")
    A("s_waitcnt lgkmcnt(0)")
    for s_ in range(8):
        for j in range(2):
            A(f"v_dot2_f32_bf16 v{SUMC+2*j}, v{88+2*s_+j}, v12, v{SUMC+2*j}")
            A(f"v_dot2_f32_bf16 v{SUMC+2*j+1}, v{88+2*s_+j}, v11, v{SUMC+2*j+1}")
    if asmlib.OPT.get('oldout'):
        SRD_O = 44; sOUT = 48
        OSC = ' sc1' if asmlib.OPT.get('osc1') else (' nt' if asmlib.OPT.get('ont') else '')
        A("v_and_b32 v3, 31, v2")
        A(f"s_lshl_b32 s{sT}, s{sTT}, 5")
        A(f"v_add_u32 v3, s{sT}, v3")
        A("v_mul_u32_u24 v3, 1280, v3")
        A("v_lshrrev_b32 v14, 5, v2")
        A("v_lshl_add_u32 v3, v14, 3, v3")
        A(f"s_mul_i32 s{sT}, s{sCBK}, 320")
        A(f"s_lshl_b32 s{sT2}, s{sG}, 4")
        A(f"s_add_u32 s{sT}, s{sT}, s{sT2}")
        A(f"s_lshl_b32 s{sT2}, s{sHF}, 6")
        A(f"s_add_u32 s{sT2}, s{sT2}, s{sT}")
        A(f"s_mov_b32 s{SRD_O}, s{sOUT}")
        A(f"s_and_b32 s{SRD_O+1}, s{sOUT+1}, 0xffff")
        A(f"s_mov_b32 s{SRD_O+2}, {2048*1280}")
        A(f"s_mov_b32 s{SRD_O+3}, 0x20000")
        A("s_nop 3")
        for src, d in ((SUMA, 68), (SUMB, 70)):
            A(f"v_cvt_pk_bf16_f32 v{d}, v{src}, v{src+1}")
            A(f"v_cvt_pk_bf16_f32 v{d+1}, v{src+2}, v{src+3}")
        A(f"buffer_store_dwordx2 v[68:69], v3, {sr(SRD_O,4)}, s{sT2} offen{OSC}")
        A(f"buffer_store_dwordx2 v[70:71], v3, {sr(SRD_O,4)}, s{sT2} offen offset:128{OSC}")
        A(f"s_cmp_eq_u32 s{sHF}, 0")
        A(f"s_cbranch_scc0 {name}_fin")
        A(f"v_cvt_pk_bf16_f32 v72, v{SUMC}, v{SUMC+1}")
        A(f"v_cvt_pk_bf16_f32 v73, v{SUMC+2}, v{SUMC+3}")
        A(f"buffer_store_dwordx2 v[72:73], v3, {sr(SRD_O,4)}, s{sT} offen offset:256{OSC}")
    else:
        SRD_O = 44; sOUT = 48
        OUTS, ORS = 98304, 336
        A("v_and_b32 v3, 31, v2")
        A(f"v_mul_u32_u24 v3, {ORS}, v3")
        A("v_lshrrev_b32 v14, 5, v2")
        A("v_lshl_add_u32 v3, v14, 3, v3")
        A(f"s_lshl_b32 s{sT}, s{sG}, 4")
        A(f"s_lshl_b32 s{sT2}, s{sHF}, 6")
        A(f"s_add_u32 s{sT}, s{sT}, {OUTS}")
        A(f"s_add_u32 s{sT2}, s{sT2}, s{sT}")
        A(f"v_add_u32 v13, s{sT2}, v3")
        A(f"v_add_u32 v14, s{sT}, v3")
        A(f"s_mov_b32 s{SRD_O}, s{sOUT}")
        A(f"s_and_b32 s{SRD_O+1}, s{sOUT+1}, 0xffff")
        A(f"s_mov_b32 s{SRD_O+2}, {2048*1280}")
        A(f"s_mov_b32 s{SRD_O+3}, 0x20000")
        A("s_nop 3")
        for src, d in ((SUMA, 68), (SUMB, 70), (SUMC, 72)):
            A(f"v_cvt_pk_bf16_f32 v{d}, v{src}, v{src+1}")
            A(f"v_cvt_pk_bf16_f32 v{d+1}, v{src+2}, v{src+3}")
        A("ds_write_b64 v13, v[68:69]")
        A("ds_write_b64 v13, v[70:71] offset:128")
        A(f"s_cmp_eq_u32 s{sHF}, 0")
        A(f"s_cbranch_scc0 {name}_no4")
        A("ds_write_b64 v14, v[72:73] offset:256")
        A.label(f"{name}_no4")
        A(f"s_lshl_b32 s{sT}, s{sW}, 6")
        A(f"v_add_u32 v3, s{sT}, v2")
        def piece(vq, vl, vg):
            A(f"v_mul_u32_u24 v14, 3277, v{vq}")
            A("v_lshrrev_b32 v14, 16, v14")
            A("v_mul_u32_u24 v15, 20, v14")
            A(f"v_sub_u32 v15, v{vq}, v15")
            A(f"v_mul_u32_u24 v{vl}, {ORS}, v14")
            A(f"v_lshl_add_u32 v{vl}, v15, 4, v{vl}")
            A(f"v_add_u32 v{vl}, {OUTS}, v{vl}")
            A(f"v_mul_u32_u24 v{vg}, 1280, v14")
            A(f"v_lshl_add_u32 v{vg}, v15, 4, v{vg}")
        piece(3, 16, 17)
        A("v_add_u32 v3, 512, v3")
        piece(3, 18, 19)
        A(f"s_mul_i32 s{sT}, s{sTT}, {32*1280}")
        A(f"s_mul_i32 s{sT2}, s{sCBK}, 320")
        A(f"s_add_u32 s{sT}, s{sT}, s{sT2}")
        A("s_waitcnt lgkmcnt(0)")
        A("s_barrier")
        A("ds_read_b128 v[20:23], v16")
        A(f"s_cmp_lt_u32 s{sW}, 2")
        A(f"s_cbranch_scc0 {name}_one")
        A("ds_read_b128 v[24:27], v18")
        A("s_waitcnt lgkmcnt(0)")
        A(f"buffer_store_dwordx4 v[24:27], v19, {sr(SRD_O,4)}, s{sT} offen")
        A.label(f"{name}_one")
        A("s_waitcnt lgkmcnt(0)")
        A(f"buffer_store_dwordx4 v[20:23], v17, {sr(SRD_O,4)}, s{sT} offen")
    A.label(f"{name}_fin")
    if asmlib.PROFILE:
        A("s_waitcnt vmcnt(0)")
        if TP not in (5, 7): stamp(A, 3)
        stamp_flush(A, 1, SRD, sW, 4)
    A.label(f"{name}_end")
    A("s_endpgm")
    return 256
```
